```python
import torch

def _softmax(x, axis=-1):
    return torch.softmax(x, dim=axis)
def _gelu(x):
    return torch.nn.functional.gelu(x, approximate="tanh")
def _silu(x):
    return torch.nn.functional.silu(x)
def _sigmoid(x):
    return torch.sigmoid(x)
def _layernorm(x, axis=-1, eps=1e-5):
    m = x.mean(dim=axis, keepdim=True)
    v = x.var(dim=axis, keepdim=True, unbiased=False)
    return (x - m) / torch.sqrt(v + eps)
def _scatter_add(tgt, idx, src, axis=0):
    return tgt.clone().index_add_(axis, idx, src)
def _segment_sum(src, seg, n):
    out = torch.zeros((n,) + src.shape[1:], dtype=src.dtype)
    return out.index_add_(0, seg, src)
def _pad(x, pw):
    flat = tuple(v for pair in reversed(pw) for v in pair)
    return torch.nn.functional.pad(x, flat)

kernel_name = 'concat_heads__mha_block_cached__mha_block_cached__near_ridge'

def setup_inputs():

    _w = (lambda a: (lambda t: t.to(torch.bfloat16) if t.is_floating_point() else t)(torch.as_tensor(a)))
    def _A_setup():
        B, Sq, D = 16, 96, 512
        H, Sk, Dh = 32, 512, 128
        return {
            "x": _w((lambda *s: torch.randn(*s, dtype=torch.bfloat16) * 0.8)(B, Sq, D)),
            "k_cache": _w((lambda *s: torch.randn(*s, dtype=torch.bfloat16) * 0.8)(B, H, Sk, Dh)),
            "v_cache": _w((lambda *s: torch.randn(*s, dtype=torch.bfloat16) * 0.05)(B, H, Sk, Dh)),
            "wq": _w((lambda *s: torch.randn(*s, dtype=torch.bfloat16) * 0.8)(D, H * Dh) * (D ** -0.5)),
            "wo": _w((lambda *s: torch.randn(*s, dtype=torch.bfloat16) * 0.05)(H * Dh, D) * ((H * Dh) ** -0.5)),
        }
    _A_in = _A_setup()

    def _B_setup():
        B, Sq, D = 16, 96, 512
        H, Sk, Dh = 32, 512, 128
        return {
            "x": _w((lambda *s: torch.randn(*s, dtype=torch.bfloat16) * 0.8)(B, Sq, D)),
            "k_cache": _w((lambda *s: torch.randn(*s, dtype=torch.bfloat16) * 0.8)(B, H, Sk, Dh)),
            "v_cache": _w((lambda *s: torch.randn(*s, dtype=torch.bfloat16) * 0.05)(B, H, Sk, Dh)),
            "wq": _w((lambda *s: torch.randn(*s, dtype=torch.bfloat16) * 0.8)(D, H * Dh) * (D ** -0.5)),
            "wo": _w((lambda *s: torch.randn(*s, dtype=torch.bfloat16) * 0.05)(H * Dh, D) * ((H * Dh) ** -0.5)),
        }
    _B_in = _B_setup()

    return {
        "A_x": _A_in["x"],
        "A_k_cache": _A_in["k_cache"],
        "A_v_cache": _A_in["v_cache"],
        "A_wq": _A_in["wq"],
        "A_wo": _A_in["wo"],
        "B_x": _B_in["x"],
        "B_k_cache": _B_in["k_cache"],
        "B_v_cache": _B_in["v_cache"],
        "B_wq": _B_in["wq"],
        "B_wo": _B_in["wo"],
    }

def reference(A_x, A_k_cache, A_v_cache, A_wq, A_wo, B_x, B_k_cache, B_v_cache, B_wq, B_wo):
    def _A_ref(x, k_cache, v_cache, wq, wo):
        B, Sq, D = x.shape
        H, Dh = 32, 128
        q = (lambda x, *d: x.permute(*d))((x @ wq).reshape(B, Sq, H, Dh), 0, 2, 1, 3)
        scores = torch.einsum("bhqd,bhkd->bhqk", q, k_cache) * (Dh ** -0.5)
        p = _softmax(scores, axis=-1)
        o = torch.einsum("bhqk,bhkd->bhqd", p, v_cache)
        return (lambda x, *d: x.permute(*d))(o, 0, 2, 1, 3).reshape(B, Sq, H * Dh) @ wo

    def _B_ref(x, k_cache, v_cache, wq, wo):
        B, Sq, D = x.shape
        H, Dh = 32, 128
        q = (lambda x, *d: x.permute(*d))((x @ wq).reshape(B, Sq, H, Dh), 0, 2, 1, 3)
        scores = torch.einsum("bhqd,bhkd->bhqk", q, k_cache) * (Dh ** -0.5)
        p = _softmax(scores, axis=-1)
        o = torch.einsum("bhqk,bhkd->bhqd", p, v_cache)
        return (lambda x, *d: x.permute(*d))(o, 0, 2, 1, 3).reshape(B, Sq, H * Dh) @ wo

    a = _A_ref(A_x, A_k_cache, A_v_cache, A_wq, A_wo)
    b = _B_ref(B_x, B_k_cache, B_v_cache, B_wq, B_wo)
    return torch.concatenate([a, b], axis=-1)
```

```python
import math
import struct
import sys

NAME = "concat_heads__mha_block_cached__mha_block_cached__near_ridge"
WS_BYTES = 288358400
STAMP_OFF = WS_BYTES - (1 << 20)
NSTAMP = 10


def f32(x):
    return "0x%08x" % struct.unpack("<I", struct.pack("<f", x))[0]


class Opt:
    stamps = False
    kv_flag = " nt"
    w_flag = " nt"
    x_flag = ""
    st_flag = " sc1"
    ld2_flag = ""
    touch_wo = 0
    skew_kv = True
    skew_wq = True
    rot_wo = True
    lag = 6
    k2_block = 256

    def __init__(self, **kw):
        for k, v in kw.items():
            assert hasattr(Opt, k), k
            setattr(self, k, v)


sW, sP, sHF, sB, sBLK, sHG, sT0, sIDX = 4, 5, 6, 7, 8, 9, 10, 11
sD = 12
sWSD = 16
pX, pK, pV, pWQ, pWO, pWS = 20, 22, 24, 26, 28, 30
sOFF0, sOFF1, sMO0, sMO1, sRS, sWSL, sDL, sU, sKVB, sTH, sLO = 32, 33, 34, 35, 36, 37, 38, 39, 40, 41, 42
sA, sB2, sC, sE = 43, 44, 45, 46
sSTO, sSTO2, sROT, sWQB, sWOB, sKAP = 47, 48, 49, 50, 51, 52
sSTAMP = 60

vLANE = 1
vLK = 2
vEXW = 3
vO = 4
vL = 100
vNEGM = 112
vS = 124
vP = 148
vONES = 160
vKF = 164
vVF = 196
vVA = 228
vKA = 236
vOFF = 240
vT = 244
vEXR = 253
vSTA = 254
vDUM = 255

aQC = 192
aQN = 144

SLOT = 32768
EX = 98304
XB = 65536


def vr(a, n=1):
    return "v%d" % a if n == 1 else "v[%d:%d]" % (a, a + n - 1)


def ar(a, n=1):
    return "a%d" % a if n == 1 else "a[%d:%d]" % (a, a + n - 1)


def sr(a, n=1):
    return "s%d" % a if n == 1 else "s[%d:%d]" % (a, a + n - 1)


MF = "v_mfma_f32_16x16x32_bf16"


class Gen:
    def __init__(self, o):
        self.o = o
        self.L = []
        self.vm = []

    def A(self, s):
        self.L.append(s)

    def stamp(self, i):
        if self.o.stamps:
            self.A("s_memrealtime %s" % sr(sSTAMP + 2 * i, 2))

    def note(self, tag):
        self.vm.append(tag)

    def vm_need(self, tag):
        idx = max(i for i, t in enumerate(self.vm) if t == tag)
        n = len(self.vm) - 1 - idx
        self.vm = self.vm[idx + 1:]
        return n

    def srd(self, d, p, size):
        return ["s_mov_b32 %s, %s" % (sr(d), sr(p)), "s_and_b32 %s, %s, 0xffff" % (sr(d + 1), sr(p + 1)),
                "s_mov_b32 %s, %d" % (sr(d + 2), size), "s_mov_b32 %s, 0x20000" % sr(d + 3)]

    def dma_list(self, wslot, flag, tag):
        out = []
        for g in range(2):
            out.append("s_add_u32 m0, %s, %s" % (sr(sMO0 + g), wslot))
            for i in range(4):
                off = " offset:%d" % (1024 * i) if i else ""
                out.append(("buffer_load_dwordx4 %s, %s, %s offen%s%s lds" % (vr(vOFF + i), sr(sD, 4), sr(sOFF0 + g), off, flag), tag))
        return out

    def emit(self, x):
        if isinstance(x, tuple):
            self.A(x[0])
            self.note(x[1])
        else:
            self.A(x)

    def voff_std(self, rowmul_i, rowmul_r, extra=None):
        t0, t1 = vT, vT + 1
        out = ["v_lshrrev_b32 %s, 4, %s" % (vr(t0), vr(vLANE)),
               "v_and_b32 %s, 15, %s" % (vr(t1), vr(vLANE)),
               "v_lshlrev_b32 %s, 1, %s" % (vr(vOFF), vr(t0)),
               "v_xor_b32 %s, %s, %s" % (vr(t1), vr(t1), vr(vOFF)),
               "v_lshlrev_b32 %s, 4, %s" % (vr(t1), vr(t1)),
               "v_mul_u32_u24 %s, %d, %s" % (vr(t0), rowmul_r, vr(t0))]
        if extra is not None:
            out.append("v_add_u32 %s, %s, %s" % (vr(t0), sr(extra), vr(t0)))
        out += ["v_add_u32 %s, %s, %s" % (vr(vOFF), vr(t0), vr(t1)),
                "v_xor_b32 %s, 0x80, %s" % (vr(t1), vr(t1)),
                "v_add_u32 %s, %s, %s" % (vr(vOFF + 1), vr(t0), vr(t1)),
                "v_add_u32 %s, %d, %s" % (vr(vOFF + 2), 2 * rowmul_i, vr(vOFF)),
                "v_add_u32 %s, %d, %s" % (vr(vOFF + 3), 3 * rowmul_i, vr(vOFF + 1)),
                "v_add_u32 %s, %d, %s" % (vr(vOFF + 1), rowmul_i, vr(vOFF + 1))]
        return out

    def wq_params(self):
        return ["s_lshl_b32 %s, %s, 18" % (sr(sOFF0), sr(sKAP)),
                "s_add_u32 %s, %s, %s" % (sr(sOFF0), sr(sOFF0), sr(sWQB)),
                "s_add_u32 %s, %s, 32768" % (sr(sOFF1), sr(sOFF0)),
                "s_add_u32 %s, %s, 1" % (sr(sKAP), sr(sKAP)),
                "s_and_b32 %s, %s, 15" % (sr(sKAP), sr(sKAP))]

    def kv_setup(self):
        out = ["s_cmp_lt_u32 %s, 2" % sr(sW),
               "s_cselect_b32 %s, %s, %s" % (sr(sD), sr(pK), sr(pV)),
               "s_cselect_b32 %s, %s, %s" % (sr(sD + 1), sr(pK + 1), sr(pV + 1)),
               "s_and_b32 %s, %s, 0xffff" % (sr(sD + 1), sr(sD + 1))]
        return out + self.voff_std(0, 256)

    def kv_params(self):
        return ["s_cmp_lt_u32 %s, 32" % sr(sIDX),
                "s_cselect_b32 %s, %d, 0" % (sr(sD + 2), 64 << 20),
                "s_add_u32 %s, %s, %s" % (sr(sA), sr(sIDX), sr(sT0)),
                "s_and_b32 %s, %s, 15" % (sr(sA), sr(sA)),
                "s_lshl_b32 %s, %s, 13" % (sr(sA), sr(sA)),
                "s_and_b32 %s, %s, 16" % (sr(sB2), sr(sIDX)),
                "s_lshl_b32 %s, %s, 13" % (sr(sB2), sr(sB2)),
                "s_add_u32 %s, %s, %s" % (sr(sA), sr(sA), sr(sB2)),
                "s_add_u32 %s, %s, %s" % (sr(sOFF0), sr(sA), sr(sKVB)),
                "s_add_u32 %s, %s, 4096" % (sr(sOFF1), sr(sOFF0)),
                "s_add_u32 %s, %s, 1" % (sr(sIDX), sr(sIDX))]

    def wo_setup(self):
        t0, t1 = vT, vT + 1
        out = self.srd(sD, pWO, 4 << 20)[:3]
        out += ["s_lshl_b32 %s, %s, 12" % (sr(sMO0), sr(sW)),
                "s_add_u32 %s, %s, 16384" % (sr(sMO1), sr(sMO0)),
                "s_lshl_b32 %s, %s, 15" % (sr(sA), sr(sW)),
                "v_lshrrev_b32 %s, 3, %s" % (vr(t0), vr(vLANE)),
                "v_and_b32 %s, 7, %s" % (vr(t1), vr(vLANE)),
                "v_and_b32 %s, 6, %s" % (vr(vOFF), vr(t0)),
                "v_xor_b32 %s, %s, %s" % (vr(t1), vr(t1), vr(vOFF)),
                "v_lshlrev_b32 %s, 4, %s" % (vr(t1), vr(t1)),
                "v_lshlrev_b32 %s, 10, %s" % (vr(t0), vr(t0)),
                "v_add3_u32 %s, %s, %s, %s" % (vr(vOFF), vr(t0), vr(t1), sr(sA))]
        for i in range(1, 4):
            out.append("v_add_u32 %s, %d, %s" % (vr(vOFF + i), 7168 * i, vr(vOFF)))
        return out

    def wo_params(self, o):
        c, sg = o // 4, o % 4
        head = 2 * (sg % 2) + sg // 2
        return ["s_add_u32 %s, %s, %d" % (sr(sA), sr(sROT), c),
                "s_and_b32 %s, %s, 3" % (sr(sA), sr(sA)),
                "s_lshl_b32 %s, %s, 7" % (sr(sA), sr(sA)),
                "s_add_u32 %s, %s, %s" % (sr(sA), sr(sA), sr(sWOB)),
                "s_add_u32 %s, %s, %d" % (sr(sOFF0), sr(sA), head * 131072),
                "s_add_u32 %s, %s, 512" % (sr(sOFF1), sr(sOFF0))]

    def stream(self, n0, reads, mfmas, extras, tail_barrier):
        A, lag = self.A, self.o.lag
        nf = 256
        issued = []
        fifo = []

        def do_reads(f):
            r = reads(f // 16, f % 16, vVF + 4 * (f % 8))
            issued.append(f)
            return r

        def boundary(s):
            n = self.vm_need(n0 + s)
            A("s_waitcnt vmcnt(%d) lgkmcnt(0)" % n)
            A("s_barrier")

        for f in range(lag):
            for x in do_reads(f):
                A(x)
        fifo += extras(0)
        nxt = lag
        done_upto = -1
        for G in range(nf):
            pend = []
            want = G + lag
            if nxt < nf:
                if nxt % 16 == 0:
                    if want >= nxt + 2:
                        while fifo:
                            self.emit(fifo.pop(0))
                        boundary(nxt // 16)
                        done_upto = nxt - 1
                        fifo += extras(nxt // 16)
                        for f in (nxt, nxt + 1):
                            for x in do_reads(f):
                                A(x)
                        pend = do_reads(nxt + 2)
                        nxt += 3
                elif want >= nxt:
                    pend = do_reads(nxt)
                    nxt += 1
            if G > done_upto:
                younger = len([f for f in issued if f > G]) - (1 if pend else 0)
                A("s_waitcnt lgkmcnt(%d)" % (2 * younger))
            m = mfmas(G // 16, G % 16, vVF + 4 * (G % 8))
            gaps = [[], [], []]
            if pend:
                if len(pend) == 3:
                    gaps[0] += pend[:2]
                    gaps[1] += pend[2:]
                else:
                    gaps[0] += pend[:1]
                    gaps[1] += pend[1:]
            for k in range(3):
                A(m[k])
                for x in gaps[k]:
                    A(x)
                room = (1 if k == 2 else 2) - len(gaps[k])
                if room > 0 and fifo:
                    self.emit(fifo.pop(0))
        while fifo:
            self.emit(fifo.pop(0))

    def main_kernel(self):
        A, o = self.A, self.o
        lab = "main_kernel"
        A(".globl %s" % lab)
        A(".p2align 8")
        A(".type %s,@function" % lab)
        A("%s:" % lab)
        A("s_cmp_ge_u32 s2, 256")
        A("s_cbranch_scc1 L_end")
        self.stamp(0)
        A("s_and_b32 %s, s2, 7" % sr(sA))
        A("s_lshr_b32 %s, s2, 3" % sr(sB2))
        A("s_lshr_b32 %s, %s, 2" % (sr(sBLK), sr(sA)))
        A("s_mul_i32 %s, %s, 40" % (sr(sC), sr(sBLK)))
        A("s_add_u32 s4, s0, %s" % sr(sC))
        A("s_addc_u32 s5, s1, 0")
        A("s_load_dwordx8 %s, s[4:5], 0" % sr(pX, 8))
        A("s_load_dwordx2 %s, s[4:5], 32" % sr(pWO, 2))
        A("s_load_dwordx2 %s, s[0:1], 96" % sr(pWS, 2))
        A("s_and_b32 %s, %s, 15" % (sr(sB), sr(sB2)))
        A("s_lshr_b32 %s, %s, 4" % (sr(sE), sr(sB2)))
        A("s_and_b32 %s, %s, 3" % (sr(sHG), sr(sA)))
        A("s_lshl_b32 %s, %s, 1" % (sr(sHG), sr(sHG)))
        A("s_add_u32 %s, %s, %s" % (sr(sHG), sr(sHG), sr(sE)))
        A("v_lshrrev_b32 %s, 6, v0" % vr(vT))
        A("v_and_b32 %s, 63, v0" % vr(vLANE))
        A("s_waitcnt lgkmcnt(0)")
        A("v_readfirstlane_b32 %s, %s" % (sr(sW), vr(vT)))
        for x in self.srd(sD, pX, 16 * 98304):
            A(x)
        A("s_lshr_b32 %s, %s, 1" % (sr(sP), sr(sW)))
        A("s_and_b32 %s, %s, 1" % (sr(sHF), sr(sW)))
        A("s_lshl_b32 %s, %s, 8" % (sr(sA), sr(sW)))
        for x in self.voff_std(3072, 1024, extra=sA):
            A(x)
        A("s_mul_i32 %s, %s, 24576" % (sr(sMO0), sr(sW)))
        A("s_add_u32 %s, %s, 4096" % (sr(sMO1), sr(sMO0)))
        A("s_mul_i32 %s, %s, 98304" % (sr(sOFF0), sr(sB)))
        for rg in range(3):
            A("s_add_u32 %s, %s, 16384" % (sr(sOFF1), sr(sOFF0)))
            lst = self.dma_list("%d" % (XB + 8192 * rg), o.x_flag, "x")
            for x in lst:
                self.emit(x)
                if not isinstance(x, tuple):
                    A("s_nop 0")
            if rg < 2:
                A("s_add_u32 %s, %s, 32768" % (sr(sOFF0), sr(sOFF0)))
        for x in self.srd(sD, pWQ, 4 << 20)[:3]:
            A(x)
        for x in self.voff_std(65536 - 1024, 8192):
            A(x)
        A("s_lshl_b32 %s, %s, 13" % (sr(sMO0), sr(sW)))
        A("s_add_u32 %s, %s, 4096" % (sr(sMO1), sr(sMO0)))
        A("s_lshl_b32 %s, %s, 2" % (sr(sA), sr(sHG)))
        A("s_add_u32 %s, %s, %s" % (sr(sA), sr(sA), sr(sW)))
        A("s_lshl_b32 %s, %s, 8" % (sr(sWQB), sr(sA)))
        if o.skew_wq:
            A("s_mov_b32 %s, %s" % (sr(sKAP), sr(sB)))
        else:
            A("s_mov_b32 %s, 0" % sr(sKAP))
        A("s_mov_b32 %s, %s" % (sr(sE), sr(sKAP)))
        for n in range(2):
            for x in self.wq_params():
                A(x)
            for x in self.dma_list("%d" % (SLOT * n), o.w_flag, n):
                self.emit(x)
                if not isinstance(x, tuple):
                    A("s_nop 0")
        for x in self.srd(sWSD, pWS, WS_BYTES):
            A(x)
        A("s_lshl_b32 %s, %s, 22" % (sr(sKVB), sr(sB)))
        A("s_lshl_b32 %s, %s, 19" % (sr(sWOB), sr(sHG)))
        A("s_add_u32 %s, %s, %s" % (sr(sKVB), sr(sKVB), sr(sWOB)))
        A("s_lshl_b32 %s, %s, 18" % (sr(sA), sr(sHF)))
        A("s_add_u32 %s, %s, %s" % (sr(sKVB), sr(sKVB), sr(sA)))
        A("s_cmp_lt_u32 %s, 2" % sr(sW))
        A("s_cselect_b32 %s, 0, -1" % sr(sIDX))
        if o.skew_kv:
            A("s_and_b32 %s, %s, 1" % (sr(sA), sr(sHG)))
            A("s_lshl_b32 %s, %s, 3" % (sr(sA), sr(sA)))
            A("s_add_u32 %s, %s, %s" % (sr(sT0), sr(sB), sr(sA)))
        else:
            A("s_mov_b32 %s, 0" % sr(sT0))
        if o.rot_wo:
            A("s_and_b32 %s, %s, 3" % (sr(sROT), sr(sB)))
        else:
            A("s_mov_b32 %s, 0" % sr(sROT))
        t0, t1, t2 = vT, vT + 1, vT + 2
        A("v_and_b32 %s, 15, %s" % (vr(t0), vr(vLANE)))
        A("v_lshrrev_b32 %s, 4, %s" % (vr(t1), vr(vLANE)))
        A("v_and_b32 %s, 7, %s" % (vr(t2), vr(vLANE)))
        A("v_lshlrev_b32 %s, 1, %s" % (vr(t2), vr(t2)))
        A("v_xor_b32 %s, %s, %s" % (vr(t2), vr(t2), vr(t1)))
        A("v_lshlrev_b32 %s, 4, %s" % (vr(t2), vr(t2)))
        A("v_lshl_add_u32 %s, %s, 8, %s" % (vr(vLK), vr(t0), vr(t2)))
        A("v_lshrrev_b32 %s, 2, %s" % (vr(t0), vr(vLANE)))
        A("v_and_b32 %s, 7, %s" % (vr(t1), vr(t0)))
        A("v_lshlrev_b32 %s, 5, %s" % (vr(t1), vr(t1)))
        A("v_lshl_add_u32 %s, %s, 8, %s" % (vr(t0), vr(t0), vr(t1)))
        A("v_and_b32 %s, 3, %s" % (vr(t1), vr(vLANE)))
        A("v_lshl_add_u32 %s, %s, 3, %s" % (vr(t0), vr(t1), vr(t0)))
        A("s_lshl_b32 %s, %s, 14" % (sr(sA), sr(sP)))
        for dt in range(8):
            A("v_xor_b32 %s, %d, %s" % (vr(vVA + dt), dt << 5, vr(t0)))
            A("v_add_u32 %s, %s, %s" % (vr(vVA + dt), sr(sA), vr(vVA + dt)))
        A("s_mul_i32 %s, %s, 12288" % (sr(sA), sr(sW)))
        A("s_add_u32 %s, %s, %d" % (sr(sA), sr(sA), EX))
        A("v_lshlrev_b32 %s, 4, %s" % (vr(vSTA), vr(vLANE)))
        A("v_add_u32 %s, %s, %s" % (vr(vEXW), sr(sA), vr(vSTA)))
        A("s_mul_i32 %s, %s, 12288" % (sr(sC), sr(sHF)))
        A("s_add_u32 %s, %s, %d" % (sr(sA), sr(sC), EX))
        A("v_add_u32 %s, %s, %s" % (vr(vEXR), sr(sA), vr(vSTA)))
        A("s_add_u32 %s, %s, %d" % (sr(sC), sr(sC), XB))
        self.stamp(1)
        A("s_waitcnt vmcnt(%d) lgkmcnt(0)" % self.vm_need("x"))
        A("s_barrier")
        for s in range(16):
            t = vT + 4 + (s % 4)
            A("s_and_b32 %s, %s, 3" % (sr(sA), sr(sE)))
            A("s_lshl_b32 %s, %s, 6" % (sr(sA), sr(sA)))
            A("s_lshr_b32 %s, %s, 2" % (sr(sB2), sr(sE)))
            A("s_mul_i32 %s, %s, 24576" % (sr(sB2), sr(sB2)))
            A("s_add_u32 %s, %s, %s" % (sr(sB2), sr(sB2), sr(sC)))
            A("v_xor_b32 %s, %s, %s" % (vr(t), sr(sA), vr(vLK)))
            A("v_add_u32 %s, %s, %s" % (vr(t), sr(sB2), vr(t)))
            A("s_add_u32 %s, %s, 1" % (sr(sE), sr(sE)))
            A("s_and_b32 %s, %s, 15" % (sr(sE), sr(sE)))
            if s >= 3:
                A("s_waitcnt lgkmcnt(6)")
            for j in range(3):
                A("ds_read_b128 %s, %s offset:%d" % (ar(12 * s + 4 * j, 4), vr(t), 4096 * j))
        self.stamp(2)
        A("s_waitcnt vmcnt(%d) lgkmcnt(0)" % self.vm_need(0))
        A("s_barrier")

        def q_reads(s, f, buf):
            r, dt = f // 8, f % 8
            out = []
            if s > 0 and f < 8:
                d = SLOT * (s % 3) - SLOT * ((s - 1) % 3)
                out.append("v_add_u32 %s, %d, %s" % (vr(vVA + dt), d, vr(vVA + dt)))
            for e in range(2):
                out.append("ds_read_b64_tr_b16 %s, %s offset:%d" % (vr(buf + 2 * e, 2), vr(vVA + dt), 8192 * r + 4096 * e))
            return out

        def q_mfmas(s, f, buf):
            out = []
            for j in range(3):
                acc = vr(vO + 12 * f + 4 * j, 4)
                out.append("%s %s, %s, %s, %s" % (MF, acc, vr(buf, 4), ar(12 * s + 4 * j, 4), "0" if s == 0 else acc))
            return out

        def q_extras(s):
            n = s + 2
            if n < 16:
                return self.wq_params() + self.dma_list("%d" % (SLOT * (n % 3)), o.w_flag, n)
            pre = self.kv_setup() if n == 16 else []
            return pre + self.kv_params() + self.dma_list("%d" % (SLOT * (n % 3)), o.kv_flag, n)

        self.stream(0, q_reads, q_mfmas, q_extras, False)
        self.stamp(3)
        A("s_waitcnt lgkmcnt(0)")
        A("s_barrier")
        ext = self.kv_params() + self.dma_list("%d" % (SLOT * (18 % 3)), o.kv_flag, 18)
        cs = math.log2(math.e) / math.sqrt(128.0)
        tq = vT + 2
        A("v_mov_b32 %s, %s" % (vr(vT), f32(cs)))
        A("v_mov_b32 %s, %s" % (vr(vT + 1), f32(cs)))
        A("v_lshrrev_b32 %s, 5, %s" % (vr(tq), vr(vLANE)))
        A("v_lshlrev_b32 %s, 8, %s" % (vr(tq), vr(tq)))
        A("v_and_b32 %s, 15, %s" % (vr(tq + 1), vr(vLANE)))
        A("v_lshl_add_u32 %s, %s, 4, %s" % (vr(tq), vr(tq + 1), vr(tq)))
        A("v_bfe_u32 %s, %s, 4, 1" % (vr(tq + 1), vr(vLANE)))
        A("v_lshl_add_u32 %s, %s, 3, %s" % (vr(tq), vr(tq + 1), vr(tq)))
        A("s_mul_i32 %s, %s, 12288" % (sr(sC), sr(sW)))
        A("s_add_u32 %s, %s, %d" % (sr(sC), sr(sC), EX))
        A("v_add_u32 %s, %s, %s" % (vr(tq), sr(sC), vr(tq)))
        for r in range(2):
            for dt in range(8):
                for j in range(3):
                    a = vO + 96 * r + 12 * dt + 4 * j
                    A("v_pk_mul_f32 %s, %s, %s" % (vr(a, 2), vr(a, 2), vr(vT, 2)))
                    A("v_pk_mul_f32 %s, %s, %s" % (vr(a + 2, 2), vr(a + 2, 2), vr(vT, 2)))
                    A("v_cvt_pk_bf16_f32 %s, %s, %s" % (vr(a), vr(a), vr(a + 1)))
                    A("v_cvt_pk_bf16_f32 %s, %s, %s" % (vr(a + 1), vr(a + 2), vr(a + 3)))
                    if r == 1 and dt == 0 and j == 0:
                        A("s_waitcnt lgkmcnt(0)")
                    A("ds_write_b64 %s, %s offset:%d" % (vr(tq), vr(a, 2), (3 * (dt // 2) + j) * 1024 + 512 * (dt % 2)))
                    if ext:
                        self.emit(ext.pop(0))
                if dt % 4 == 3:
                    A("s_waitcnt lgkmcnt(0)")
            dst = aQC if r == 0 else aQN
            for f in range(12):
                A("ds_read_b128 %s, %s offset:%d" % (ar(dst + 4 * f, 4), vr(vEXW), 1024 * f))
        assert not ext
        rs = SLOT * (16 % 3)
        A("s_lshl_b32 %s, %s, 13" % (sr(sA), sr(sP)))
        A("s_sub_u32 %s, %d, %s" % (sr(sB2), 16384 + rs - SLOT * (15 % 3), sr(sA)))
        A("s_add_u32 %s, %s, %d" % (sr(sA), sr(sA), rs))
        for dt in range(8):
            A("v_add_u32 %s, %s, %s" % (vr(vVA + dt), sr(sB2), vr(vVA + dt)))
        for ks in range(4):
            A("v_xor_b32 %s, %d, %s" % (vr(vKA + ks), ks << 6, vr(vLK)))
            A("v_add_u32 %s, %s, %s" % (vr(vKA + ks), sr(sA), vr(vKA + ks)))
        A("s_mov_b32 %s, %d" % (sr(sRS), rs))
        A("s_mov_b32 %s, -1" % sr(sU))
        A("s_mov_b32 %s, 0xff800000" % sr(sTH))
        A("s_mov_b32 %s, 0xff800000" % sr(sLO))
        A("s_waitcnt lgkmcnt(0)")
        for i in range(vO, vNEGM + 12):
            A("v_mov_b32 %s, 0" % vr(i))
        for i in range(4):
            A("v_mov_b32 %s, 0x3f803f80" % vr(vONES + i))
        self.stamp(4)
        A("s_waitcnt vmcnt(%d) lgkmcnt(0)" % self.vm_need(16))
        A("s_barrier")
        for kt in range(2):
            for ks in range(4):
                A("ds_read_b128 %s, %s offset:%d" % (vr(vKF + 16 * kt + 4 * ks, 4), vr(vKA + ks), 4096 * kt))
        A("s_branch L_qk")

        A(".p2align 6")
        A("L_att:")
        A("s_waitcnt vmcnt(8) lgkmcnt(0)")
        A("s_barrier")
        A("s_mov_b32 %s, %s" % (sr(sWSL), sr(sRS)))
        A("s_add_u32 %s, %s, %d" % (sr(sRS), sr(sRS), SLOT))
        A("s_cmp_eq_u32 %s, %d" % (sr(sRS), 3 * SLOT))
        A("s_cselect_b32 %s, 0, %s" % (sr(sRS), sr(sRS)))
        A("s_sub_u32 %s, %s, %s" % (sr(sDL), sr(sRS), sr(sWSL)))
        A("s_cmp_ge_u32 %s, 30" % sr(sU))
        A("s_cbranch_scc1 L_wopar")
        for x in self.kv_params():
            A(x)
        A("L_pardone:")
        dm = self.dma_list(sr(sWSL), o.kv_flag, None)
        mx = []
        for j in range(3):
            s0, s1, m = vS + 4 * j, vS + 12 + 4 * j, vT + j
            mx.append("v_max3_f32 %s, %s, %s, %s" % (vr(m), vr(s0), vr(s0 + 1), vr(s0 + 2)))
        for j in range(3):
            s0, s1, m = vS + 4 * j, vS + 12 + 4 * j, vT + j
            mx.append("v_max3_f32 %s, %s, %s, %s" % (vr(m), vr(m), vr(s0 + 3), vr(s1)))
        for j in range(3):
            s0, s1, m = vS + 4 * j, vS + 12 + 4 * j, vT + j
            mx.append("v_max3_f32 %s, %s, %s, %s" % (vr(m), vr(m), vr(s1 + 1), vr(s1 + 2)))
        for j in range(3):
            s0, s1, m = vS + 4 * j, vS + 12 + 4 * j, vT + j
            mx.append("v_max_f32 %s, %s, %s" % (vr(m), vr(m), vr(s1 + 3)))
        A(dm.pop(0))

        def v_reads(dt):
            A("v_add_u32 %s, %s, %s" % (vr(vVA + dt), sr(sDL), vr(vVA + dt)))
            for e in range(2):
                A("ds_read_b64_tr_b16 %s, %s offset:%d" % (vr(vVF + 4 * dt + 2 * e, 2), vr(vVA + dt), 4096 * e))

        for dt in range(4):
            v_reads(dt)
            for _ in range(3):
                A(mx.pop(0))
            if dt == 1:
                A(dm.pop(0)[0])
        A("v_max3_f32 %s, %s, %s, %s" % (vr(vT + 3), vr(vT), vr(vT + 1), vr(vT + 2)))
        A("v_cmp_lt_f32 vcc, %s, %s" % (sr(sTH), vr(vT + 3)))
        A("s_cbranch_vccnz L_rare")
        A("L_back:")
        for j in range(3):
            for kt in range(2):
                a = vS + 12 * kt + 4 * j
                for i in range(4):
                    A("v_exp_f32 %s, %s" % (vr(a + i), vr(a + i)))
                if kt == 0:
                    if j > 0:
                        b = vS + 12 + 4 * (j - 1)
                        A("v_cvt_pk_bf16_f32 %s, %s, %s" % (vr(vP + 4 * (j - 1) + 2), vr(b), vr(b + 1)))
                        A("v_cvt_pk_bf16_f32 %s, %s, %s" % (vr(vP + 4 * (j - 1) + 3), vr(b + 2), vr(b + 3)))
                    A(dm.pop(0)[0])
                else:
                    b = vS + 4 * j
                    A("v_cvt_pk_bf16_f32 %s, %s, %s" % (vr(vP + 4 * j), vr(b), vr(b + 1)))
                    A("v_cvt_pk_bf16_f32 %s, %s, %s" % (vr(vP + 4 * j + 1), vr(b + 2), vr(b + 3)))
                if 2 * j + kt < 4:
                    v_reads(4 + 2 * j + kt)
        b = vS + 12 + 8
        A(dm.pop(0))
        A("v_cvt_pk_bf16_f32 %s, %s, %s" % (vr(vP + 10), vr(b), vr(b + 1)))
        A("v_cvt_pk_bf16_f32 %s, %s, %s" % (vr(vP + 11), vr(b + 2), vr(b + 3)))
        A("s_waitcnt lgkmcnt(0)")
        kx = []
        for ks in range(4):
            kx.append("v_add_u32 %s, %s, %s" % (vr(vKA + ks), sr(sDL), vr(vKA + ks)))
        for kt in range(2):
            for ks in range(4):
                kx.append("ds_read_b128 %s, %s offset:%d" % (vr(vKF + 16 * kt + 4 * ks, 4), vr(vKA + ks), 4096 * kt))
        for j in range(3):
            A("%s %s, %s, %s, %s" % (MF, vr(vL + 4 * j, 4), vr(vONES, 4), vr(vP + 4 * j, 4), vr(vL + 4 * j, 4)))
            A(kx.pop(0))
        for dt in range(8):
            for j in range(3):
                acc = vr(vO + 12 * dt + 4 * j, 4)
                A("%s %s, %s, %s, %s" % (MF, acc, vr(vVF + 4 * dt, 4), vr(vP + 4 * j, 4), acc))
                if kx:
                    A(kx.pop(0))
                elif dm and (j == 0):
                    A(dm.pop(0)[0])
        assert not dm and not kx
        A("s_and_b32 %s, %s, 15" % (sr(sA), sr(sU)))
        A("s_cmp_eq_u32 %s, 15" % sr(sA))
        A("s_cbranch_scc1 L_fin")
        A("L_qk:")
        A("s_waitcnt lgkmcnt(0)")
        for kt in range(2):
            for ks in range(4):
                for j in range(3):
                    acc = vr(vS + 12 * kt + 4 * j, 4)
                    c = vr(vNEGM + 4 * j, 4) if ks == 0 else acc
                    A("%s %s, %s, %s, %s" % (MF, acc, vr(vKF + 16 * kt + 4 * ks, 4), ar(aQC + 12 * ks + 4 * j, 4), c))
        A("s_add_u32 %s, %s, 1" % (sr(sU), sr(sU)))
        A("s_branch L_att")

        A("L_rare:")
        for j in range(3):
            A("v_mov_b32 %s, %s" % (vr(vT + 3 + j), vr(vT + j)))
        A("s_nop 1")
        for j in range(3):
            A("v_permlane32_swap_b32 %s, %s" % (vr(vT + j), vr(vT + 3 + j)))
        for j in range(3):
            A("v_max_f32 %s, %s, %s" % (vr(vT + j), vr(vT + j), vr(vT + 3 + j)))
        for j in range(3):
            A("v_mov_b32 %s, %s" % (vr(vT + 3 + j), vr(vT + j)))
        A("s_nop 1")
        for j in range(3):
            A("v_permlane16_swap_b32 %s, %s" % (vr(vT + j), vr(vT + 3 + j)))
        for j in range(3):
            A("v_max3_f32 %s, %s, %s, %s" % (vr(vT + j), vr(vT + j), vr(vT + 3 + j), sr(sLO)))
        for j in range(3):
            A("v_max_f32 %s, 0, %s" % (vr(vT + 3 + j), vr(vT + j)))
        for j in range(3):
            A("v_exp_f32 %s, -%s" % (vr(vT + 3 + j), vr(vT + 3 + j)))
        for j in range(3):
            for base in (vS + 4 * j, vS + 12 + 4 * j, vNEGM + 4 * j):
                for i in range(4):
                    A("v_sub_f32 %s, %s, %s" % (vr(base + i), vr(base + i), vr(vT + j)))
        for j in range(3):
            for base in [vO + 12 * dt + 4 * j for dt in range(8)] + [vL + 4 * j]:
                for i in range(4):
                    A("v_mul_f32 %s, %s, %s" % (vr(base + i), vr(base + i), vr(vT + 3 + j)))
        A("s_mov_b32 %s, %s" % (sr(sTH), f32(8.0)))
        A("s_mov_b32 %s, 0" % sr(sLO))
        A("s_branch L_back")

        A("L_wopar:")
        A("s_cmp_eq_u32 %s, 31" % sr(sU))
        A("s_cbranch_scc1 L_wopar1")
        for x in self.wo_setup() + self.wo_params(0):
            A(x)
        A("s_branch L_pardone")
        A("L_wopar1:")
        for x in self.wo_params(1):
            A(x)
        A("s_branch L_pardone")

        def fin(r):
            for j in range(3):
                A("v_rcp_f32 %s, %s" % (vr(vT + 2 * j), vr(vL + 4 * j)))
                A("v_rcp_f32 %s, %s" % (vr(vT + 2 * j + 1), vr(vL + 4 * j)))
            A("s_nop 1")
            for ks in range(4):
                for j in range(3):
                    a, b = vO + 24 * ks + 4 * j, vO + 24 * ks + 12 + 4 * j
                    for x in (a, a + 2, b, b + 2):
                        A("v_pk_mul_f32 %s, %s, %s" % (vr(x, 2), vr(x, 2), vr(vT + 2 * j, 2)))
                    A("v_cvt_pk_bf16_f32 %s, %s, %s" % (vr(a), vr(a), vr(a + 1)))
                    A("v_cvt_pk_bf16_f32 %s, %s, %s" % (vr(a + 1), vr(a + 2), vr(a + 3)))
                    A("v_cvt_pk_bf16_f32 %s, %s, %s" % (vr(a + 2), vr(b), vr(b + 1)))
                    A("v_cvt_pk_bf16_f32 %s, %s, %s" % (vr(a + 3), vr(b + 2), vr(b + 3)))
                    A("ds_write_b128 %s, %s offset:%d" % (vr(vEXW), vr(a, 4), 1024 * (3 * ks + j)))
                if ks == 1:
                    A("s_waitcnt lgkmcnt(3)")
            if r == 0:
                self.stamp(5)
                A("s_waitcnt lgkmcnt(0)")
            else:
                self.stamp(6)
                A("s_waitcnt vmcnt(8) lgkmcnt(0)")
            A("s_barrier")
            fill = []
            if r == 0:
                fill += ["v_accvgpr_mov_b32 %s, %s" % (ar(aQC + i), ar(aQN + i)) for i in range(48)]
                fill += ["v_mov_b32 %s, 0" % vr(i) for i in range(vO, vNEGM + 12)]
            for pp in range(2):
                for f in range(12):
                    A("ds_read_b128 %s, %s offset:%d" % (ar(48 * (2 * r + pp) + 4 * f, 4), vr(vEXR), 24576 * pp + 1024 * f))
                    for _ in range(7):
                        if fill:
                            A(fill.pop(0))
                A("s_waitcnt lgkmcnt(%d)" % (2 if pp == 0 else 0))
            assert not fill

        A("L_fin:")
        A("s_cmp_eq_u32 %s, 31" % sr(sU))
        A("s_cbranch_scc1 L_fin1")
        fin(0)
        A("s_mov_b32 %s, 0xff800000" % sr(sTH))
        A("s_mov_b32 %s, 0xff800000" % sr(sLO))
        A("s_branch L_qk")
        A("L_fin1:")
        t0, t1 = vT + 6, vT + 7
        A("v_lshrrev_b32 %s, 2, %s" % (vr(t0), vr(vLANE)))
        A("v_bfe_u32 %s, %s, 3, 2" % (vr(t1), vr(vLANE)))
        A("v_lshlrev_b32 %s, 5, %s" % (vr(t1), vr(t1)))
        A("v_lshl_add_u32 %s, %s, 7, %s" % (vr(t0), vr(t0), vr(t1)))
        A("v_and_b32 %s, 3, %s" % (vr(t1), vr(vLANE)))
        A("v_lshl_add_u32 %s, %s, 3, %s" % (vr(t0), vr(t1), vr(t0)))
        A("s_lshl_b32 %s, %s, 14" % (sr(sA), sr(sP)))
        A("s_add_u32 %s, %s, %d" % (sr(sA), sr(sA), SLOT * (49 % 3)))
        for nt in range(4):
            A("v_xor_b32 %s, %d, %s" % (vr(vKA + nt), nt << 5, vr(t0)))
            A("v_add_u32 %s, %s, %s" % (vr(vKA + nt), sr(sA), vr(vKA + nt)))
        A("s_lshl_b32 %s, %s, 4" % (sr(sA), sr(sBLK)))
        A("s_add_u32 %s, %s, %s" % (sr(sA), sr(sA), sr(sB)))
        A("s_lshl_b32 %s, %s, 1" % (sr(sA), sr(sA)))
        A("s_add_u32 %s, %s, %s" % (sr(sA), sr(sA), sr(sP)))
        A("s_mul_i32 %s, %s, %d" % (sr(sA), sr(sA), 4 * 98304))
        A("s_lshl_b32 %s, %s, 1" % (sr(sB2), sr(sHG)))
        A("s_add_u32 %s, %s, %s" % (sr(sB2), sr(sB2), sr(sHF)))
        A("s_mul_i32 %s, %s, 6144" % (sr(sB2), sr(sB2)))
        A("s_add_u32 %s, %s, %s" % (sr(sC), sr(sA), sr(sB2)))
        fin(1)
        self.vm = [50] * 8

        def o_reads(s, f, buf):
            ks, nt = f // 4, f % 4
            out = []
            if s > 0 and f < 4:
                d = SLOT * ((49 + s) % 3) - SLOT * ((48 + s) % 3)
                out.append("v_add_u32 %s, %d, %s" % (vr(vKA + nt), d, vr(vKA + nt)))
            for e in range(2):
                out.append("ds_read_b64_tr_b16 %s, %s offset:%d" % (vr(buf + 2 * e, 2), vr(vKA + nt), 4096 * ks + 2048 * e))
            return out

        def o_mfmas(s, f, buf):
            ks, nt = f // 4, f % 4
            c, sg = s // 4, s % 4
            out = []
            for j in range(3):
                acc = vr(vO + 48 * (c % 2) + 12 * nt + 4 * j, 4)
                out.append("%s %s, %s, %s, %s" % (MF, acc, vr(buf, 4), ar(48 * sg + 12 * ks + 4 * j, 4),
                                                  "0" if (sg == 0 and ks == 0) else acc))
            return out

        def stores(c):
            out = ["s_add_u32 %s, %s, %d" % (sr(sE), sr(sROT), c),
                   "s_and_b32 %s, %s, 3" % (sr(sE), sr(sE)),
                   "s_mul_i32 %s, %s, 98304" % (sr(sE), sr(sE)),
                   "s_add_u32 %s, %s, %s" % (sr(sSTO), sr(sE), sr(sC)),
                   "s_add_u32 %s, %s, 4096" % (sr(sSTO2), sr(sSTO))]
            for jq in range(3):
                for u in range(2):
                    a = vO + 48 * (c % 2) + 24 * u + 4 * jq
                    b = a + 12
                    out.append("v_cvt_pk_bf16_f32 %s, %s, %s" % (vr(a), vr(a), vr(a + 1)))
                    out.append("v_cvt_pk_bf16_f32 %s, %s, %s" % (vr(a + 1), vr(a + 2), vr(a + 3)))
                    out.append("v_cvt_pk_bf16_f32 %s, %s, %s" % (vr(a + 2), vr(b), vr(b + 1)))
                    out.append("v_cvt_pk_bf16_f32 %s, %s, %s" % (vr(a + 3), vr(b + 2), vr(b + 3)))
                    i = 2 * jq + u
                    off = " offset:%d" % (1024 * (i % 4)) if i % 4 else ""
                    out.append(("buffer_store_dwordx4 %s, %s, %s, %s offen%s%s" % (
                        vr(a, 4), vr(vSTA), sr(sWSD, 4), sr(sSTO if i < 4 else sSTO2), off, o.st_flag), "st"))
            return out

        def o_extras(s):
            out = []
            if s + 2 < 16:
                out += self.wo_params(s + 2) + self.dma_list("%d" % (SLOT * ((51 + s) % 3)), o.w_flag, 51 + s)
            if s % 4 == 1 and s > 4:
                out = stores(s // 4 - 1)[:17] + out
            if s % 4 == 2 and s > 4:
                out = stores(s // 4 - 1)[17:] + out
            return out

        self.stream(49, o_reads, o_mfmas, o_extras, False)
        A("s_nop 7")
        for x in stores(3):
            self.emit(x)
        if o.stamps:
            A("s_waitcnt vmcnt(0)")
            self.stamp(7)
            self.write_stamps(0, 8, sW)
        A("L_end:")
        A("s_endpgm")

    def write_stamps(self, lo, hi, swave):
        A = self.A
        A("s_waitcnt lgkmcnt(0)")
        A("s_cmp_lg_u32 %s, 0" % sr(swave))
        A("s_cbranch_scc1 L_nost%d" % lo)
        A("s_mov_b64 exec, 1")
        A("s_mul_i32 s58, s2, %d" % (NSTAMP * 8))
        A("s_add_u32 s58, s58, %d" % STAMP_OFF)
        A("v_mov_b32 v6, 0")
        for i in range(lo, hi):
            A("v_mov_b32 v8, s%d" % (sSTAMP + 2 * i))
            A("v_mov_b32 v9, s%d" % (sSTAMP + 2 * i + 1))
            A("buffer_store_dwordx2 v[8:9], v6, %s, s58 offen offset:%d" % (sr(sWSD, 4), 8 * i))
            A("s_nop 1")
        A("L_nost%d:" % lo)

    def reduce_kernel(self):
        A, o = self.A, self.o
        lab = "reduce_kernel"
        wpb = o.k2_block // 64
        nwg = 3072 // wpb
        A(".globl %s" % lab)
        A(".p2align 8")
        A(".type %s,@function" % lab)
        A("%s:" % lab)
        A("s_cmp_ge_u32 s2, %d" % nwg)
        A("s_cbranch_scc1 L_end2")
        self.stamp(8)
        A("s_load_dwordx2 s[20:21], s[0:1], 80")
        A("s_load_dwordx2 s[22:23], s[0:1], 96")
        A("v_lshrrev_b32 v2, 6, v0")
        A("v_and_b32 v1, 63, v0")
        A("s_mul_i32 s5, s2, %d" % wpb)
        A("v_readfirstlane_b32 s4, v2")
        A("v_lshlrev_b32 v3, 4, v1")
        A("s_add_u32 s5, s5, s4")
        A("s_mul_hi_u32 s6, s5, 0x15555556")
        A("s_mul_i32 s7, s6, 12")
        A("s_sub_u32 s7, s5, s7")
        A("s_mul_i32 s8, s6, 98304")
        A("s_lshl_b32 s9, s7, 10")
        A("s_add_u32 s8, s8, s9")
        A("s_waitcnt lgkmcnt(0)")
        for x in self.srd(sWSD, 22, WS_BYTES):
            A(x)
        for h in range(8):
            A("buffer_load_dwordx4 %s, v3, %s, s8 offen%s" % (vr(8 + 4 * h, 4), sr(sWSD, 4), o.ld2_flag))
            if h < 7:
                A("s_add_u32 s8, s8, 12288")
        for x in self.srd(12, 20, 16 * 96 * 1024 * 2):
            A(x)
        A("s_and_b32 s9, s6, 7")
        A("s_bfe_u32 s10, s6, 0x40003")
        A("s_lshr_b32 s11, s6, 7")
        A("s_mul_i32 s10, s10, 96")
        A("s_lshr_b32 s24, s7, 1")
        A("s_lshl_b32 s24, s24, 4")
        A("s_add_u32 s10, s10, s24")
        A("s_lshl_b32 s10, s10, 11")
        A("s_lshl_b32 s11, s11, 10")
        A("s_add_u32 s10, s10, s11")
        A("s_lshl_b32 s9, s9, 7")
        A("s_add_u32 s10, s10, s9")
        A("s_and_b32 s24, s7, 1")
        A("s_lshl_b32 s24, s24, 6")
        A("s_add_u32 s10, s10, s24")
        A("v_and_b32 v4, 15, v1")
        A("v_lshlrev_b32 v4, 11, v4")
        A("v_lshrrev_b32 v5, 4, v1")
        A("v_lshl_add_u32 v4, v5, 4, v4")
        A("s_mov_b32 s25, 0xffff0000")
        for h in range(8):
            A("s_waitcnt vmcnt(%d)" % (7 - h))
            for i in range(4):
                src = vr(8 + 4 * h + i)
                if h == 0:
                    A("v_lshlrev_b32 %s, 16, %s" % (vr(40 + 2 * i), src))
                    A("v_and_b32 %s, s25, %s" % (vr(41 + 2 * i), src))
                else:
                    A("v_lshlrev_b32 v6, 16, %s" % src)
                    A("v_and_b32 v7, s25, %s" % src)
                    A("v_add_f32 %s, %s, v6" % (vr(40 + 2 * i), vr(40 + 2 * i)))
                    A("v_add_f32 %s, %s, v7" % (vr(41 + 2 * i), vr(41 + 2 * i)))
        for i in range(4):
            A("v_cvt_pk_bf16_f32 %s, %s, %s" % (vr(48 + i), vr(40 + 2 * i), vr(41 + 2 * i)))
        A("s_nop 1")
        A("v_permlane32_swap_b32 v48, v50")
        A("v_permlane32_swap_b32 v49, v51")
        A("s_nop 1")
        A("v_permlane16_swap_b32 v48, v50")
        A("v_permlane16_swap_b32 v49, v51")
        A("buffer_store_dwordx4 v[48:51], v4, s[12:15], s10 offen")
        if o.stamps:
            A("s_waitcnt vmcnt(0)")
            self.stamp(9)
            A("s_cmp_ge_u32 s2, 256")
            A("s_cbranch_scc1 L_end2")
            self.write_stamps(8, 10, 4)
        A("L_end2:")
        A("s_endpgm")

    def desc(self, lab, nv, acc, ns):
        A = self.A
        A(".p2align 6")
        A(".amdhsa_kernel %s" % lab)
        A("  .amdhsa_next_free_vgpr %d" % nv)
        A("  .amdhsa_next_free_sgpr %d" % ns)
        A("  .amdhsa_accum_offset %d" % acc)
        A("  .amdhsa_group_segment_fixed_size 0")
        A("  .amdhsa_kernarg_size 104")
        A("  .amdhsa_user_sgpr_count 2")
        A("  .amdhsa_user_sgpr_kernarg_segment_ptr 1")
        A("  .amdhsa_system_sgpr_workgroup_id_x 1")
        A(".end_amdhsa_kernel")

    def build(self):
        A, o = self.A, self.o
        A("; @launch kernel=main_kernel grid=(256,1,1) block=(256,1,1) lds=163840")
        A("; @launch kernel=reduce_kernel grid=(%d,1,1) block=(%d,1,1) lds=0" % (3072 * 64 // o.k2_block, o.k2_block))
        A('.amdgcn_target "amdgcn-amd-amdhsa--gfx950"')
        A(".text")
        self.main_kernel()
        self.reduce_kernel()
        A('.section .rodata,"a"')
        self.desc("main_kernel", 512, 256, 96)
        self.desc("reduce_kernel", 64, 64, 96)
        return "\n".join(self.L) + "\n"


def parse_opts(args):
    kw = {}
    for a in args:
        k, v = a.split("=", 1)
        cur = getattr(Opt, k)
        if isinstance(cur, bool):
            kw[k] = v not in ("0", "False")
        elif isinstance(cur, int):
            kw[k] = int(v)
        else:
            kw[k] = (" " + v.replace("+", " ")) if v else ""
    return kw


if __name__ == "__main__":
    out = sys.argv[1]
    open(out, "w").write(Gen(Opt(**parse_opts(sys.argv[2:]))).build())
```

```python
import math
import struct
import sys

WS_BYTES = 288358400
STAMP_OFF = WS_BYTES - (1 << 20)
NSTAMP = 10


def f32(x):
    return "0x%08x" % struct.unpack("<I", struct.pack("<f", x))[0]


class Opt:
    stamps = False
    cyc = False
    kv_flag = " nt"
    w_flag = ""
    o1_flag = ""
    x_flag = ""
    st_flag = " sc1"
    ld2_flag = ""
    touch_flag = ""
    touch = True
    skew_kv = True
    skew_wq = True
    k2_block = 256
    nomf = 0
    prof = 0

    def __init__(self, **kw):
        for k, v in kw.items():
            assert hasattr(Opt, k), k
            setattr(self, k, v)


sW, sP, sHF, sB, sBLK, sHG, sT0, sIDX = 4, 5, 6, 7, 8, 9, 10, 11
dK, dV, dW, dX, dS = 12, 16, 32, 36, 40
pX, pK, pV, pWQ, pWO, pWS = 20, 22, 24, 26, 28, 30
sKV, sWOFF, sXO, sM0, sIT, sKVB, sTH, sLO = 44, 45, 46, 47, 48, 49, 50, 51
sA, sB2, sC, sE = 52, 53, 54, 55
sWQB, sWOB, sWT, sXT, sXB, sST, sST2, sSTB = 56, 57, 58, 59, 60, 61, 62, 63
sO1 = 64
sRET = 68
sXM = 70
sSTAMP = 72

vLANE, vLK, vB = 1, 2, 3
vO, vL, vNEGM, vS, vP = 4, 100, 112, 124, 148
vF = (160, 192)
vVA, vKA, vOKV, vOW, vT = 224, 232, 236, 240, 244
vEXW, vSTA, vDUM = 252, 253, 254
aQC, aBF, aONES = 192, 240, 252

SLOT = 16384
XB = 65536
EX = 65536
EXTRA = 114688
MF = "v_mfma_f32_16x16x32_bf16"


def vr(a, n=1):
    return "v%d" % a if n == 1 else "v[%d:%d]" % (a, a + n - 1)


def ar(a, n=1):
    return "a%d" % a if n == 1 else "a[%d:%d]" % (a, a + n - 1)


def sr(a, n=1):
    return "s%d" % a if n == 1 else "s[%d:%d]" % (a, a + n - 1)


def cost(x):
    t = x[0] if isinstance(x, tuple) else x
    if t.endswith(":"):
        return 0
    if t.startswith(("v_exp", "v_rcp", "v_pk_")):
        return 8
    if t.startswith("buffer_"):
        return 8
    return 4


def spread(base, ins):
    out, k = [], 0
    for i, x in enumerate(base):
        out.append(x)
        while k < len(ins) and (k + 1) * len(base) <= (i + 1) * (len(ins) + 1):
            out.append(ins[k])
            k += 1
    return out + ins[k:]


class Gen:
    def __init__(self, o):
        self.o = o
        self.L = []
        self.vm = []
        self.tail = []
        self.uid = 0

    def A(self, s):
        self.L.append(s)

    def emit(self, x):
        if isinstance(x, tuple):
            self.A(x[0])
            self.vm.append(x[1])
        else:
            self.A(x)

    def emit_all(self, xs):
        for x in xs:
            self.emit(x)

    def stamp(self, i):
        table = {0: {k: k for k in range(10)},
                 1: {0: 0, 2: 1, "q2": 2, "q4": 3, "q8": 4, "q12": 5, 3: 6, 7: 7, 8: 8, 9: 9},
                 2: {0: 0, "a1end": 1, 6: 2, "o0": 3, "o4": 4, "o8": 5, "o16": 6, 7: 7, 8: 8, 9: 9},
                 3: {0: 0, 4: 1, "a0end": 2, "mid1": 3, "mid2": 4, 5: 5, "a1end": 6, 7: 7, 8: 8, 9: 9}}[self.o.prof]
        if i not in table:
            return
        i = table[i]
        if self.o.stamps:
            self.A("%s %s" % ("s_memtime" if self.o.cyc else "s_memrealtime", sr(sSTAMP + 2 * i, 2)))

    def vm_need(self, tags):
        idx = max([i for i, t in enumerate(self.vm) if t in tags] + [-1])
        n = len(self.vm) - 1 - idx
        self.vm = self.vm[idx + 1:]
        return n

    def sync(self, n):
        self.A("s_waitcnt vmcnt(%d) lgkmcnt(0)" % n)
        self.A("s_barrier")

    def weave(self, mf, other, front=1.0):
        total = sum(cost(x) for x in other)
        ngap = max(1, int(len(mf) * front))
        k, acc = 0, 0
        for i, m in enumerate(mf):
            self.A(m if not self.o.nomf else "s_nop 0")
            lim = max(total * (i + 1) / ngap, 0)
            while k < len(other) and (acc + cost(other[k]) / 2.0 <= lim or cost(other[k]) == 0):
                acc += cost(other[k])
                self.emit(other[k])
                k += 1
        self.emit_all(other[k:])

    def srd(self, d, p, size):
        return ["s_mov_b32 %s, %s" % (sr(d), sr(p)), "s_and_b32 %s, %s, 0xffff" % (sr(d + 1), sr(p + 1)),
                "s_mov_b32 %s, %d" % (sr(d + 2), size), "s_mov_b32 %s, 0x20000" % sr(d + 3)]

    def dma(self, loc, srd, voff, soff, flag, tag, cnt=4, m0=sM0):
        out = ["s_add_u32 m0, %s, %d" % (sr(m0), loc), "s_nop 0"]
        for i in range(cnt):
            off = " offset:%d" % (1024 * i) if i else ""
            out.append(("buffer_load_dwordx4 %s, %s, %s offen%s%s lds" % (vr(voff + i), sr(srd, 4), sr(soff), off, flag), tag))
        return out

    def voff_std(self, dst, mul_i, mul_r):
        t0, t1 = vT + 6, vT + 7
        return ["v_lshrrev_b32 %s, 4, %s" % (vr(t0), vr(vLANE)),
                "v_and_b32 %s, 15, %s" % (vr(t1), vr(vLANE)),
                "v_lshlrev_b32 %s, 1, %s" % (vr(dst), vr(t0)),
                "v_xor_b32 %s, %s, %s" % (vr(t1), vr(t1), vr(dst)),
                "v_lshlrev_b32 %s, 4, %s" % (vr(t1), vr(t1)),
                "v_mul_u32_u24 %s, %d, %s" % (vr(t0), mul_r, vr(t0)),
                "v_add_u32 %s, %s, %s" % (vr(dst), vr(t0), vr(t1)),
                "v_xor_b32 %s, 0x80, %s" % (vr(t1), vr(t1)),
                "v_add_u32 %s, %s, %s" % (vr(dst + 1), vr(t0), vr(t1)),
                "v_add_u32 %s, %d, %s" % (vr(dst + 2), 2 * mul_i, vr(dst)),
                "v_add_u32 %s, %d, %s" % (vr(dst + 3), 3 * mul_i, vr(dst + 1)),
                "v_add_u32 %s, %d, %s" % (vr(dst + 1), mul_i, vr(dst + 1))]

    def voff_o1(self, dst):
        t0, t1 = vT + 6, vT + 7
        out = ["v_lshrrev_b32 %s, 3, %s" % (vr(t0), vr(vLANE)),
               "v_and_b32 %s, 7, %s" % (vr(t1), vr(vLANE)),
               "v_and_b32 %s, 6, %s" % (vr(dst), vr(t0)),
               "v_xor_b32 %s, %s, %s" % (vr(t1), vr(t1), vr(dst)),
               "v_lshlrev_b32 %s, 4, %s" % (vr(t1), vr(t1)),
               "v_lshl_add_u32 %s, %s, 10, %s" % (vr(dst), vr(t0), vr(t1))]
        for i in range(1, 4):
            out.append("v_add_u32 %s, %d, %s" % (vr(dst + i), 7168 * i, vr(dst)))
        return out

    def kappa(self, dst, cnt):
        if not self.o.skew_wq:
            return ["s_and_b32 %s, %s, 15" % (sr(dst), sr(cnt))]
        return ["s_lshl_b32 %s, %s, 2" % (sr(dst), sr(sB)),
                "s_add_u32 %s, %s, %s" % (sr(dst), sr(dst), sr(cnt)),
                "s_and_b32 %s, %s, 12" % (sr(dst), sr(dst)),
                "s_lshr_b32 %s, %s, 2" % (sr(sE), sr(sB)),
                "s_add_u32 %s, %s, %s" % (sr(sE), sr(sE), sr(cnt)),
                "s_and_b32 %s, %s, 3" % (sr(sE), sr(sE)),
                "s_or_b32 %s, %s, %s" % (sr(dst), sr(dst), sr(sE))]

    def wq_params(self):
        return self.kappa(sA, sWT) + [
            "s_lshl_b32 %s, %s, 18" % (sr(sA), sr(sA)),
            "s_add_u32 %s, %s, %s" % (sr(sWOFF), sr(sA), sr(sWQB)),
            "s_add_u32 %s, %s, 1" % (sr(sWT), sr(sWT))]

    def wo0_params(self):
        return ["s_bfe_u32 %s, %s, 0x20001" % (sr(sA), sr(sWT)),
                "s_lshl_b32 %s, %s, 15" % (sr(sA), sr(sA)),
                "s_lshr_b32 %s, %s, 3" % (sr(sB2), sr(sWT)),
                "s_lshl_b32 %s, %s, 18" % (sr(sB2), sr(sB2)),
                "s_add_u32 %s, %s, %s" % (sr(sA), sr(sA), sr(sB2)),
                "s_and_b32 %s, %s, 1" % (sr(sB2), sr(sWT)),
                "s_lshl_b32 %s, %s, 8" % (sr(sB2), sr(sB2)),
                "s_add_u32 %s, %s, %s" % (sr(sA), sr(sA), sr(sB2)),
                "s_add_u32 %s, %s, %s" % (sr(sWOFF), sr(sA), sr(sWOB)),
                "s_add_u32 %s, %s, 1" % (sr(sWT), sr(sWT))]

    def kv_params(self):
        return ["s_add_u32 %s, %s, %s" % (sr(sA), sr(sIDX), sr(sT0)),
                "s_and_b32 %s, %s, 15" % (sr(sA), sr(sA)),
                "s_and_b32 %s, %s, 16" % (sr(sB2), sr(sIDX)),
                "s_or_b32 %s, %s, %s" % (sr(sA), sr(sA), sr(sB2)),
                "s_lshl_b32 %s, %s, 13" % (sr(sA), sr(sA)),
                "s_add_u32 %s, %s, %s" % (sr(sKV), sr(sA), sr(sKVB)),
                "s_add_u32 %s, %s, 1" % (sr(sIDX), sr(sIDX))]

    def x_addr(self):
        return self.kappa(sC, sXT) + [
            "s_and_b32 %s, %s, 3" % (sr(sB2), sr(sC)),
            "s_lshl_b32 %s, %s, 6" % (sr(sB2), sr(sB2)),
            "v_xor_b32 %s, %s, %s" % (vr(vB), sr(sB2), vr(vLK)),
            "s_lshr_b32 %s, %s, 2" % (sr(sC), sr(sC)),
            "s_mul_i32 %s, %s, 24576" % (sr(sC), sr(sC)),
            "s_add_u32 %s, %s, %s" % (sr(sC), sr(sC), sr(sXB)),
            "v_add_u32 %s, %s, %s" % (vr(vB), sr(sC), vr(vB)),
            "s_add_u32 %s, %s, 1" % (sr(sXT), sr(sXT))]

    def x_dma(self, c):
        o = self.o
        out = []
        if o.skew_wq:
            out += ["s_add_u32 %s, %s, %d" % (sr(sA), sr(sB), c), "s_and_b32 %s, %s, 3" % (sr(sA), sr(sA))]
        else:
            out += ["s_mov_b32 %s, %d" % (sr(sA), c)]
        out += ["s_mul_i32 %s, %s, 24576" % (sr(sB2), sr(sA)),
                "s_mul_i32 %s, %s, 6144" % (sr(sXM), sr(sW)),
                "s_add_u32 %s, %s, %s" % (sr(sXM), sr(sXM), sr(sB2)),
                "s_lshl_b32 %s, %s, 8" % (sr(sA), sr(sA)),
                "s_mul_i32 %s, %s, 98304" % (sr(sXO), sr(sB)),
                "s_add_u32 %s, %s, %s" % (sr(sXO), sr(sXO), sr(sA)),
                "s_mul_i32 %s, %s, 24576" % (sr(sA), sr(sW)),
                "s_add_u32 %s, %s, %s" % (sr(sXO), sr(sXO), sr(sA))]
        out += self.dma(XB, dX, vOKV, sXO, o.x_flag, ("x", c), 4, sXM)
        out += ["s_add_u32 %s, %s, 16384" % (sr(sXO), sr(sXO))]
        out += self.dma(XB + 4096, dX, vOKV, sXO, o.x_flag, ("x", c), 2, sXM)
        return out

    def tr_reads(self, fset, slot):
        return ["ds_read_b64_tr_b16 %s, %s offset:%d" % (vr(vF[fset] + 4 * dt + 2 * e, 2), vr(vVA + dt), SLOT * slot + 4096 * e)
                for dt in range(8) for e in range(2)]

    def k_reads(self, fset, slot):
        return ["ds_read_b128 %s, %s offset:%d" % (vr(vF[fset] + 16 * kt + 4 * ks, 4), vr(vKA + ks), SLOT * slot + 4096 * kt)
                for kt in range(2) for ks in range(4)]

    def q_finalize(self, from_agpr):
        cs = math.log2(math.e) / math.sqrt(128.0)
        out = ["v_mov_b32 %s, %s" % (vr(vT), f32(cs)), "v_mov_b32 %s, %s" % (vr(vT + 1), f32(cs))]
        blocks = []
        for ks in range(4):
            for j in range(3):
                pre = []
                if from_agpr:
                    a = vS + 8 * ((3 * ks + j) % 3)
                    b = a + 4
                    pre += ["v_accvgpr_read_b32 %s, %s" % (vr(a + i), ar(24 * ks + 4 * j + i)) for i in range(4)]
                    pre += ["v_accvgpr_read_b32 %s, %s" % (vr(b + i), ar(24 * ks + 12 + 4 * j + i)) for i in range(4)]
                else:
                    a, b = vO + 24 * ks + 4 * j, vO + 24 * ks + 12 + 4 * j
                pre += ["v_pk_mul_f32 %s, %s, %s" % (vr(x, 2), vr(x, 2), vr(vT, 2)) for x in (a, a + 2, b, b + 2)]
                pre += ["v_cvt_pk_bf16_f32 %s, %s, %s" % (vr(a), vr(a), vr(a + 1)),
                        "v_cvt_pk_bf16_f32 %s, %s, %s" % (vr(a + 1), vr(a + 2), vr(a + 3)),
                        "v_cvt_pk_bf16_f32 %s, %s, %s" % (vr(a + 2), vr(b), vr(b + 1)),
                        "v_cvt_pk_bf16_f32 %s, %s, %s" % (vr(a + 3), vr(b + 2), vr(b + 3))]
                s32 = ["v_permlane32_swap_b32 %s, %s" % (vr(a), vr(a + 2)), "v_permlane32_swap_b32 %s, %s" % (vr(a + 1), vr(a + 3))]
                s16 = ["v_permlane16_swap_b32 %s, %s" % (vr(a), vr(a + 2)), "v_permlane16_swap_b32 %s, %s" % (vr(a + 1), vr(a + 3))]
                wr = ["v_accvgpr_write_b32 %s, %s" % (ar(aQC + 12 * ks + 4 * j + i), vr(a + i)) for i in range(4)]
                blocks.append((pre, s32, s16, wr))
        n = len(blocks)
        for k in range(n + 1):
            if k < n:
                pre = blocks[k][0]
                h = len(pre) // 2
                out += pre[:h]
            if k > 0:
                if k == n:
                    out.append("s_nop 1")
                out += blocks[k - 1][1]
            if k < n:
                out += pre[h:]
            else:
                out.append("s_nop 1")
            if k > 0:
                out += blocks[k - 1][2] + blocks[k - 1][3]
        return out

    def o_finalize(self):
        out = []
        for j in range(3):
            out += ["v_rcp_f32 %s, %s" % (vr(vT + 2 * j), vr(vL + 4 * j)), "v_rcp_f32 %s, %s" % (vr(vT + 2 * j + 1), vr(vL + 4 * j))]
        out.append("s_nop 1")
        for ks in range(4):
            for j in range(3):
                a, b = vO + 24 * ks + 4 * j, vO + 24 * ks + 12 + 4 * j
                out += ["v_pk_mul_f32 %s, %s, %s" % (vr(x, 2), vr(x, 2), vr(vT + 2 * j, 2)) for x in (a, a + 2, b, b + 2)]
                out += ["v_cvt_pk_bf16_f32 %s, %s, %s" % (vr(a), vr(a), vr(a + 1)),
                        "v_cvt_pk_bf16_f32 %s, %s, %s" % (vr(a + 1), vr(a + 2), vr(a + 3)),
                        "v_cvt_pk_bf16_f32 %s, %s, %s" % (vr(a + 2), vr(b), vr(b + 1)),
                        "v_cvt_pk_bf16_f32 %s, %s, %s" % (vr(a + 3), vr(b + 2), vr(b + 3)),
                        "ds_write_b128 %s, %s offset:%d" % (vr(vEXW), vr(a, 4), 1024 * (3 * ks + j))]
        return out

    def att_reset(self):
        out = ["v_mov_b32 %s, 0" % vr(i) for i in range(vO, vNEGM + 12)]
        out += ["s_mov_b32 %s, 0xff800000" % sr(sTH), "s_mov_b32 %s, 0xff800000" % sr(sLO), "s_mov_b32 %s, 0" % sr(sIT)]
        return out

    def last_only(self, code):
        self.uid += 1
        k = self.uid
        self.tail += ["L_alt%d:" % k] + code + ["s_branch L_altback%d" % k]
        return ["s_cmp_eq_u32 %s, 3" % sr(sIT), "s_cbranch_scc1 L_alt%d" % k, "L_altback%d:" % k]

    def sel_last(self, dst, alt):
        return ["s_cmp_eq_u32 %s, 3" % sr(sIT), "s_cselect_b32 %s, %s, %s" % (sr(dst), sr(alt), sr(dst))]

    def att_loop(self, rnd):
        A, o = self.A, self.o
        A(".p2align 6")
        A("L_att%d:" % rnd)
        for i in range(4):
            nK, nW, nV = 3 * i, 3 * i + 1, 3 * i + 2
            self.sync(8)
            mf = []
            for kt in range(2):
                for ks in range(4):
                    for j in range(3):
                        acc = vr(vS + 12 * kt + 4 * j, 4)
                        c = vr(vNEGM + 4 * j, 4) if ks == 0 else acc
                        mf.append("%s %s, %s, %s, %s" % (MF, acc, vr(vF[nK % 2] + 16 * kt + 4 * ks, 4), ar(aQC + 12 * ks + 4 * j, 4), c))
            rd = self.tr_reads(nW % 2, nW % 4)
            if rnd == 0:
                par = self.wq_params()
                if i == 3:
                    par += self.last_only(self.srd(dW, pWO, 4 << 20)[:2] + self.voff_std(vOW, 3072, 1024) +
                                          ["s_mov_b32 %s, 0" % sr(sWT)] + self.wo0_params())
                rd = rd[:4] + self.x_addr() + rd[4:] + ["ds_read_b128 %s, %s offset:%d" % (ar(aBF + 4 * j, 4), vr(vB), 4096 * j) for j in range(3)]
            else:
                par = self.wo0_params()
                if i == 3:
                    par += self.sel_last(sWOFF, sO1 + 1)
                if i % 2 == 0:
                    rd += ["ds_read_b128 %s, %s offset:%d" % (ar(aBF + 4 * j, 4), vr(vB), 3072 * (i // 2) + 1024 * j) for j in range(3)]
                if i == 3:
                    rd += ["s_movk_i32 %s, 6144" % sr(sC), "s_cmp_eq_u32 %s, 1" % sr(sIT), "s_cselect_b32 %s, 18432, %s" % (sr(sC), sr(sC)),
                           "v_add_u32 %s, %s, %s" % (vr(vB), sr(sC), vr(vB))]
            d = self.dma(SLOT * (nK % 4), dW, vOW, sWOFF, o.w_flag, None)
            if rnd == 0:
                body = rd[:19] + par + d[:1] + spread(rd[19:], d[2:])
            else:
                body = rd[:4] + par + d[:1] + spread(rd[4:], d[2:])
            self.weave(mf, body, 0.8)
            self.sync(8)
            mf = []
            for dt in range(8):
                for j in range(3):
                    acc = ar((0 if rnd == 0 else 96 * (i % 2)) + 12 * dt + 4 * j, 4)
                    mf.append("%s %s, %s, %s, %s" % (MF, acc, vr(vF[nW % 2] + 4 * dt, 4), ar(aBF + 4 * j, 4), acc))
            rd = self.tr_reads(nV % 2, nV % 4)
            mx = []
            for step in range(4):
                for j in range(3):
                    s0, s1, m = vS + 4 * j, vS + 12 + 4 * j, vT + j
                    mx.append(["v_max3_f32 %s, %s, %s, %s" % (vr(m), vr(s0), vr(s0 + 1), vr(s0 + 2)),
                               "v_max3_f32 %s, %s, %s, %s" % (vr(m), vr(m), vr(s0 + 3), vr(s1)),
                               "v_max3_f32 %s, %s, %s, %s" % (vr(m), vr(m), vr(s1 + 1), vr(s1 + 2)),
                               "v_max_f32 %s, %s, %s" % (vr(m), vr(m), vr(s1 + 3))][step])
            self.uid += 1
            k = self.uid
            mx += ["v_max3_f32 %s, %s, %s, %s" % (vr(vT + 3), vr(vT), vr(vT + 1), vr(vT + 2)),
                   "v_cmp_lt_f32 vcc, %s, %s" % (sr(sTH), vr(vT + 3)),
                   "s_cbranch_vccnz L_rs%d" % k, "L_rb%d:" % k]
            self.tail += ["L_rs%d:" % k, "s_call_b64 %s, L_rare" % sr(sRET, 2), "s_branch L_rb%d" % k]
            ex = []
            for j in range(3):
                for kt in range(2):
                    a = vS + 12 * kt + 4 * j
                    ex += ["v_exp_f32 %s, %s" % (vr(a + x), vr(a + x)) for x in range(4)]
                    if kt == 0 and j > 0:
                        b, p = vS + 12 + 4 * (j - 1), vP + 4 * (j - 1) + 2
                    elif kt == 1:
                        b, p = vS + 4 * j, vP + 4 * j
                    else:
                        continue
                    ex += ["v_cvt_pk_bf16_f32 %s, %s, %s" % (vr(p), vr(b), vr(b + 1)),
                           "v_cvt_pk_bf16_f32 %s, %s, %s" % (vr(p + 1), vr(b + 2), vr(b + 3))]
            b = vS + 20
            ex += ["s_nop 0", "v_cvt_pk_bf16_f32 %s, %s, %s" % (vr(vP + 10), vr(b), vr(b + 1)),
                   "v_cvt_pk_bf16_f32 %s, %s, %s" % (vr(vP + 11), vr(b + 2), vr(b + 3))]
            par = self.sel_last(sKV, sO1 + 2) if (rnd == 1 and i == 3) else []
            d = self.dma(SLOT * (nW % 4), dV, vOKV, sKV, o.kv_flag, None)
            body = par + d[:1] + rd[:3] + d[2:3] + rd[3:6] + mx + spread(ex[:24], spread(rd[6:], d[3:5])) + spread(ex[24:], d[5:])
            self.weave(mf, body, 1.0)
            self.sync(8)
            mf = ["%s %s, %s, %s, %s" % (MF, vr(vL + 4 * j, 4), ar(aONES, 4), vr(vP + 4 * j, 4), vr(vL + 4 * j, 4)) for j in range(3)]
            for dt in range(8):
                for j in range(3):
                    acc = vr(vO + 12 * dt + 4 * j, 4)
                    mf.append("%s %s, %s, %s, %s" % (MF, acc, vr(vF[nV % 2] + 4 * dt, 4), vr(vP + 4 * j, 4), acc))
            rd = self.k_reads((nV + 1) % 2, (nV + 1) % 4)
            par = self.kv_params()
            if rnd == 1 and i == 2:
                par += self.last_only(self.srd(dK, pWO, 4 << 20)[:3] + self.srd(dV, pWO, 4 << 20)[:3] +
                                      self.voff_o1(vOKV) + ["v_mov_b32 %s, %s" % (vr(vOW + x), vr(vOKV + x)) for x in range(4)] +
                                      ["s_mov_b32 %s, %s" % (sr(sKV), sr(sO1))])
            if rnd == 1 and i == 3:
                par += self.sel_last(sKV, sO1 + 3)
            d = self.dma(SLOT * (nV % 4), dK, vOKV, sKV, o.kv_flag, None)
            body = par + d[:1] + spread(rd, d[2:])
            if rnd == 1 and i == 0 and o.touch:
                t = vT + 4
                body += self.last_only([
                    "s_lshl_b32 %s, %s, 3" % (sr(sA), sr(sB)),
                    "s_and_b32 %s, %s, 1" % (sr(sB2), sr(sW)),
                    "s_lshl_b32 %s, %s, 2" % (sr(sB2), sr(sB2)),
                    "s_add_u32 %s, %s, %s" % (sr(sA), sr(sA), sr(sB2)),
                    "s_lshl_b32 %s, %s, 10" % (sr(sA), sr(sA)),
                    "s_lshl_b32 %s, %s, 19" % (sr(sB2), sr(sHG)),
                    "s_add_u32 %s, %s, %s" % (sr(sA), sr(sA), sr(sB2)),
                    "s_lshl_b32 %s, %s, 18" % (sr(sB2), sr(sP)),
                    "s_add_u32 %s, %s, %s" % (sr(sA), sr(sA), sr(sB2)),
                    "s_add_u32 %s, %s, 131072" % (sr(sA), sr(sA)),
                    "v_and_b32 %s, 31, %s" % (vr(t), vr(vLANE)),
                    "v_lshlrev_b32 %s, 7, %s" % (vr(t), vr(t)),
                    "buffer_load_dword %s, %s, %s, %s offen%s" % (vr(vDUM), vr(t), sr(dW, 4), sr(sA), o.touch_flag)])
            if i == 3:
                body += ["s_add_u32 %s, %s, 1" % (sr(sIT), sr(sIT))]
            self.weave(mf, body, 0.8)
        A("s_cmp_lt_u32 %s, 4" % sr(sIT))
        A("s_cbranch_scc1 L_att%d" % rnd)

    def rare(self):
        A = self.A
        A("L_rare:")
        for j in range(3):
            A("v_mov_b32 %s, %s" % (vr(vT + 3 + j), vr(vT + j)))
        A("s_nop 1")
        for j in range(3):
            A("v_permlane32_swap_b32 %s, %s" % (vr(vT + j), vr(vT + 3 + j)))
        for j in range(3):
            A("v_max_f32 %s, %s, %s" % (vr(vT + j), vr(vT + j), vr(vT + 3 + j)))
        for j in range(3):
            A("v_mov_b32 %s, %s" % (vr(vT + 3 + j), vr(vT + j)))
        A("s_nop 1")
        for j in range(3):
            A("v_permlane16_swap_b32 %s, %s" % (vr(vT + j), vr(vT + 3 + j)))
        for j in range(3):
            A("v_max3_f32 %s, %s, %s, %s" % (vr(vT + j), vr(vT + j), vr(vT + 3 + j), sr(sLO)))
        for j in range(3):
            A("v_max_f32 %s, 0, %s" % (vr(vT + 3 + j), vr(vT + j)))
        for j in range(3):
            A("v_exp_f32 %s, -%s" % (vr(vT + 3 + j), vr(vT + 3 + j)))
        for j in range(3):
            for base in (vS + 4 * j, vS + 12 + 4 * j, vNEGM + 4 * j):
                for i in range(4):
                    A("v_sub_f32 %s, %s, %s" % (vr(base + i), vr(base + i), vr(vT + j)))
        A("s_cmp_lg_u32 %s, 0" % sr(sLO))
        A("s_cbranch_scc1 L_rare_first")
        for j in range(3):
            for base in [vO + 12 * dt + 4 * j for dt in range(8)] + [vL + 4 * j]:
                for i in range(4):
                    A("v_mul_f32 %s, %s, %s" % (vr(base + i), vr(base + i), vr(vT + 3 + j)))
        A("L_rare_first:")
        A("s_mov_b32 %s, %s" % (sr(sTH), f32(8.0)))
        A("s_mov_b32 %s, 0" % sr(sLO))
        A("s_setpc_b64 %s" % sr(sRET, 2))

    def main_kernel(self):
        A, o = self.A, self.o
        lab = "main_kernel"
        A(".globl %s" % lab)
        A(".p2align 8")
        A(".type %s,@function" % lab)
        A("%s:" % lab)
        A("s_cmp_ge_u32 s2, 256")
        A("s_cbranch_scc1 L_end")
        self.stamp(0)
        A("s_and_b32 %s, s2, 7" % sr(sA))
        A("s_lshr_b32 %s, s2, 3" % sr(sB2))
        A("s_lshr_b32 %s, %s, 2" % (sr(sBLK), sr(sA)))
        A("s_mul_i32 %s, %s, 40" % (sr(sC), sr(sBLK)))
        A("s_add_u32 s4, s0, %s" % sr(sC))
        A("s_addc_u32 s5, s1, 0")
        A("s_load_dwordx8 %s, s[4:5], 0" % sr(pX, 8))
        A("s_load_dwordx2 %s, s[4:5], 32" % sr(pWO, 2))
        A("s_load_dwordx2 %s, s[0:1], 96" % sr(pWS, 2))
        A("s_and_b32 %s, %s, 15" % (sr(sB), sr(sB2)))
        A("s_lshr_b32 %s, %s, 4" % (sr(sE), sr(sB2)))
        A("s_and_b32 %s, %s, 3" % (sr(sHG), sr(sA)))
        A("s_lshl_b32 %s, %s, 1" % (sr(sHG), sr(sHG)))
        A("s_add_u32 %s, %s, %s" % (sr(sHG), sr(sHG), sr(sE)))
        A("v_lshrrev_b32 %s, 6, v0" % vr(vT))
        A("v_and_b32 %s, 63, v0" % vr(vLANE))
        self.emit_all(self.voff_std(vOKV, 3072, 1024))
        self.emit_all(self.voff_std(vOW, 65536 - 1024, 8192))
        A("s_waitcnt lgkmcnt(0)")
        A("v_readfirstlane_b32 %s, %s" % (sr(sW), vr(vT)))
        self.emit_all(self.srd(dX, pX, 16 * 98304))
        self.emit_all(self.srd(dW, pWQ, 4 << 20))
        A("s_lshr_b32 %s, %s, 1" % (sr(sP), sr(sW)))
        A("s_and_b32 %s, %s, 1" % (sr(sHF), sr(sW)))
        self.emit_all(self.x_dma(0))
        A("s_lshl_b32 %s, %s, 12" % (sr(sM0), sr(sW)))
        A("s_lshl_b32 %s, %s, 1" % (sr(sA), sr(sHG)))
        A("s_add_u32 %s, %s, %s" % (sr(sA), sr(sA), sr(sP)))
        A("s_lshl_b32 %s, %s, 9" % (sr(sWQB), sr(sA)))
        A("s_lshl_b32 %s, %s, 15" % (sr(sA), sr(sHF)))
        A("s_add_u32 %s, %s, %s" % (sr(sWQB), sr(sWQB), sr(sA)))
        A("s_mov_b32 %s, 0" % sr(sWT))
        A("s_mov_b32 %s, 0" % sr(sXT))

        def wq_dma(n):
            return self.wq_params() + self.dma(SLOT * (n % 4), dW, vOW, sWOFF, o.w_flag, n)

        self.emit_all(wq_dma(0))
        self.emit_all(wq_dma(1))
        self.emit_all(self.srd(dK, pK, 64 << 20))
        self.emit_all(self.srd(dV, pV, 64 << 20))
        self.emit_all(self.srd(dS, pWS, WS_BYTES))
        A("s_lshl_b32 %s, %s, 22" % (sr(sKVB), sr(sB)))
        A("s_lshl_b32 %s, %s, 19" % (sr(sWOB), sr(sHG)))
        A("s_add_u32 %s, %s, %s" % (sr(sKVB), sr(sKVB), sr(sWOB)))
        A("s_lshl_b32 %s, %s, 18" % (sr(sA), sr(sP)))
        A("s_add_u32 %s, %s, %s" % (sr(sKVB), sr(sKVB), sr(sA)))
        A("s_lshl_b32 %s, %s, 12" % (sr(sA), sr(sHF)))
        A("s_add_u32 %s, %s, %s" % (sr(sKVB), sr(sKVB), sr(sA)))
        A("s_lshl_b32 %s, %s, 9" % (sr(sA), sr(sP)))
        A("s_add_u32 %s, %s, %s" % (sr(sWOB), sr(sWOB), sr(sA)))
        A("s_lshl_b32 %s, %s, 15" % (sr(sA), sr(sHF)))
        A("s_add_u32 %s, %s, %s" % (sr(sO1), sr(sWOB), sr(sA)))
        A("s_add_u32 %s, %s, 131072" % (sr(sO1), sr(sO1)))
        A("s_add_u32 %s, %s, 65536" % (sr(sO1 + 1), sr(sO1)))
        A("s_add_u32 %s, %s, 262144" % (sr(sO1 + 2), sr(sO1)))
        A("s_add_u32 %s, %s, 262144" % (sr(sO1 + 3), sr(sO1 + 1)))
        A("s_lshl_b32 %s, %s, 14" % (sr(sA), sr(sHF)))
        A("s_add_u32 %s, %s, %s" % (sr(sWOB), sr(sWOB), sr(sA)))
        A("s_mov_b32 %s, 0" % sr(sIDX))
        if o.skew_kv:
            A("s_and_b32 %s, %s, 1" % (sr(sA), sr(sHG)))
            A("s_lshl_b32 %s, %s, 3" % (sr(sA), sr(sA)))
            A("s_add_u32 %s, %s, %s" % (sr(sT0), sr(sB), sr(sA)))
        else:
            A("s_mov_b32 %s, 0" % sr(sT0))
        A("s_mul_i32 %s, %s, 12288" % (sr(sXB), sr(sHF)))
        A("s_add_u32 %s, %s, %d" % (sr(sXB), sr(sXB), XB))
        A("s_lshl_b32 %s, %s, 4" % (sr(sA), sr(sBLK)))
        A("s_add_u32 %s, %s, %s" % (sr(sA), sr(sA), sr(sB)))
        A("s_lshl_b32 %s, %s, 1" % (sr(sA), sr(sA)))
        A("s_add_u32 %s, %s, %s" % (sr(sA), sr(sA), sr(sP)))
        A("s_mul_i32 %s, %s, %d" % (sr(sA), sr(sA), 4 * 98304))
        A("s_lshl_b32 %s, %s, 1" % (sr(sB2), sr(sHG)))
        A("s_add_u32 %s, %s, %s" % (sr(sB2), sr(sB2), sr(sHF)))
        A("s_mul_i32 %s, %s, 6144" % (sr(sB2), sr(sB2)))
        A("s_add_u32 %s, %s, %s" % (sr(sSTB), sr(sA), sr(sB2)))
        t0, t1, t2 = vT, vT + 1, vT + 2
        A("v_and_b32 %s, 15, %s" % (vr(t0), vr(vLANE)))
        A("v_lshrrev_b32 %s, 4, %s" % (vr(t1), vr(vLANE)))
        A("v_and_b32 %s, 7, %s" % (vr(t2), vr(vLANE)))
        A("v_lshlrev_b32 %s, 1, %s" % (vr(t2), vr(t2)))
        A("v_xor_b32 %s, %s, %s" % (vr(t2), vr(t2), vr(t1)))
        A("v_lshlrev_b32 %s, 4, %s" % (vr(t2), vr(t2)))
        A("v_lshl_add_u32 %s, %s, 8, %s" % (vr(vLK), vr(t0), vr(t2)))
        A("v_lshrrev_b32 %s, 2, %s" % (vr(t0), vr(vLANE)))
        A("v_and_b32 %s, 7, %s" % (vr(t1), vr(t0)))
        A("v_lshlrev_b32 %s, 5, %s" % (vr(t1), vr(t1)))
        A("v_lshl_add_u32 %s, %s, 8, %s" % (vr(t0), vr(t0), vr(t1)))
        A("v_and_b32 %s, 3, %s" % (vr(t1), vr(vLANE)))
        A("v_lshl_add_u32 %s, %s, 3, %s" % (vr(t0), vr(t1), vr(t0)))
        A("s_lshl_b32 %s, %s, 13" % (sr(sA), sr(sP)))
        for dt in range(8):
            A("v_xor_b32 %s, %d, %s" % (vr(vVA + dt), dt << 5, vr(t0)))
            A("v_add_u32 %s, %s, %s" % (vr(vVA + dt), sr(sA), vr(vVA + dt)))
        for ks in range(4):
            A("v_xor_b32 %s, %d, %s" % (vr(vKA + ks), ks << 6, vr(vLK)))
            A("v_add_u32 %s, %s, %s" % (vr(vKA + ks), sr(sA), vr(vKA + ks)))
        A("s_mul_i32 %s, %s, 12288" % (sr(sA), sr(sW)))
        A("s_add_u32 %s, %s, %d" % (sr(sA), sr(sA), EX))
        A("v_lshlrev_b32 %s, 4, %s" % (vr(vSTA), vr(vLANE)))
        A("v_add_u32 %s, %s, %s" % (vr(vEXW), sr(sA), vr(vSTA)))
        A("v_mov_b32 %s, 0x3f803f80" % vr(t0))
        for i in range(4):
            A("v_accvgpr_write_b32 %s, %s" % (ar(aONES + i), vr(t0)))
        for i in range(192):
            A("v_accvgpr_write_b32 %s, 0" % ar(i))
        self.emit_all(wq_dma(2))

        vBX = (vS, vS + 12)

        def xb_reads(n):
            return self.x_addr() + ["ds_read_b128 %s, %s offset:%d" % (vr(vBX[n % 2] + 4 * j, 4), vr(vB), 4096 * j) for j in range(3)]

        self.stamp(1)
        self.sync(self.vm_need([0, ("x", 0)]))
        self.emit_all(xb_reads(0) + self.tr_reads(0, 0) + wq_dma(3))
        for n in range(16):
            need = [n + 1]
            if n % 4 == 3 and n < 15:
                need.append(("x", (n + 1) // 4))
            self.sync(self.vm_need(need))
            if n == 0:
                self.stamp(2)
            self.stamp("q%d" % n)
            mf = []
            for dt in range(8):
                for j in range(3):
                    acc = vr(vO + 12 * dt + 4 * j, 4)
                    mf.append("%s %s, %s, %s, %s" % (MF, acc, vr(vF[n % 2] + 4 * dt, 4), vr(vBX[n % 2] + 4 * j, 4), "0" if n == 0 else acc))
            if n < 15:
                rd = self.tr_reads((n + 1) % 2, (n + 1) % 4)
                rd = rd[:4] + xb_reads(n + 1) + rd[4:]
            else:
                rd = self.k_reads(0, 0)
            m = n + 4
            pre = []
            if n in (0, 4, 8):
                pre = self.x_dma(n // 4 + 1)
            if m < 16:
                d = wq_dma(m)
            elif m == 16:
                d = self.voff_std(vOKV, 0, 256) + self.kv_params() + self.dma(SLOT * (m % 4), dK, vOKV, sKV, o.kv_flag, m)
            elif m == 17:
                d = ["s_add_u32 %s, %s, 256" % (sr(sWQB), sr(sWQB)), "s_mov_b32 %s, 0" % sr(sWT)] + wq_dma(m)
            elif m == 18:
                d = self.dma(SLOT * (m % 4), dV, vOKV, sKV, o.kv_flag, m)
            else:
                d = self.kv_params() + self.dma(SLOT * (m % 4), dK, vOKV, sKV, o.kv_flag, m)
            k = len(d) - 4
            nx = 22 if n < 15 else 0
            body = rd[:nx] + pre + d[:k - 1] + spread(rd[nx:], d[k:])
            self.weave(mf, body, 0.85)
        self.stamp(3)
        A("s_mov_b32 %s, 0" % sr(sXT))
        A("s_nop 4")
        self.emit_all(self.q_finalize(False))
        self.emit_all(self.att_reset())
        self.stamp(4)
        self.att_loop(0)
        self.stamp("a0end")
        A("s_nop 4")
        self.emit_all(self.o_finalize())
        self.stamp("mid1")
        self.emit_all(self.q_finalize(True))
        self.stamp("mid2")
        for i in range(96):
            A("v_accvgpr_write_b32 %s, 0" % ar(i))
        A("s_mul_i32 %s, %s, 12288" % (sr(sA), sr(sHF)))
        A("s_add_u32 %s, %s, %d" % (sr(sA), sr(sA), EX))
        A("v_add_u32 %s, %s, %s" % (vr(vB), sr(sA), vr(vSTA)))
        A("s_waitcnt lgkmcnt(0)")
        self.emit_all(self.att_reset())
        self.stamp(5)
        self.att_loop(1)

        loc = {}
        for n in range(4):
            loc[n] = SLOT * n
        for n in range(4, 7):
            loc[n] = EXTRA + SLOT * (n - 4)
        for n in range(7, 10):
            loc[n] = EX + SLOT * (n - 7)
        for n in range(10, 14):
            loc[n] = SLOT * (n - 10)
        loc[14], loc[15] = EXTRA, EXTRA + SLOT

        def o1_dma(n):
            return ["s_add_u32 %s, %s, %d" % (sr(sWOFF), sr(sO1 + n % 4), 128 * (n // 4))] + \
                self.dma(loc[n], dW, vOW, sWOFF, o.o1_flag, n)

        self.vm = [1] * 4 + [2] * 4 + [3] * 4
        vOA = vVA
        t0, t1 = vT + 6, vT + 7
        addr = ["v_lshrrev_b32 %s, 2, %s" % (vr(t0), vr(vLANE)),
                "v_bfe_u32 %s, %s, 3, 2" % (vr(t1), vr(vLANE)),
                "v_lshlrev_b32 %s, 5, %s" % (vr(t1), vr(t1)),
                "v_lshl_add_u32 %s, %s, 7, %s" % (vr(t0), vr(t0), vr(t1)),
                "v_and_b32 %s, 3, %s" % (vr(t1), vr(vLANE)),
                "v_lshl_add_u32 %s, %s, 3, %s" % (vr(t0), vr(t1), vr(t0)),
                "s_lshl_b32 %s, %s, 13" % (sr(sA), sr(sP))]
        for nt in range(4):
            addr += ["v_xor_b32 %s, %d, %s" % (vr(vOA + nt), nt << 5, vr(t0)),
                     "v_add_u32 %s, %s, %s" % (vr(vOA + nt), sr(sA), vr(vOA + nt)),
                     "v_add_u32 %s, 0x10000, %s" % (vr(vOA + 4 + nt), vr(vOA + nt)),
                     "v_add_u32 %s, 0x20000, %s" % (vr(vOA + 8 + nt), vr(vOA + nt))]
        addr += ["s_mul_i32 %s, %s, 12288" % (sr(sA), sr(sHF)),
                 "s_add_u32 %s, %s, %d" % (sr(sA), sr(sA), EX),
                 "v_add_u32 %s, %s, %s" % (vr(vB), sr(sA), vr(vSTA))]

        def o1_reads(n):
            win, off = loc[n] // 65536, loc[n] % 65536
            return ["ds_read_b64_tr_b16 %s, %s offset:%d" % (vr(vF[n % 2] + 16 * ks + 4 * nt + 2 * e, 2), vr(vOA + 4 * win + nt),
                                                             off + 4096 * ks + 2048 * e)
                    for ks in range(2) for nt in range(4) for e in range(2)]

        self.stamp("a1end")
        self.emit_all(addr)
        self.emit_all(spread(self.o_finalize(), o1_dma(4) + o1_dma(5) + o1_dma(6)))
        self.stamp(6)
        A("s_waitcnt lgkmcnt(0)")
        A("s_barrier")
        brd = ["ds_read_b128 %s, %s offset:%d" % (vr(vO + 4 * f, 4), vr(vB), 24576 * (f // 12) + 1024 * (f % 12)) for f in range(24)]
        self.emit_all(brd[:6] + o1_reads(0)[:8])
        A("s_waitcnt lgkmcnt(6)")
        self.emit_all(o1_reads(0)[8:])
        A("s_waitcnt lgkmcnt(6)")
        self.emit_all(brd[6:15])
        A("s_waitcnt lgkmcnt(6)")
        self.emit_all(brd[15:])

        vSG = vL

        def stores(c):
            out = ["s_add_u32 %s, %s, %d" % (sr(sST), sr(sSTB), 98304 * c), "s_add_u32 %s, %s, 4096" % (sr(sST2), sr(sST))]
            for jq in range(3):
                for u in range(2):
                    i = 2 * jq + u
                    a = vSG + 8 * i
                    src = 48 * c + 24 * u + 4 * jq
                    out += ["v_accvgpr_read_b32 %s, %s" % (vr(a + x), ar(src + x)) for x in range(4)]
                    out += ["v_accvgpr_read_b32 %s, %s" % (vr(a + 4 + x), ar(src + 12 + x)) for x in range(4)]
                    out += ["v_cvt_pk_bf16_f32 %s, %s, %s" % (vr(a + x), vr(a + 2 * x), vr(a + 2 * x + 1)) for x in range(4)]
                    off = " offset:%d" % (1024 * (i % 4)) if i % 4 else ""
                    out.append(("buffer_store_dwordx4 %s, %s, %s, %s offen%s%s" % (
                        vr(a, 4), vr(vSTA), sr(dS, 4), sr(sST if i < 4 else sST2), off, o.st_flag), "st"))
            return out

        plan = {0: [7, 8], 1: [9, 10], 2: [11, 12], 3: [13], 4: [14], 5: [15]}
        for n in range(16):
            if n < 15:
                self.sync(self.vm_need([n + 1]))
            else:
                A("s_waitcnt lgkmcnt(0)")
            self.stamp("o%d" % n)
            c, i = n // 4, n % 4
            mf = []
            for ks in range(2):
                for nt in range(4):
                    for j in range(3):
                        acc = ar(48 * c + 12 * nt + 4 * j, 4)
                        mf.append("%s %s, %s, %s, %s" % (MF, acc, vr(vF[n % 2] + 16 * ks + 4 * nt, 4), vr(vO + 24 * i + 12 * ks + 4 * j, 4), acc))
            rd = o1_reads(n + 1) if n < 15 else []
            d = []
            for m in plan.get(n, []):
                d += o1_dma(m)
            st = []
            if c > 0:
                s = stores(c - 1)
                if c == 1:
                    st = {0: s[:14], 1: s[14:28], 2: s[28:54], 3: s[54:]}[i]
                else:
                    st = {0: s[:28], 1: s[28:54], 2: s[54:], 3: []}[i]
            body = spread(rd, d) + st if len(d) < len(rd) else rd + d + st
            self.weave(mf, body, 1.0 if st else 0.85)
        self.stamp("o16")
        A("s_nop 7")
        self.emit_all(stores(3))
        if o.stamps:
            A("s_waitcnt vmcnt(0)")
            self.stamp(7)
            self.write_stamps(0, 8, sW, dS)
        A("L_end:")
        A("s_endpgm")
        self.rare()
        for x in self.tail:
            A(x)

    def write_stamps(self, lo, hi, swave, d):
        A = self.A
        A("s_waitcnt lgkmcnt(0)")
        A("s_cmp_lg_u32 %s, 0" % sr(swave))
        A("s_cbranch_scc1 L_nost%d" % lo)
        A("s_mov_b64 exec, 1")
        A("s_mul_i32 s3, s2, %d" % (NSTAMP * 8))
        A("s_add_u32 s3, s3, %d" % STAMP_OFF)
        A("v_mov_b32 v6, 0")
        for i in range(lo, hi):
            A("v_mov_b32 v8, s%d" % (sSTAMP + 2 * i))
            A("v_mov_b32 v9, s%d" % (sSTAMP + 2 * i + 1))
            A("buffer_store_dwordx2 v[8:9], v6, %s, s3 offen offset:%d" % (sr(d, 4), 8 * i))
            A("s_nop 1")
        A("L_nost%d:" % lo)

    def reduce_kernel(self):
        A, o = self.A, self.o
        lab = "reduce_kernel"
        wpb = o.k2_block // 64
        nwg = 3072 // wpb
        A(".globl %s" % lab)
        A(".p2align 8")
        A(".type %s,@function" % lab)
        A("%s:" % lab)
        A("s_cmp_ge_u32 s2, %d" % nwg)
        A("s_cbranch_scc1 L_end2")
        self.stamp(8)
        A("s_load_dwordx2 s[20:21], s[0:1], 80")
        A("s_load_dwordx2 s[22:23], s[0:1], 96")
        A("v_lshrrev_b32 v2, 6, v0")
        A("v_and_b32 v1, 63, v0")
        A("s_mul_i32 s5, s2, %d" % wpb)
        A("v_readfirstlane_b32 s4, v2")
        A("v_lshlrev_b32 v3, 4, v1")
        A("s_add_u32 s5, s5, s4")
        A("s_mul_hi_u32 s6, s5, 0x15555556")
        A("s_mul_i32 s7, s6, 12")
        A("s_sub_u32 s7, s5, s7")
        A("s_mul_i32 s8, s6, 98304")
        A("s_lshl_b32 s9, s7, 10")
        A("s_add_u32 s8, s8, s9")
        A("s_waitcnt lgkmcnt(0)")
        self.emit_all(self.srd(16, 22, WS_BYTES))
        for h in range(8):
            A("buffer_load_dwordx4 %s, v3, s[16:19], s8 offen%s" % (vr(8 + 4 * h, 4), o.ld2_flag))
            if h < 7:
                A("s_add_u32 s8, s8, 12288")
        self.emit_all(self.srd(12, 20, 16 * 96 * 1024 * 2))
        A("s_and_b32 s9, s6, 7")
        A("s_bfe_u32 s10, s6, 0x40003")
        A("s_lshr_b32 s11, s6, 7")
        A("s_mul_i32 s10, s10, 96")
        A("s_lshr_b32 s24, s7, 1")
        A("s_lshl_b32 s24, s24, 4")
        A("s_add_u32 s10, s10, s24")
        A("s_lshl_b32 s10, s10, 11")
        A("s_lshl_b32 s11, s11, 10")
        A("s_add_u32 s10, s10, s11")
        A("s_lshl_b32 s9, s9, 7")
        A("s_add_u32 s10, s10, s9")
        A("s_and_b32 s24, s7, 1")
        A("s_lshl_b32 s24, s24, 6")
        A("s_add_u32 s10, s10, s24")
        A("v_and_b32 v4, 15, v1")
        A("v_lshlrev_b32 v4, 11, v4")
        A("v_lshrrev_b32 v5, 4, v1")
        A("v_lshl_add_u32 v4, v5, 4, v4")
        A("s_mov_b32 s25, 0xffff0000")
        for h in range(8):
            A("s_waitcnt vmcnt(%d)" % (7 - h))
            for i in range(4):
                src = vr(8 + 4 * h + i)
                if h == 0:
                    A("v_lshlrev_b32 %s, 16, %s" % (vr(40 + 2 * i), src))
                    A("v_and_b32 %s, s25, %s" % (vr(41 + 2 * i), src))
                else:
                    A("v_lshlrev_b32 v6, 16, %s" % src)
                    A("v_and_b32 v7, s25, %s" % src)
                    A("v_add_f32 %s, %s, v6" % (vr(40 + 2 * i), vr(40 + 2 * i)))
                    A("v_add_f32 %s, %s, v7" % (vr(41 + 2 * i), vr(41 + 2 * i)))
        for i in range(4):
            A("v_cvt_pk_bf16_f32 %s, %s, %s" % (vr(48 + i), vr(40 + 2 * i), vr(41 + 2 * i)))
        A("s_nop 1")
        A("v_permlane32_swap_b32 v48, v50")
        A("v_permlane32_swap_b32 v49, v51")
        A("s_nop 1")
        A("v_permlane16_swap_b32 v48, v50")
        A("v_permlane16_swap_b32 v49, v51")
        A("buffer_store_dwordx4 v[48:51], v4, s[12:15], s10 offen")
        if o.stamps:
            A("s_waitcnt vmcnt(0)")
            self.stamp(9)
            A("s_cmp_ge_u32 s2, 256")
            A("s_cbranch_scc1 L_end2")
            self.write_stamps(8, 10, 4, 16)
        A("L_end2:")
        A("s_endpgm")

    def desc(self, lab, nv, acc, ns):
        A = self.A
        A(".p2align 6")
        A(".amdhsa_kernel %s" % lab)
        A("  .amdhsa_next_free_vgpr %d" % nv)
        A("  .amdhsa_next_free_sgpr %d" % ns)
        A("  .amdhsa_accum_offset %d" % acc)
        A("  .amdhsa_group_segment_fixed_size 0")
        A("  .amdhsa_kernarg_size 104")
        A("  .amdhsa_user_sgpr_count 2")
        A("  .amdhsa_user_sgpr_kernarg_segment_ptr 1")
        A("  .amdhsa_system_sgpr_workgroup_id_x 1")
        A(".end_amdhsa_kernel")

    def build(self):
        A, o = self.A, self.o
        A("; @launch kernel=main_kernel grid=(256,1,1) block=(256,1,1) lds=163840")
        A("; @launch kernel=reduce_kernel grid=(%d,1,1) block=(%d,1,1) lds=0" % (3072 * 64 // o.k2_block, o.k2_block))
        A('.amdgcn_target "amdgcn-amd-amdhsa--gfx950"')
        A(".text")
        self.main_kernel()
        self.reduce_kernel()
        A('.section .rodata,"a"')
        self.desc("main_kernel", 512, 256, 96)
        self.desc("reduce_kernel", 64, 64, 96)
        return "\n".join(self.L) + "\n"


def parse_opts(args):
    kw = {}
    for a in args:
        k, v = a.split("=", 1)
        cur = getattr(Opt, k)
        if isinstance(cur, bool):
            kw[k] = v not in ("0", "False")
        elif isinstance(cur, int):
            kw[k] = int(v)
        else:
            kw[k] = (" " + v.replace("+", " ")) if v else ""
    return kw


if __name__ == "__main__":
    out = sys.argv[1]
    open(out, "w").write(Gen(Opt(**parse_opts(sys.argv[2:]))).build())
```

```python
import math
import struct
import sys

WS_BYTES = 288358400
STAMP_OFF = WS_BYTES - (1 << 20)
NSTAMP = 10


def f32(x):
    return "0x%08x" % struct.unpack("<I", struct.pack("<f", x))[0]


class Opt:
    stamps = False
    cyc = False
    kv_flag = " nt"
    w_flag = ""
    o1_flag = ""
    x_flag = ""
    st_flag = " sc1"
    ld2_flag = ""
    touch_flag = ""
    touch = True
    skew_kv = True
    skew_wq = True
    k2_block = 256
    nomf = 0
    prof = 0
    dbg = False

    def __init__(self, **kw):
        for k, v in kw.items():
            assert hasattr(Opt, k), k
            setattr(self, k, v)


sW, sP, sHF, sB, sBLK, sHG, sT0, sIDX = 4, 5, 6, 7, 8, 9, 10, 11
dK, dV, dW, dX, dS = 12, 16, 32, 36, 40
pX, pK, pV, pWQ, pWO, pWS = 20, 22, 24, 26, 28, 30
sKV, sWOFF, sXO, sM0, sIT, sKVB, sTH, sLO = 44, 45, 46, 47, 48, 49, 50, 51
sA, sB2, sC, sE = 52, 53, 54, 55
sWQB, sWOB, sWT, sXT, sXB, sST, sST2, sSTB = 56, 57, 58, 59, 60, 61, 62, 63
sO1 = 64
sRET = 68
sXM = 70
sSTAMP = 72

vLANE, vLK, vB = 1, 2, 3
vO, vL, vNEGM, vS, vP = 4, 100, 112, 124, 148
vF = (160, 192)
vVA, vKA, vOKV, vOW, vT = 224, 232, 236, 240, 244
vEXW, vSTA, vDUM = 252, 253, 254
aQC, aBF, aONES = 192, 240, 252

SLOT = 16384
XB = 65536
EX = 65536
EXTRA = 114688
MF = "v_mfma_f32_16x16x32_bf16"


def vr(a, n=1):
    return "v%d" % a if n == 1 else "v[%d:%d]" % (a, a + n - 1)


def ar(a, n=1):
    return "a%d" % a if n == 1 else "a[%d:%d]" % (a, a + n - 1)


def sr(a, n=1):
    return "s%d" % a if n == 1 else "s[%d:%d]" % (a, a + n - 1)


def cost(x):
    t = x[0] if isinstance(x, tuple) else x
    if t.endswith(":"):
        return 0
    if t.startswith(("v_exp", "v_rcp", "v_pk_")):
        return 8
    if t.startswith("buffer_"):
        return 8
    return 4


def spread(base, ins):
    out, k = [], 0
    for i, x in enumerate(base):
        out.append(x)
        while k < len(ins) and (k + 1) * len(base) <= (i + 1) * (len(ins) + 1):
            out.append(ins[k])
            k += 1
    return out + ins[k:]


class Gen:
    def __init__(self, o):
        self.o = o
        self.L = []
        self.vm = []
        self.tail = []
        self.uid = 0

    def A(self, s):
        self.L.append(s)

    def emit(self, x):
        if isinstance(x, tuple):
            self.A(x[0])
            self.vm.append(x[1])
        else:
            self.A(x)

    def emit_all(self, xs):
        for x in xs:
            self.emit(x)

    def stamp(self, i):
        table = {0: {k: k for k in range(10)},
                 1: {0: 0, 2: 1, "q2": 2, "q4": 3, "q8": 4, "q12": 5, 3: 6, 7: 7, 8: 8, 9: 9},
                 2: {0: 0, "a1end": 1, 6: 2, "o0": 3, "o4": 4, "o8": 5, "o16": 6, 7: 7, 8: 8, 9: 9},
                 3: {0: 0, 4: 1, "a0end": 2, "mid1": 3, "mid2": 4, 5: 5, "a1end": 6, 7: 7, 8: 8, 9: 9}}[self.o.prof]
        if i not in table:
            return
        i = table[i]
        if self.o.stamps:
            self.A("%s %s" % ("s_memtime" if self.o.cyc else "s_memrealtime", sr(sSTAMP + 2 * i, 2)))

    def vm_need(self, tags):
        idx = max([i for i, t in enumerate(self.vm) if t in tags] + [-1])
        n = len(self.vm) - 1 - idx
        self.vm = self.vm[idx + 1:]
        return n

    def sync(self, n):
        self.A("s_waitcnt vmcnt(%d) lgkmcnt(0)" % n)
        self.A("s_barrier")

    def weave(self, mf, other, front=1.0):
        total = sum(cost(x) for x in other)
        ngap = max(1, int(len(mf) * front))
        k, acc = 0, 0
        for i, m in enumerate(mf):
            self.A(m if not self.o.nomf else "s_nop 0")
            lim = max(total * (i + 1) / ngap, 0)
            while k < len(other) and (acc + cost(other[k]) / 2.0 <= lim or cost(other[k]) == 0):
                acc += cost(other[k])
                self.emit(other[k])
                k += 1
        self.emit_all(other[k:])

    def srd(self, d, p, size):
        return ["s_mov_b32 %s, %s" % (sr(d), sr(p)), "s_and_b32 %s, %s, 0xffff" % (sr(d + 1), sr(p + 1)),
                "s_mov_b32 %s, %d" % (sr(d + 2), size), "s_mov_b32 %s, 0x20000" % sr(d + 3)]

    def dma(self, loc, srd, voff, soff, flag, tag, cnt=4, m0=sM0):
        out = ["s_add_u32 m0, %s, %d" % (sr(m0), loc), "s_nop 0"]
        for i in range(cnt):
            off = " offset:%d" % (1024 * i) if i else ""
            out.append(("buffer_load_dwordx4 %s, %s, %s offen%s%s lds" % (vr(voff + i), sr(srd, 4), sr(soff), off, flag), tag))
        return out

    def voff_std(self, dst, mul_i, mul_r):
        t0, t1 = vT + 6, vT + 7
        return ["v_lshrrev_b32 %s, 4, %s" % (vr(t0), vr(vLANE)),
                "v_and_b32 %s, 15, %s" % (vr(t1), vr(vLANE)),
                "v_lshlrev_b32 %s, 1, %s" % (vr(dst), vr(t0)),
                "v_xor_b32 %s, %s, %s" % (vr(t1), vr(t1), vr(dst)),
                "v_lshlrev_b32 %s, 4, %s" % (vr(t1), vr(t1)),
                "v_mul_u32_u24 %s, %d, %s" % (vr(t0), mul_r, vr(t0)),
                "v_add_u32 %s, %s, %s" % (vr(dst), vr(t0), vr(t1)),
                "v_xor_b32 %s, 0x80, %s" % (vr(t1), vr(t1)),
                "v_add_u32 %s, %s, %s" % (vr(dst + 1), vr(t0), vr(t1)),
                "v_add_u32 %s, %d, %s" % (vr(dst + 2), 2 * mul_i, vr(dst)),
                "v_add_u32 %s, %d, %s" % (vr(dst + 3), 3 * mul_i, vr(dst + 1)),
                "v_add_u32 %s, %d, %s" % (vr(dst + 1), mul_i, vr(dst + 1))]

    def voff_o1(self, dst):
        t0, t1 = vT + 6, vT + 7
        out = ["v_lshrrev_b32 %s, 3, %s" % (vr(t0), vr(vLANE)),
               "v_and_b32 %s, 7, %s" % (vr(t1), vr(vLANE)),
               "v_and_b32 %s, 6, %s" % (vr(dst), vr(t0)),
               "v_xor_b32 %s, %s, %s" % (vr(t1), vr(t1), vr(dst)),
               "v_lshlrev_b32 %s, 4, %s" % (vr(t1), vr(t1)),
               "v_lshl_add_u32 %s, %s, 10, %s" % (vr(dst), vr(t0), vr(t1))]
        for i in range(1, 4):
            out.append("v_add_u32 %s, %d, %s" % (vr(dst + i), 7168 * i, vr(dst)))
        return out

    def kappa(self, dst, cnt):
        if not self.o.skew_wq:
            return ["s_and_b32 %s, %s, 15" % (sr(dst), sr(cnt))]
        return ["s_lshl_b32 %s, %s, 2" % (sr(dst), sr(sB)),
                "s_add_u32 %s, %s, %s" % (sr(dst), sr(dst), sr(cnt)),
                "s_and_b32 %s, %s, 12" % (sr(dst), sr(dst)),
                "s_lshr_b32 %s, %s, 2" % (sr(sE), sr(sB)),
                "s_add_u32 %s, %s, %s" % (sr(sE), sr(sE), sr(cnt)),
                "s_and_b32 %s, %s, 3" % (sr(sE), sr(sE)),
                "s_or_b32 %s, %s, %s" % (sr(dst), sr(dst), sr(sE))]

    def wq_params(self):
        return self.kappa(sA, sWT) + [
            "s_lshl_b32 %s, %s, 18" % (sr(sA), sr(sA)),
            "s_add_u32 %s, %s, %s" % (sr(sWOFF), sr(sA), sr(sWQB)),
            "s_add_u32 %s, %s, 1" % (sr(sWT), sr(sWT))]

    def wo0_params(self):
        return ["s_bfe_u32 %s, %s, 0x20001" % (sr(sA), sr(sWT)),
                "s_lshl_b32 %s, %s, 15" % (sr(sA), sr(sA)),
                "s_lshr_b32 %s, %s, 3" % (sr(sB2), sr(sWT)),
                "s_lshl_b32 %s, %s, 18" % (sr(sB2), sr(sB2)),
                "s_add_u32 %s, %s, %s" % (sr(sA), sr(sA), sr(sB2)),
                "s_and_b32 %s, %s, 1" % (sr(sB2), sr(sWT)),
                "s_lshl_b32 %s, %s, 8" % (sr(sB2), sr(sB2)),
                "s_add_u32 %s, %s, %s" % (sr(sA), sr(sA), sr(sB2)),
                "s_add_u32 %s, %s, %s" % (sr(sWOFF), sr(sA), sr(sWOB)),
                "s_add_u32 %s, %s, 1" % (sr(sWT), sr(sWT))]

    def kv_params(self):
        return ["s_add_u32 %s, %s, %s" % (sr(sA), sr(sIDX), sr(sT0)),
                "s_and_b32 %s, %s, 15" % (sr(sA), sr(sA)),
                "s_and_b32 %s, %s, 16" % (sr(sB2), sr(sIDX)),
                "s_or_b32 %s, %s, %s" % (sr(sA), sr(sA), sr(sB2)),
                "s_lshl_b32 %s, %s, 13" % (sr(sA), sr(sA)),
                "s_add_u32 %s, %s, %s" % (sr(sKV), sr(sA), sr(sKVB)),
                "s_add_u32 %s, %s, 1" % (sr(sIDX), sr(sIDX))]

    def x_addr(self):
        return self.kappa(sC, sXT) + [
            "s_and_b32 %s, %s, 3" % (sr(sB2), sr(sC)),
            "s_lshl_b32 %s, %s, 6" % (sr(sB2), sr(sB2)),
            "v_xor_b32 %s, %s, %s" % (vr(vB), sr(sB2), vr(vLK)),
            "s_lshr_b32 %s, %s, 2" % (sr(sC), sr(sC)),
            "s_mul_i32 %s, %s, 24576" % (sr(sC), sr(sC)),
            "s_add_u32 %s, %s, %s" % (sr(sC), sr(sC), sr(sXB)),
            "v_add_u32 %s, %s, %s" % (vr(vB), sr(sC), vr(vB)),
            "s_add_u32 %s, %s, 1" % (sr(sXT), sr(sXT))]

    def x_dma(self, c):
        o = self.o
        out = []
        if o.skew_wq:
            out += ["s_add_u32 %s, %s, %d" % (sr(sA), sr(sB), c), "s_and_b32 %s, %s, 3" % (sr(sA), sr(sA))]
        else:
            out += ["s_mov_b32 %s, %d" % (sr(sA), c)]
        out += ["s_mul_i32 %s, %s, 24576" % (sr(sB2), sr(sA)),
                "s_mul_i32 %s, %s, 6144" % (sr(sXM), sr(sW)),
                "s_add_u32 %s, %s, %s" % (sr(sXM), sr(sXM), sr(sB2)),
                "s_lshl_b32 %s, %s, 8" % (sr(sA), sr(sA)),
                "s_mul_i32 %s, %s, 98304" % (sr(sXO), sr(sB)),
                "s_add_u32 %s, %s, %s" % (sr(sXO), sr(sXO), sr(sA)),
                "s_mul_i32 %s, %s, 24576" % (sr(sA), sr(sW)),
                "s_add_u32 %s, %s, %s" % (sr(sXO), sr(sXO), sr(sA))]
        out += self.dma(XB, dX, vOKV, sXO, o.x_flag, ("x", c), 4, sXM)
        out += ["s_add_u32 %s, %s, 16384" % (sr(sXO), sr(sXO))]
        out += self.dma(XB + 4096, dX, vOKV, sXO, o.x_flag, ("x", c), 2, sXM)
        return out

    def tr_reads(self, fset, slot):
        return ["ds_read_b64_tr_b16 %s, %s offset:%d" % (vr(vF[fset] + 4 * dt + 2 * e, 2), vr(vVA + dt), SLOT * slot + 4096 * e)
                for dt in range(8) for e in range(2)]

    def k_reads(self, fset, slot):
        return ["ds_read_b128 %s, %s offset:%d" % (vr(vF[fset] + 16 * kt + 4 * ks, 4), vr(vKA + ks), SLOT * slot + 4096 * kt)
                for kt in range(2) for ks in range(4)]

    def q_finalize(self, from_agpr):
        cs = math.log2(math.e) / math.sqrt(128.0)
        out = ["v_mov_b32 %s, %s" % (vr(vT), f32(cs)), "v_mov_b32 %s, %s" % (vr(vT + 1), f32(cs))]
        blocks = []
        for ks in range(4):
            for j in range(3):
                pre = []
                if from_agpr:
                    a = vS + 8 * ((3 * ks + j) % 3)
                    b = a + 4
                    pre += ["v_accvgpr_read_b32 %s, %s" % (vr(a + i), ar(24 * ks + 4 * j + i)) for i in range(4)]
                    pre += ["v_accvgpr_read_b32 %s, %s" % (vr(b + i), ar(24 * ks + 12 + 4 * j + i)) for i in range(4)]
                else:
                    a, b = vO + 24 * ks + 4 * j, vO + 24 * ks + 12 + 4 * j
                pre += ["v_pk_mul_f32 %s, %s, %s" % (vr(x, 2), vr(x, 2), vr(vT, 2)) for x in (a, a + 2, b, b + 2)]
                pre += ["v_cvt_pk_bf16_f32 %s, %s, %s" % (vr(a), vr(a), vr(a + 1)),
                        "v_cvt_pk_bf16_f32 %s, %s, %s" % (vr(a + 1), vr(a + 2), vr(a + 3)),
                        "v_cvt_pk_bf16_f32 %s, %s, %s" % (vr(a + 2), vr(b), vr(b + 1)),
                        "v_cvt_pk_bf16_f32 %s, %s, %s" % (vr(a + 3), vr(b + 2), vr(b + 3))]
                s32 = ["v_permlane32_swap_b32 %s, %s" % (vr(a), vr(a + 2)), "v_permlane32_swap_b32 %s, %s" % (vr(a + 1), vr(a + 3))]
                s16 = ["v_permlane16_swap_b32 %s, %s" % (vr(a), vr(a + 2)), "v_permlane16_swap_b32 %s, %s" % (vr(a + 1), vr(a + 3))]
                wr = ["v_accvgpr_write_b32 %s, %s" % (ar(aQC + 12 * ks + 4 * j + i), vr(a + i)) for i in range(4)]
                blocks.append((pre, s32, s16, wr))
        n = len(blocks)
        for k in range(n + 1):
            if k < n:
                pre = blocks[k][0]
                h = len(pre) // 2
                out += pre[:h]
            if k > 0:
                if k == n:
                    out.append("s_nop 1")
                out += blocks[k - 1][1]
            if k < n:
                out += pre[h:]
            else:
                out.append("s_nop 1")
            if k > 0:
                out += blocks[k - 1][2] + blocks[k - 1][3]
        return out

    def o_finalize(self):
        out = []
        for j in range(3):
            out += ["v_rcp_f32 %s, %s" % (vr(vT + 2 * j), vr(vL + 4 * j)), "v_rcp_f32 %s, %s" % (vr(vT + 2 * j + 1), vr(vL + 4 * j))]
        out.append("s_nop 1")
        for ks in range(4):
            for j in range(3):
                a, b = vO + 24 * ks + 4 * j, vO + 24 * ks + 12 + 4 * j
                out += ["v_pk_mul_f32 %s, %s, %s" % (vr(x, 2), vr(x, 2), vr(vT + 2 * j, 2)) for x in (a, a + 2, b, b + 2)]
                out += ["v_cvt_pk_bf16_f32 %s, %s, %s" % (vr(a), vr(a), vr(a + 1)),
                        "v_cvt_pk_bf16_f32 %s, %s, %s" % (vr(a + 1), vr(a + 2), vr(a + 3)),
                        "v_cvt_pk_bf16_f32 %s, %s, %s" % (vr(a + 2), vr(b), vr(b + 1)),
                        "v_cvt_pk_bf16_f32 %s, %s, %s" % (vr(a + 3), vr(b + 2), vr(b + 3)),
                        "ds_write_b128 %s, %s offset:%d" % (vr(vEXW), vr(a, 4), 1024 * (3 * ks + j))]
        return out

    def att_reset(self):
        out = ["v_mov_b32 %s, 0" % vr(i) for i in range(vO, vNEGM + 12)]
        out += ["s_mov_b32 %s, 0xff800000" % sr(sTH), "s_mov_b32 %s, 0xff800000" % sr(sLO), "s_mov_b32 %s, 0" % sr(sIT)]
        return out

    def last_only(self, code):
        self.uid += 1
        k = self.uid
        self.tail += ["L_alt%d:" % k] + code + ["s_branch L_altback%d" % k]
        return ["s_cmp_eq_u32 %s, 3" % sr(sIT), "s_cbranch_scc1 L_alt%d" % k, "L_altback%d:" % k]

    def sel_last(self, dst, alt):
        return ["s_cmp_eq_u32 %s, 3" % sr(sIT), "s_cselect_b32 %s, %s, %s" % (sr(dst), sr(alt), sr(dst))]

    def att_loop(self, rnd):
        A, o = self.A, self.o
        A(".p2align 6")
        A("L_att%d:" % rnd)
        for i in range(4):
            nK, nW, nV = 3 * i, 3 * i + 1, 3 * i + 2
            self.sync(8)
            mf = []
            for kt in range(2):
                for ks in range(4):
                    for j in range(3):
                        acc = vr(vS + 12 * kt + 4 * j, 4)
                        c = vr(vNEGM + 4 * j, 4) if ks == 0 else acc
                        mf.append("%s %s, %s, %s, %s" % (MF, acc, vr(vF[nK % 2] + 16 * kt + 4 * ks, 4), ar(aQC + 12 * ks + 4 * j, 4), c))
            rd = self.tr_reads(nW % 2, nW % 4)
            if rnd == 0:
                par = self.wq_params()
                if i == 3:
                    par += self.last_only(self.srd(dW, pWO, 4 << 20)[:2] + self.voff_std(vOW, 3072, 1024) +
                                          ["s_mov_b32 %s, 0" % sr(sWT)] + self.wo0_params())
                rd = rd[:4] + self.x_addr() + rd[4:] + ["ds_read_b128 %s, %s offset:%d" % (ar(aBF + 4 * j, 4), vr(vB), 4096 * j) for j in range(3)]
            else:
                par = self.wo0_params()
                if i == 3:
                    par += self.sel_last(sWOFF, sO1 + 1)
                if i % 2 == 0:
                    rd += ["ds_read_b128 %s, %s offset:%d" % (ar(aBF + 4 * j, 4), vr(vB), 3072 * (i // 2) + 1024 * j) for j in range(3)]
                if i == 3:
                    rd += ["s_movk_i32 %s, 6144" % sr(sC), "s_cmp_eq_u32 %s, 1" % sr(sIT), "s_cselect_b32 %s, 18432, %s" % (sr(sC), sr(sC)),
                           "v_add_u32 %s, %s, %s" % (vr(vB), sr(sC), vr(vB))]
            d = self.dma(SLOT * (nK % 4), dW, vOW, sWOFF, o.w_flag, None)
            if rnd == 0:
                body = rd[:19] + par + d[:1] + spread(rd[19:], d[2:])
            else:
                body = rd[:4] + par + d[:1] + spread(rd[4:], d[2:])
            self.weave(mf, body, 0.8)
            self.sync(8)
            mf = []
            for dt in range(8):
                for j in range(3):
                    acc = ar((0 if rnd == 0 else 96 * (i % 2)) + 12 * dt + 4 * j, 4)
                    mf.append("%s %s, %s, %s, %s" % (MF, acc, vr(vF[nW % 2] + 4 * dt, 4), ar(aBF + 4 * j, 4), acc))
            rd = self.tr_reads(nV % 2, nV % 4)
            mx = []
            for step in range(4):
                for j in range(3):
                    s0, s1, m = vS + 4 * j, vS + 12 + 4 * j, vT + j
                    mx.append(["v_max3_f32 %s, %s, %s, %s" % (vr(m), vr(s0), vr(s0 + 1), vr(s0 + 2)),
                               "v_max3_f32 %s, %s, %s, %s" % (vr(m), vr(m), vr(s0 + 3), vr(s1)),
                               "v_max3_f32 %s, %s, %s, %s" % (vr(m), vr(m), vr(s1 + 1), vr(s1 + 2)),
                               "v_max_f32 %s, %s, %s" % (vr(m), vr(m), vr(s1 + 3))][step])
            self.uid += 1
            k = self.uid
            mx += ["v_max3_f32 %s, %s, %s, %s" % (vr(vT + 3), vr(vT), vr(vT + 1), vr(vT + 2)),
                   "v_cmp_lt_f32 vcc, %s, %s" % (sr(sTH), vr(vT + 3)),
                   "s_cbranch_vccnz L_rs%d" % k, "L_rb%d:" % k]
            self.tail += ["L_rs%d:" % k, "s_call_b64 %s, L_rare" % sr(sRET, 2), "s_branch L_rb%d" % k]
            ex = []
            for j in range(3):
                for kt in range(2):
                    a = vS + 12 * kt + 4 * j
                    ex += ["v_exp_f32 %s, %s" % (vr(a + x), vr(a + x)) for x in range(4)]
                    if kt == 0 and j > 0:
                        b, p = vS + 12 + 4 * (j - 1), vP + 4 * (j - 1) + 2
                    elif kt == 1:
                        b, p = vS + 4 * j, vP + 4 * j
                    else:
                        continue
                    ex += ["v_cvt_pk_bf16_f32 %s, %s, %s" % (vr(p), vr(b), vr(b + 1)),
                           "v_cvt_pk_bf16_f32 %s, %s, %s" % (vr(p + 1), vr(b + 2), vr(b + 3))]
            b = vS + 20
            ex += ["s_nop 0", "v_cvt_pk_bf16_f32 %s, %s, %s" % (vr(vP + 10), vr(b), vr(b + 1)),
                   "v_cvt_pk_bf16_f32 %s, %s, %s" % (vr(vP + 11), vr(b + 2), vr(b + 3))]
            par = self.sel_last(sKV, sO1 + 2) if (rnd == 1 and i == 3) else []
            d = self.dma(SLOT * (nW % 4), dV, vOKV, sKV, o.kv_flag, None)
            body = par + d[:1] + rd[:3] + d[2:3] + rd[3:6] + mx + spread(ex[:24], spread(rd[6:], d[3:5])) + spread(ex[24:], d[5:])
            self.weave(mf, body, 1.0)
            self.sync(8)
            mf = ["%s %s, %s, %s, %s" % (MF, vr(vL + 4 * j, 4), ar(aONES, 4), vr(vP + 4 * j, 4), vr(vL + 4 * j, 4)) for j in range(3)]
            for dt in range(8):
                for j in range(3):
                    acc = vr(vO + 12 * dt + 4 * j, 4)
                    mf.append("%s %s, %s, %s, %s" % (MF, acc, vr(vF[nV % 2] + 4 * dt, 4), vr(vP + 4 * j, 4), acc))
            rd = self.k_reads((nV + 1) % 2, (nV + 1) % 4)
            par = self.kv_params()
            if rnd == 1 and i == 2:
                par += self.last_only(self.srd(dK, pWO, 4 << 20)[:3] + self.srd(dV, pWO, 4 << 20)[:3] +
                                      self.voff_o1(vOKV) + ["v_mov_b32 %s, %s" % (vr(vOW + x), vr(vOKV + x)) for x in range(4)] +
                                      ["s_mov_b32 %s, %s" % (sr(sKV), sr(sO1))])
            if rnd == 1 and i == 3:
                par += self.sel_last(sKV, sO1 + 3)
            d = self.dma(SLOT * (nV % 4), dK, vOKV, sKV, o.kv_flag, None)
            body = par + d[:1] + spread(rd, d[2:])
            if rnd == 1 and i == 0 and o.touch:
                t = vT + 4
                body += self.last_only([
                    "s_lshl_b32 %s, %s, 3" % (sr(sA), sr(sB)),
                    "s_and_b32 %s, %s, 1" % (sr(sB2), sr(sW)),
                    "s_lshl_b32 %s, %s, 2" % (sr(sB2), sr(sB2)),
                    "s_add_u32 %s, %s, %s" % (sr(sA), sr(sA), sr(sB2)),
                    "s_lshl_b32 %s, %s, 10" % (sr(sA), sr(sA)),
                    "s_lshl_b32 %s, %s, 19" % (sr(sB2), sr(sHG)),
                    "s_add_u32 %s, %s, %s" % (sr(sA), sr(sA), sr(sB2)),
                    "s_lshl_b32 %s, %s, 18" % (sr(sB2), sr(sP)),
                    "s_add_u32 %s, %s, %s" % (sr(sA), sr(sA), sr(sB2)),
                    "s_add_u32 %s, %s, 131072" % (sr(sA), sr(sA)),
                    "v_and_b32 %s, 31, %s" % (vr(t), vr(vLANE)),
                    "v_lshlrev_b32 %s, 7, %s" % (vr(t), vr(t)),
                    "buffer_load_dword %s, %s, %s, %s offen%s" % (vr(vDUM), vr(t), sr(dW, 4), sr(sA), o.touch_flag)])
            if i == 3:
                body += ["s_add_u32 %s, %s, 1" % (sr(sIT), sr(sIT))]
            self.weave(mf, body, 0.8)
        A("s_cmp_lt_u32 %s, 4" % sr(sIT))
        A("s_cbranch_scc1 L_att%d" % rnd)

    def rare(self):
        A = self.A
        A("L_rare:")
        for j in range(3):
            A("v_mov_b32 %s, %s" % (vr(vT + 3 + j), vr(vT + j)))
        A("s_nop 1")
        for j in range(3):
            A("v_permlane32_swap_b32 %s, %s" % (vr(vT + j), vr(vT + 3 + j)))
        for j in range(3):
            A("v_max_f32 %s, %s, %s" % (vr(vT + j), vr(vT + j), vr(vT + 3 + j)))
        for j in range(3):
            A("v_mov_b32 %s, %s" % (vr(vT + 3 + j), vr(vT + j)))
        A("s_nop 1")
        for j in range(3):
            A("v_permlane16_swap_b32 %s, %s" % (vr(vT + j), vr(vT + 3 + j)))
        for j in range(3):
            A("v_max3_f32 %s, %s, %s, %s" % (vr(vT + j), vr(vT + j), vr(vT + 3 + j), sr(sLO)))
        for j in range(3):
            A("v_max_f32 %s, 0, %s" % (vr(vT + 3 + j), vr(vT + j)))
        for j in range(3):
            A("v_exp_f32 %s, -%s" % (vr(vT + 3 + j), vr(vT + 3 + j)))
        for j in range(3):
            for base in (vS + 4 * j, vS + 12 + 4 * j, vNEGM + 4 * j):
                for i in range(4):
                    A("v_sub_f32 %s, %s, %s" % (vr(base + i), vr(base + i), vr(vT + j)))
        A("s_cmp_lg_u32 %s, 0" % sr(sLO))
        A("s_cbranch_scc1 L_rare_first")
        for j in range(3):
            for base in [vO + 12 * dt + 4 * j for dt in range(8)] + [vL + 4 * j]:
                for i in range(4):
                    A("v_mul_f32 %s, %s, %s" % (vr(base + i), vr(base + i), vr(vT + 3 + j)))
        A("L_rare_first:")
        A("s_mov_b32 %s, %s" % (sr(sTH), f32(8.0)))
        A("s_mov_b32 %s, 0" % sr(sLO))
        A("s_setpc_b64 %s" % sr(sRET, 2))

    def main_kernel(self):
        A, o = self.A, self.o
        lab = "main_kernel"
        A(".globl %s" % lab)
        A(".p2align 8")
        A(".type %s,@function" % lab)
        A("%s:" % lab)
        A("s_cmp_ge_u32 s2, 256")
        A("s_cbranch_scc1 L_end")
        self.stamp(0)
        A("s_and_b32 %s, s2, 7" % sr(sA))
        A("s_lshr_b32 %s, s2, 3" % sr(sB2))
        A("s_lshr_b32 %s, %s, 2" % (sr(sBLK), sr(sA)))
        A("s_mul_i32 %s, %s, 40" % (sr(sC), sr(sBLK)))
        A("s_add_u32 s4, s0, %s" % sr(sC))
        A("s_addc_u32 s5, s1, 0")
        A("s_load_dwordx8 %s, s[4:5], 0" % sr(pX, 8))
        A("s_load_dwordx2 %s, s[4:5], 32" % sr(pWO, 2))
        A("s_load_dwordx2 %s, s[0:1], 96" % sr(pWS, 2))
        A("s_and_b32 %s, %s, 15" % (sr(sB), sr(sB2)))
        A("s_lshr_b32 %s, %s, 4" % (sr(sE), sr(sB2)))
        A("s_and_b32 %s, %s, 3" % (sr(sHG), sr(sA)))
        A("s_lshl_b32 %s, %s, 1" % (sr(sHG), sr(sHG)))
        A("s_add_u32 %s, %s, %s" % (sr(sHG), sr(sHG), sr(sE)))
        A("v_lshrrev_b32 %s, 6, v0" % vr(vT))
        A("v_and_b32 %s, 63, v0" % vr(vLANE))
        self.emit_all(self.voff_std(vOKV, 3072, 1024))
        self.emit_all(self.voff_std(vOW, 65536 - 1024, 8192))
        A("s_waitcnt lgkmcnt(0)")
        A("v_readfirstlane_b32 %s, %s" % (sr(sW), vr(vT)))
        self.emit_all(self.srd(dX, pX, 16 * 98304))
        self.emit_all(self.srd(dW, pWQ, 4 << 20))
        A("s_lshr_b32 %s, %s, 1" % (sr(sP), sr(sW)))
        A("s_and_b32 %s, %s, 1" % (sr(sHF), sr(sW)))
        self.emit_all(self.x_dma(0))
        A("s_lshl_b32 %s, %s, 12" % (sr(sM0), sr(sW)))
        A("s_lshl_b32 %s, %s, 1" % (sr(sA), sr(sHG)))
        A("s_add_u32 %s, %s, %s" % (sr(sA), sr(sA), sr(sP)))
        A("s_lshl_b32 %s, %s, 9" % (sr(sWQB), sr(sA)))
        A("s_lshl_b32 %s, %s, 15" % (sr(sA), sr(sHF)))
        A("s_add_u32 %s, %s, %s" % (sr(sWQB), sr(sWQB), sr(sA)))
        A("s_mov_b32 %s, 0" % sr(sWT))
        A("s_mov_b32 %s, 0" % sr(sXT))

        def wq_dma(n):
            return self.wq_params() + self.dma(SLOT * (n % 4), dW, vOW, sWOFF, o.w_flag, n)

        self.emit_all(wq_dma(0))
        self.emit_all(wq_dma(1))
        self.emit_all(self.srd(dK, pK, 64 << 20))
        self.emit_all(self.srd(dV, pV, 64 << 20))
        self.emit_all(self.srd(dS, pWS, WS_BYTES))
        A("s_lshl_b32 %s, %s, 22" % (sr(sKVB), sr(sB)))
        A("s_lshl_b32 %s, %s, 19" % (sr(sWOB), sr(sHG)))
        A("s_add_u32 %s, %s, %s" % (sr(sKVB), sr(sKVB), sr(sWOB)))
        A("s_lshl_b32 %s, %s, 18" % (sr(sA), sr(sP)))
        A("s_add_u32 %s, %s, %s" % (sr(sKVB), sr(sKVB), sr(sA)))
        A("s_lshl_b32 %s, %s, 12" % (sr(sA), sr(sHF)))
        A("s_add_u32 %s, %s, %s" % (sr(sKVB), sr(sKVB), sr(sA)))
        A("s_lshl_b32 %s, %s, 9" % (sr(sA), sr(sP)))
        A("s_add_u32 %s, %s, %s" % (sr(sWOB), sr(sWOB), sr(sA)))
        A("s_lshl_b32 %s, %s, 15" % (sr(sA), sr(sHF)))
        A("s_add_u32 %s, %s, %s" % (sr(sO1), sr(sWOB), sr(sA)))
        A("s_add_u32 %s, %s, 131072" % (sr(sO1), sr(sO1)))
        A("s_add_u32 %s, %s, 65536" % (sr(sO1 + 1), sr(sO1)))
        A("s_add_u32 %s, %s, 262144" % (sr(sO1 + 2), sr(sO1)))
        A("s_add_u32 %s, %s, 262144" % (sr(sO1 + 3), sr(sO1 + 1)))
        A("s_lshl_b32 %s, %s, 14" % (sr(sA), sr(sHF)))
        A("s_add_u32 %s, %s, %s" % (sr(sWOB), sr(sWOB), sr(sA)))
        A("s_mov_b32 %s, 0" % sr(sIDX))
        if o.skew_kv:
            A("s_and_b32 %s, %s, 1" % (sr(sA), sr(sHG)))
            A("s_lshl_b32 %s, %s, 3" % (sr(sA), sr(sA)))
            A("s_add_u32 %s, %s, %s" % (sr(sT0), sr(sB), sr(sA)))
        else:
            A("s_mov_b32 %s, 0" % sr(sT0))
        A("s_mul_i32 %s, %s, 12288" % (sr(sXB), sr(sHF)))
        A("s_add_u32 %s, %s, %d" % (sr(sXB), sr(sXB), XB))
        A("s_lshl_b32 %s, %s, 4" % (sr(sA), sr(sBLK)))
        A("s_add_u32 %s, %s, %s" % (sr(sA), sr(sA), sr(sB)))
        A("s_lshl_b32 %s, %s, 1" % (sr(sA), sr(sA)))
        A("s_add_u32 %s, %s, %s" % (sr(sA), sr(sA), sr(sP)))
        A("s_mul_i32 %s, %s, %d" % (sr(sA), sr(sA), 4 * 98304))
        A("s_lshl_b32 %s, %s, 1" % (sr(sB2), sr(sHG)))
        A("s_add_u32 %s, %s, %s" % (sr(sB2), sr(sB2), sr(sHF)))
        A("s_mul_i32 %s, %s, 6144" % (sr(sB2), sr(sB2)))
        A("s_add_u32 %s, %s, %s" % (sr(sSTB), sr(sA), sr(sB2)))
        t0, t1, t2 = vT, vT + 1, vT + 2
        A("v_and_b32 %s, 15, %s" % (vr(t0), vr(vLANE)))
        A("v_lshrrev_b32 %s, 4, %s" % (vr(t1), vr(vLANE)))
        A("v_and_b32 %s, 7, %s" % (vr(t2), vr(vLANE)))
        A("v_lshlrev_b32 %s, 1, %s" % (vr(t2), vr(t2)))
        A("v_xor_b32 %s, %s, %s" % (vr(t2), vr(t2), vr(t1)))
        A("v_lshlrev_b32 %s, 4, %s" % (vr(t2), vr(t2)))
        A("v_lshl_add_u32 %s, %s, 8, %s" % (vr(vLK), vr(t0), vr(t2)))
        A("v_lshrrev_b32 %s, 2, %s" % (vr(t0), vr(vLANE)))
        A("v_and_b32 %s, 7, %s" % (vr(t1), vr(t0)))
        A("v_lshlrev_b32 %s, 5, %s" % (vr(t1), vr(t1)))
        A("v_lshl_add_u32 %s, %s, 8, %s" % (vr(t0), vr(t0), vr(t1)))
        A("v_and_b32 %s, 3, %s" % (vr(t1), vr(vLANE)))
        A("v_lshl_add_u32 %s, %s, 3, %s" % (vr(t0), vr(t1), vr(t0)))
        A("s_lshl_b32 %s, %s, 13" % (sr(sA), sr(sP)))
        for dt in range(8):
            A("v_xor_b32 %s, %d, %s" % (vr(vVA + dt), dt << 5, vr(t0)))
            A("v_add_u32 %s, %s, %s" % (vr(vVA + dt), sr(sA), vr(vVA + dt)))
        for ks in range(4):
            A("v_xor_b32 %s, %d, %s" % (vr(vKA + ks), ks << 6, vr(vLK)))
            A("v_add_u32 %s, %s, %s" % (vr(vKA + ks), sr(sA), vr(vKA + ks)))
        A("s_mul_i32 %s, %s, 12288" % (sr(sA), sr(sW)))
        A("s_add_u32 %s, %s, %d" % (sr(sA), sr(sA), EX))
        A("v_lshlrev_b32 %s, 4, %s" % (vr(vSTA), vr(vLANE)))
        A("v_add_u32 %s, %s, %s" % (vr(vEXW), sr(sA), vr(vSTA)))
        A("v_mov_b32 %s, 0x3f803f80" % vr(t0))
        for i in range(4):
            A("v_accvgpr_write_b32 %s, %s" % (ar(aONES + i), vr(t0)))
        for i in range(192):
            A("v_accvgpr_write_b32 %s, 0" % ar(i))
        self.emit_all(wq_dma(2))

        vBX = (vS, vS + 12)

        def xb_reads(n):
            return self.x_addr() + ["ds_read_b128 %s, %s offset:%d" % (vr(vBX[n % 2] + 4 * j, 4), vr(vB), 4096 * j) for j in range(3)]

        self.stamp(1)
        self.sync(self.vm_need([0, ("x", 0)]))
        self.emit_all(xb_reads(0) + self.tr_reads(0, 0) + wq_dma(3))
        for n in range(16):
            need = [n + 1]
            if n % 4 == 3 and n < 15:
                need.append(("x", (n + 1) // 4))
            self.sync(self.vm_need(need))
            if n == 0:
                self.stamp(2)
            self.stamp("q%d" % n)
            mf = []
            for dt in range(8):
                for j in range(3):
                    acc = vr(vO + 12 * dt + 4 * j, 4)
                    mf.append("%s %s, %s, %s, %s" % (MF, acc, vr(vF[n % 2] + 4 * dt, 4), vr(vBX[n % 2] + 4 * j, 4), "0" if n == 0 else acc))
            if n < 15:
                rd = self.tr_reads((n + 1) % 2, (n + 1) % 4)
                rd = rd[:4] + xb_reads(n + 1) + rd[4:]
            else:
                rd = self.k_reads(0, 0)
            m = n + 4
            pre = []
            if n in (0, 4, 8):
                pre = self.x_dma(n // 4 + 1)
            if m < 16:
                d = wq_dma(m)
            elif m == 16:
                d = self.voff_std(vOKV, 0, 256) + self.kv_params() + self.dma(SLOT * (m % 4), dK, vOKV, sKV, o.kv_flag, m)
            elif m == 17:
                d = ["s_add_u32 %s, %s, 256" % (sr(sWQB), sr(sWQB)), "s_mov_b32 %s, 0" % sr(sWT)] + wq_dma(m)
            elif m == 18:
                d = self.dma(SLOT * (m % 4), dV, vOKV, sKV, o.kv_flag, m)
            else:
                d = self.kv_params() + self.dma(SLOT * (m % 4), dK, vOKV, sKV, o.kv_flag, m)
            k = len(d) - 4
            nx = 22 if n < 15 else 0
            body = rd[:nx] + pre + d[:k - 1] + spread(rd[nx:], d[k:])
            self.weave(mf, body, 0.85)
        self.stamp(3)
        A("s_mov_b32 %s, 0" % sr(sXT))
        A("s_nop 4")
        self.emit_all(self.q_finalize(False))
        self.emit_all(self.att_reset())
        self.stamp(4)
        self.att_loop(0)
        self.stamp("a0end")
        A("s_nop 4")
        self.emit_all(self.o_finalize())
        self.stamp("mid1")
        self.emit_all(self.q_finalize(True))
        self.stamp("mid2")
        for i in range(96):
            A("v_accvgpr_write_b32 %s, 0" % ar(i))
        A("s_mul_i32 %s, %s, 12288" % (sr(sA), sr(sHF)))
        A("s_add_u32 %s, %s, %d" % (sr(sA), sr(sA), EX))
        A("v_add_u32 %s, %s, %s" % (vr(vB), sr(sA), vr(vSTA)))
        A("s_waitcnt lgkmcnt(0)")
        self.emit_all(self.att_reset())
        self.stamp(5)
        self.att_loop(1)

        loc = {}
        for n in range(4):
            loc[n] = SLOT * n
        for n in range(4, 7):
            loc[n] = EXTRA + SLOT * (n - 4)
        for n in range(7, 10):
            loc[n] = EX + SLOT * (n - 7)
        for n in range(10, 14):
            loc[n] = SLOT * (n - 10)
        loc[14], loc[15] = EXTRA, EXTRA + SLOT

        def o1_dma(n):
            return ["s_add_u32 %s, %s, %d" % (sr(sWOFF), sr(sO1 + n % 4), 128 * (n // 4))] + \
                self.dma(loc[n], dW, vOW, sWOFF, o.o1_flag, n)

        self.vm = [1] * 4 + [2] * 4 + [3] * 4
        vOA = vVA
        t0, t1 = vT + 6, vT + 7
        addr = ["v_lshrrev_b32 %s, 2, %s" % (vr(t0), vr(vLANE)),
                "v_bfe_u32 %s, %s, 3, 2" % (vr(t1), vr(vLANE)),
                "v_lshlrev_b32 %s, 5, %s" % (vr(t1), vr(t1)),
                "v_lshl_add_u32 %s, %s, 7, %s" % (vr(t0), vr(t0), vr(t1)),
                "v_and_b32 %s, 3, %s" % (vr(t1), vr(vLANE)),
                "v_lshl_add_u32 %s, %s, 3, %s" % (vr(t0), vr(t1), vr(t0)),
                "s_lshl_b32 %s, %s, 13" % (sr(sA), sr(sP))]
        for nt in range(4):
            addr += ["v_xor_b32 %s, %d, %s" % (vr(vOA + nt), nt << 5, vr(t0)),
                     "v_add_u32 %s, %s, %s" % (vr(vOA + nt), sr(sA), vr(vOA + nt)),
                     "v_add_u32 %s, 0x10000, %s" % (vr(vOA + 4 + nt), vr(vOA + nt)),
                     "v_add_u32 %s, 0x20000, %s" % (vr(vOA + 8 + nt), vr(vOA + nt))]
        addr += ["s_mul_i32 %s, %s, 12288" % (sr(sA), sr(sHF)),
                 "s_add_u32 %s, %s, %d" % (sr(sA), sr(sA), EX),
                 "v_add_u32 %s, %s, %s" % (vr(vB), sr(sA), vr(vSTA))]

        def o1_reads(n):
            win, off = loc[n] // 65536, loc[n] % 65536
            return ["ds_read_b64_tr_b16 %s, %s offset:%d" % (vr(vF[n % 2] + 16 * ks + 4 * nt + 2 * e, 2), vr(vOA + 4 * win + nt),
                                                             off + 4096 * ks + 2048 * e)
                    for ks in range(2) for nt in range(4) for e in range(2)]

        self.stamp("a1end")
        self.emit_all(addr)
        self.emit_all(spread(self.o_finalize(), o1_dma(4) + o1_dma(5) + o1_dma(6)))
        self.stamp(6)
        A("s_waitcnt lgkmcnt(0)")
        A("s_barrier")
        brd = ["ds_read_b128 %s, %s offset:%d" % (vr(vO + 4 * f, 4), vr(vB), 24576 * (f // 12) + 1024 * (f % 12)) for f in range(24)]
        self.emit_all(brd[:6] + o1_reads(0)[:8])
        A("s_waitcnt lgkmcnt(6)")
        self.emit_all(o1_reads(0)[8:])
        A("s_waitcnt lgkmcnt(6)")
        self.emit_all(brd[6:15])
        A("s_waitcnt lgkmcnt(6)")
        self.emit_all(brd[15:])

        vSG = vL

        def stores(c):
            out = ["s_add_u32 %s, %s, %d" % (sr(sST), sr(sSTB), 98304 * c), "s_add_u32 %s, %s, 4096" % (sr(sST2), sr(sST))]
            for jq in range(3):
                for u in range(2):
                    i = 2 * jq + u
                    a = vSG + 8 * i
                    src = 48 * c + 24 * u + 4 * jq
                    out += ["v_accvgpr_read_b32 %s, %s" % (vr(a + x), ar(src + x)) for x in range(4)]
                    out += ["v_accvgpr_read_b32 %s, %s" % (vr(a + 4 + x), ar(src + 12 + x)) for x in range(4)]
                    out += ["v_cvt_pk_bf16_f32 %s, %s, %s" % (vr(a + x), vr(a + 2 * x), vr(a + 2 * x + 1)) for x in range(4)]
                    off = " offset:%d" % (1024 * (i % 4)) if i % 4 else ""
                    out.append(("buffer_store_dwordx4 %s, %s, %s, %s offen%s%s" % (
                        vr(a, 4), vr(vSTA), sr(dS, 4), sr(sST if i < 4 else sST2), off, o.st_flag), "st"))
            return out

        plan = {0: [7, 8], 1: [9, 10], 2: [11, 12], 3: [13], 4: [14], 5: [15]}
        for n in range(16):
            if n < 15:
                self.sync(self.vm_need([n + 1]))
            else:
                A("s_waitcnt lgkmcnt(0)")
            self.stamp("o%d" % n)
            c, i = n // 4, n % 4
            mf = []
            for ks in range(2):
                for nt in range(4):
                    for j in range(3):
                        acc = ar(48 * c + 12 * nt + 4 * j, 4)
                        mf.append("%s %s, %s, %s, %s" % (MF, acc, vr(vF[n % 2] + 16 * ks + 4 * nt, 4), vr(vO + 24 * i + 12 * ks + 4 * j, 4), acc))
            rd = o1_reads(n + 1) if n < 15 else []
            d = []
            for m in plan.get(n, []):
                d += o1_dma(m)
            st = []
            if c > 0:
                s = stores(c - 1)
                if c == 1:
                    st = {0: s[:14], 1: s[14:28], 2: s[28:54], 3: s[54:]}[i]
                else:
                    st = {0: s[:28], 1: s[28:54], 2: s[54:], 3: []}[i]
            body = spread(rd, d) + st if len(d) < len(rd) else rd + d + st
            self.weave(mf, body, 1.0 if st else 0.85)
        self.stamp("o16")
        A("s_nop 7")
        self.emit_all(stores(3))
        if o.stamps:
            A("s_waitcnt vmcnt(0)")
            self.stamp(7)
            self.write_stamps(0, 8, sW, dS)
        A("L_end:")
        A("s_endpgm")
        self.rare()
        for x in self.tail:
            A(x)

    def write_stamps(self, lo, hi, swave, d):
        A = self.A
        A("s_waitcnt lgkmcnt(0)")
        A("s_cmp_lg_u32 %s, 0" % sr(swave))
        A("s_cbranch_scc1 L_nost%d" % lo)
        A("s_mov_b64 exec, 1")
        if self.o.dbg and lo == 0:
            A("s_load_dwordx2 s[20:21], s[0:1], 88")
            A("s_waitcnt lgkmcnt(0)")
            self.emit_all(self.srd(12, 20, 256))
            A("v_mov_b32 v6, 0")
            for i in range(lo, hi):
                A("v_mov_b32 v8, s%d" % (sSTAMP + 2 * i))
                A("buffer_atomic_umax v8, v6, s[12:15], 0 offen offset:%d" % (4 * i))
                A("s_nop 1")
            A("v_not_b32 v8, s%d" % sSTAMP)
            A("buffer_atomic_umax v8, v6, s[12:15], 0 offen offset:32")
            A("s_nop 1")
        A("s_mul_i32 s3, s2, %d" % (NSTAMP * 8))
        A("s_add_u32 s3, s3, %d" % STAMP_OFF)
        A("v_mov_b32 v6, 0")
        for i in range(lo, hi):
            A("v_mov_b32 v8, s%d" % (sSTAMP + 2 * i))
            A("v_mov_b32 v9, s%d" % (sSTAMP + 2 * i + 1))
            A("buffer_store_dwordx2 v[8:9], v6, %s, s3 offen offset:%d" % (sr(d, 4), 8 * i))
            A("s_nop 1")
        A("L_nost%d:" % lo)

    def reduce_kernel(self):
        A, o = self.A, self.o
        lab = "reduce_kernel"
        wpb = o.k2_block // 64
        nwg = 3072 // wpb
        A(".globl %s" % lab)
        A(".p2align 8")
        A(".type %s,@function" % lab)
        A("%s:" % lab)
        A("s_cmp_ge_u32 s2, %d" % nwg)
        A("s_cbranch_scc1 L_end2")
        self.stamp(8)
        A("s_load_dwordx2 s[20:21], s[0:1], 80")
        A("s_load_dwordx2 s[22:23], s[0:1], 96")
        A("v_lshrrev_b32 v2, 6, v0")
        A("v_and_b32 v1, 63, v0")
        A("s_mul_i32 s5, s2, %d" % wpb)
        A("v_readfirstlane_b32 s4, v2")
        A("v_lshlrev_b32 v3, 4, v1")
        A("s_add_u32 s5, s5, s4")
        A("s_mul_hi_u32 s6, s5, 0x15555556")
        A("s_mul_i32 s7, s6, 12")
        A("s_sub_u32 s7, s5, s7")
        A("s_mul_i32 s8, s6, 98304")
        A("s_lshl_b32 s9, s7, 10")
        A("s_add_u32 s8, s8, s9")
        A("s_waitcnt lgkmcnt(0)")
        self.emit_all(self.srd(16, 22, WS_BYTES))
        for h in range(8):
            A("buffer_load_dwordx4 %s, v3, s[16:19], s8 offen%s" % (vr(8 + 4 * h, 4), o.ld2_flag))
            if h < 7:
                A("s_add_u32 s8, s8, 12288")
        self.emit_all(self.srd(12, 20, 16 * 96 * 1024 * 2))
        A("s_and_b32 s9, s6, 7")
        A("s_bfe_u32 s10, s6, 0x40003")
        A("s_lshr_b32 s11, s6, 7")
        A("s_mul_i32 s10, s10, 96")
        A("s_lshr_b32 s24, s7, 1")
        A("s_lshl_b32 s24, s24, 4")
        A("s_add_u32 s10, s10, s24")
        A("s_lshl_b32 s10, s10, 11")
        A("s_lshl_b32 s11, s11, 10")
        A("s_add_u32 s10, s10, s11")
        A("s_lshl_b32 s9, s9, 7")
        A("s_add_u32 s10, s10, s9")
        A("s_and_b32 s24, s7, 1")
        A("s_lshl_b32 s24, s24, 6")
        A("s_add_u32 s10, s10, s24")
        A("v_and_b32 v4, 15, v1")
        A("v_lshlrev_b32 v4, 11, v4")
        A("v_lshrrev_b32 v5, 4, v1")
        A("v_lshl_add_u32 v4, v5, 4, v4")
        A("s_mov_b32 s25, 0xffff0000")
        for h in range(8):
            A("s_waitcnt vmcnt(%d)" % (7 - h))
            for i in range(4):
                src = vr(8 + 4 * h + i)
                if h == 0:
                    A("v_lshlrev_b32 %s, 16, %s" % (vr(40 + 2 * i), src))
                    A("v_and_b32 %s, s25, %s" % (vr(41 + 2 * i), src))
                else:
                    A("v_lshlrev_b32 v6, 16, %s" % src)
                    A("v_and_b32 v7, s25, %s" % src)
                    A("v_add_f32 %s, %s, v6" % (vr(40 + 2 * i), vr(40 + 2 * i)))
                    A("v_add_f32 %s, %s, v7" % (vr(41 + 2 * i), vr(41 + 2 * i)))
        for i in range(4):
            A("v_cvt_pk_bf16_f32 %s, %s, %s" % (vr(48 + i), vr(40 + 2 * i), vr(41 + 2 * i)))
        A("s_nop 1")
        A("v_permlane32_swap_b32 v48, v50")
        A("v_permlane32_swap_b32 v49, v51")
        A("s_nop 1")
        A("v_permlane16_swap_b32 v48, v50")
        A("v_permlane16_swap_b32 v49, v51")
        A("buffer_store_dwordx4 v[48:51], v4, s[12:15], s10 offen")
        if o.stamps:
            A("s_waitcnt vmcnt(0)")
            self.stamp(9)
            A("s_cmp_ge_u32 s2, 256")
            A("s_cbranch_scc1 L_end2")
            self.write_stamps(8, 10, 4, 16)
        A("L_end2:")
        A("s_endpgm")

    def desc(self, lab, nv, acc, ns):
        A = self.A
        A(".p2align 6")
        A(".amdhsa_kernel %s" % lab)
        A("  .amdhsa_next_free_vgpr %d" % nv)
        A("  .amdhsa_next_free_sgpr %d" % ns)
        A("  .amdhsa_accum_offset %d" % acc)
        A("  .amdhsa_group_segment_fixed_size 0")
        A("  .amdhsa_kernarg_size 104")
        A("  .amdhsa_user_sgpr_count 2")
        A("  .amdhsa_user_sgpr_kernarg_segment_ptr 1")
        A("  .amdhsa_system_sgpr_workgroup_id_x 1")
        A(".end_amdhsa_kernel")

    def build(self):
        A, o = self.A, self.o
        A("; @launch kernel=main_kernel grid=(256,1,1) block=(256,1,1) lds=163840")
        A("; @launch kernel=reduce_kernel grid=(%d,1,1) block=(%d,1,1) lds=0" % (3072 * 64 // o.k2_block, o.k2_block))
        A('.amdgcn_target "amdgcn-amd-amdhsa--gfx950"')
        A(".text")
        self.main_kernel()
        self.reduce_kernel()
        A('.section .rodata,"a"')
        self.desc("main_kernel", 512, 256, 96)
        self.desc("reduce_kernel", 64, 64, 96)
        return "\n".join(self.L) + "\n"


def parse_opts(args):
    kw = {}
    for a in args:
        k, v = a.split("=", 1)
        cur = getattr(Opt, k)
        if isinstance(cur, bool):
            kw[k] = v not in ("0", "False")
        elif isinstance(cur, int):
            kw[k] = int(v)
        else:
            kw[k] = (" " + v.replace("+", " ")) if v else ""
    return kw


if __name__ == "__main__":
    out = sys.argv[1]
    open(out, "w").write(Gen(Opt(**parse_opts(sys.argv[2:]))).build())
```

```python
import math
import struct
import sys

WS_BYTES = 288358400
STAMP_OFF = WS_BYTES - (1 << 20)
NSTAMP = 10


def f32(x):
    return "0x%08x" % struct.unpack("<I", struct.pack("<f", x))[0]


class Opt:
    stamps = False
    cyc = False
    kv_flag = " nt"
    w_flag = ""
    o1_flag = ""
    x_flag = ""
    st_flag = " sc1"
    ld2_flag = ""
    touch_flag = ""
    touch = True
    skew_kv = True
    skew_wq = True
    k2_block = 256
    nomf = 0
    prof = 0
    dbg = False

    def __init__(self, **kw):
        for k, v in kw.items():
            assert hasattr(Opt, k), k
            setattr(self, k, v)


sW, sP, sHF, sB, sBLK, sHG, sT0, sIDX = 4, 5, 6, 7, 8, 9, 10, 11
dK, dV, dW, dX, dS = 12, 16, 32, 36, 40
pX, pK, pV, pWQ, pWO, pWS = 20, 22, 24, 26, 28, 30
sKV, sWOFF, sXO, sM0, sIT, sKVB, sTH, sLO = 44, 45, 46, 47, 48, 49, 50, 51
sA, sB2, sC, sE = 52, 53, 54, 55
sWQB, sWOB, sWT, sXT, sXB, sST, sST2, sSTB = 56, 57, 58, 59, 60, 61, 62, 63
sO1 = 64
sRET = 68
sXM = 70
sSTAMP = 72

vLANE, vLK, vB = 1, 2, 3
vO, vL, vNEGM, vS, vP = 4, 100, 112, 124, 148
vF = (160, 192)
vVA, vKA, vOKV, vOW, vT = 224, 232, 236, 240, 244
vEXW, vSTA, vDUM = 252, 253, 254
aQC, aBF, aONES = 192, 240, 252

SLOT = 16384
XB = 65536
EX = 65536
EXTRA = 114688
MF = "v_mfma_f32_16x16x32_bf16"


def vr(a, n=1):
    return "v%d" % a if n == 1 else "v[%d:%d]" % (a, a + n - 1)


def ar(a, n=1):
    return "a%d" % a if n == 1 else "a[%d:%d]" % (a, a + n - 1)


def sr(a, n=1):
    return "s%d" % a if n == 1 else "s[%d:%d]" % (a, a + n - 1)


def cost(x):
    t = x[0] if isinstance(x, tuple) else x
    if t.endswith(":"):
        return 0
    if t.startswith(("v_exp", "v_rcp", "v_pk_")):
        return 8
    if t.startswith("buffer_"):
        return 8
    return 4


def spread(base, ins):
    out, k = [], 0
    for i, x in enumerate(base):
        out.append(x)
        while k < len(ins) and (k + 1) * len(base) <= (i + 1) * (len(ins) + 1):
            out.append(ins[k])
            k += 1
    return out + ins[k:]


class Gen:
    def __init__(self, o):
        self.o = o
        self.L = []
        self.vm = []
        self.tail = []
        self.uid = 0

    def A(self, s):
        self.L.append(s)

    def emit(self, x):
        if isinstance(x, tuple):
            self.A(x[0])
            self.vm.append(x[1])
        else:
            self.A(x)

    def emit_all(self, xs):
        for x in xs:
            self.emit(x)

    def stamp(self, i):
        table = {0: {k: k for k in range(10)},
                 1: {0: 0, 2: 1, "q2": 2, "q4": 3, "q8": 4, "q12": 5, 3: 6, 7: 7, 8: 8, 9: 9},
                 2: {0: 0, "a1end": 1, 6: 2, "o0": 3, "o4": 4, "o8": 5, "o16": 6, 7: 7, 8: 8, 9: 9},
                 3: {0: 0, 4: 1, "a0end": 2, "mid1": 3, "mid2": 4, 5: 5, "a1end": 6, 7: 7, 8: 8, 9: 9}}[self.o.prof]
        if i not in table:
            return
        i = table[i]
        if self.o.stamps:
            self.A("%s %s" % ("s_memtime" if self.o.cyc else "s_memrealtime", sr(sSTAMP + 2 * i, 2)))

    def vm_need(self, tags):
        idx = max([i for i, t in enumerate(self.vm) if t in tags] + [-1])
        n = len(self.vm) - 1 - idx
        self.vm = self.vm[idx + 1:]
        return n

    def sync(self, n):
        self.A("s_waitcnt vmcnt(%d) lgkmcnt(0)" % n)
        self.A("s_barrier")

    def weave(self, mf, other, front=1.0):
        total = sum(cost(x) for x in other)
        ngap = max(1, int(len(mf) * front))
        k, acc = 0, 0
        for i, m in enumerate(mf):
            self.A(m if not self.o.nomf else "s_nop 0")
            lim = max(total * (i + 1) / ngap, 0)
            while k < len(other) and (acc + cost(other[k]) / 2.0 <= lim or cost(other[k]) == 0):
                acc += cost(other[k])
                self.emit(other[k])
                k += 1
        self.emit_all(other[k:])

    def srd(self, d, p, size):
        return ["s_mov_b32 %s, %s" % (sr(d), sr(p)), "s_and_b32 %s, %s, 0xffff" % (sr(d + 1), sr(p + 1)),
                "s_mov_b32 %s, %d" % (sr(d + 2), size), "s_mov_b32 %s, 0x20000" % sr(d + 3)]

    def dma(self, loc, srd, voff, soff, flag, tag, cnt=4, m0=sM0):
        out = ["s_add_u32 m0, %s, %d" % (sr(m0), loc), "s_nop 0"]
        for i in range(cnt):
            off = " offset:%d" % (1024 * i) if i else ""
            out.append(("buffer_load_dwordx4 %s, %s, %s offen%s%s lds" % (vr(voff + i), sr(srd, 4), sr(soff), off, flag), tag))
        return out

    def voff_std(self, dst, mul_i, mul_r):
        t0, t1 = vT + 6, vT + 7
        return ["v_lshrrev_b32 %s, 4, %s" % (vr(t0), vr(vLANE)),
                "v_and_b32 %s, 15, %s" % (vr(t1), vr(vLANE)),
                "v_lshlrev_b32 %s, 1, %s" % (vr(dst), vr(t0)),
                "v_xor_b32 %s, %s, %s" % (vr(t1), vr(t1), vr(dst)),
                "v_lshlrev_b32 %s, 4, %s" % (vr(t1), vr(t1)),
                "v_mul_u32_u24 %s, %d, %s" % (vr(t0), mul_r, vr(t0)),
                "v_add_u32 %s, %s, %s" % (vr(dst), vr(t0), vr(t1)),
                "v_xor_b32 %s, 0x80, %s" % (vr(t1), vr(t1)),
                "v_add_u32 %s, %s, %s" % (vr(dst + 1), vr(t0), vr(t1)),
                "v_add_u32 %s, %d, %s" % (vr(dst + 2), 2 * mul_i, vr(dst)),
                "v_add_u32 %s, %d, %s" % (vr(dst + 3), 3 * mul_i, vr(dst + 1)),
                "v_add_u32 %s, %d, %s" % (vr(dst + 1), mul_i, vr(dst + 1))]

    def voff_o1(self, dst):
        t0, t1 = vT + 6, vT + 7
        out = ["v_lshrrev_b32 %s, 3, %s" % (vr(t0), vr(vLANE)),
               "v_and_b32 %s, 7, %s" % (vr(t1), vr(vLANE)),
               "v_and_b32 %s, 6, %s" % (vr(dst), vr(t0)),
               "v_xor_b32 %s, %s, %s" % (vr(t1), vr(t1), vr(dst)),
               "v_lshlrev_b32 %s, 4, %s" % (vr(t1), vr(t1)),
               "v_lshl_add_u32 %s, %s, 10, %s" % (vr(dst), vr(t0), vr(t1))]
        for i in range(1, 4):
            out.append("v_add_u32 %s, %d, %s" % (vr(dst + i), 7168 * i, vr(dst)))
        return out

    def kappa(self, dst, cnt):
        if not self.o.skew_wq:
            return ["s_and_b32 %s, %s, 15" % (sr(dst), sr(cnt))]
        return ["s_lshl_b32 %s, %s, 2" % (sr(dst), sr(sB)),
                "s_add_u32 %s, %s, %s" % (sr(dst), sr(dst), sr(cnt)),
                "s_and_b32 %s, %s, 12" % (sr(dst), sr(dst)),
                "s_lshr_b32 %s, %s, 2" % (sr(sE), sr(sB)),
                "s_add_u32 %s, %s, %s" % (sr(sE), sr(sE), sr(cnt)),
                "s_and_b32 %s, %s, 3" % (sr(sE), sr(sE)),
                "s_or_b32 %s, %s, %s" % (sr(dst), sr(dst), sr(sE))]

    def wq_params(self):
        return self.kappa(sA, sWT) + [
            "s_lshl_b32 %s, %s, 18" % (sr(sA), sr(sA)),
            "s_add_u32 %s, %s, %s" % (sr(sWOFF), sr(sA), sr(sWQB)),
            "s_add_u32 %s, %s, 1" % (sr(sWT), sr(sWT))]

    def wo0_params(self):
        return ["s_bfe_u32 %s, %s, 0x20001" % (sr(sA), sr(sWT)),
                "s_lshl_b32 %s, %s, 15" % (sr(sA), sr(sA)),
                "s_lshr_b32 %s, %s, 3" % (sr(sB2), sr(sWT)),
                "s_lshl_b32 %s, %s, 18" % (sr(sB2), sr(sB2)),
                "s_add_u32 %s, %s, %s" % (sr(sA), sr(sA), sr(sB2)),
                "s_and_b32 %s, %s, 1" % (sr(sB2), sr(sWT)),
                "s_lshl_b32 %s, %s, 8" % (sr(sB2), sr(sB2)),
                "s_add_u32 %s, %s, %s" % (sr(sA), sr(sA), sr(sB2)),
                "s_add_u32 %s, %s, %s" % (sr(sWOFF), sr(sA), sr(sWOB)),
                "s_add_u32 %s, %s, 1" % (sr(sWT), sr(sWT))]

    def kv_params(self):
        return ["s_add_u32 %s, %s, %s" % (sr(sA), sr(sIDX), sr(sT0)),
                "s_and_b32 %s, %s, 15" % (sr(sA), sr(sA)),
                "s_and_b32 %s, %s, 16" % (sr(sB2), sr(sIDX)),
                "s_or_b32 %s, %s, %s" % (sr(sA), sr(sA), sr(sB2)),
                "s_lshl_b32 %s, %s, 13" % (sr(sA), sr(sA)),
                "s_add_u32 %s, %s, %s" % (sr(sKV), sr(sA), sr(sKVB)),
                "s_add_u32 %s, %s, 1" % (sr(sIDX), sr(sIDX))]

    def x_addr(self):
        return self.kappa(sC, sXT) + [
            "s_and_b32 %s, %s, 3" % (sr(sB2), sr(sC)),
            "s_lshl_b32 %s, %s, 6" % (sr(sB2), sr(sB2)),
            "v_xor_b32 %s, %s, %s" % (vr(vB), sr(sB2), vr(vLK)),
            "s_lshr_b32 %s, %s, 2" % (sr(sC), sr(sC)),
            "s_mul_i32 %s, %s, 24576" % (sr(sC), sr(sC)),
            "s_add_u32 %s, %s, %s" % (sr(sC), sr(sC), sr(sXB)),
            "v_add_u32 %s, %s, %s" % (vr(vB), sr(sC), vr(vB)),
            "s_add_u32 %s, %s, 1" % (sr(sXT), sr(sXT))]

    def x_dma(self, c):
        o = self.o
        out = []
        if o.skew_wq:
            out += ["s_add_u32 %s, %s, %d" % (sr(sA), sr(sB), c), "s_and_b32 %s, %s, 3" % (sr(sA), sr(sA))]
        else:
            out += ["s_mov_b32 %s, %d" % (sr(sA), c)]
        out += ["s_mul_i32 %s, %s, 24576" % (sr(sB2), sr(sA)),
                "s_mul_i32 %s, %s, 6144" % (sr(sXM), sr(sW)),
                "s_add_u32 %s, %s, %s" % (sr(sXM), sr(sXM), sr(sB2)),
                "s_lshl_b32 %s, %s, 8" % (sr(sA), sr(sA)),
                "s_mul_i32 %s, %s, 98304" % (sr(sXO), sr(sB)),
                "s_add_u32 %s, %s, %s" % (sr(sXO), sr(sXO), sr(sA)),
                "s_mul_i32 %s, %s, 24576" % (sr(sA), sr(sW)),
                "s_add_u32 %s, %s, %s" % (sr(sXO), sr(sXO), sr(sA))]
        out += self.dma(XB, dX, vOKV, sXO, o.x_flag, ("x", c), 4, sXM)
        out += ["s_add_u32 %s, %s, 16384" % (sr(sXO), sr(sXO))]
        out += self.dma(XB + 4096, dX, vOKV, sXO, o.x_flag, ("x", c), 2, sXM)
        return out

    def tr_reads(self, fset, slot):
        return ["ds_read_b64_tr_b16 %s, %s offset:%d" % (vr(vF[fset] + 4 * dt + 2 * e, 2), vr(vVA + dt), SLOT * slot + 4096 * e)
                for dt in range(8) for e in range(2)]

    def k_reads(self, fset, slot):
        return ["ds_read_b128 %s, %s offset:%d" % (vr(vF[fset] + 16 * kt + 4 * ks, 4), vr(vKA + ks), SLOT * slot + 4096 * kt)
                for kt in range(2) for ks in range(4)]

    def q_finalize(self, from_agpr):
        cs = math.log2(math.e) / math.sqrt(128.0)
        out = ["v_mov_b32 %s, %s" % (vr(vT), f32(cs)), "v_mov_b32 %s, %s" % (vr(vT + 1), f32(cs))]
        blocks = []
        for ks in range(4):
            for j in range(3):
                pre = []
                if from_agpr:
                    a = vS + 8 * ((3 * ks + j) % 3)
                    b = a + 4
                    pre += ["v_accvgpr_read_b32 %s, %s" % (vr(a + i), ar(24 * ks + 4 * j + i)) for i in range(4)]
                    pre += ["v_accvgpr_read_b32 %s, %s" % (vr(b + i), ar(24 * ks + 12 + 4 * j + i)) for i in range(4)]
                else:
                    a, b = vO + 24 * ks + 4 * j, vO + 24 * ks + 12 + 4 * j
                pre += ["v_pk_mul_f32 %s, %s, %s" % (vr(x, 2), vr(x, 2), vr(vT, 2)) for x in (a, a + 2, b, b + 2)]
                pre += ["v_cvt_pk_bf16_f32 %s, %s, %s" % (vr(a), vr(a), vr(a + 1)),
                        "v_cvt_pk_bf16_f32 %s, %s, %s" % (vr(a + 1), vr(a + 2), vr(a + 3)),
                        "v_cvt_pk_bf16_f32 %s, %s, %s" % (vr(a + 2), vr(b), vr(b + 1)),
                        "v_cvt_pk_bf16_f32 %s, %s, %s" % (vr(a + 3), vr(b + 2), vr(b + 3))]
                s32 = ["v_permlane32_swap_b32 %s, %s" % (vr(a), vr(a + 2)), "v_permlane32_swap_b32 %s, %s" % (vr(a + 1), vr(a + 3))]
                s16 = ["v_permlane16_swap_b32 %s, %s" % (vr(a), vr(a + 2)), "v_permlane16_swap_b32 %s, %s" % (vr(a + 1), vr(a + 3))]
                wr = ["v_accvgpr_write_b32 %s, %s" % (ar(aQC + 12 * ks + 4 * j + i), vr(a + i)) for i in range(4)]
                blocks.append((pre, s32, s16, wr))
        n = len(blocks)
        for k in range(n + 1):
            if k < n:
                pre = blocks[k][0]
                h = len(pre) // 2
                out += pre[:h]
            if k > 0:
                if k == n:
                    out.append("s_nop 1")
                out += blocks[k - 1][1]
            if k < n:
                out += pre[h:]
            else:
                out.append("s_nop 1")
            if k > 0:
                out += blocks[k - 1][2] + blocks[k - 1][3]
        return out

    def o_finalize(self):
        out = []
        for j in range(3):
            out += ["v_rcp_f32 %s, %s" % (vr(vT + 2 * j), vr(vL + 4 * j)), "v_rcp_f32 %s, %s" % (vr(vT + 2 * j + 1), vr(vL + 4 * j))]
        out.append("s_nop 1")
        for ks in range(4):
            for j in range(3):
                a, b = vO + 24 * ks + 4 * j, vO + 24 * ks + 12 + 4 * j
                out += ["v_pk_mul_f32 %s, %s, %s" % (vr(x, 2), vr(x, 2), vr(vT + 2 * j, 2)) for x in (a, a + 2, b, b + 2)]
                out += ["v_cvt_pk_bf16_f32 %s, %s, %s" % (vr(a), vr(a), vr(a + 1)),
                        "v_cvt_pk_bf16_f32 %s, %s, %s" % (vr(a + 1), vr(a + 2), vr(a + 3)),
                        "v_cvt_pk_bf16_f32 %s, %s, %s" % (vr(a + 2), vr(b), vr(b + 1)),
                        "v_cvt_pk_bf16_f32 %s, %s, %s" % (vr(a + 3), vr(b + 2), vr(b + 3)),
                        "ds_write_b128 %s, %s offset:%d" % (vr(vEXW), vr(a, 4), 1024 * (3 * ks + j))]
        return out

    def att_reset(self):
        out = ["v_mov_b32 %s, 0" % vr(i) for i in range(vO, vNEGM + 12)]
        out += ["s_mov_b32 %s, 0xff800000" % sr(sTH), "s_mov_b32 %s, 0xff800000" % sr(sLO), "s_mov_b32 %s, 0" % sr(sIT)]
        return out

    def last_only(self, code):
        self.uid += 1
        k = self.uid
        self.tail += ["L_alt%d:" % k] + code + ["s_branch L_altback%d" % k]
        return ["s_cmp_eq_u32 %s, 3" % sr(sIT), "s_cbranch_scc1 L_alt%d" % k, "L_altback%d:" % k]

    def sel_last(self, dst, alt):
        return ["s_cmp_eq_u32 %s, 3" % sr(sIT), "s_cselect_b32 %s, %s, %s" % (sr(dst), sr(alt), sr(dst))]

    def att_loop(self, rnd):
        A, o = self.A, self.o
        A(".p2align 6")
        A("L_att%d:" % rnd)
        for i in range(4):
            nK, nW, nV = 3 * i, 3 * i + 1, 3 * i + 2
            self.sync(8)
            mf = []
            for kt in range(2):
                for ks in range(4):
                    for j in range(3):
                        acc = vr(vS + 12 * kt + 4 * j, 4)
                        c = vr(vNEGM + 4 * j, 4) if ks == 0 else acc
                        mf.append("%s %s, %s, %s, %s" % (MF, acc, vr(vF[nK % 2] + 16 * kt + 4 * ks, 4), ar(aQC + 12 * ks + 4 * j, 4), c))
            rd = self.tr_reads(nW % 2, nW % 4)
            if rnd == 0:
                par = self.wq_params()
                if i == 3:
                    par += self.last_only(self.srd(dW, pWO, 4 << 20)[:2] + self.voff_std(vOW, 3072, 1024) +
                                          ["s_mov_b32 %s, 0" % sr(sWT)] + self.wo0_params())
                rd = rd[:4] + self.x_addr() + rd[4:] + ["ds_read_b128 %s, %s offset:%d" % (ar(aBF + 4 * j, 4), vr(vB), 4096 * j) for j in range(3)]
            else:
                par = self.wo0_params()
                if i == 3:
                    par += self.sel_last(sWOFF, sO1 + 1)
                if i % 2 == 0:
                    rd += ["ds_read_b128 %s, %s offset:%d" % (ar(aBF + 4 * j, 4), vr(vB), 3072 * (i // 2) + 1024 * j) for j in range(3)]
                if i == 3:
                    rd += ["s_movk_i32 %s, 6144" % sr(sC), "s_cmp_eq_u32 %s, 1" % sr(sIT), "s_cselect_b32 %s, 18432, %s" % (sr(sC), sr(sC)),
                           "v_add_u32 %s, %s, %s" % (vr(vB), sr(sC), vr(vB))]
            d = self.dma(SLOT * (nK % 4), dW, vOW, sWOFF, o.w_flag, None)
            if rnd == 0:
                body = rd[:19] + par + d[:1] + spread(rd[19:], d[2:])
            else:
                body = rd[:4] + par + d[:1] + spread(rd[4:], d[2:])
            self.weave(mf, body, 0.8)
            self.sync(8)
            mf = []
            for dt in range(8):
                for j in range(3):
                    acc = ar((0 if rnd == 0 else 96 * (i % 2)) + 12 * dt + 4 * j, 4)
                    mf.append("%s %s, %s, %s, %s" % (MF, acc, vr(vF[nW % 2] + 4 * dt, 4), ar(aBF + 4 * j, 4), acc))
            rd = self.tr_reads(nV % 2, nV % 4)
            mx = []
            for step in range(4):
                for j in range(3):
                    s0, s1, m = vS + 4 * j, vS + 12 + 4 * j, vT + j
                    mx.append(["v_max3_f32 %s, %s, %s, %s" % (vr(m), vr(s0), vr(s0 + 1), vr(s0 + 2)),
                               "v_max3_f32 %s, %s, %s, %s" % (vr(m), vr(m), vr(s0 + 3), vr(s1)),
                               "v_max3_f32 %s, %s, %s, %s" % (vr(m), vr(m), vr(s1 + 1), vr(s1 + 2)),
                               "v_max_f32 %s, %s, %s" % (vr(m), vr(m), vr(s1 + 3))][step])
            self.uid += 1
            k = self.uid
            mx += ["v_max3_f32 %s, %s, %s, %s" % (vr(vT + 3), vr(vT), vr(vT + 1), vr(vT + 2)),
                   "v_cmp_lt_f32 vcc, %s, %s" % (sr(sTH), vr(vT + 3)),
                   "s_cbranch_vccnz L_rs%d" % k, "L_rb%d:" % k]
            self.tail += ["L_rs%d:" % k, "s_call_b64 %s, L_rare" % sr(sRET, 2), "s_branch L_rb%d" % k]
            ex = []
            for j in range(3):
                for kt in range(2):
                    a = vS + 12 * kt + 4 * j
                    ex += ["v_exp_f32 %s, %s" % (vr(a + x), vr(a + x)) for x in range(4)]
                    if kt == 0 and j > 0:
                        b, p = vS + 12 + 4 * (j - 1), vP + 4 * (j - 1) + 2
                    elif kt == 1:
                        b, p = vS + 4 * j, vP + 4 * j
                    else:
                        continue
                    ex += ["v_cvt_pk_bf16_f32 %s, %s, %s" % (vr(p), vr(b), vr(b + 1)),
                           "v_cvt_pk_bf16_f32 %s, %s, %s" % (vr(p + 1), vr(b + 2), vr(b + 3))]
            b = vS + 20
            ex += ["s_nop 0", "v_cvt_pk_bf16_f32 %s, %s, %s" % (vr(vP + 10), vr(b), vr(b + 1)),
                   "v_cvt_pk_bf16_f32 %s, %s, %s" % (vr(vP + 11), vr(b + 2), vr(b + 3))]
            par = self.sel_last(sKV, sO1 + 2) if (rnd == 1 and i == 3) else []
            d = self.dma(SLOT * (nW % 4), dV, vOKV, sKV, o.kv_flag, None)
            body = par + d[:1] + rd[:3] + d[2:3] + rd[3:6] + mx + spread(ex[:24], spread(rd[6:], d[3:5])) + spread(ex[24:], d[5:])
            self.weave(mf, body, 1.0)
            self.sync(8)
            mf = ["%s %s, %s, %s, %s" % (MF, vr(vL + 4 * j, 4), ar(aONES, 4), vr(vP + 4 * j, 4), vr(vL + 4 * j, 4)) for j in range(3)]
            for dt in range(8):
                for j in range(3):
                    acc = vr(vO + 12 * dt + 4 * j, 4)
                    mf.append("%s %s, %s, %s, %s" % (MF, acc, vr(vF[nV % 2] + 4 * dt, 4), vr(vP + 4 * j, 4), acc))
            rd = self.k_reads((nV + 1) % 2, (nV + 1) % 4)
            par = self.kv_params()
            if rnd == 1 and i == 2:
                par += self.last_only(self.srd(dK, pWO, 4 << 20)[:3] + self.srd(dV, pWO, 4 << 20)[:3] +
                                      self.voff_o1(vOKV) + ["v_mov_b32 %s, %s" % (vr(vOW + x), vr(vOKV + x)) for x in range(4)] +
                                      ["s_mov_b32 %s, %s" % (sr(sKV), sr(sO1))])
            if rnd == 1 and i == 3:
                par += self.sel_last(sKV, sO1 + 3)
            d = self.dma(SLOT * (nV % 4), dK, vOKV, sKV, o.kv_flag, None)
            body = par + d[:1] + spread(rd, d[2:])
            if rnd == 1 and i == 0 and o.touch:
                t = vT + 4
                body += self.last_only([
                    "s_lshl_b32 %s, %s, 3" % (sr(sA), sr(sB)),
                    "s_and_b32 %s, %s, 1" % (sr(sB2), sr(sW)),
                    "s_lshl_b32 %s, %s, 2" % (sr(sB2), sr(sB2)),
                    "s_add_u32 %s, %s, %s" % (sr(sA), sr(sA), sr(sB2)),
                    "s_lshl_b32 %s, %s, 10" % (sr(sA), sr(sA)),
                    "s_lshl_b32 %s, %s, 19" % (sr(sB2), sr(sHG)),
                    "s_add_u32 %s, %s, %s" % (sr(sA), sr(sA), sr(sB2)),
                    "s_lshl_b32 %s, %s, 18" % (sr(sB2), sr(sP)),
                    "s_add_u32 %s, %s, %s" % (sr(sA), sr(sA), sr(sB2)),
                    "s_add_u32 %s, %s, 131072" % (sr(sA), sr(sA)),
                    "v_and_b32 %s, 31, %s" % (vr(t), vr(vLANE)),
                    "v_lshlrev_b32 %s, 7, %s" % (vr(t), vr(t)),
                    "buffer_load_dword %s, %s, %s, %s offen%s" % (vr(vDUM), vr(t), sr(dW, 4), sr(sA), o.touch_flag)])
            if i == 3:
                body += ["s_add_u32 %s, %s, 1" % (sr(sIT), sr(sIT))]
            self.weave(mf, body, 0.8)
        A("s_cmp_lt_u32 %s, 4" % sr(sIT))
        A("s_cbranch_scc1 L_att%d" % rnd)

    def rare(self):
        A = self.A
        A("L_rare:")
        for j in range(3):
            A("v_mov_b32 %s, %s" % (vr(vT + 3 + j), vr(vT + j)))
        A("s_nop 1")
        for j in range(3):
            A("v_permlane32_swap_b32 %s, %s" % (vr(vT + j), vr(vT + 3 + j)))
        for j in range(3):
            A("v_max_f32 %s, %s, %s" % (vr(vT + j), vr(vT + j), vr(vT + 3 + j)))
        for j in range(3):
            A("v_mov_b32 %s, %s" % (vr(vT + 3 + j), vr(vT + j)))
        A("s_nop 1")
        for j in range(3):
            A("v_permlane16_swap_b32 %s, %s" % (vr(vT + j), vr(vT + 3 + j)))
        for j in range(3):
            A("v_max3_f32 %s, %s, %s, %s" % (vr(vT + j), vr(vT + j), vr(vT + 3 + j), sr(sLO)))
        for j in range(3):
            A("v_max_f32 %s, 0, %s" % (vr(vT + 3 + j), vr(vT + j)))
        for j in range(3):
            A("v_exp_f32 %s, -%s" % (vr(vT + 3 + j), vr(vT + 3 + j)))
        for j in range(3):
            for base in (vS + 4 * j, vS + 12 + 4 * j, vNEGM + 4 * j):
                for i in range(4):
                    A("v_sub_f32 %s, %s, %s" % (vr(base + i), vr(base + i), vr(vT + j)))
        A("s_cmp_lg_u32 %s, 0" % sr(sLO))
        A("s_cbranch_scc1 L_rare_first")
        for j in range(3):
            for base in [vO + 12 * dt + 4 * j for dt in range(8)] + [vL + 4 * j]:
                for i in range(4):
                    A("v_mul_f32 %s, %s, %s" % (vr(base + i), vr(base + i), vr(vT + 3 + j)))
        A("L_rare_first:")
        A("s_mov_b32 %s, %s" % (sr(sTH), f32(8.0)))
        A("s_mov_b32 %s, 0" % sr(sLO))
        A("s_setpc_b64 %s" % sr(sRET, 2))

    def main_kernel(self):
        A, o = self.A, self.o
        lab = "main_kernel"
        A(".globl %s" % lab)
        A(".p2align 8")
        A(".type %s,@function" % lab)
        A("%s:" % lab)
        A("s_cmp_ge_u32 s2, 256")
        A("s_cbranch_scc1 L_end")
        self.stamp(0)
        A("s_and_b32 %s, s2, 7" % sr(sA))
        A("s_lshr_b32 %s, s2, 3" % sr(sB2))
        A("s_lshr_b32 %s, %s, 2" % (sr(sBLK), sr(sA)))
        A("s_mul_i32 %s, %s, 40" % (sr(sC), sr(sBLK)))
        A("s_add_u32 s4, s0, %s" % sr(sC))
        A("s_addc_u32 s5, s1, 0")
        A("s_load_dwordx8 %s, s[4:5], 0" % sr(pX, 8))
        A("s_load_dwordx2 %s, s[4:5], 32" % sr(pWO, 2))
        A("s_load_dwordx2 %s, s[0:1], 96" % sr(pWS, 2))
        A("s_and_b32 %s, %s, 15" % (sr(sB), sr(sB2)))
        A("s_lshr_b32 %s, %s, 4" % (sr(sE), sr(sB2)))
        A("s_and_b32 %s, %s, 3" % (sr(sHG), sr(sA)))
        A("s_lshl_b32 %s, %s, 1" % (sr(sHG), sr(sHG)))
        A("s_add_u32 %s, %s, %s" % (sr(sHG), sr(sHG), sr(sE)))
        A("v_lshrrev_b32 %s, 6, v0" % vr(vT))
        A("v_and_b32 %s, 63, v0" % vr(vLANE))
        self.emit_all(self.voff_std(vOKV, 3072, 1024))
        self.emit_all(self.voff_std(vOW, 65536 - 1024, 8192))
        A("s_waitcnt lgkmcnt(0)")
        A("v_readfirstlane_b32 %s, %s" % (sr(sW), vr(vT)))
        self.emit_all(self.srd(dX, pX, 16 * 98304))
        self.emit_all(self.srd(dW, pWQ, 4 << 20))
        A("s_lshr_b32 %s, %s, 1" % (sr(sP), sr(sW)))
        A("s_and_b32 %s, %s, 1" % (sr(sHF), sr(sW)))
        self.emit_all(self.x_dma(0))
        A("s_lshl_b32 %s, %s, 12" % (sr(sM0), sr(sW)))
        A("s_lshl_b32 %s, %s, 1" % (sr(sA), sr(sHG)))
        A("s_add_u32 %s, %s, %s" % (sr(sA), sr(sA), sr(sP)))
        A("s_lshl_b32 %s, %s, 9" % (sr(sWQB), sr(sA)))
        A("s_lshl_b32 %s, %s, 15" % (sr(sA), sr(sHF)))
        A("s_add_u32 %s, %s, %s" % (sr(sWQB), sr(sWQB), sr(sA)))
        A("s_mov_b32 %s, 0" % sr(sWT))
        A("s_mov_b32 %s, 0" % sr(sXT))

        def wq_dma(n):
            return self.wq_params() + self.dma(SLOT * (n % 4), dW, vOW, sWOFF, o.w_flag, n)

        self.emit_all(wq_dma(0))
        self.emit_all(wq_dma(1))
        self.emit_all(self.srd(dK, pK, 64 << 20))
        self.emit_all(self.srd(dV, pV, 64 << 20))
        self.emit_all(self.srd(dS, pWS, WS_BYTES))
        A("s_lshl_b32 %s, %s, 22" % (sr(sKVB), sr(sB)))
        A("s_lshl_b32 %s, %s, 19" % (sr(sWOB), sr(sHG)))
        A("s_add_u32 %s, %s, %s" % (sr(sKVB), sr(sKVB), sr(sWOB)))
        A("s_lshl_b32 %s, %s, 18" % (sr(sA), sr(sP)))
        A("s_add_u32 %s, %s, %s" % (sr(sKVB), sr(sKVB), sr(sA)))
        A("s_lshl_b32 %s, %s, 12" % (sr(sA), sr(sHF)))
        A("s_add_u32 %s, %s, %s" % (sr(sKVB), sr(sKVB), sr(sA)))
        A("s_lshl_b32 %s, %s, 9" % (sr(sA), sr(sP)))
        A("s_add_u32 %s, %s, %s" % (sr(sWOB), sr(sWOB), sr(sA)))
        A("s_lshl_b32 %s, %s, 15" % (sr(sA), sr(sHF)))
        A("s_add_u32 %s, %s, %s" % (sr(sO1), sr(sWOB), sr(sA)))
        A("s_add_u32 %s, %s, 131072" % (sr(sO1), sr(sO1)))
        A("s_add_u32 %s, %s, 65536" % (sr(sO1 + 1), sr(sO1)))
        A("s_add_u32 %s, %s, 262144" % (sr(sO1 + 2), sr(sO1)))
        A("s_add_u32 %s, %s, 262144" % (sr(sO1 + 3), sr(sO1 + 1)))
        A("s_lshl_b32 %s, %s, 14" % (sr(sA), sr(sHF)))
        A("s_add_u32 %s, %s, %s" % (sr(sWOB), sr(sWOB), sr(sA)))
        A("s_mov_b32 %s, 0" % sr(sIDX))
        if o.skew_kv:
            A("s_and_b32 %s, %s, 1" % (sr(sA), sr(sHG)))
            A("s_lshl_b32 %s, %s, 3" % (sr(sA), sr(sA)))
            A("s_add_u32 %s, %s, %s" % (sr(sT0), sr(sB), sr(sA)))
        else:
            A("s_mov_b32 %s, 0" % sr(sT0))
        A("s_mul_i32 %s, %s, 12288" % (sr(sXB), sr(sHF)))
        A("s_add_u32 %s, %s, %d" % (sr(sXB), sr(sXB), XB))
        A("s_lshl_b32 %s, %s, 4" % (sr(sA), sr(sBLK)))
        A("s_add_u32 %s, %s, %s" % (sr(sA), sr(sA), sr(sB)))
        A("s_lshl_b32 %s, %s, 1" % (sr(sA), sr(sA)))
        A("s_add_u32 %s, %s, %s" % (sr(sA), sr(sA), sr(sP)))
        A("s_mul_i32 %s, %s, %d" % (sr(sA), sr(sA), 4 * 98304))
        A("s_lshl_b32 %s, %s, 1" % (sr(sB2), sr(sHG)))
        A("s_add_u32 %s, %s, %s" % (sr(sB2), sr(sB2), sr(sHF)))
        A("s_mul_i32 %s, %s, 6144" % (sr(sB2), sr(sB2)))
        A("s_add_u32 %s, %s, %s" % (sr(sSTB), sr(sA), sr(sB2)))
        t0, t1, t2 = vT, vT + 1, vT + 2
        A("v_and_b32 %s, 15, %s" % (vr(t0), vr(vLANE)))
        A("v_lshrrev_b32 %s, 4, %s" % (vr(t1), vr(vLANE)))
        A("v_and_b32 %s, 7, %s" % (vr(t2), vr(vLANE)))
        A("v_lshlrev_b32 %s, 1, %s" % (vr(t2), vr(t2)))
        A("v_xor_b32 %s, %s, %s" % (vr(t2), vr(t2), vr(t1)))
        A("v_lshlrev_b32 %s, 4, %s" % (vr(t2), vr(t2)))
        A("v_lshl_add_u32 %s, %s, 8, %s" % (vr(vLK), vr(t0), vr(t2)))
        A("v_lshrrev_b32 %s, 2, %s" % (vr(t0), vr(vLANE)))
        A("v_and_b32 %s, 7, %s" % (vr(t1), vr(t0)))
        A("v_lshlrev_b32 %s, 5, %s" % (vr(t1), vr(t1)))
        A("v_lshl_add_u32 %s, %s, 8, %s" % (vr(t0), vr(t0), vr(t1)))
        A("v_and_b32 %s, 3, %s" % (vr(t1), vr(vLANE)))
        A("v_lshl_add_u32 %s, %s, 3, %s" % (vr(t0), vr(t1), vr(t0)))
        A("s_lshl_b32 %s, %s, 13" % (sr(sA), sr(sP)))
        for dt in range(8):
            A("v_xor_b32 %s, %d, %s" % (vr(vVA + dt), dt << 5, vr(t0)))
            A("v_add_u32 %s, %s, %s" % (vr(vVA + dt), sr(sA), vr(vVA + dt)))
        for ks in range(4):
            A("v_xor_b32 %s, %d, %s" % (vr(vKA + ks), ks << 6, vr(vLK)))
            A("v_add_u32 %s, %s, %s" % (vr(vKA + ks), sr(sA), vr(vKA + ks)))
        A("s_mul_i32 %s, %s, 12288" % (sr(sA), sr(sW)))
        A("s_add_u32 %s, %s, %d" % (sr(sA), sr(sA), EX))
        A("v_lshlrev_b32 %s, 4, %s" % (vr(vSTA), vr(vLANE)))
        A("v_add_u32 %s, %s, %s" % (vr(vEXW), sr(sA), vr(vSTA)))
        A("v_mov_b32 %s, 0x3f803f80" % vr(t0))
        for i in range(4):
            A("v_accvgpr_write_b32 %s, %s" % (ar(aONES + i), vr(t0)))
        for i in range(192):
            A("v_accvgpr_write_b32 %s, 0" % ar(i))
        self.emit_all(wq_dma(2))

        vBX = (vS, vS + 12)

        def xb_reads(n):
            return self.x_addr() + ["ds_read_b128 %s, %s offset:%d" % (vr(vBX[n % 2] + 4 * j, 4), vr(vB), 4096 * j) for j in range(3)]

        self.stamp(1)
        self.sync(self.vm_need([0, ("x", 0)]))
        self.emit_all(xb_reads(0) + self.tr_reads(0, 0) + wq_dma(3))
        for n in range(16):
            need = [n + 1]
            if n % 4 == 3 and n < 15:
                need.append(("x", (n + 1) // 4))
            self.sync(self.vm_need(need))
            if n == 0:
                self.stamp(2)
            self.stamp("q%d" % n)
            mf = []
            for dt in range(8):
                for j in range(3):
                    acc = vr(vO + 12 * dt + 4 * j, 4)
                    mf.append("%s %s, %s, %s, %s" % (MF, acc, vr(vF[n % 2] + 4 * dt, 4), vr(vBX[n % 2] + 4 * j, 4), "0" if n == 0 else acc))
            if n < 15:
                rd = self.tr_reads((n + 1) % 2, (n + 1) % 4)
                rd = rd[:4] + xb_reads(n + 1) + rd[4:]
            else:
                rd = self.k_reads(0, 0)
            m = n + 4
            pre = []
            if n in (0, 4, 8):
                pre = self.x_dma(n // 4 + 1)
            if m < 16:
                d = wq_dma(m)
            elif m == 16:
                d = self.voff_std(vOKV, 0, 256) + self.kv_params() + self.dma(SLOT * (m % 4), dK, vOKV, sKV, o.kv_flag, m)
            elif m == 17:
                d = ["s_add_u32 %s, %s, 256" % (sr(sWQB), sr(sWQB)), "s_mov_b32 %s, 0" % sr(sWT)] + wq_dma(m)
            elif m == 18:
                d = self.dma(SLOT * (m % 4), dV, vOKV, sKV, o.kv_flag, m)
            else:
                d = self.kv_params() + self.dma(SLOT * (m % 4), dK, vOKV, sKV, o.kv_flag, m)
            k = len(d) - 4
            nx = 22 if n < 15 else 0
            body = rd[:nx] + pre + d[:k - 1] + spread(rd[nx:], d[k:])
            self.weave(mf, body, 0.85)
        self.stamp(3)
        A("s_mov_b32 %s, 0" % sr(sXT))
        A("s_nop 4")
        self.emit_all(self.q_finalize(False))
        self.emit_all(self.att_reset())
        self.stamp(4)
        self.att_loop(0)
        self.stamp("a0end")
        A("s_nop 4")
        self.emit_all(self.o_finalize())
        self.stamp("mid1")
        self.emit_all(self.q_finalize(True))
        self.stamp("mid2")
        for i in range(96):
            A("v_accvgpr_write_b32 %s, 0" % ar(i))
        A("s_mul_i32 %s, %s, 12288" % (sr(sA), sr(sHF)))
        A("s_add_u32 %s, %s, %d" % (sr(sA), sr(sA), EX))
        A("v_add_u32 %s, %s, %s" % (vr(vB), sr(sA), vr(vSTA)))
        A("s_waitcnt lgkmcnt(0)")
        self.emit_all(self.att_reset())
        self.stamp(5)
        self.att_loop(1)

        loc = {}
        for n in range(4):
            loc[n] = SLOT * n
        for n in range(4, 7):
            loc[n] = EXTRA + SLOT * (n - 4)
        for n in range(7, 10):
            loc[n] = EX + SLOT * (n - 7)
        for n in range(10, 14):
            loc[n] = SLOT * (n - 10)
        loc[14], loc[15] = EXTRA, EXTRA + SLOT

        def o1_dma(n):
            return ["s_add_u32 %s, %s, %d" % (sr(sWOFF), sr(sO1 + n % 4), 128 * (n // 4))] + \
                self.dma(loc[n], dW, vOW, sWOFF, o.o1_flag, n)

        self.vm = [1] * 4 + [2] * 4 + [3] * 4
        vOA = vVA
        t0, t1 = vT + 6, vT + 7
        addr = ["v_lshrrev_b32 %s, 2, %s" % (vr(t0), vr(vLANE)),
                "v_bfe_u32 %s, %s, 3, 2" % (vr(t1), vr(vLANE)),
                "v_lshlrev_b32 %s, 5, %s" % (vr(t1), vr(t1)),
                "v_lshl_add_u32 %s, %s, 7, %s" % (vr(t0), vr(t0), vr(t1)),
                "v_and_b32 %s, 3, %s" % (vr(t1), vr(vLANE)),
                "v_lshl_add_u32 %s, %s, 3, %s" % (vr(t0), vr(t1), vr(t0)),
                "s_lshl_b32 %s, %s, 13" % (sr(sA), sr(sP))]
        for nt in range(4):
            addr += ["v_xor_b32 %s, %d, %s" % (vr(vOA + nt), nt << 5, vr(t0)),
                     "v_add_u32 %s, %s, %s" % (vr(vOA + nt), sr(sA), vr(vOA + nt)),
                     "v_add_u32 %s, 0x10000, %s" % (vr(vOA + 4 + nt), vr(vOA + nt)),
                     "v_add_u32 %s, 0x20000, %s" % (vr(vOA + 8 + nt), vr(vOA + nt))]
        addr += ["s_mul_i32 %s, %s, 12288" % (sr(sA), sr(sHF)),
                 "s_add_u32 %s, %s, %d" % (sr(sA), sr(sA), EX),
                 "v_add_u32 %s, %s, %s" % (vr(vB), sr(sA), vr(vSTA))]

        def o1_reads(n):
            win, off = loc[n] // 65536, loc[n] % 65536
            return ["ds_read_b64_tr_b16 %s, %s offset:%d" % (vr(vF[n % 2] + 16 * ks + 4 * nt + 2 * e, 2), vr(vOA + 4 * win + nt),
                                                             off + 4096 * ks + 2048 * e)
                    for ks in range(2) for nt in range(4) for e in range(2)]

        self.stamp("a1end")
        self.emit_all(addr)
        self.emit_all(spread(self.o_finalize(), o1_dma(4) + o1_dma(5) + o1_dma(6)))
        self.stamp(6)
        A("s_waitcnt lgkmcnt(0)")
        A("s_barrier")
        brd = ["ds_read_b128 %s, %s offset:%d" % (vr(vO + 4 * f, 4), vr(vB), 24576 * (f // 12) + 1024 * (f % 12)) for f in range(24)]
        self.emit_all(brd[:6] + o1_reads(0)[:8])
        A("s_waitcnt lgkmcnt(6)")
        self.emit_all(o1_reads(0)[8:])
        A("s_waitcnt lgkmcnt(6)")
        self.emit_all(brd[6:15])
        A("s_waitcnt lgkmcnt(6)")
        self.emit_all(brd[15:])

        vSG = vL

        def stores(c):
            out = ["s_add_u32 %s, %s, %d" % (sr(sST), sr(sSTB), 98304 * c), "s_add_u32 %s, %s, 4096" % (sr(sST2), sr(sST))]
            for jq in range(3):
                for u in range(2):
                    i = 2 * jq + u
                    a = vSG + 8 * i
                    src = 48 * c + 24 * u + 4 * jq
                    out += ["v_accvgpr_read_b32 %s, %s" % (vr(a + x), ar(src + x)) for x in range(4)]
                    out += ["v_accvgpr_read_b32 %s, %s" % (vr(a + 4 + x), ar(src + 12 + x)) for x in range(4)]
                    out += ["v_cvt_pk_bf16_f32 %s, %s, %s" % (vr(a + x), vr(a + 2 * x), vr(a + 2 * x + 1)) for x in range(4)]
                    off = " offset:%d" % (1024 * (i % 4)) if i % 4 else ""
                    out.append(("buffer_store_dwordx4 %s, %s, %s, %s offen%s%s" % (
                        vr(a, 4), vr(vSTA), sr(dS, 4), sr(sST if i < 4 else sST2), off, o.st_flag), "st"))
            return out

        plan = {0: [7, 8], 1: [9, 10], 2: [11, 12], 3: [13], 4: [14], 5: [15]}
        for n in range(16):
            if n < 15:
                self.sync(self.vm_need([n + 1]))
            else:
                A("s_waitcnt lgkmcnt(0)")
            self.stamp("o%d" % n)
            c, i = n // 4, n % 4
            mf = []
            for ks in range(2):
                for nt in range(4):
                    for j in range(3):
                        acc = ar(48 * c + 12 * nt + 4 * j, 4)
                        mf.append("%s %s, %s, %s, %s" % (MF, acc, vr(vF[n % 2] + 16 * ks + 4 * nt, 4), vr(vO + 24 * i + 12 * ks + 4 * j, 4), acc))
            rd = o1_reads(n + 1) if n < 15 else []
            d = []
            for m in plan.get(n, []):
                d += o1_dma(m)
            st = []
            if c > 0:
                s = stores(c - 1)
                if c == 1:
                    st = {0: s[:14], 1: s[14:28], 2: s[28:54], 3: s[54:]}[i]
                else:
                    st = {0: s[:28], 1: s[28:54], 2: s[54:], 3: []}[i]
            body = spread(rd, d) + st if len(d) < len(rd) else rd + d + st
            self.weave(mf, body, 1.0 if st else 0.85)
        self.stamp("o16")
        A("s_nop 7")
        self.emit_all(stores(3))
        if o.stamps:
            A("s_waitcnt vmcnt(0)")
            self.stamp(7)
            self.write_stamps(0, 8, sW, dS)
        A("L_end:")
        A("s_endpgm")
        self.rare()
        for x in self.tail:
            A(x)

    def write_stamps(self, lo, hi, swave, d):
        A = self.A
        A("s_waitcnt lgkmcnt(0)")
        A("s_cmp_lg_u32 %s, 0" % sr(swave))
        A("s_cbranch_scc1 L_nost%d" % lo)
        A("s_mov_b64 exec, 1")
        A("s_mul_i32 s3, s2, %d" % (NSTAMP * 8))
        A("s_add_u32 s3, s3, %d" % STAMP_OFF)
        A("v_mov_b32 v6, 0")
        for i in range(lo, hi):
            A("v_mov_b32 v8, s%d" % (sSTAMP + 2 * i))
            A("v_mov_b32 v9, s%d" % (sSTAMP + 2 * i + 1))
            A("buffer_store_dwordx2 v[8:9], v6, %s, s3 offen offset:%d" % (sr(d, 4), 8 * i))
            A("s_nop 1")
        A("L_nost%d:" % lo)

    def reduce_kernel(self):
        A, o = self.A, self.o
        lab = "reduce_kernel"
        wpb = o.k2_block // 64
        nwg = 3072 // wpb
        A(".globl %s" % lab)
        A(".p2align 8")
        A(".type %s,@function" % lab)
        A("%s:" % lab)
        A("s_cmp_ge_u32 s2, %d" % nwg)
        A("s_cbranch_scc1 L_end2")
        self.stamp(8)
        A("s_load_dwordx2 s[20:21], s[0:1], 80")
        A("s_load_dwordx2 s[22:23], s[0:1], 96")
        A("v_lshrrev_b32 v2, 6, v0")
        A("v_and_b32 v1, 63, v0")
        A("s_mul_i32 s5, s2, %d" % wpb)
        A("v_readfirstlane_b32 s4, v2")
        A("v_lshlrev_b32 v3, 4, v1")
        A("s_add_u32 s5, s5, s4")
        A("s_mul_hi_u32 s6, s5, 0x15555556")
        A("s_mul_i32 s7, s6, 12")
        A("s_sub_u32 s7, s5, s7")
        A("s_mul_i32 s8, s6, 98304")
        A("s_lshl_b32 s9, s7, 10")
        A("s_add_u32 s8, s8, s9")
        A("s_waitcnt lgkmcnt(0)")
        self.emit_all(self.srd(16, 22, WS_BYTES))
        for h in range(8):
            A("buffer_load_dwordx4 %s, v3, s[16:19], s8 offen%s" % (vr(8 + 4 * h, 4), o.ld2_flag))
            if h < 7:
                A("s_add_u32 s8, s8, 12288")
        self.emit_all(self.srd(12, 20, 16 * 96 * 1024 * 2))
        A("s_and_b32 s9, s6, 7")
        A("s_bfe_u32 s10, s6, 0x40003")
        A("s_lshr_b32 s11, s6, 7")
        A("s_mul_i32 s10, s10, 96")
        A("s_lshr_b32 s24, s7, 1")
        A("s_lshl_b32 s24, s24, 4")
        A("s_add_u32 s10, s10, s24")
        A("s_lshl_b32 s10, s10, 11")
        A("s_lshl_b32 s11, s11, 10")
        A("s_add_u32 s10, s10, s11")
        A("s_lshl_b32 s9, s9, 7")
        A("s_add_u32 s10, s10, s9")
        A("s_and_b32 s24, s7, 1")
        A("s_lshl_b32 s24, s24, 6")
        A("s_add_u32 s10, s10, s24")
        A("v_and_b32 v4, 15, v1")
        A("v_lshlrev_b32 v4, 11, v4")
        A("v_lshrrev_b32 v5, 4, v1")
        A("v_lshl_add_u32 v4, v5, 4, v4")
        A("s_mov_b32 s25, 0xffff0000")
        for h in range(8):
            A("s_waitcnt vmcnt(%d)" % (7 - h))
            for i in range(4):
                src = vr(8 + 4 * h + i)
                if h == 0:
                    A("v_lshlrev_b32 %s, 16, %s" % (vr(40 + 2 * i), src))
                    A("v_and_b32 %s, s25, %s" % (vr(41 + 2 * i), src))
                else:
                    A("v_lshlrev_b32 v6, 16, %s" % src)
                    A("v_and_b32 v7, s25, %s" % src)
                    A("v_add_f32 %s, %s, v6" % (vr(40 + 2 * i), vr(40 + 2 * i)))
                    A("v_add_f32 %s, %s, v7" % (vr(41 + 2 * i), vr(41 + 2 * i)))
        for i in range(4):
            A("v_cvt_pk_bf16_f32 %s, %s, %s" % (vr(48 + i), vr(40 + 2 * i), vr(41 + 2 * i)))
        A("s_nop 1")
        A("v_permlane32_swap_b32 v48, v50")
        A("v_permlane32_swap_b32 v49, v51")
        A("s_nop 1")
        A("v_permlane16_swap_b32 v48, v50")
        A("v_permlane16_swap_b32 v49, v51")
        A("buffer_store_dwordx4 v[48:51], v4, s[12:15], s10 offen")
        if o.stamps:
            A("s_waitcnt vmcnt(0)")
            self.stamp(9)
            A("s_cmp_ge_u32 s2, 256")
            A("s_cbranch_scc1 L_end2")
            if o.dbg:
                A("s_cmp_lg_u32 s2, 0")
                A("s_cbranch_scc1 L_end2")
                A("s_load_dwordx2 s[20:21], s[0:1], 88")
                A("s_waitcnt lgkmcnt(0)")
                self.emit_all(self.srd(12, 20, 256))
                A("v_mul_u32_u24 v5, %d, v0" % (NSTAMP * 8))
                A("s_mov_b32 s3, %d" % STAMP_OFF)
                A("v_mov_b32 v6, 0")
                for i in range(8):
                    A("buffer_load_dword v%d, v5, s[16:19], s3 offen offset:%d" % (10 + i, 8 * i))
                A("s_waitcnt vmcnt(0)")
                A("v_not_b32 v18, v10")
                A("v_mov_b32 v19, s%d" % (sSTAMP + 16))
                A("v_mov_b32 v20, s%d" % (sSTAMP + 18))
                for i in range(11):
                    A("buffer_atomic_umax v%d, v6, s[12:15], 0 offen offset:%d" % (10 + i, 4 * i))
            else:
                self.write_stamps(8, 10, 4, 16)
        A("L_end2:")
        A("s_endpgm")

    def desc(self, lab, nv, acc, ns):
        A = self.A
        A(".p2align 6")
        A(".amdhsa_kernel %s" % lab)
        A("  .amdhsa_next_free_vgpr %d" % nv)
        A("  .amdhsa_next_free_sgpr %d" % ns)
        A("  .amdhsa_accum_offset %d" % acc)
        A("  .amdhsa_group_segment_fixed_size 0")
        A("  .amdhsa_kernarg_size 104")
        A("  .amdhsa_user_sgpr_count 2")
        A("  .amdhsa_user_sgpr_kernarg_segment_ptr 1")
        A("  .amdhsa_system_sgpr_workgroup_id_x 1")
        A(".end_amdhsa_kernel")

    def build(self):
        A, o = self.A, self.o
        A("; @launch kernel=main_kernel grid=(256,1,1) block=(256,1,1) lds=163840")
        A("; @launch kernel=reduce_kernel grid=(%d,1,1) block=(%d,1,1) lds=0" % (3072 * 64 // o.k2_block, o.k2_block))
        A('.amdgcn_target "amdgcn-amd-amdhsa--gfx950"')
        A(".text")
        self.main_kernel()
        self.reduce_kernel()
        A('.section .rodata,"a"')
        self.desc("main_kernel", 512, 256, 96)
        self.desc("reduce_kernel", 64, 64, 96)
        return "\n".join(self.L) + "\n"


def parse_opts(args):
    kw = {}
    for a in args:
        k, v = a.split("=", 1)
        cur = getattr(Opt, k)
        if isinstance(cur, bool):
            kw[k] = v not in ("0", "False")
        elif isinstance(cur, int):
            kw[k] = int(v)
        else:
            kw[k] = (" " + v.replace("+", " ")) if v else ""
    return kw


if __name__ == "__main__":
    out = sys.argv[1]
    open(out, "w").write(Gen(Opt(**parse_opts(sys.argv[2:]))).build())
```

```python
import math
import struct
import sys

WS_BYTES = 288358400
STAMP_OFF = WS_BYTES - (1 << 20)
NSTAMP = 10


def f32(x):
    return "0x%08x" % struct.unpack("<I", struct.pack("<f", x))[0]


class Opt:
    stamps = False
    cyc = False
    kv_flag = " nt"
    w_flag = ""
    o1_flag = ""
    x_flag = ""
    st_flag = " sc1"
    ld2_flag = ""
    touch_flag = ""
    touch = True
    skew_kv = True
    skew_wq = True
    k2_block = 256
    nomf = 0
    prof = 0
    dbg = False
    calib = 0

    def __init__(self, **kw):
        for k, v in kw.items():
            assert hasattr(Opt, k), k
            setattr(self, k, v)


sW, sP, sHF, sB, sBLK, sHG, sT0, sIDX = 4, 5, 6, 7, 8, 9, 10, 11
dK, dV, dW, dX, dS = 12, 16, 32, 36, 40
pX, pK, pV, pWQ, pWO, pWS = 20, 22, 24, 26, 28, 30
sKV, sWOFF, sXO, sM0, sIT, sKVB, sTH, sLO = 44, 45, 46, 47, 48, 49, 50, 51
sA, sB2, sC, sE = 52, 53, 54, 55
sWQB, sWOB, sWT, sXT, sXB, sST, sST2, sSTB = 56, 57, 58, 59, 60, 61, 62, 63
sO1 = 64
sRET = 68
sXM = 70
sSTAMP = 72

vLANE, vLK, vB = 1, 2, 3
vO, vL, vNEGM, vS, vP = 4, 100, 112, 124, 148
vF = (160, 192)
vVA, vKA, vOKV, vOW, vT = 224, 232, 236, 240, 244
vEXW, vSTA, vDUM = 252, 253, 254
aQC, aBF, aONES = 192, 240, 252

SLOT = 16384
XB = 65536
EX = 65536
EXTRA = 114688
MF = "v_mfma_f32_16x16x32_bf16"


def vr(a, n=1):
    return "v%d" % a if n == 1 else "v[%d:%d]" % (a, a + n - 1)


def ar(a, n=1):
    return "a%d" % a if n == 1 else "a[%d:%d]" % (a, a + n - 1)


def sr(a, n=1):
    return "s%d" % a if n == 1 else "s[%d:%d]" % (a, a + n - 1)


def cost(x):
    t = x[0] if isinstance(x, tuple) else x
    if t.endswith(":"):
        return 0
    if t.startswith(("v_exp", "v_rcp", "v_pk_")):
        return 8
    if t.startswith("buffer_"):
        return 8
    return 4


def spread(base, ins):
    out, k = [], 0
    for i, x in enumerate(base):
        out.append(x)
        while k < len(ins) and (k + 1) * len(base) <= (i + 1) * (len(ins) + 1):
            out.append(ins[k])
            k += 1
    return out + ins[k:]


class Gen:
    def __init__(self, o):
        self.o = o
        self.L = []
        self.vm = []
        self.tail = []
        self.uid = 0

    def A(self, s):
        self.L.append(s)

    def emit(self, x):
        if isinstance(x, tuple):
            self.A(x[0])
            self.vm.append(x[1])
        else:
            self.A(x)

    def emit_all(self, xs):
        for x in xs:
            self.emit(x)

    def stamp(self, i):
        table = {0: {k: k for k in range(10)},
                 1: {0: 0, 2: 1, "q2": 2, "q4": 3, "q8": 4, "q12": 5, 3: 6, 7: 7, 8: 8, 9: 9},
                 2: {0: 0, "a1end": 1, 6: 2, "o0": 3, "o4": 4, "o8": 5, "o16": 6, 7: 7, 8: 8, 9: 9},
                 3: {0: 0, 4: 1, "a0end": 2, "mid1": 3, "mid2": 4, 5: 5, "a1end": 6, 7: 7, 8: 8, 9: 9}}[self.o.prof]
        if i not in table:
            return
        i = table[i]
        if self.o.stamps:
            self.A("%s %s" % ("s_memtime" if self.o.cyc else "s_memrealtime", sr(sSTAMP + 2 * i, 2)))

    def vm_need(self, tags):
        idx = max([i for i, t in enumerate(self.vm) if t in tags] + [-1])
        n = len(self.vm) - 1 - idx
        self.vm = self.vm[idx + 1:]
        return n

    def sync(self, n):
        self.A("s_waitcnt vmcnt(%d) lgkmcnt(0)" % n)
        self.A("s_barrier")

    def weave(self, mf, other, front=1.0):
        total = sum(cost(x) for x in other)
        ngap = max(1, int(len(mf) * front))
        k, acc = 0, 0
        for i, m in enumerate(mf):
            self.A(m if not self.o.nomf else "s_nop 0")
            lim = max(total * (i + 1) / ngap, 0)
            while k < len(other) and (acc + cost(other[k]) / 2.0 <= lim or cost(other[k]) == 0):
                acc += cost(other[k])
                self.emit(other[k])
                k += 1
        self.emit_all(other[k:])

    def srd(self, d, p, size):
        return ["s_mov_b32 %s, %s" % (sr(d), sr(p)), "s_and_b32 %s, %s, 0xffff" % (sr(d + 1), sr(p + 1)),
                "s_mov_b32 %s, %d" % (sr(d + 2), size), "s_mov_b32 %s, 0x20000" % sr(d + 3)]

    def dma(self, loc, srd, voff, soff, flag, tag, cnt=4, m0=sM0):
        out = ["s_add_u32 m0, %s, %d" % (sr(m0), loc), "s_nop 0"]
        for i in range(cnt):
            off = " offset:%d" % (1024 * i) if i else ""
            out.append(("buffer_load_dwordx4 %s, %s, %s offen%s%s lds" % (vr(voff + i), sr(srd, 4), sr(soff), off, flag), tag))
        return out

    def voff_std(self, dst, mul_i, mul_r):
        t0, t1 = vT + 6, vT + 7
        return ["v_lshrrev_b32 %s, 4, %s" % (vr(t0), vr(vLANE)),
                "v_and_b32 %s, 15, %s" % (vr(t1), vr(vLANE)),
                "v_lshlrev_b32 %s, 1, %s" % (vr(dst), vr(t0)),
                "v_xor_b32 %s, %s, %s" % (vr(t1), vr(t1), vr(dst)),
                "v_lshlrev_b32 %s, 4, %s" % (vr(t1), vr(t1)),
                "v_mul_u32_u24 %s, %d, %s" % (vr(t0), mul_r, vr(t0)),
                "v_add_u32 %s, %s, %s" % (vr(dst), vr(t0), vr(t1)),
                "v_xor_b32 %s, 0x80, %s" % (vr(t1), vr(t1)),
                "v_add_u32 %s, %s, %s" % (vr(dst + 1), vr(t0), vr(t1)),
                "v_add_u32 %s, %d, %s" % (vr(dst + 2), 2 * mul_i, vr(dst)),
                "v_add_u32 %s, %d, %s" % (vr(dst + 3), 3 * mul_i, vr(dst + 1)),
                "v_add_u32 %s, %d, %s" % (vr(dst + 1), mul_i, vr(dst + 1))]

    def voff_o1(self, dst):
        t0, t1 = vT + 6, vT + 7
        out = ["v_lshrrev_b32 %s, 3, %s" % (vr(t0), vr(vLANE)),
               "v_and_b32 %s, 7, %s" % (vr(t1), vr(vLANE)),
               "v_and_b32 %s, 6, %s" % (vr(dst), vr(t0)),
               "v_xor_b32 %s, %s, %s" % (vr(t1), vr(t1), vr(dst)),
               "v_lshlrev_b32 %s, 4, %s" % (vr(t1), vr(t1)),
               "v_lshl_add_u32 %s, %s, 10, %s" % (vr(dst), vr(t0), vr(t1))]
        for i in range(1, 4):
            out.append("v_add_u32 %s, %d, %s" % (vr(dst + i), 7168 * i, vr(dst)))
        return out

    def kappa(self, dst, cnt):
        if not self.o.skew_wq:
            return ["s_and_b32 %s, %s, 15" % (sr(dst), sr(cnt))]
        return ["s_lshl_b32 %s, %s, 2" % (sr(dst), sr(sB)),
                "s_add_u32 %s, %s, %s" % (sr(dst), sr(dst), sr(cnt)),
                "s_and_b32 %s, %s, 12" % (sr(dst), sr(dst)),
                "s_lshr_b32 %s, %s, 2" % (sr(sE), sr(sB)),
                "s_add_u32 %s, %s, %s" % (sr(sE), sr(sE), sr(cnt)),
                "s_and_b32 %s, %s, 3" % (sr(sE), sr(sE)),
                "s_or_b32 %s, %s, %s" % (sr(dst), sr(dst), sr(sE))]

    def wq_params(self):
        return self.kappa(sA, sWT) + [
            "s_lshl_b32 %s, %s, 18" % (sr(sA), sr(sA)),
            "s_add_u32 %s, %s, %s" % (sr(sWOFF), sr(sA), sr(sWQB)),
            "s_add_u32 %s, %s, 1" % (sr(sWT), sr(sWT))]

    def wo0_params(self):
        return ["s_bfe_u32 %s, %s, 0x20001" % (sr(sA), sr(sWT)),
                "s_lshl_b32 %s, %s, 15" % (sr(sA), sr(sA)),
                "s_lshr_b32 %s, %s, 3" % (sr(sB2), sr(sWT)),
                "s_lshl_b32 %s, %s, 18" % (sr(sB2), sr(sB2)),
                "s_add_u32 %s, %s, %s" % (sr(sA), sr(sA), sr(sB2)),
                "s_and_b32 %s, %s, 1" % (sr(sB2), sr(sWT)),
                "s_lshl_b32 %s, %s, 8" % (sr(sB2), sr(sB2)),
                "s_add_u32 %s, %s, %s" % (sr(sA), sr(sA), sr(sB2)),
                "s_add_u32 %s, %s, %s" % (sr(sWOFF), sr(sA), sr(sWOB)),
                "s_add_u32 %s, %s, 1" % (sr(sWT), sr(sWT))]

    def kv_params(self):
        return ["s_add_u32 %s, %s, %s" % (sr(sA), sr(sIDX), sr(sT0)),
                "s_and_b32 %s, %s, 15" % (sr(sA), sr(sA)),
                "s_and_b32 %s, %s, 16" % (sr(sB2), sr(sIDX)),
                "s_or_b32 %s, %s, %s" % (sr(sA), sr(sA), sr(sB2)),
                "s_lshl_b32 %s, %s, 13" % (sr(sA), sr(sA)),
                "s_add_u32 %s, %s, %s" % (sr(sKV), sr(sA), sr(sKVB)),
                "s_add_u32 %s, %s, 1" % (sr(sIDX), sr(sIDX))]

    def x_addr(self):
        return self.kappa(sC, sXT) + [
            "s_and_b32 %s, %s, 3" % (sr(sB2), sr(sC)),
            "s_lshl_b32 %s, %s, 6" % (sr(sB2), sr(sB2)),
            "v_xor_b32 %s, %s, %s" % (vr(vB), sr(sB2), vr(vLK)),
            "s_lshr_b32 %s, %s, 2" % (sr(sC), sr(sC)),
            "s_mul_i32 %s, %s, 24576" % (sr(sC), sr(sC)),
            "s_add_u32 %s, %s, %s" % (sr(sC), sr(sC), sr(sXB)),
            "v_add_u32 %s, %s, %s" % (vr(vB), sr(sC), vr(vB)),
            "s_add_u32 %s, %s, 1" % (sr(sXT), sr(sXT))]

    def x_dma(self, c):
        o = self.o
        out = []
        if o.skew_wq:
            out += ["s_add_u32 %s, %s, %d" % (sr(sA), sr(sB), c), "s_and_b32 %s, %s, 3" % (sr(sA), sr(sA))]
        else:
            out += ["s_mov_b32 %s, %d" % (sr(sA), c)]
        out += ["s_mul_i32 %s, %s, 24576" % (sr(sB2), sr(sA)),
                "s_mul_i32 %s, %s, 6144" % (sr(sXM), sr(sW)),
                "s_add_u32 %s, %s, %s" % (sr(sXM), sr(sXM), sr(sB2)),
                "s_lshl_b32 %s, %s, 8" % (sr(sA), sr(sA)),
                "s_mul_i32 %s, %s, 98304" % (sr(sXO), sr(sB)),
                "s_add_u32 %s, %s, %s" % (sr(sXO), sr(sXO), sr(sA)),
                "s_mul_i32 %s, %s, 24576" % (sr(sA), sr(sW)),
                "s_add_u32 %s, %s, %s" % (sr(sXO), sr(sXO), sr(sA))]
        out += self.dma(XB, dX, vOKV, sXO, o.x_flag, ("x", c), 4, sXM)
        out += ["s_add_u32 %s, %s, 16384" % (sr(sXO), sr(sXO))]
        out += self.dma(XB + 4096, dX, vOKV, sXO, o.x_flag, ("x", c), 2, sXM)
        return out

    def tr_reads(self, fset, slot):
        return ["ds_read_b64_tr_b16 %s, %s offset:%d" % (vr(vF[fset] + 4 * dt + 2 * e, 2), vr(vVA + dt), SLOT * slot + 4096 * e)
                for dt in range(8) for e in range(2)]

    def k_reads(self, fset, slot):
        return ["ds_read_b128 %s, %s offset:%d" % (vr(vF[fset] + 16 * kt + 4 * ks, 4), vr(vKA + ks), SLOT * slot + 4096 * kt)
                for kt in range(2) for ks in range(4)]

    def q_finalize(self, from_agpr):
        cs = math.log2(math.e) / math.sqrt(128.0)
        out = ["v_mov_b32 %s, %s" % (vr(vT), f32(cs)), "v_mov_b32 %s, %s" % (vr(vT + 1), f32(cs))]
        blocks = []
        for ks in range(4):
            for j in range(3):
                pre = []
                if from_agpr:
                    a = vS + 8 * ((3 * ks + j) % 3)
                    b = a + 4
                    pre += ["v_accvgpr_read_b32 %s, %s" % (vr(a + i), ar(24 * ks + 4 * j + i)) for i in range(4)]
                    pre += ["v_accvgpr_read_b32 %s, %s" % (vr(b + i), ar(24 * ks + 12 + 4 * j + i)) for i in range(4)]
                else:
                    a, b = vO + 24 * ks + 4 * j, vO + 24 * ks + 12 + 4 * j
                pre += ["v_pk_mul_f32 %s, %s, %s" % (vr(x, 2), vr(x, 2), vr(vT, 2)) for x in (a, a + 2, b, b + 2)]
                pre += ["v_cvt_pk_bf16_f32 %s, %s, %s" % (vr(a), vr(a), vr(a + 1)),
                        "v_cvt_pk_bf16_f32 %s, %s, %s" % (vr(a + 1), vr(a + 2), vr(a + 3)),
                        "v_cvt_pk_bf16_f32 %s, %s, %s" % (vr(a + 2), vr(b), vr(b + 1)),
                        "v_cvt_pk_bf16_f32 %s, %s, %s" % (vr(a + 3), vr(b + 2), vr(b + 3))]
                s32 = ["v_permlane32_swap_b32 %s, %s" % (vr(a), vr(a + 2)), "v_permlane32_swap_b32 %s, %s" % (vr(a + 1), vr(a + 3))]
                s16 = ["v_permlane16_swap_b32 %s, %s" % (vr(a), vr(a + 2)), "v_permlane16_swap_b32 %s, %s" % (vr(a + 1), vr(a + 3))]
                wr = ["v_accvgpr_write_b32 %s, %s" % (ar(aQC + 12 * ks + 4 * j + i), vr(a + i)) for i in range(4)]
                blocks.append((pre, s32, s16, wr))
        n = len(blocks)
        for k in range(n + 1):
            if k < n:
                pre = blocks[k][0]
                h = len(pre) // 2
                out += pre[:h]
            if k > 0:
                if k == n:
                    out.append("s_nop 1")
                out += blocks[k - 1][1]
            if k < n:
                out += pre[h:]
            else:
                out.append("s_nop 1")
            if k > 0:
                out += blocks[k - 1][2] + blocks[k - 1][3]
        return out

    def o_finalize(self):
        out = []
        for j in range(3):
            out += ["v_rcp_f32 %s, %s" % (vr(vT + 2 * j), vr(vL + 4 * j)), "v_rcp_f32 %s, %s" % (vr(vT + 2 * j + 1), vr(vL + 4 * j))]
        out.append("s_nop 1")
        for ks in range(4):
            for j in range(3):
                a, b = vO + 24 * ks + 4 * j, vO + 24 * ks + 12 + 4 * j
                out += ["v_pk_mul_f32 %s, %s, %s" % (vr(x, 2), vr(x, 2), vr(vT + 2 * j, 2)) for x in (a, a + 2, b, b + 2)]
                out += ["v_cvt_pk_bf16_f32 %s, %s, %s" % (vr(a), vr(a), vr(a + 1)),
                        "v_cvt_pk_bf16_f32 %s, %s, %s" % (vr(a + 1), vr(a + 2), vr(a + 3)),
                        "v_cvt_pk_bf16_f32 %s, %s, %s" % (vr(a + 2), vr(b), vr(b + 1)),
                        "v_cvt_pk_bf16_f32 %s, %s, %s" % (vr(a + 3), vr(b + 2), vr(b + 3)),
                        "ds_write_b128 %s, %s offset:%d" % (vr(vEXW), vr(a, 4), 1024 * (3 * ks + j))]
        return out

    def att_reset(self):
        out = ["v_mov_b32 %s, 0" % vr(i) for i in range(vO, vNEGM + 12)]
        out += ["s_mov_b32 %s, 0xff800000" % sr(sTH), "s_mov_b32 %s, 0xff800000" % sr(sLO), "s_mov_b32 %s, 0" % sr(sIT)]
        return out

    def last_only(self, code):
        self.uid += 1
        k = self.uid
        self.tail += ["L_alt%d:" % k] + code + ["s_branch L_altback%d" % k]
        return ["s_cmp_eq_u32 %s, 3" % sr(sIT), "s_cbranch_scc1 L_alt%d" % k, "L_altback%d:" % k]

    def sel_last(self, dst, alt):
        return ["s_cmp_eq_u32 %s, 3" % sr(sIT), "s_cselect_b32 %s, %s, %s" % (sr(dst), sr(alt), sr(dst))]

    def att_loop(self, rnd):
        A, o = self.A, self.o
        A(".p2align 6")
        A("L_att%d:" % rnd)
        for i in range(4):
            nK, nW, nV = 3 * i, 3 * i + 1, 3 * i + 2
            self.sync(8)
            mf = []
            for kt in range(2):
                for ks in range(4):
                    for j in range(3):
                        acc = vr(vS + 12 * kt + 4 * j, 4)
                        c = vr(vNEGM + 4 * j, 4) if ks == 0 else acc
                        mf.append("%s %s, %s, %s, %s" % (MF, acc, vr(vF[nK % 2] + 16 * kt + 4 * ks, 4), ar(aQC + 12 * ks + 4 * j, 4), c))
            rd = self.tr_reads(nW % 2, nW % 4)
            if rnd == 0:
                par = self.wq_params()
                if i == 3:
                    par += self.last_only(self.srd(dW, pWO, 4 << 20)[:2] + self.voff_std(vOW, 3072, 1024) +
                                          ["s_mov_b32 %s, 0" % sr(sWT)] + self.wo0_params())
                rd = rd[:4] + self.x_addr() + rd[4:] + ["ds_read_b128 %s, %s offset:%d" % (ar(aBF + 4 * j, 4), vr(vB), 4096 * j) for j in range(3)]
            else:
                par = self.wo0_params()
                if i == 3:
                    par += self.sel_last(sWOFF, sO1 + 1)
                if i % 2 == 0:
                    rd += ["ds_read_b128 %s, %s offset:%d" % (ar(aBF + 4 * j, 4), vr(vB), 3072 * (i // 2) + 1024 * j) for j in range(3)]
                if i == 3:
                    rd += ["s_movk_i32 %s, 6144" % sr(sC), "s_cmp_eq_u32 %s, 1" % sr(sIT), "s_cselect_b32 %s, 18432, %s" % (sr(sC), sr(sC)),
                           "v_add_u32 %s, %s, %s" % (vr(vB), sr(sC), vr(vB))]
            d = self.dma(SLOT * (nK % 4), dW, vOW, sWOFF, o.w_flag, None)
            if rnd == 0:
                body = rd[:19] + par + d[:1] + spread(rd[19:], d[2:])
            else:
                body = rd[:4] + par + d[:1] + spread(rd[4:], d[2:])
            self.weave(mf, body, 0.8)
            self.sync(8)
            mf = []
            for dt in range(8):
                for j in range(3):
                    acc = ar((0 if rnd == 0 else 96 * (i % 2)) + 12 * dt + 4 * j, 4)
                    mf.append("%s %s, %s, %s, %s" % (MF, acc, vr(vF[nW % 2] + 4 * dt, 4), ar(aBF + 4 * j, 4), acc))
            rd = self.tr_reads(nV % 2, nV % 4)
            mx = []
            for step in range(4):
                for j in range(3):
                    s0, s1, m = vS + 4 * j, vS + 12 + 4 * j, vT + j
                    mx.append(["v_max3_f32 %s, %s, %s, %s" % (vr(m), vr(s0), vr(s0 + 1), vr(s0 + 2)),
                               "v_max3_f32 %s, %s, %s, %s" % (vr(m), vr(m), vr(s0 + 3), vr(s1)),
                               "v_max3_f32 %s, %s, %s, %s" % (vr(m), vr(m), vr(s1 + 1), vr(s1 + 2)),
                               "v_max_f32 %s, %s, %s" % (vr(m), vr(m), vr(s1 + 3))][step])
            self.uid += 1
            k = self.uid
            mx += ["v_max3_f32 %s, %s, %s, %s" % (vr(vT + 3), vr(vT), vr(vT + 1), vr(vT + 2)),
                   "v_cmp_lt_f32 vcc, %s, %s" % (sr(sTH), vr(vT + 3)),
                   "s_cbranch_vccnz L_rs%d" % k, "L_rb%d:" % k]
            self.tail += ["L_rs%d:" % k, "s_call_b64 %s, L_rare" % sr(sRET, 2), "s_branch L_rb%d" % k]
            ex = []
            for j in range(3):
                for kt in range(2):
                    a = vS + 12 * kt + 4 * j
                    ex += ["v_exp_f32 %s, %s" % (vr(a + x), vr(a + x)) for x in range(4)]
                    if kt == 0 and j > 0:
                        b, p = vS + 12 + 4 * (j - 1), vP + 4 * (j - 1) + 2
                    elif kt == 1:
                        b, p = vS + 4 * j, vP + 4 * j
                    else:
                        continue
                    ex += ["v_cvt_pk_bf16_f32 %s, %s, %s" % (vr(p), vr(b), vr(b + 1)),
                           "v_cvt_pk_bf16_f32 %s, %s, %s" % (vr(p + 1), vr(b + 2), vr(b + 3))]
            b = vS + 20
            ex += ["s_nop 0", "v_cvt_pk_bf16_f32 %s, %s, %s" % (vr(vP + 10), vr(b), vr(b + 1)),
                   "v_cvt_pk_bf16_f32 %s, %s, %s" % (vr(vP + 11), vr(b + 2), vr(b + 3))]
            par = self.sel_last(sKV, sO1 + 2) if (rnd == 1 and i == 3) else []
            d = self.dma(SLOT * (nW % 4), dV, vOKV, sKV, o.kv_flag, None)
            body = par + d[:1] + rd[:3] + d[2:3] + rd[3:6] + mx + spread(ex[:24], spread(rd[6:], d[3:5])) + spread(ex[24:], d[5:])
            self.weave(mf, body, 1.0)
            self.sync(8)
            mf = ["%s %s, %s, %s, %s" % (MF, vr(vL + 4 * j, 4), ar(aONES, 4), vr(vP + 4 * j, 4), vr(vL + 4 * j, 4)) for j in range(3)]
            for dt in range(8):
                for j in range(3):
                    acc = vr(vO + 12 * dt + 4 * j, 4)
                    mf.append("%s %s, %s, %s, %s" % (MF, acc, vr(vF[nV % 2] + 4 * dt, 4), vr(vP + 4 * j, 4), acc))
            rd = self.k_reads((nV + 1) % 2, (nV + 1) % 4)
            par = self.kv_params()
            if rnd == 1 and i == 2:
                par += self.last_only(self.srd(dK, pWO, 4 << 20)[:3] + self.srd(dV, pWO, 4 << 20)[:3] +
                                      self.voff_o1(vOKV) + ["v_mov_b32 %s, %s" % (vr(vOW + x), vr(vOKV + x)) for x in range(4)] +
                                      ["s_mov_b32 %s, %s" % (sr(sKV), sr(sO1))])
            if rnd == 1 and i == 3:
                par += self.sel_last(sKV, sO1 + 3)
            d = self.dma(SLOT * (nV % 4), dK, vOKV, sKV, o.kv_flag, None)
            body = par + d[:1] + spread(rd, d[2:])
            if rnd == 1 and i == 0 and o.touch:
                t = vT + 4
                body += self.last_only([
                    "s_lshl_b32 %s, %s, 3" % (sr(sA), sr(sB)),
                    "s_and_b32 %s, %s, 1" % (sr(sB2), sr(sW)),
                    "s_lshl_b32 %s, %s, 2" % (sr(sB2), sr(sB2)),
                    "s_add_u32 %s, %s, %s" % (sr(sA), sr(sA), sr(sB2)),
                    "s_lshl_b32 %s, %s, 10" % (sr(sA), sr(sA)),
                    "s_lshl_b32 %s, %s, 19" % (sr(sB2), sr(sHG)),
                    "s_add_u32 %s, %s, %s" % (sr(sA), sr(sA), sr(sB2)),
                    "s_lshl_b32 %s, %s, 18" % (sr(sB2), sr(sP)),
                    "s_add_u32 %s, %s, %s" % (sr(sA), sr(sA), sr(sB2)),
                    "s_add_u32 %s, %s, 131072" % (sr(sA), sr(sA)),
                    "v_and_b32 %s, 31, %s" % (vr(t), vr(vLANE)),
                    "v_lshlrev_b32 %s, 7, %s" % (vr(t), vr(t)),
                    "buffer_load_dword %s, %s, %s, %s offen%s" % (vr(vDUM), vr(t), sr(dW, 4), sr(sA), o.touch_flag)])
            if i == 3:
                body += ["s_add_u32 %s, %s, 1" % (sr(sIT), sr(sIT))]
            self.weave(mf, body, 0.8)
        A("s_cmp_lt_u32 %s, 4" % sr(sIT))
        A("s_cbranch_scc1 L_att%d" % rnd)

    def rare(self):
        A = self.A
        A("L_rare:")
        for j in range(3):
            A("v_mov_b32 %s, %s" % (vr(vT + 3 + j), vr(vT + j)))
        A("s_nop 1")
        for j in range(3):
            A("v_permlane32_swap_b32 %s, %s" % (vr(vT + j), vr(vT + 3 + j)))
        for j in range(3):
            A("v_max_f32 %s, %s, %s" % (vr(vT + j), vr(vT + j), vr(vT + 3 + j)))
        for j in range(3):
            A("v_mov_b32 %s, %s" % (vr(vT + 3 + j), vr(vT + j)))
        A("s_nop 1")
        for j in range(3):
            A("v_permlane16_swap_b32 %s, %s" % (vr(vT + j), vr(vT + 3 + j)))
        for j in range(3):
            A("v_max3_f32 %s, %s, %s, %s" % (vr(vT + j), vr(vT + j), vr(vT + 3 + j), sr(sLO)))
        for j in range(3):
            A("v_max_f32 %s, 0, %s" % (vr(vT + 3 + j), vr(vT + j)))
        for j in range(3):
            A("v_exp_f32 %s, -%s" % (vr(vT + 3 + j), vr(vT + 3 + j)))
        for j in range(3):
            for base in (vS + 4 * j, vS + 12 + 4 * j, vNEGM + 4 * j):
                for i in range(4):
                    A("v_sub_f32 %s, %s, %s" % (vr(base + i), vr(base + i), vr(vT + j)))
        A("s_cmp_lg_u32 %s, 0" % sr(sLO))
        A("s_cbranch_scc1 L_rare_first")
        for j in range(3):
            for base in [vO + 12 * dt + 4 * j for dt in range(8)] + [vL + 4 * j]:
                for i in range(4):
                    A("v_mul_f32 %s, %s, %s" % (vr(base + i), vr(base + i), vr(vT + 3 + j)))
        A("L_rare_first:")
        A("s_mov_b32 %s, %s" % (sr(sTH), f32(8.0)))
        A("s_mov_b32 %s, 0" % sr(sLO))
        A("s_setpc_b64 %s" % sr(sRET, 2))

    def main_kernel(self):
        A, o = self.A, self.o
        lab = "main_kernel"
        A(".globl %s" % lab)
        A(".p2align 8")
        A(".type %s,@function" % lab)
        A("%s:" % lab)
        A("s_cmp_ge_u32 s2, 256")
        A("s_cbranch_scc1 L_end")
        self.stamp(0)
        A("s_and_b32 %s, s2, 7" % sr(sA))
        A("s_lshr_b32 %s, s2, 3" % sr(sB2))
        A("s_lshr_b32 %s, %s, 2" % (sr(sBLK), sr(sA)))
        A("s_mul_i32 %s, %s, 40" % (sr(sC), sr(sBLK)))
        A("s_add_u32 s4, s0, %s" % sr(sC))
        A("s_addc_u32 s5, s1, 0")
        A("s_load_dwordx8 %s, s[4:5], 0" % sr(pX, 8))
        A("s_load_dwordx2 %s, s[4:5], 32" % sr(pWO, 2))
        A("s_load_dwordx2 %s, s[0:1], 96" % sr(pWS, 2))
        A("s_and_b32 %s, %s, 15" % (sr(sB), sr(sB2)))
        A("s_lshr_b32 %s, %s, 4" % (sr(sE), sr(sB2)))
        A("s_and_b32 %s, %s, 3" % (sr(sHG), sr(sA)))
        A("s_lshl_b32 %s, %s, 1" % (sr(sHG), sr(sHG)))
        A("s_add_u32 %s, %s, %s" % (sr(sHG), sr(sHG), sr(sE)))
        A("v_lshrrev_b32 %s, 6, v0" % vr(vT))
        A("v_and_b32 %s, 63, v0" % vr(vLANE))
        self.emit_all(self.voff_std(vOKV, 3072, 1024))
        self.emit_all(self.voff_std(vOW, 65536 - 1024, 8192))
        A("s_waitcnt lgkmcnt(0)")
        A("v_readfirstlane_b32 %s, %s" % (sr(sW), vr(vT)))
        self.emit_all(self.srd(dX, pX, 16 * 98304))
        self.emit_all(self.srd(dW, pWQ, 4 << 20))
        A("s_lshr_b32 %s, %s, 1" % (sr(sP), sr(sW)))
        A("s_and_b32 %s, %s, 1" % (sr(sHF), sr(sW)))
        self.emit_all(self.x_dma(0))
        A("s_lshl_b32 %s, %s, 12" % (sr(sM0), sr(sW)))
        A("s_lshl_b32 %s, %s, 1" % (sr(sA), sr(sHG)))
        A("s_add_u32 %s, %s, %s" % (sr(sA), sr(sA), sr(sP)))
        A("s_lshl_b32 %s, %s, 9" % (sr(sWQB), sr(sA)))
        A("s_lshl_b32 %s, %s, 15" % (sr(sA), sr(sHF)))
        A("s_add_u32 %s, %s, %s" % (sr(sWQB), sr(sWQB), sr(sA)))
        A("s_mov_b32 %s, 0" % sr(sWT))
        A("s_mov_b32 %s, 0" % sr(sXT))

        def wq_dma(n):
            return self.wq_params() + self.dma(SLOT * (n % 4), dW, vOW, sWOFF, o.w_flag, n)

        self.emit_all(wq_dma(0))
        self.emit_all(wq_dma(1))
        self.emit_all(self.srd(dK, pK, 64 << 20))
        self.emit_all(self.srd(dV, pV, 64 << 20))
        self.emit_all(self.srd(dS, pWS, WS_BYTES))
        A("s_lshl_b32 %s, %s, 22" % (sr(sKVB), sr(sB)))
        A("s_lshl_b32 %s, %s, 19" % (sr(sWOB), sr(sHG)))
        A("s_add_u32 %s, %s, %s" % (sr(sKVB), sr(sKVB), sr(sWOB)))
        A("s_lshl_b32 %s, %s, 18" % (sr(sA), sr(sP)))
        A("s_add_u32 %s, %s, %s" % (sr(sKVB), sr(sKVB), sr(sA)))
        A("s_lshl_b32 %s, %s, 12" % (sr(sA), sr(sHF)))
        A("s_add_u32 %s, %s, %s" % (sr(sKVB), sr(sKVB), sr(sA)))
        A("s_lshl_b32 %s, %s, 9" % (sr(sA), sr(sP)))
        A("s_add_u32 %s, %s, %s" % (sr(sWOB), sr(sWOB), sr(sA)))
        A("s_lshl_b32 %s, %s, 15" % (sr(sA), sr(sHF)))
        A("s_add_u32 %s, %s, %s" % (sr(sO1), sr(sWOB), sr(sA)))
        A("s_add_u32 %s, %s, 131072" % (sr(sO1), sr(sO1)))
        A("s_add_u32 %s, %s, 65536" % (sr(sO1 + 1), sr(sO1)))
        A("s_add_u32 %s, %s, 262144" % (sr(sO1 + 2), sr(sO1)))
        A("s_add_u32 %s, %s, 262144" % (sr(sO1 + 3), sr(sO1 + 1)))
        A("s_lshl_b32 %s, %s, 14" % (sr(sA), sr(sHF)))
        A("s_add_u32 %s, %s, %s" % (sr(sWOB), sr(sWOB), sr(sA)))
        A("s_mov_b32 %s, 0" % sr(sIDX))
        if o.skew_kv:
            A("s_and_b32 %s, %s, 1" % (sr(sA), sr(sHG)))
            A("s_lshl_b32 %s, %s, 3" % (sr(sA), sr(sA)))
            A("s_add_u32 %s, %s, %s" % (sr(sT0), sr(sB), sr(sA)))
        else:
            A("s_mov_b32 %s, 0" % sr(sT0))
        A("s_mul_i32 %s, %s, 12288" % (sr(sXB), sr(sHF)))
        A("s_add_u32 %s, %s, %d" % (sr(sXB), sr(sXB), XB))
        A("s_lshl_b32 %s, %s, 4" % (sr(sA), sr(sBLK)))
        A("s_add_u32 %s, %s, %s" % (sr(sA), sr(sA), sr(sB)))
        A("s_lshl_b32 %s, %s, 1" % (sr(sA), sr(sA)))
        A("s_add_u32 %s, %s, %s" % (sr(sA), sr(sA), sr(sP)))
        A("s_mul_i32 %s, %s, %d" % (sr(sA), sr(sA), 4 * 98304))
        A("s_lshl_b32 %s, %s, 1" % (sr(sB2), sr(sHG)))
        A("s_add_u32 %s, %s, %s" % (sr(sB2), sr(sB2), sr(sHF)))
        A("s_mul_i32 %s, %s, 6144" % (sr(sB2), sr(sB2)))
        A("s_add_u32 %s, %s, %s" % (sr(sSTB), sr(sA), sr(sB2)))
        t0, t1, t2 = vT, vT + 1, vT + 2
        A("v_and_b32 %s, 15, %s" % (vr(t0), vr(vLANE)))
        A("v_lshrrev_b32 %s, 4, %s" % (vr(t1), vr(vLANE)))
        A("v_and_b32 %s, 7, %s" % (vr(t2), vr(vLANE)))
        A("v_lshlrev_b32 %s, 1, %s" % (vr(t2), vr(t2)))
        A("v_xor_b32 %s, %s, %s" % (vr(t2), vr(t2), vr(t1)))
        A("v_lshlrev_b32 %s, 4, %s" % (vr(t2), vr(t2)))
        A("v_lshl_add_u32 %s, %s, 8, %s" % (vr(vLK), vr(t0), vr(t2)))
        A("v_lshrrev_b32 %s, 2, %s" % (vr(t0), vr(vLANE)))
        A("v_and_b32 %s, 7, %s" % (vr(t1), vr(t0)))
        A("v_lshlrev_b32 %s, 5, %s" % (vr(t1), vr(t1)))
        A("v_lshl_add_u32 %s, %s, 8, %s" % (vr(t0), vr(t0), vr(t1)))
        A("v_and_b32 %s, 3, %s" % (vr(t1), vr(vLANE)))
        A("v_lshl_add_u32 %s, %s, 3, %s" % (vr(t0), vr(t1), vr(t0)))
        A("s_lshl_b32 %s, %s, 13" % (sr(sA), sr(sP)))
        for dt in range(8):
            A("v_xor_b32 %s, %d, %s" % (vr(vVA + dt), dt << 5, vr(t0)))
            A("v_add_u32 %s, %s, %s" % (vr(vVA + dt), sr(sA), vr(vVA + dt)))
        for ks in range(4):
            A("v_xor_b32 %s, %d, %s" % (vr(vKA + ks), ks << 6, vr(vLK)))
            A("v_add_u32 %s, %s, %s" % (vr(vKA + ks), sr(sA), vr(vKA + ks)))
        A("s_mul_i32 %s, %s, 12288" % (sr(sA), sr(sW)))
        A("s_add_u32 %s, %s, %d" % (sr(sA), sr(sA), EX))
        A("v_lshlrev_b32 %s, 4, %s" % (vr(vSTA), vr(vLANE)))
        A("v_add_u32 %s, %s, %s" % (vr(vEXW), sr(sA), vr(vSTA)))
        A("v_mov_b32 %s, 0x3f803f80" % vr(t0))
        for i in range(4):
            A("v_accvgpr_write_b32 %s, %s" % (ar(aONES + i), vr(t0)))
        for i in range(192):
            A("v_accvgpr_write_b32 %s, 0" % ar(i))
        self.emit_all(wq_dma(2))

        vBX = (vS, vS + 12)

        def xb_reads(n):
            return self.x_addr() + ["ds_read_b128 %s, %s offset:%d" % (vr(vBX[n % 2] + 4 * j, 4), vr(vB), 4096 * j) for j in range(3)]

        self.stamp(1)
        self.sync(self.vm_need([0, ("x", 0)]))
        self.emit_all(xb_reads(0) + self.tr_reads(0, 0) + wq_dma(3))
        for n in range(16):
            need = [n + 1]
            if n % 4 == 3 and n < 15:
                need.append(("x", (n + 1) // 4))
            self.sync(self.vm_need(need))
            if n == 0:
                self.stamp(2)
            self.stamp("q%d" % n)
            mf = []
            for dt in range(8):
                for j in range(3):
                    acc = vr(vO + 12 * dt + 4 * j, 4)
                    mf.append("%s %s, %s, %s, %s" % (MF, acc, vr(vF[n % 2] + 4 * dt, 4), vr(vBX[n % 2] + 4 * j, 4), "0" if n == 0 else acc))
            if n < 15:
                rd = self.tr_reads((n + 1) % 2, (n + 1) % 4)
                rd = rd[:4] + xb_reads(n + 1) + rd[4:]
            else:
                rd = self.k_reads(0, 0)
            m = n + 4
            pre = []
            if n in (0, 4, 8):
                pre = self.x_dma(n // 4 + 1)
            if m < 16:
                d = wq_dma(m)
            elif m == 16:
                d = self.voff_std(vOKV, 0, 256) + self.kv_params() + self.dma(SLOT * (m % 4), dK, vOKV, sKV, o.kv_flag, m)
            elif m == 17:
                d = ["s_add_u32 %s, %s, 256" % (sr(sWQB), sr(sWQB)), "s_mov_b32 %s, 0" % sr(sWT)] + wq_dma(m)
            elif m == 18:
                d = self.dma(SLOT * (m % 4), dV, vOKV, sKV, o.kv_flag, m)
            else:
                d = self.kv_params() + self.dma(SLOT * (m % 4), dK, vOKV, sKV, o.kv_flag, m)
            k = len(d) - 4
            nx = 22 if n < 15 else 0
            body = rd[:nx] + pre + d[:k - 1] + spread(rd[nx:], d[k:])
            self.weave(mf, body, 0.85)
        self.stamp(3)
        A("s_mov_b32 %s, 0" % sr(sXT))
        A("s_nop 4")
        self.emit_all(self.q_finalize(False))
        self.emit_all(self.att_reset())
        self.stamp(4)
        self.att_loop(0)
        self.stamp("a0end")
        A("s_nop 4")
        self.emit_all(self.o_finalize())
        self.stamp("mid1")
        self.emit_all(self.q_finalize(True))
        self.stamp("mid2")
        for i in range(96):
            A("v_accvgpr_write_b32 %s, 0" % ar(i))
        A("s_mul_i32 %s, %s, 12288" % (sr(sA), sr(sHF)))
        A("s_add_u32 %s, %s, %d" % (sr(sA), sr(sA), EX))
        A("v_add_u32 %s, %s, %s" % (vr(vB), sr(sA), vr(vSTA)))
        A("s_waitcnt lgkmcnt(0)")
        self.emit_all(self.att_reset())
        self.stamp(5)
        self.att_loop(1)

        loc = {}
        for n in range(4):
            loc[n] = SLOT * n
        for n in range(4, 7):
            loc[n] = EXTRA + SLOT * (n - 4)
        for n in range(7, 10):
            loc[n] = EX + SLOT * (n - 7)
        for n in range(10, 14):
            loc[n] = SLOT * (n - 10)
        loc[14], loc[15] = EXTRA, EXTRA + SLOT

        def o1_dma(n):
            return ["s_add_u32 %s, %s, %d" % (sr(sWOFF), sr(sO1 + n % 4), 128 * (n // 4))] + \
                self.dma(loc[n], dW, vOW, sWOFF, o.o1_flag, n)

        self.vm = [1] * 4 + [2] * 4 + [3] * 4
        vOA = vVA
        t0, t1 = vT + 6, vT + 7
        addr = ["v_lshrrev_b32 %s, 2, %s" % (vr(t0), vr(vLANE)),
                "v_bfe_u32 %s, %s, 3, 2" % (vr(t1), vr(vLANE)),
                "v_lshlrev_b32 %s, 5, %s" % (vr(t1), vr(t1)),
                "v_lshl_add_u32 %s, %s, 7, %s" % (vr(t0), vr(t0), vr(t1)),
                "v_and_b32 %s, 3, %s" % (vr(t1), vr(vLANE)),
                "v_lshl_add_u32 %s, %s, 3, %s" % (vr(t0), vr(t1), vr(t0)),
                "s_lshl_b32 %s, %s, 13" % (sr(sA), sr(sP))]
        for nt in range(4):
            addr += ["v_xor_b32 %s, %d, %s" % (vr(vOA + nt), nt << 5, vr(t0)),
                     "v_add_u32 %s, %s, %s" % (vr(vOA + nt), sr(sA), vr(vOA + nt)),
                     "v_add_u32 %s, 0x10000, %s" % (vr(vOA + 4 + nt), vr(vOA + nt)),
                     "v_add_u32 %s, 0x20000, %s" % (vr(vOA + 8 + nt), vr(vOA + nt))]
        addr += ["s_mul_i32 %s, %s, 12288" % (sr(sA), sr(sHF)),
                 "s_add_u32 %s, %s, %d" % (sr(sA), sr(sA), EX),
                 "v_add_u32 %s, %s, %s" % (vr(vB), sr(sA), vr(vSTA))]

        def o1_reads(n):
            win, off = loc[n] // 65536, loc[n] % 65536
            return ["ds_read_b64_tr_b16 %s, %s offset:%d" % (vr(vF[n % 2] + 16 * ks + 4 * nt + 2 * e, 2), vr(vOA + 4 * win + nt),
                                                             off + 4096 * ks + 2048 * e)
                    for ks in range(2) for nt in range(4) for e in range(2)]

        self.stamp("a1end")
        self.emit_all(addr)
        self.emit_all(spread(self.o_finalize(), o1_dma(4) + o1_dma(5) + o1_dma(6)))
        self.stamp(6)
        A("s_waitcnt lgkmcnt(0)")
        A("s_barrier")
        brd = ["ds_read_b128 %s, %s offset:%d" % (vr(vO + 4 * f, 4), vr(vB), 24576 * (f // 12) + 1024 * (f % 12)) for f in range(24)]
        self.emit_all(brd[:6] + o1_reads(0)[:8])
        A("s_waitcnt lgkmcnt(6)")
        self.emit_all(o1_reads(0)[8:])
        A("s_waitcnt lgkmcnt(6)")
        self.emit_all(brd[6:15])
        A("s_waitcnt lgkmcnt(6)")
        self.emit_all(brd[15:])

        vSG = vL

        def stores(c):
            out = ["s_add_u32 %s, %s, %d" % (sr(sST), sr(sSTB), 98304 * c), "s_add_u32 %s, %s, 4096" % (sr(sST2), sr(sST))]
            for jq in range(3):
                for u in range(2):
                    i = 2 * jq + u
                    a = vSG + 8 * i
                    src = 48 * c + 24 * u + 4 * jq
                    out += ["v_accvgpr_read_b32 %s, %s" % (vr(a + x), ar(src + x)) for x in range(4)]
                    out += ["v_accvgpr_read_b32 %s, %s" % (vr(a + 4 + x), ar(src + 12 + x)) for x in range(4)]
                    out += ["v_cvt_pk_bf16_f32 %s, %s, %s" % (vr(a + x), vr(a + 2 * x), vr(a + 2 * x + 1)) for x in range(4)]
                    off = " offset:%d" % (1024 * (i % 4)) if i % 4 else ""
                    out.append(("buffer_store_dwordx4 %s, %s, %s, %s offen%s%s" % (
                        vr(a, 4), vr(vSTA), sr(dS, 4), sr(sST if i < 4 else sST2), off, o.st_flag), "st"))
            return out

        plan = {0: [7, 8], 1: [9, 10], 2: [11, 12], 3: [13], 4: [14], 5: [15]}
        for n in range(16):
            if n < 15:
                self.sync(self.vm_need([n + 1]))
            else:
                A("s_waitcnt lgkmcnt(0)")
            self.stamp("o%d" % n)
            c, i = n // 4, n % 4
            mf = []
            for ks in range(2):
                for nt in range(4):
                    for j in range(3):
                        acc = ar(48 * c + 12 * nt + 4 * j, 4)
                        mf.append("%s %s, %s, %s, %s" % (MF, acc, vr(vF[n % 2] + 16 * ks + 4 * nt, 4), vr(vO + 24 * i + 12 * ks + 4 * j, 4), acc))
            rd = o1_reads(n + 1) if n < 15 else []
            d = []
            for m in plan.get(n, []):
                d += o1_dma(m)
            st = []
            if c > 0:
                s = stores(c - 1)
                if c == 1:
                    st = {0: s[:14], 1: s[14:28], 2: s[28:54], 3: s[54:]}[i]
                else:
                    st = {0: s[:28], 1: s[28:54], 2: s[54:], 3: []}[i]
            body = spread(rd, d) + st if len(d) < len(rd) else rd + d + st
            self.weave(mf, body, 1.0 if st else 0.85)
        self.stamp("o16")
        A("s_nop 7")
        self.emit_all(stores(3))
        if o.stamps:
            A("s_waitcnt vmcnt(0)")
            self.stamp(7)
            self.write_stamps(0, 8, sW, dS)
        A("L_end:")
        A("s_endpgm")
        self.rare()
        for x in self.tail:
            A(x)

    def write_stamps(self, lo, hi, swave, d):
        A = self.A
        A("s_waitcnt lgkmcnt(0)")
        A("s_cmp_lg_u32 %s, 0" % sr(swave))
        A("s_cbranch_scc1 L_nost%d" % lo)
        A("s_mov_b64 exec, 1")
        A("s_mul_i32 s3, s2, %d" % (NSTAMP * 8))
        A("s_add_u32 s3, s3, %d" % STAMP_OFF)
        A("v_mov_b32 v6, 0")
        for i in range(lo, hi):
            A("v_mov_b32 v8, s%d" % (sSTAMP + 2 * i))
            A("v_mov_b32 v9, s%d" % (sSTAMP + 2 * i + 1))
            A("buffer_store_dwordx2 v[8:9], v6, %s, s3 offen offset:%d" % (sr(d, 4), 8 * i))
            A("s_nop 1")
        A("L_nost%d:" % lo)

    def reduce_kernel(self):
        A, o = self.A, self.o
        lab = "reduce_kernel"
        wpb = o.k2_block // 64
        nwg = 3072 // wpb
        A(".globl %s" % lab)
        A(".p2align 8")
        A(".type %s,@function" % lab)
        A("%s:" % lab)
        A("s_cmp_ge_u32 s2, %d" % nwg)
        A("s_cbranch_scc1 L_end2")
        self.stamp(8)
        A("s_load_dwordx2 s[20:21], s[0:1], 80")
        A("s_load_dwordx2 s[22:23], s[0:1], 96")
        A("v_lshrrev_b32 v2, 6, v0")
        A("v_and_b32 v1, 63, v0")
        A("s_mul_i32 s5, s2, %d" % wpb)
        A("v_readfirstlane_b32 s4, v2")
        A("v_lshlrev_b32 v3, 4, v1")
        A("s_add_u32 s5, s5, s4")
        A("s_mul_hi_u32 s6, s5, 0x15555556")
        A("s_mul_i32 s7, s6, 12")
        A("s_sub_u32 s7, s5, s7")
        A("s_mul_i32 s8, s6, 98304")
        A("s_lshl_b32 s9, s7, 10")
        A("s_add_u32 s8, s8, s9")
        A("s_waitcnt lgkmcnt(0)")
        self.emit_all(self.srd(16, 22, WS_BYTES))
        for h in range(8):
            A("buffer_load_dwordx4 %s, v3, s[16:19], s8 offen%s" % (vr(8 + 4 * h, 4), o.ld2_flag))
            if h < 7:
                A("s_add_u32 s8, s8, 12288")
        self.emit_all(self.srd(12, 20, 16 * 96 * 1024 * 2))
        A("s_and_b32 s9, s6, 7")
        A("s_bfe_u32 s10, s6, 0x40003")
        A("s_lshr_b32 s11, s6, 7")
        A("s_mul_i32 s10, s10, 96")
        A("s_lshr_b32 s24, s7, 1")
        A("s_lshl_b32 s24, s24, 4")
        A("s_add_u32 s10, s10, s24")
        A("s_lshl_b32 s10, s10, 11")
        A("s_lshl_b32 s11, s11, 10")
        A("s_add_u32 s10, s10, s11")
        A("s_lshl_b32 s9, s9, 7")
        A("s_add_u32 s10, s10, s9")
        A("s_and_b32 s24, s7, 1")
        A("s_lshl_b32 s24, s24, 6")
        A("s_add_u32 s10, s10, s24")
        A("v_and_b32 v4, 15, v1")
        A("v_lshlrev_b32 v4, 11, v4")
        A("v_lshrrev_b32 v5, 4, v1")
        A("v_lshl_add_u32 v4, v5, 4, v4")
        A("s_mov_b32 s25, 0xffff0000")
        for h in range(8):
            A("s_waitcnt vmcnt(%d)" % (7 - h))
            for i in range(4):
                src = vr(8 + 4 * h + i)
                if h == 0:
                    A("v_lshlrev_b32 %s, 16, %s" % (vr(40 + 2 * i), src))
                    A("v_and_b32 %s, s25, %s" % (vr(41 + 2 * i), src))
                else:
                    A("v_lshlrev_b32 v6, 16, %s" % src)
                    A("v_and_b32 v7, s25, %s" % src)
                    A("v_add_f32 %s, %s, v6" % (vr(40 + 2 * i), vr(40 + 2 * i)))
                    A("v_add_f32 %s, %s, v7" % (vr(41 + 2 * i), vr(41 + 2 * i)))
        for i in range(4):
            A("v_cvt_pk_bf16_f32 %s, %s, %s" % (vr(48 + i), vr(40 + 2 * i), vr(41 + 2 * i)))
        A("s_nop 1")
        A("v_permlane32_swap_b32 v48, v50")
        A("v_permlane32_swap_b32 v49, v51")
        A("s_nop 1")
        A("v_permlane16_swap_b32 v48, v50")
        A("v_permlane16_swap_b32 v49, v51")
        A("buffer_store_dwordx4 v[48:51], v4, s[12:15], s10 offen")
        if o.stamps:
            A("s_waitcnt vmcnt(0)")
            self.stamp(9)
            A("s_cmp_ge_u32 s2, 256")
            A("s_cbranch_scc1 L_end2")
            if o.calib:
                lo, hi = o.calib // 10 % 10, o.calib % 10
                A("s_cmp_lg_u32 s2, 0")
                A("s_cbranch_scc1 L_end2")
                A("s_mov_b32 s3, %d" % STAMP_OFF)
                A("v_mov_b32 v5, 0")
                A("buffer_load_dword v10, v5, s[16:19], s3 offen")
                A("buffer_load_dword v11, v5, s[16:19], s3 offen offset:%d" % (8 * lo))
                A("buffer_load_dword v12, v5, s[16:19], s3 offen offset:%d" % (8 * hi))
                A("s_waitcnt vmcnt(0)")
                A("v_sub_u32 v11, v12, v11")
                A("s_nop 1")
                A("v_readfirstlane_b32 s20, v10")
                A("v_readfirstlane_b32 s21, v11")
                A("s_nop 3")
                A("s_min_u32 s21, s21, 20000")
                A("s_mul_i32 s21, s21, 10")
                A("s_add_u32 s21, s21, 20000")
                A("L_spin:")
                A("s_memrealtime s[22:23]")
                A("s_waitcnt lgkmcnt(0)")
                A("s_sub_u32 s22, s22, s20")
                A("s_cmp_lt_u32 s22, s21")
                A("s_cbranch_scc1 L_spin")
            elif o.dbg:
                A("s_cmp_lg_u32 s2, 0")
                A("s_cbranch_scc1 L_end2")
                A("s_load_dwordx2 s[20:21], s[0:1], 88")
                A("s_waitcnt lgkmcnt(0)")
                self.emit_all(self.srd(12, 20, 256))
                A("v_mul_u32_u24 v5, %d, v0" % (NSTAMP * 8))
                A("s_mov_b32 s3, %d" % STAMP_OFF)
                A("v_mov_b32 v6, 0")
                for i in range(8):
                    A("buffer_load_dword v%d, v5, s[16:19], s3 offen offset:%d" % (10 + i, 8 * i))
                A("s_waitcnt vmcnt(0)")
                A("v_not_b32 v18, v10")
                A("v_mov_b32 v19, s%d" % (sSTAMP + 16))
                A("v_mov_b32 v20, s%d" % (sSTAMP + 18))
                for i in range(11):
                    A("buffer_atomic_umax v%d, v6, s[12:15], 0 offen offset:%d" % (10 + i, 4 * i))
            else:
                self.write_stamps(8, 10, 4, 16)
        A("L_end2:")
        A("s_endpgm")

    def desc(self, lab, nv, acc, ns):
        A = self.A
        A(".p2align 6")
        A(".amdhsa_kernel %s" % lab)
        A("  .amdhsa_next_free_vgpr %d" % nv)
        A("  .amdhsa_next_free_sgpr %d" % ns)
        A("  .amdhsa_accum_offset %d" % acc)
        A("  .amdhsa_group_segment_fixed_size 0")
        A("  .amdhsa_kernarg_size 104")
        A("  .amdhsa_user_sgpr_count 2")
        A("  .amdhsa_user_sgpr_kernarg_segment_ptr 1")
        A("  .amdhsa_system_sgpr_workgroup_id_x 1")
        A(".end_amdhsa_kernel")

    def build(self):
        A, o = self.A, self.o
        A("; @launch kernel=main_kernel grid=(256,1,1) block=(256,1,1) lds=163840")
        A("; @launch kernel=reduce_kernel grid=(%d,1,1) block=(%d,1,1) lds=0" % (3072 * 64 // o.k2_block, o.k2_block))
        A('.amdgcn_target "amdgcn-amd-amdhsa--gfx950"')
        A(".text")
        self.main_kernel()
        self.reduce_kernel()
        A('.section .rodata,"a"')
        self.desc("main_kernel", 512, 256, 96)
        self.desc("reduce_kernel", 64, 64, 96)
        return "\n".join(self.L) + "\n"


def parse_opts(args):
    kw = {}
    for a in args:
        k, v = a.split("=", 1)
        cur = getattr(Opt, k)
        if isinstance(cur, bool):
            kw[k] = v not in ("0", "False")
        elif isinstance(cur, int):
            kw[k] = int(v)
        else:
            kw[k] = (" " + v.replace("+", " ")) if v else ""
    return kw


if __name__ == "__main__":
    out = sys.argv[1]
    open(out, "w").write(Gen(Opt(**parse_opts(sys.argv[2:]))).build())
```

```python
import math
import struct
import sys

WS_BYTES = 288358400
STAMP_OFF = WS_BYTES - (1 << 20)
NSTAMP = 10


def f32(x):
    return "0x%08x" % struct.unpack("<I", struct.pack("<f", x))[0]


class Opt:
    stamps = False
    cyc = False
    kv_flag = " nt"
    w_flag = ""
    o1_flag = ""
    x_flag = ""
    st_flag = " sc1"
    ld2_flag = ""
    touch_flag = ""
    touch = True
    skew_kv = True
    skew_wq = True
    k2_block = 256
    nomf = 0
    prof = 0
    dbg = False
    calib = 0
    ctouch = 3
    xsplit = False
    kvtouch = 0
    kv_oob = False
    oplan = 0
    skb = 1
    skq = 8
    sko = 0
    skp = 0
    skk = 0

    def __init__(self, **kw):
        for k, v in kw.items():
            assert hasattr(Opt, k), k
            setattr(self, k, v)


sW, sP, sHF, sB, sBLK, sHG, sT0, sIDX = 4, 5, 6, 7, 8, 9, 10, 11
dK, dV, dW, dX, dS = 12, 16, 32, 36, 40
pX, pK, pV, pWQ, pWO, pWS = 20, 22, 24, 26, 28, 30
sKV, sWOFF, sXO, sM0, sIT, sKVB, sTH, sLO = 44, 45, 46, 47, 48, 49, 50, 51
sA, sB2, sC, sE = 52, 53, 54, 55
sWQB, sWOB, sWT, sXT, sXB, sST, sST2, sSTB = 56, 57, 58, 59, 60, 61, 62, 63
sO1 = 64
sRET = 68
sXM = 70
sCG0 = 71
sSTAMP = 72
sKS, sKW = 92, 96
sKVO, sCGX = sIDX, sXT
dC = dX

vLANE, vLK, vB = 1, 2, 3
vO, vL, vNEGM, vS, vP = 4, 100, 112, 124, 148
vF = (160, 192)
vVA, vKA, vOKV, vOW, vT = 224, 232, 236, 240, 244
vEXW, vSTA, vDUM = 252, 253, 254
aQC, aBF, aONES = 192, 240, 252

SLOT = 16384
XB = 65536
EX = 65536
EXTRA = 114688
MF = "v_mfma_f32_16x16x32_bf16"


def vr(a, n=1):
    return "v%d" % a if n == 1 else "v[%d:%d]" % (a, a + n - 1)


def ar(a, n=1):
    return "a%d" % a if n == 1 else "a[%d:%d]" % (a, a + n - 1)


def sr(a, n=1):
    return "s%d" % a if n == 1 else "s[%d:%d]" % (a, a + n - 1)


def cost(x):
    t = x[0] if isinstance(x, tuple) else x
    if t.endswith(":"):
        return 0
    if t.startswith(("v_exp", "v_rcp", "v_pk_")):
        return 8
    if t.startswith("buffer_"):
        return 8
    return 4


def spread(base, ins):
    out, k = [], 0
    for i, x in enumerate(base):
        out.append(x)
        while k < len(ins) and (k + 1) * len(base) <= (i + 1) * (len(ins) + 1):
            out.append(ins[k])
            k += 1
    return out + ins[k:]


class Gen:
    def __init__(self, o):
        self.o = o
        self.L = []
        self.vm = []
        self.tail = []
        self.uid = 0

    def A(self, s):
        self.L.append(s)

    def emit(self, x):
        if isinstance(x, tuple):
            self.A(x[0])
            self.vm.append(x[1])
        else:
            self.A(x)

    def emit_all(self, xs):
        for x in xs:
            if isinstance(x, tuple) and x[0].endswith(" lds") and " m0," in self.L[-1]:
                self.A("s_nop 0")
            self.emit(x)

    def stamp(self, i):
        table = {0: {k: k for k in range(10)},
                 1: {0: 0, 2: 1, "q2": 2, "q4": 3, "q8": 4, "q12": 5, 3: 6, 7: 7, 8: 8, 9: 9},
                 2: {0: 0, "a1end": 1, 6: 2, "o0": 3, "o4": 4, "o8": 5, "o16": 6, 7: 7, 8: 8, 9: 9},
                 4: {0: 0, "s1": 1, "s2": 2, "s3": 3, 1: 4, "s4": 5, 2: 6, 7: 7, 8: 8, 9: 9},
                 3: {0: 0, 4: 1, "a0end": 2, "mid1": 3, "mid2": 4, 5: 5, "a1end": 6, 7: 7, 8: 8, 9: 9}}[self.o.prof]
        if i not in table:
            return
        i = table[i]
        if self.o.stamps:
            self.A("%s %s" % ("s_memtime" if self.o.cyc else "s_memrealtime", sr(sSTAMP + 2 * i, 2)))

    def vm_need(self, tags):
        idx = max([i for i, t in enumerate(self.vm) if t in tags] + [-1])
        n = len(self.vm) - 1 - idx
        self.vm = self.vm[idx + 1:]
        return n

    def sync(self, n):
        self.A("s_waitcnt vmcnt(%d) lgkmcnt(0)" % n)
        self.A("s_barrier")

    def weave(self, mf, other, front=1.0):
        total = sum(cost(x) for x in other)
        ngap = max(1, int(len(mf) * front))
        k, acc = 0, 0
        for i, m in enumerate(mf):
            self.A(m if not self.o.nomf else "s_nop 0")
            lim = max(total * (i + 1) / ngap, 0)
            while k < len(other) and (acc + cost(other[k]) / 2.0 <= lim or cost(other[k]) == 0):
                acc += cost(other[k])
                self.emit(other[k])
                k += 1
        self.emit_all(other[k:])

    def pat(self, mf, pattern, ds=(), dq=(), vq=()):
        ds, dq, vq = list(ds), list(dq), list(vq)
        assert len(pattern) == len(mf), (len(pattern), len(mf))
        txt = lambda x: x[0] if isinstance(x, tuple) else x
        labels = lambda q: [self.emit(q.pop(0)) for _ in range(len(q)) if q and txt(q[0]).endswith(":")]
        for m, gap in zip(mf, pattern):
            self.A(m if not self.o.nomf else "s_nop 0")
            for ch in gap:
                if ch == "t" and ds:
                    self.emit(ds.pop(0))
                elif ch == "s" and dq and not txt(dq[0]).startswith("buffer_"):
                    self.emit(dq.pop(0))
                    labels(dq)
                elif ch == "d" and dq:
                    while dq and not txt(dq[0]).startswith("buffer_"):
                        self.emit(dq.pop(0))
                    if dq:
                        if " m0," in self.L[-1]:
                            self.A("s_nop 0")
                        self.emit(dq.pop(0))
                elif ch == "n":
                    self.A("s_nop 1")
                elif ch == "v" and vq:
                    self.emit(vq.pop(0))
                    labels(vq)
        self.emit_all(ds)
        for x in dq:
            if txt(x).startswith("buffer_") and " m0," in self.L[-1]:
                self.A("s_nop 0")
            self.emit(x)
        self.emit_all(vq)

    def auto(self, mf, ds=(), dq=(), vq=(), ds_end=None, v0=0):
        n = len(mf)
        txt = lambda x: x[0] if isinstance(x, tuple) else x
        nd = len([x for x in dq if txt(x).startswith("buffer_")])
        ds_end = n - 5 if ds_end is None else ds_end
        first = 3
        dpos = [first + int(k * (n - 2 - first) / max(nd - 1, 1) + 0.5) for k in range(nd)] if nd > 1 else ([first] if nd else [])
        pattern, left, vleft = [], len(ds), [x for x in vq if not txt(x).endswith(":")]
        for g in range(n):
            k = dpos.count(g)
            if k:
                pattern.append("d" * k)
                continue
            gaps_ds = len([h for h in range(g, ds_end + 1) if h not in dpos])
            nds = 0 if left == 0 else min(2, -(-left // max(gaps_ds, 1)))
            left -= nds
            nv = 0
            if g >= v0 and vleft:
                gaps_v = len([h for h in range(g, n) if h not in dpos])
                if txt(vleft[0]).startswith("buffer_"):
                    nv = 1
                else:
                    nv = max(2 - nds, -(-len(vleft) // gaps_v))
                    for q in range(min(nv, len(vleft))):
                        if q and txt(vleft[q]).startswith("buffer_"):
                            nv = q
                            break
                vleft = vleft[nv:]
            pattern.append("t" * nds + "s" * max(0, 3 - nds - nv) + "v" * nv)
        self.pat(mf, pattern, ds, dq, vq)

    def srd(self, d, p, size):
        return ["s_mov_b32 %s, %s" % (sr(d), sr(p)), "s_and_b32 %s, %s, 0xffff" % (sr(d + 1), sr(p + 1)),
                "s_mov_b32 %s, %d" % (sr(d + 2), size), "s_mov_b32 %s, 0x20000" % sr(d + 3)]

    def dma(self, loc, srd, voff, soff, flag, tag, cnt=4, m0=sM0, nop=False):
        out = ["s_add_u32 m0, %s, %d" % (sr(m0), loc)] + (["s_nop 0"] if nop else [])
        for i in range(cnt):
            off = " offset:%d" % (1024 * i) if i else ""
            out.append(("buffer_load_dwordx4 %s, %s, %s offen%s%s lds" % (vr(voff + i), sr(srd, 4), sr(soff), off, flag), tag))
        return out

    def voff_std(self, dst, mul_i, mul_r):
        t0, t1 = vT + 6, vT + 7
        return ["v_lshrrev_b32 %s, 4, %s" % (vr(t0), vr(vLANE)),
                "v_and_b32 %s, 15, %s" % (vr(t1), vr(vLANE)),
                "v_lshlrev_b32 %s, 1, %s" % (vr(dst), vr(t0)),
                "v_xor_b32 %s, %s, %s" % (vr(t1), vr(t1), vr(dst)),
                "v_lshlrev_b32 %s, 4, %s" % (vr(t1), vr(t1)),
                "v_mul_u32_u24 %s, %d, %s" % (vr(t0), mul_r, vr(t0)),
                "v_add_u32 %s, %s, %s" % (vr(dst), vr(t0), vr(t1)),
                "v_xor_b32 %s, 0x80, %s" % (vr(t1), vr(t1)),
                "v_add_u32 %s, %s, %s" % (vr(dst + 1), vr(t0), vr(t1)),
                "v_add_u32 %s, %d, %s" % (vr(dst + 2), 2 * mul_i, vr(dst)),
                "v_add_u32 %s, %d, %s" % (vr(dst + 3), 3 * mul_i, vr(dst + 1)),
                "v_add_u32 %s, %d, %s" % (vr(dst + 1), mul_i, vr(dst + 1))]

    def voff_o1(self, dst):
        t0, t1 = vT + 6, vT + 7
        out = ["v_lshrrev_b32 %s, 3, %s" % (vr(t0), vr(vLANE)),
               "v_and_b32 %s, 7, %s" % (vr(t1), vr(vLANE)),
               "v_and_b32 %s, 6, %s" % (vr(dst), vr(t0)),
               "v_xor_b32 %s, %s, %s" % (vr(t1), vr(t1), vr(dst)),
               "v_lshlrev_b32 %s, 4, %s" % (vr(t1), vr(t1)),
               "v_lshl_add_u32 %s, %s, 10, %s" % (vr(dst), vr(t0), vr(t1))]
        for i in range(1, 4):
            out.append("v_add_u32 %s, %d, %s" % (vr(dst + i), 7168 * i, vr(dst)))
        return out

    def cg_of(self, dst, c):
        return ["s_add_u32 %s, %s, %s" % (sr(dst), sr(sCG0), c), "s_and_b32 %s, %s, 3" % (sr(dst), sr(dst))]

    def wq_group(self, c):
        return self.cg_of(sA, c) + ["s_lshl_b32 %s, %s, 20" % (sr(sA), sr(sA)),
                                    "s_add_u32 %s, %s, %s" % (sr(sWT), sr(sA), sr(sWQB))]

    def wq_params(self, i):
        return ["s_add_u32 %s, %s, %s" % (sr(sWOFF), sr(sWT), sr(sKW + i))]

    def x_group(self, c):
        return self.cg_of(sB2, c) + ["s_mul_i32 %s, %s, 24576" % (sr(sB2), sr(sB2)),
                                     "s_add_u32 %s, %s, %s" % (sr(sCGX), sr(sB2), sr(sXB))]

    def x_addr(self, i):
        return ["v_xor_b32 %s, %s, %s" % (vr(vB), sr(sKS + i), vr(vLK)),
                "v_add_u32 %s, %s, %s" % (vr(vB), sr(sCGX), vr(vB))]

    def kv_params(self):
        return ["s_add_u32 %s, %s, %s" % (sr(sKV), sr(sKVO), sr(sKVB)),
                "s_add_u32 %s, %s, 8192" % (sr(sKVO), sr(sKVO)),
                "s_and_b32 %s, %s, 0x1ffff" % (sr(sKVO), sr(sKVO))]

    def code_touch(self, label, t, back=False):
        self.uid += 1
        k = self.uid
        return ["s_getpc_b64 %s" % sr(dC, 2), "L_pc%d:" % k,
                "s_add_u32 %s, %s, %s-L_pc%d" % (sr(dC), sr(dC), label, k),
                "s_addc_u32 %s, %s, %d" % (sr(dC + 1), sr(dC + 1), -1 if back else 0),
                "s_and_b32 %s, %s, 0xffff" % (sr(dC + 1), sr(dC + 1)),
                "s_mov_b32 %s, L_codeend-%s" % (sr(dC + 2), label),
                "s_lshl_b32 %s, %s, 13" % (sr(sA), sr(sW)),
                "v_lshlrev_b32 %s, 7, %s" % (vr(t), vr(vLANE)),
                ("buffer_load_dword %s, %s, %s, %s offen" % (vr(vDUM), vr(t), sr(dC, 4), sr(sA)), "touch")]

    def zero_regs(self, fn, lo, n):
        out = []
        while n >= 16:
            out.append("v_mfma_f32_32x32x16_bf16 %s, %s, %s, 0" % (fn(lo, 16), vr(vT + 4, 4), ar(aONES, 4)))
            lo, n = lo + 16, n - 16
        while n >= 4:
            out.append("%s %s, %s, %s, 0" % (MF, fn(lo, 4), vr(vT + 4, 4), ar(aONES, 4)))
            lo, n = lo + 4, n - 4
        return out

    def x_dma(self, c):
        o = self.o
        out = []
        out += self.cg_of(sA, "%d" % c)
        out += ["s_mul_i32 %s, %s, 24576" % (sr(sB2), sr(sA)),
                "s_mul_i32 %s, %s, 6144" % (sr(sXM), sr(sW)),
                "s_add_u32 %s, %s, %s" % (sr(sXM), sr(sXM), sr(sB2)),
                "s_lshl_b32 %s, %s, 8" % (sr(sA), sr(sA)),
                "s_mul_i32 %s, %s, 98304" % (sr(sXO), sr(sB)),
                "s_add_u32 %s, %s, %s" % (sr(sXO), sr(sXO), sr(sA)),
                "s_mul_i32 %s, %s, 24576" % (sr(sA), sr(sW)),
                "s_add_u32 %s, %s, %s" % (sr(sXO), sr(sXO), sr(sA))]
        out += self.dma(XB, dX, vOKV, sXO, o.x_flag, ("x", c), 4, sXM)
        out += ["s_add_u32 %s, %s, 16384" % (sr(sXO), sr(sXO))]
        out += self.dma(XB + 4096, dX, vOKV, sXO, o.x_flag, ("x", c), 2, sXM)
        return out

    def tr_reads(self, fset, slot):
        return ["ds_read_b64_tr_b16 %s, %s offset:%d" % (vr(vF[fset] + 4 * dt + 2 * e, 2), vr(vVA + dt), SLOT * slot + 4096 * e)
                for dt in range(8) for e in range(2)]

    def k_reads(self, fset, slot):
        return ["ds_read_b128 %s, %s offset:%d" % (vr(vF[fset] + 16 * kt + 4 * ks, 4), vr(vKA + ks), SLOT * slot + 4096 * kt)
                for kt in range(2) for ks in range(4)]

    def q_finalize(self, from_agpr):
        cs = math.log2(math.e) / math.sqrt(128.0)
        out = ["s_mov_b32 %s, %s" % (sr(sE), f32(cs))]
        blocks = []
        for ks in range(4):
            for j in range(3):
                pre = []
                if from_agpr:
                    a = vS + 8 * ((3 * ks + j) % 3)
                    b = a + 4
                    pre += ["v_accvgpr_read_b32 %s, %s" % (vr(a + i), ar(24 * ks + 4 * j + i)) for i in range(4)]
                    pre += ["v_accvgpr_read_b32 %s, %s" % (vr(b + i), ar(24 * ks + 12 + 4 * j + i)) for i in range(4)]
                else:
                    a, b = vO + 24 * ks + 4 * j, vO + 24 * ks + 12 + 4 * j
                pre += ["v_mul_f32 %s, %s, %s" % (vr(x + y), sr(sE), vr(x + y)) for x in (a, b) for y in range(4)]
                pre += ["v_cvt_pk_bf16_f32 %s, %s, %s" % (vr(a), vr(a), vr(a + 1)),
                        "v_cvt_pk_bf16_f32 %s, %s, %s" % (vr(a + 1), vr(a + 2), vr(a + 3)),
                        "v_cvt_pk_bf16_f32 %s, %s, %s" % (vr(a + 2), vr(b), vr(b + 1)),
                        "v_cvt_pk_bf16_f32 %s, %s, %s" % (vr(a + 3), vr(b + 2), vr(b + 3))]
                s32 = ["v_permlane32_swap_b32 %s, %s" % (vr(a), vr(a + 2)), "v_permlane32_swap_b32 %s, %s" % (vr(a + 1), vr(a + 3))]
                s16 = ["v_permlane16_swap_b32 %s, %s" % (vr(a), vr(a + 2)), "v_permlane16_swap_b32 %s, %s" % (vr(a + 1), vr(a + 3))]
                wr = ["v_accvgpr_write_b32 %s, %s" % (ar(aQC + 12 * ks + 4 * j + i), vr(a + i)) for i in range(4)]
                blocks.append((pre, s32, s16, wr))
        n = len(blocks)
        for k in range(n + 1):
            if k < n:
                pre = blocks[k][0]
                h = len(pre) // 2
                out += pre[:h]
            if k > 0:
                if k == n:
                    out.append("s_nop 1")
                out += blocks[k - 1][1]
            if k < n:
                out += pre[h:]
            else:
                out.append("s_nop 1")
            if k > 0:
                out += blocks[k - 1][2] + blocks[k - 1][3]
        return out

    def o_finalize(self, kss=(0, 1, 2, 3)):
        out = []
        if kss[0] == 0:
            for j in range(3):
                out += ["v_rcp_f32 %s, %s" % (vr(vT + j), vr(vL + 4 * j))]
            out.append("s_nop 1")
        for ks in kss:
            for j in range(3):
                a, b = vO + 24 * ks + 4 * j, vO + 24 * ks + 12 + 4 * j
                out += ["v_mul_f32 %s, %s, %s" % (vr(x + y), vr(x + y), vr(vT + j)) for x in (a, b) for y in range(4)]
                out += ["v_cvt_pk_bf16_f32 %s, %s, %s" % (vr(a), vr(a), vr(a + 1)),
                        "v_cvt_pk_bf16_f32 %s, %s, %s" % (vr(a + 1), vr(a + 2), vr(a + 3)),
                        "v_cvt_pk_bf16_f32 %s, %s, %s" % (vr(a + 2), vr(b), vr(b + 1)),
                        "v_cvt_pk_bf16_f32 %s, %s, %s" % (vr(a + 3), vr(b + 2), vr(b + 3)),
                        "ds_write_b128 %s, %s offset:%d" % (vr(vEXW), vr(a, 4), 1024 * (3 * ks + j))]
        return out

    def att_reset(self, nacc):
        out = ["v_mov_b32 %s, 0" % vr(vT + 4 + i) for i in range(4)] + ["s_nop 1"]
        out += self.zero_regs(vr, vNEGM - 4, 16) + self.zero_regs(vr, vO, vNEGM - 4 - vO) + self.zero_regs(ar, 0, nacc)
        out += ["s_nop 7"]
        out += ["s_mov_b32 %s, 0xff800000" % sr(sTH), "s_mov_b32 %s, 0xff800000" % sr(sLO), "s_mov_b32 %s, 0" % sr(sIT)]
        return out

    def last_only(self, code):
        self.uid += 1
        k = self.uid
        self.tail += ["L_alt%d:" % k] + code + ["s_branch L_altback%d" % k]
        return ["s_cmp_eq_u32 %s, 3" % sr(sIT), "s_cbranch_scc1 L_alt%d" % k, "L_altback%d:" % k]

    def sel_last(self, dst, alt):
        return ["s_cmp_eq_u32 %s, 3" % sr(sIT), "s_cselect_b32 %s, %s, %s" % (sr(dst), sr(alt), sr(dst))]

    def att_loop(self, rnd):
        A, o = self.A, self.o

        def mx(j):
            s0, s1, m = vS + 4 * j, vS + 12 + 4 * j, vT + j
            return ["v_max3_f32 %s, %s, %s, %s" % (vr(m), vr(s0), vr(s0 + 1), vr(s0 + 2)),
                    "v_max3_f32 %s, %s, %s, %s" % (vr(m), vr(m), vr(s0 + 3), vr(s1)),
                    "v_max3_f32 %s, %s, %s, %s" % (vr(m), vr(m), vr(s1 + 1), vr(s1 + 2)),
                    "v_max_f32 %s, %s, %s" % (vr(m), vr(m), vr(s1 + 3))]

        def ex(kt, j):
            a = vS + 12 * kt + 4 * j
            return ["v_exp_f32 %s, %s" % (vr(a + x), vr(a + x)) for x in range(4)]

        def cv(j):
            return ["v_cvt_pk_bf16_f32 %s, %s, %s" % (vr(vP + 4 * j + 2 * kt + h), vr(vS + 12 * kt + 4 * j + 2 * h), vr(vS + 12 * kt + 4 * j + 2 * h + 1))
                    for kt in range(2) for h in range(2)]

        patK = "tss tss tss tss tts d tv tv t t tt d tv tv tv ttv d t t vv vv d _ _".split()
        patW = "tss tts d tv tv vv vvv v d tv tv tv tv tv d tv tv tv tv ttv d vv vv v".split()
        patV = "sv sv sv sv svv svv sv d v v v v d v v tv tvv tvv tt t d tt t _ d _ _".split()
        A(".p2align 6")
        A("L_att%d:" % rnd)
        for i in range(4):
            nK, nW, nV = 3 * i, 3 * i + 1, 3 * i + 2
            self.sync(8)
            mf = []
            for j in range(3):
                for kt in range(2):
                    for ks in range(4):
                        acc = vr(vS + 12 * kt + 4 * j, 4)
                        c = vr(vNEGM + 4 * j, 4) if ks == 0 else acc
                        mf.append("%s %s, %s, %s, %s" % (MF, acc, vr(vF[nK % 2] + 16 * kt + 4 * ks, 4), ar(aQC + 12 * ks + 4 * j, 4), c))
            rd = self.tr_reads(nW % 2, nW % 4)
            if rnd == 0:
                par = []
                if i == 0:
                    par += self.x_group(sr(sIT))
                if i == 3:
                    par += ["s_add_u32 %s, %s, 1" % (sr(sC), sr(sIT))] + self.wq_group(sr(sC))
                par += self.wq_params((i + 1) % 4)
                if i == 3:
                    par += self.last_only(self.srd(dW, pWO, 4 << 20)[:2] + self.voff_std(vOW, 3072, 1024) +
                                          ["s_mov_b32 %s, %s" % (sr(sWT), sr(sWOB)), "s_mov_b32 %s, %s" % (sr(sWOFF), sr(sWOB))])
                vq = self.x_addr(i)
                rd += ["ds_read_b128 %s, %s offset:%d" % (ar(aBF + 4 * j, 4), vr(vB), 4096 * j) for j in range(3)]
            else:
                vq = ["s_nop 0", "s_nop 0"]
                if i < 3:
                    par = ["s_add_u32 %s, %s, %d" % (sr(sWOFF), sr(sWT), 32768 * ((i + 1) // 2) + 256 * ((i + 1) % 2))]
                else:
                    par = ["s_mov_b32 %s, 65536" % sr(sA), "s_movk_i32 %s, 6144" % sr(sC), "s_cmp_eq_u32 %s, 1" % sr(sIT),
                           "s_cselect_b32 %s, 196608, %s" % (sr(sA), sr(sA)),
                           "s_cselect_b32 %s, 18432, %s" % (sr(sC), sr(sC)),
                           "s_add_u32 %s, %s, %s" % (sr(sWT), sr(sWT), sr(sA)),
                           "s_cmp_eq_u32 %s, 3" % sr(sIT),
                           "s_cselect_b32 %s, %s, %s" % (sr(sWOFF), sr(sO1 + 1), sr(sWT))]
                    vq = ["s_nop 0", "v_add_u32 %s, %s, %s" % (vr(vB), sr(sC), vr(vB))]
                if i % 2 == 0:
                    rd += ["ds_read_b128 %s, %s offset:%d" % (ar(aBF + 4 * j, 4), vr(vB), 3072 * (i // 2) + 1024 * j) for j in range(3)]
            d = self.dma(SLOT * (nK % 4), dW, vOW, sWOFF, o.w_flag, None)
            self.pat(mf, patK, rd, par + d, vq + mx(0) + mx(1))
            self.sync(8)
            mf = []
            for dt in range(8):
                for j in range(3):
                    acc = ar((0 if rnd == 0 else 96 * (i % 2)) + 12 * dt + 4 * j, 4)
                    mf.append("%s %s, %s, %s, %s" % (MF, acc, vr(vF[nW % 2] + 4 * dt, 4), ar(aBF + 4 * j, 4), acc))
            rd = self.tr_reads(nV % 2, nV % 4)
            self.uid += 1
            k = self.uid
            vq = mx(2) + ["v_max3_f32 %s, %s, %s, %s" % (vr(vT + 3), vr(vT), vr(vT + 1), vr(vT + 2)),
                          "v_cmp_lt_f32 vcc, %s, %s" % (sr(sTH), vr(vT + 3)),
                          "s_cbranch_vccnz L_rs%d" % k, "L_rb%d:" % k]
            self.tail += ["L_rs%d:" % k, "s_call_b64 %s, L_rare" % sr(sRET, 2), "s_branch L_rb%d" % k]
            vq += ex(0, 0) + ex(1, 0) + cv(0) + ex(0, 1)
            par = self.sel_last(sKV, sO1 + 2) if (rnd == 1 and i == 3) else []
            d = self.dma(SLOT * (nW % 4), dV, vOKV, sKV, o.kv_flag, None)
            self.pat(mf, patW, rd, par + d, vq)
            self.sync(8)
            mf = []
            for j in range(3):
                mf.append("%s %s, %s, %s, %s" % (MF, vr(vL + 4 * j, 4), ar(aONES, 4), vr(vP + 4 * j, 4), vr(vL + 4 * j, 4)))
                for dt in range(8):
                    acc = vr(vO + 12 * dt + 4 * j, 4)
                    mf.append("%s %s, %s, %s, %s" % (MF, acc, vr(vF[nV % 2] + 4 * dt, 4), vr(vP + 4 * j, 4), acc))
            mf[17], mf[18] = mf[17], mf[18]
            rd = self.k_reads((nV + 1) % 2, (nV + 1) % 4)
            par = self.kv_params()
            if rnd == 0 and i == 2:
                par = ["s_cmp_eq_u32 %s, 3" % sr(sIT), "s_cselect_b32 %s, 131072, 0" % sr(sA),
                       "s_add_u32 %s, %s, %s" % (sr(sKVB), sr(sKVB), sr(sA))] + par
            if rnd == 1 and i == 2:
                par += self.last_only(self.srd(dK, pWO, 4 << 20)[:3] + self.srd(dV, pWO, 4 << 20)[:3] +
                                      self.voff_o1(vOKV) + ["v_mov_b32 %s, %s" % (vr(vOW + x), vr(vOKV + x)) for x in range(4)] +
                                      ["s_mov_b32 %s, %s" % (sr(sKV), sr(sO1))])
            if rnd == 1 and i == 3:
                par += self.sel_last(sKV, sO1 + 3)
            d = self.dma(SLOT * (nV % 4), dK, vOKV, sKV, o.kv_flag, None)
            if rnd == 1 and i == 0 and o.touch:
                t = vT + 4
                d += self.last_only([
                    "s_lshl_b32 %s, %s, 3" % (sr(sA), sr(sB)),
                    "s_and_b32 %s, %s, 1" % (sr(sB2), sr(sW)),
                    "s_lshl_b32 %s, %s, 2" % (sr(sB2), sr(sB2)),
                    "s_add_u32 %s, %s, %s" % (sr(sA), sr(sA), sr(sB2)),
                    "s_lshl_b32 %s, %s, 10" % (sr(sA), sr(sA)),
                    "s_lshl_b32 %s, %s, 19" % (sr(sB2), sr(sHG)),
                    "s_add_u32 %s, %s, %s" % (sr(sA), sr(sA), sr(sB2)),
                    "s_lshl_b32 %s, %s, 18" % (sr(sB2), sr(sP)),
                    "s_add_u32 %s, %s, %s" % (sr(sA), sr(sA), sr(sB2)),
                    "s_add_u32 %s, %s, 131072" % (sr(sA), sr(sA)),
                    "v_and_b32 %s, 31, %s" % (vr(t), vr(vLANE)),
                    "v_lshlrev_b32 %s, 7, %s" % (vr(t), vr(t)),
                    "buffer_load_dword %s, %s, %s, %s offen%s" % (vr(vDUM), vr(t), sr(dW, 4), sr(sA), o.touch_flag)] +
                    ([x[0] if isinstance(x, tuple) else x for x in self.code_touch("L_o1", t, True)] if o.ctouch & 2 else []))
            if i == 3:
                d += ["s_add_u32 %s, %s, 1" % (sr(sIT), sr(sIT)), "s_cmp_lt_u32 %s, 4" % sr(sIT)]
            vq = ex(1, 1) + cv(1) + ex(0, 2) + ex(1, 2) + cv(2)
            pv = list(patV)
            pv[17] += "n"
            pv[25] = "ss"
            self.pat(mf, pv, rd, par + d, vq)
        A("s_cbranch_scc1 L_att%d" % rnd)

    def rare(self):
        A = self.A
        A("L_rare:")
        for j in range(3):
            A("v_mov_b32 %s, %s" % (vr(vT + 3 + j), vr(vT + j)))
        A("s_nop 1")
        for j in range(3):
            A("v_permlane32_swap_b32 %s, %s" % (vr(vT + j), vr(vT + 3 + j)))
        for j in range(3):
            A("v_max_f32 %s, %s, %s" % (vr(vT + j), vr(vT + j), vr(vT + 3 + j)))
        for j in range(3):
            A("v_mov_b32 %s, %s" % (vr(vT + 3 + j), vr(vT + j)))
        A("s_nop 1")
        for j in range(3):
            A("v_permlane16_swap_b32 %s, %s" % (vr(vT + j), vr(vT + 3 + j)))
        for j in range(3):
            A("v_max3_f32 %s, %s, %s, %s" % (vr(vT + j), vr(vT + j), vr(vT + 3 + j), sr(sLO)))
        for j in range(3):
            A("v_max_f32 %s, 0, %s" % (vr(vT + 3 + j), vr(vT + j)))
        for j in range(3):
            A("v_exp_f32 %s, -%s" % (vr(vT + 3 + j), vr(vT + 3 + j)))
        for j in range(3):
            for base in (vS + 4 * j, vS + 12 + 4 * j, vNEGM + 4 * j):
                for i in range(4):
                    A("v_sub_f32 %s, %s, %s" % (vr(base + i), vr(base + i), vr(vT + j)))
        A("s_cmp_lg_u32 %s, 0" % sr(sLO))
        A("s_cbranch_scc1 L_rare_first")
        for j in range(3):
            for base in [vO + 12 * dt + 4 * j for dt in range(8)] + [vL + 4 * j]:
                for i in range(4):
                    A("v_mul_f32 %s, %s, %s" % (vr(base + i), vr(base + i), vr(vT + 3 + j)))
        A("L_rare_first:")
        A("s_mov_b32 %s, %s" % (sr(sTH), f32(8.0)))
        A("s_mov_b32 %s, 0" % sr(sLO))
        A("s_setpc_b64 %s" % sr(sRET, 2))

    def main_kernel(self):
        A, o = self.A, self.o
        lab = "main_kernel"
        A(".globl %s" % lab)
        A(".p2align 8")
        A(".type %s,@function" % lab)
        A("%s:" % lab)
        A("s_cmp_ge_u32 s2, 256")
        A("s_cbranch_scc1 L_end")
        self.stamp(0)
        A("s_and_b32 %s, s2, 7" % sr(sA))
        A("s_lshr_b32 %s, s2, 3" % sr(sB2))
        A("s_lshr_b32 %s, %s, 2" % (sr(sBLK), sr(sA)))
        A("s_mul_i32 %s, %s, 40" % (sr(sC), sr(sBLK)))
        A("s_add_u32 s4, s0, %s" % sr(sC))
        A("s_addc_u32 s5, s1, 0")
        A("s_load_dwordx8 %s, s[4:5], 0" % sr(pX, 8))
        A("s_load_dwordx2 %s, s[4:5], 32" % sr(pWO, 2))
        A("s_load_dwordx2 %s, s[0:1], 96" % sr(pWS, 2))
        A("s_and_b32 %s, %s, 15" % (sr(sB), sr(sB2)))
        A("s_lshr_b32 %s, %s, 4" % (sr(sE), sr(sB2)))
        A("s_and_b32 %s, %s, 3" % (sr(sHG), sr(sA)))
        A("s_lshl_b32 %s, %s, 1" % (sr(sHG), sr(sHG)))
        A("s_add_u32 %s, %s, %s" % (sr(sHG), sr(sHG), sr(sE)))
        if o.skew_wq:
            A("s_lshl_b32 %s, %s, %d" % (sr(sE), sr(sE), 1) if o.xsplit else "s_mov_b32 %s, 0" % sr(sE))
            A("s_add_u32 %s, %s, %s" % (sr(sCG0), sr(sB), sr(sE)))
            A("s_lshr_b32 %s, %s, 2" % (sr(sE), sr(sB)))
        else:
            A("s_mov_b32 %s, 0" % sr(sCG0))
            A("s_mov_b32 %s, 0" % sr(sE))
        for i in range(4):
            A("s_add_u32 %s, %s, %d" % (sr(sC), sr(sE), i))
            A("s_and_b32 %s, %s, 3" % (sr(sC), sr(sC)))
            A("s_lshl_b32 %s, %s, 6" % (sr(sKS + i), sr(sC)))
            A("s_lshl_b32 %s, %s, 18" % (sr(sKW + i), sr(sC)))
        A("v_lshrrev_b32 %s, 6, v0" % vr(vT))
        A("v_and_b32 %s, 63, v0" % vr(vLANE))
        self.emit_all(self.voff_std(vOKV, 3072, 1024))
        self.emit_all(self.voff_std(vOW, 65536 - 1024, 8192))
        self.stamp("s1")
        A("s_waitcnt lgkmcnt(0)")
        self.stamp("s2")
        A("v_readfirstlane_b32 %s, %s" % (sr(sW), vr(vT)))
        self.emit_all(self.srd(dX, pX, 16 * 98304))
        self.emit_all(self.srd(dW, pWQ, 4 << 20))
        A("s_lshr_b32 %s, %s, 1" % (sr(sP), sr(sW)))
        A("s_and_b32 %s, %s, 1" % (sr(sHF), sr(sW)))
        self.emit_all(self.x_dma(0))
        A("s_lshl_b32 %s, %s, 12" % (sr(sM0), sr(sW)))
        A("s_lshl_b32 %s, %s, 1" % (sr(sA), sr(sHG)))
        A("s_add_u32 %s, %s, %s" % (sr(sA), sr(sA), sr(sP)))
        A("s_lshl_b32 %s, %s, 9" % (sr(sWQB), sr(sA)))
        A("s_lshl_b32 %s, %s, 15" % (sr(sA), sr(sHF)))
        A("s_add_u32 %s, %s, %s" % (sr(sWQB), sr(sWQB), sr(sA)))

        def wq_dma(n, k=None):
            k = n if k is None else k
            return (self.wq_group("%d" % (k // 4)) if k % 4 == 0 else []) + self.wq_params(k % 4) + \
                self.dma(SLOT * (n % 4), dW, vOW, sWOFF, o.w_flag, n)

        self.emit_all(wq_dma(0))
        self.stamp("s3")
        self.emit_all(wq_dma(1))
        self.emit_all(self.srd(dK, pK, 0 if o.kv_oob else 64 << 20))
        self.emit_all(self.srd(dV, pV, 0 if o.kv_oob else 64 << 20))
        self.emit_all(self.srd(dS, pWS, WS_BYTES))
        A("s_lshl_b32 %s, %s, 22" % (sr(sKVB), sr(sB)))
        A("s_lshl_b32 %s, %s, 19" % (sr(sWOB), sr(sHG)))
        A("s_add_u32 %s, %s, %s" % (sr(sKVB), sr(sKVB), sr(sWOB)))
        A("s_lshl_b32 %s, %s, 18" % (sr(sA), sr(sP)))
        A("s_add_u32 %s, %s, %s" % (sr(sKVB), sr(sKVB), sr(sA)))
        A("s_lshl_b32 %s, %s, 12" % (sr(sA), sr(sHF)))
        A("s_add_u32 %s, %s, %s" % (sr(sKVB), sr(sKVB), sr(sA)))
        A("s_lshl_b32 %s, %s, 9" % (sr(sA), sr(sP)))
        A("s_add_u32 %s, %s, %s" % (sr(sWOB), sr(sWOB), sr(sA)))
        A("s_lshl_b32 %s, %s, 15" % (sr(sA), sr(sHF)))
        A("s_add_u32 %s, %s, %s" % (sr(sO1), sr(sWOB), sr(sA)))
        A("s_add_u32 %s, %s, 131072" % (sr(sC), sr(sO1)))
        A("s_lshl_b32 %s, %s, 18" % (sr(sA), sr(sP)))
        A("s_add_u32 %s, %s, %s" % (sr(sO1), sr(sC), sr(sA)))
        A("s_xor_b32 %s, %s, 262144" % (sr(sA), sr(sA)))
        A("s_add_u32 %s, %s, %s" % (sr(sO1 + 2), sr(sC), sr(sA)))
        A("s_add_u32 %s, %s, 65536" % (sr(sO1 + 1), sr(sO1)))
        A("s_add_u32 %s, %s, 65536" % (sr(sO1 + 3), sr(sO1 + 2)))
        A("s_lshl_b32 %s, %s, 14" % (sr(sA), sr(sHF)))
        A("s_add_u32 %s, %s, %s" % (sr(sWOB), sr(sWOB), sr(sA)))
        if o.skew_kv:
            A("s_and_b32 %s, %s, 1" % (sr(sA), sr(sHG)))
            A("s_mul_i32 %s, %s, %d" % (sr(sA), sr(sA), o.skq))
            A("s_mul_i32 %s, %s, %d" % (sr(sC), sr(sB), o.skb))
            A("s_add_u32 %s, %s, %s" % (sr(sA), sr(sA), sr(sC)))
            A("s_lshr_b32 %s, %s, 1" % (sr(sC), sr(sHG)))
            A("s_mul_i32 %s, %s, %d" % (sr(sC), sr(sC), o.sko))
            A("s_add_u32 %s, %s, %s" % (sr(sA), sr(sA), sr(sC)))
            A("s_mul_i32 %s, %s, %d" % (sr(sC), sr(sP), o.skp))
            A("s_add_u32 %s, %s, %s" % (sr(sA), sr(sA), sr(sC)))
            A("s_mul_i32 %s, %s, %d" % (sr(sC), sr(sBLK), o.skk))
            A("s_add_u32 %s, %s, %s" % (sr(sA), sr(sA), sr(sC)))
            A("s_and_b32 %s, %s, 15" % (sr(sA), sr(sA)))
            A("s_lshl_b32 %s, %s, 13" % (sr(sKVO), sr(sA)))
        else:
            A("s_mov_b32 %s, 0" % sr(sKVO))
        A("s_mul_i32 %s, %s, 12288" % (sr(sXB), sr(sHF)))
        A("s_add_u32 %s, %s, %d" % (sr(sXB), sr(sXB), XB))
        A("s_lshl_b32 %s, %s, 4" % (sr(sA), sr(sBLK)))
        A("s_add_u32 %s, %s, %s" % (sr(sA), sr(sA), sr(sB)))
        A("s_lshl_b32 %s, %s, 1" % (sr(sA), sr(sA)))
        A("s_add_u32 %s, %s, %s" % (sr(sA), sr(sA), sr(sP)))
        A("s_mul_i32 %s, %s, %d" % (sr(sA), sr(sA), 4 * 98304))
        A("s_lshl_b32 %s, %s, 1" % (sr(sB2), sr(sHG)))
        A("s_add_u32 %s, %s, %s" % (sr(sB2), sr(sB2), sr(sHF)))
        A("s_mul_i32 %s, %s, 6144" % (sr(sB2), sr(sB2)))
        A("s_add_u32 %s, %s, %s" % (sr(sSTB), sr(sA), sr(sB2)))
        t0, t1, t2 = vT, vT + 1, vT + 2
        A("v_and_b32 %s, 15, %s" % (vr(t0), vr(vLANE)))
        A("v_lshrrev_b32 %s, 4, %s" % (vr(t1), vr(vLANE)))
        A("v_and_b32 %s, 7, %s" % (vr(t2), vr(vLANE)))
        A("v_lshlrev_b32 %s, 1, %s" % (vr(t2), vr(t2)))
        A("v_xor_b32 %s, %s, %s" % (vr(t2), vr(t2), vr(t1)))
        A("v_lshlrev_b32 %s, 4, %s" % (vr(t2), vr(t2)))
        A("v_lshl_add_u32 %s, %s, 8, %s" % (vr(vLK), vr(t0), vr(t2)))
        A("v_lshrrev_b32 %s, 2, %s" % (vr(t0), vr(vLANE)))
        A("v_and_b32 %s, 7, %s" % (vr(t1), vr(t0)))
        A("v_lshlrev_b32 %s, 5, %s" % (vr(t1), vr(t1)))
        A("v_lshl_add_u32 %s, %s, 8, %s" % (vr(t0), vr(t0), vr(t1)))
        A("v_and_b32 %s, 3, %s" % (vr(t1), vr(vLANE)))
        A("v_lshl_add_u32 %s, %s, 3, %s" % (vr(t0), vr(t1), vr(t0)))
        A("s_lshl_b32 %s, %s, 13" % (sr(sA), sr(sP)))
        for dt in range(8):
            A("v_xor_b32 %s, %d, %s" % (vr(vVA + dt), dt << 5, vr(t0)))
            A("v_add_u32 %s, %s, %s" % (vr(vVA + dt), sr(sA), vr(vVA + dt)))
        for ks in range(4):
            A("v_xor_b32 %s, %d, %s" % (vr(vKA + ks), ks << 6, vr(vLK)))
            A("v_add_u32 %s, %s, %s" % (vr(vKA + ks), sr(sA), vr(vKA + ks)))
        A("s_mul_i32 %s, %s, 12288" % (sr(sA), sr(sW)))
        A("s_add_u32 %s, %s, %d" % (sr(sA), sr(sA), EX))
        A("v_lshlrev_b32 %s, 4, %s" % (vr(vSTA), vr(vLANE)))
        A("v_add_u32 %s, %s, %s" % (vr(vEXW), sr(sA), vr(vSTA)))
        A("v_mov_b32 %s, 0x3f803f80" % vr(t0))
        for i in range(4):
            A("v_accvgpr_write_b32 %s, %s" % (ar(aONES + i), vr(t0)))

        vBX = (vS, vS + 12)

        def xb_reads(n):
            return (self.x_group("%d" % (n // 4)) if n % 4 == 0 else []) + self.x_addr(n % 4) + \
                ["ds_read_b128 %s, %s offset:%d" % (vr(vBX[n % 2] + 4 * j, 4), vr(vB), 4096 * j) for j in range(3)]

        def kv_touch(k):
            t = vT + 5
            return ["s_add_u32 %s, %s, %d" % (sr(sA), sr(sKVO), 8192 * k),
                    "s_and_b32 %s, %s, 0x1ffff" % (sr(sA), sr(sA)),
                    "s_add_u32 %s, %s, %s" % (sr(sA), sr(sA), sr(sKVB)),
                    "v_and_b32 %s, 31, %s" % (vr(t), vr(vLANE)),
                    "v_lshlrev_b32 %s, 7, %s" % (vr(t), vr(t)),
                    ("buffer_load_dword %s, %s, %s, %s offen" % (vr(vDUM), vr(t), sr(dK, 4), sr(sA)), "touch"),
                    ("buffer_load_dword %s, %s, %s, %s offen" % (vr(vDUM), vr(t), sr(dV, 4), sr(sA)), "touch")]

        self.stamp(1)
        self.sync(self.vm_need([0, ("x", 0)]))
        self.stamp("s4")
        self.emit_all(xb_reads(0) + self.tr_reads(0, 0) + wq_dma(2))
        xplan = {0: 1, 3: 2, 7: 3} if o.xsplit else {0: 1, 4: 2, 8: 3}
        qfin = self.q_finalize(False)
        for n in range(16):
            need = [n + 1] if n < 15 else []
            if n % 4 == 3 and n < 15:
                need.append(("x", (n + 1) // 4))
            self.sync(self.vm_need(need))
            if n == 0:
                self.stamp(2)
            self.stamp("q%d" % n)
            mf = []
            for dt in range(8):
                for j in range(3):
                    acc = vr(vO + 12 * dt + 4 * j, 4)
                    mf.append("%s %s, %s, %s, %s" % (MF, acc, vr(vF[n % 2] + 4 * dt, 4), vr(vBX[n % 2] + 4 * j, 4), "0" if n == 0 else acc))
            head, rd, vq = [], [], []
            if n < 15:
                xb = xb_reads(n + 1)
                head, vq, rd = xb[:-5], xb[-5:-3], self.tr_reads((n + 1) % 2, (n + 1) % 4) + xb[-3:]
            m = n + 4
            pre, post = [], []
            if n == 0:
                pre = wq_dma(3)
            if n in xplan:
                post = self.x_dma(xplan[n])
            if n == 9 and o.ctouch & 1:
                post = self.code_touch("L_q0end", vT + 5)
            if o.kvtouch and n in (8, 10)[:o.kvtouch]:
                post = kv_touch(1 + (n - 8) // 2)
            if m < 16:
                d = wq_dma(m)
            elif m == 16:
                d = self.voff_std(vOKV, 0, 256) + self.kv_params() + self.dma(SLOT * (m % 4), dK, vOKV, sKV, o.kv_flag, m)
            elif m == 17:
                d = ["s_add_u32 %s, %s, 256" % (sr(sWQB), sr(sWQB))] + wq_dma(m, 0)
            elif m == 18:
                d = self.dma(SLOT * (m % 4), dV, vOKV, sKV, o.kv_flag, m)
            else:
                d = self.kv_params() + self.dma(SLOT * (m % 4), dK, vOKV, sKV, o.kv_flag, m)
            if n < 15:
                self.auto(mf, rd, head + pre + d + post, vq, v0=4)
            else:
                self.auto(mf, [], d, qfin[:24], v0=11)
        A("L_q0end:")
        self.stamp(3)
        self.emit_all(qfin[24:150])
        self.sync(self.vm_need([16]))
        self.emit_all(spread(qfin[150:], self.k_reads(0, 0)))
        self.emit_all(self.att_reset(192))
        self.stamp(4)
        self.att_loop(0)
        self.stamp("a0end")
        A("s_nop 4")
        self.emit_all(self.o_finalize())
        self.stamp("mid1")
        self.emit_all(self.q_finalize(True))
        self.stamp("mid2")
        A("s_mul_i32 %s, %s, 12288" % (sr(sA), sr(sHF)))
        A("s_add_u32 %s, %s, %d" % (sr(sA), sr(sA), EX))
        A("v_add_u32 %s, %s, %s" % (vr(vB), sr(sA), vr(vSTA)))
        A("s_waitcnt lgkmcnt(0)")
        self.emit_all(self.att_reset(96))
        self.stamp(5)
        self.att_loop(1)

        loc = {}
        for n in range(4):
            loc[n] = SLOT * n
        for n in range(4, 7):
            loc[n] = EXTRA + SLOT * (n - 4)
        for n in range(7, 10):
            loc[n] = SLOT * (n - 7)
        for n in range(10, 13):
            loc[n] = EX + SLOT * (n - 10)
        loc[13] = SLOT * 3
        loc[14], loc[15] = EXTRA, EXTRA + SLOT

        def o1_dma(n):
            return ["s_add_u32 %s, %s, %d" % (sr(sWOFF), sr(sO1 + n % 4), 128 * (n // 4))] + \
                self.dma(loc[n], dW, vOW, sWOFF, o.o1_flag, n)

        self.vm = [1] * 4 + [2] * 4 + [3] * 4
        vOA = vVA
        t0, t1 = vT + 6, vT + 7
        addr = ["v_lshrrev_b32 %s, 2, %s" % (vr(t0), vr(vLANE)),
                "v_bfe_u32 %s, %s, 3, 2" % (vr(t1), vr(vLANE)),
                "v_lshlrev_b32 %s, 5, %s" % (vr(t1), vr(t1)),
                "v_lshl_add_u32 %s, %s, 7, %s" % (vr(t0), vr(t0), vr(t1)),
                "v_and_b32 %s, 3, %s" % (vr(t1), vr(vLANE)),
                "v_lshl_add_u32 %s, %s, 3, %s" % (vr(t0), vr(t1), vr(t0)),
                "s_lshl_b32 %s, %s, 13" % (sr(sA), sr(sP))]
        for nt in range(4):
            addr += ["v_xor_b32 %s, %d, %s" % (vr(vOA + nt), nt << 5, vr(t0)),
                     "v_add_u32 %s, %s, %s" % (vr(vOA + nt), sr(sA), vr(vOA + nt)),
                     "v_add_u32 %s, 0x10000, %s" % (vr(vOA + 4 + nt), vr(vOA + nt)),
                     "v_add_u32 %s, 0x20000, %s" % (vr(vOA + 8 + nt), vr(vOA + nt))]
        addr2 = ["s_xor_b32 %s, %s, 2" % (sr(sA), sr(sW)),
                 "s_mul_i32 %s, %s, 12288" % (sr(sA), sr(sA)),
                 "s_add_u32 %s, %s, %d" % (sr(sA), sr(sA), EX),
                 "v_add_u32 %s, %s, %s" % (vr(vB), sr(sA), vr(vSTA))]

        def o1_reads(n):
            win, off = loc[n] // 65536, loc[n] % 65536
            return ["ds_read_b64_tr_b16 %s, %s offset:%d" % (vr(vF[n % 2] + 16 * ks + 4 * nt + 2 * e, 2), vr(vOA + 4 * win + nt),
                                                             off + 4096 * ks + 2048 * e)
                    for ks in range(2) for nt in range(4) for e in range(2)]

        A("L_o1:")
        self.stamp("a1end")
        self.emit_all(addr)
        A("s_waitcnt lgkmcnt(0)")
        self.emit_all(spread(self.o_finalize((0, 1)), o1_reads(0) + o1_dma(4)))
        self.stamp(6)
        brd = ["ds_read_b128 %s, %s offset:%d" % (vr(vO + 24 * (f // 3) + 12 + 4 * (f % 3), 4), vr(vB), 1024 * f) for f in range(12)]

        vSG = vL

        def stores(c):
            out = ["s_add_u32 %s, %s, %d" % (sr(sST), sr(sSTB), 98304 * c), "s_add_u32 %s, %s, 4096" % (sr(sST2), sr(sST))]
            for jq in range(3):
                for u in range(2):
                    i = 2 * jq + u
                    a = vSG + 8 * i
                    src = 48 * c + 24 * u + 4 * jq
                    out += ["v_accvgpr_read_b32 %s, %s" % (vr(a + x), ar(src + x)) for x in range(4)]
                    out += ["v_accvgpr_read_b32 %s, %s" % (vr(a + 4 + x), ar(src + 12 + x)) for x in range(4)]
                    out += ["v_cvt_pk_bf16_f32 %s, %s, %s" % (vr(a + x), vr(a + 2 * x), vr(a + 2 * x + 1)) for x in range(4)]
                    off = " offset:%d" % (1024 * (i % 4)) if i % 4 else ""
                    out.append(("buffer_store_dwordx4 %s, %s, %s, %s offen%s%s" % (
                        vr(a, 4), vr(vSTA), sr(dS, 4), sr(sST if i < 4 else sST2), off, o.st_flag), "st"))
            return out

        plan = [{0: [5], 1: [6, 7], 2: [8, 9, 10], 3: [11, 12, 13], 4: [14], 5: [15]},
                {0: [5], 1: [6], 2: [7, 8], 3: [9, 10], 4: [11], 5: [12], 6: [13], 7: [14], 8: [15]},
                {1: [5], 2: [6], 3: [7], 4: [8], 5: [9], 6: [10], 7: [11], 8: [12], 9: [13], 10: [14], 11: [15]},
                {0: [5], 1: [6], 2: [7, 8], 3: [9, 10], 4: [11, 12], 5: [13, 14], 6: [15]}][o.oplan]
        for n in range(16):
            if n < 15:
                self.sync(self.vm_need([n + 1]))
            else:
                A("s_waitcnt lgkmcnt(0)")
            self.stamp("o%d" % n)
            c, i = n // 4, n % 4
            mf = []
            for ks in range(2):
                for nt in range(4):
                    for j in range(3):
                        acc = ar(48 * c + 12 * nt + 4 * j, 4)
                        mf.append("%s %s, %s, %s, %s" % (MF, acc, vr(vF[n % 2] + 16 * ks + 4 * nt, 4), vr(vO + 48 * (i % 2) + 24 * ks + 12 * (i // 2) + 4 * j, 4), acc))
            rd = o1_reads(n + 1) if n < 15 else []
            d = []
            for m in plan.get(n, []):
                d += o1_dma(m)
            st = []
            if c > 0:
                s = stores(c - 1)
                st = {0: s[:14], 1: s[14:35], 2: s[35:58], 3: s[58:]}[i]
            if n == 0:
                st = addr2 + self.o_finalize((2, 3))
            if n == 1:
                rd = rd + brd
            self.auto(mf, rd, d, st, v0=(0 if n == 0 else 3))
        self.stamp("o16")
        A("s_nop 7")
        self.emit_all(stores(3))
        if o.stamps:
            A("s_waitcnt vmcnt(0)")
            self.stamp(7)
            self.write_stamps(0, 8, sW, dS)
        A("L_end:")
        A("s_endpgm")
        self.rare()
        for x in self.tail:
            A(x)
        A("L_codeend:")

    def write_stamps(self, lo, hi, swave, d):
        A = self.A
        A("s_waitcnt lgkmcnt(0)")
        A("s_cmp_lg_u32 %s, 0" % sr(swave))
        A("s_cbranch_scc1 L_nost%d" % lo)
        A("s_mov_b64 exec, 1")
        A("s_mul_i32 s3, s2, %d" % (NSTAMP * 8))
        A("s_add_u32 s3, s3, %d" % STAMP_OFF)
        A("v_mov_b32 v6, 0")
        for i in range(lo, hi):
            A("v_mov_b32 v8, s%d" % (sSTAMP + 2 * i))
            A("v_mov_b32 v9, s%d" % (sSTAMP + 2 * i + 1))
            A("buffer_store_dwordx2 v[8:9], v6, %s, s3 offen offset:%d" % (sr(d, 4), 8 * i))
            A("s_nop 1")
        A("L_nost%d:" % lo)

    def reduce_kernel(self):
        A, o = self.A, self.o
        lab = "reduce_kernel"
        wpb = o.k2_block // 64
        nwg = 3072 // wpb
        A(".globl %s" % lab)
        A(".p2align 8")
        A(".type %s,@function" % lab)
        A("%s:" % lab)
        A("s_cmp_ge_u32 s2, %d" % nwg)
        A("s_cbranch_scc1 L_end2")
        self.stamp(8)
        A("s_load_dwordx2 s[20:21], s[0:1], 80")
        A("s_load_dwordx2 s[22:23], s[0:1], 96")
        A("v_lshrrev_b32 v2, 6, v0")
        A("v_and_b32 v1, 63, v0")
        A("s_mul_i32 s5, s2, %d" % wpb)
        A("v_readfirstlane_b32 s4, v2")
        A("v_lshlrev_b32 v3, 4, v1")
        A("s_add_u32 s5, s5, s4")
        A("s_mul_hi_u32 s6, s5, 0x15555556")
        A("s_mul_i32 s7, s6, 12")
        A("s_sub_u32 s7, s5, s7")
        A("s_mul_i32 s8, s6, 98304")
        A("s_lshl_b32 s9, s7, 10")
        A("s_add_u32 s8, s8, s9")
        A("s_waitcnt lgkmcnt(0)")
        self.emit_all(self.srd(16, 22, WS_BYTES))
        for h in range(8):
            A("buffer_load_dwordx4 %s, v3, s[16:19], s8 offen%s" % (vr(8 + 4 * h, 4), o.ld2_flag))
            if h < 7:
                A("s_add_u32 s8, s8, 12288")
        self.emit_all(self.srd(12, 20, 16 * 96 * 1024 * 2))
        A("s_and_b32 s9, s6, 7")
        A("s_bfe_u32 s10, s6, 0x40003")
        A("s_lshr_b32 s11, s6, 7")
        A("s_mul_i32 s10, s10, 96")
        A("s_lshr_b32 s24, s7, 1")
        A("s_lshl_b32 s24, s24, 4")
        A("s_add_u32 s10, s10, s24")
        A("s_lshl_b32 s10, s10, 11")
        A("s_lshl_b32 s11, s11, 10")
        A("s_add_u32 s10, s10, s11")
        A("s_lshl_b32 s9, s9, 7")
        A("s_add_u32 s10, s10, s9")
        A("s_and_b32 s24, s7, 1")
        A("s_lshl_b32 s24, s24, 6")
        A("s_add_u32 s10, s10, s24")
        A("v_and_b32 v4, 15, v1")
        A("v_lshlrev_b32 v4, 11, v4")
        A("v_lshrrev_b32 v5, 4, v1")
        A("v_lshl_add_u32 v4, v5, 4, v4")
        A("s_mov_b32 s25, 0xffff0000")
        for h in range(8):
            A("s_waitcnt vmcnt(%d)" % (7 - h))
            for i in range(4):
                src = vr(8 + 4 * h + i)
                if h == 0:
                    A("v_lshlrev_b32 %s, 16, %s" % (vr(40 + 2 * i), src))
                    A("v_and_b32 %s, s25, %s" % (vr(41 + 2 * i), src))
                else:
                    A("v_lshlrev_b32 v6, 16, %s" % src)
                    A("v_and_b32 v7, s25, %s" % src)
                    A("v_add_f32 %s, %s, v6" % (vr(40 + 2 * i), vr(40 + 2 * i)))
                    A("v_add_f32 %s, %s, v7" % (vr(41 + 2 * i), vr(41 + 2 * i)))
        for i in range(4):
            A("v_cvt_pk_bf16_f32 %s, %s, %s" % (vr(48 + i), vr(40 + 2 * i), vr(41 + 2 * i)))
        A("s_nop 1")
        A("v_permlane32_swap_b32 v48, v50")
        A("v_permlane32_swap_b32 v49, v51")
        A("s_nop 1")
        A("v_permlane16_swap_b32 v48, v50")
        A("v_permlane16_swap_b32 v49, v51")
        A("buffer_store_dwordx4 v[48:51], v4, s[12:15], s10 offen")
        if o.stamps:
            A("s_waitcnt vmcnt(0)")
            self.stamp(9)
            A("s_cmp_ge_u32 s2, 256")
            A("s_cbranch_scc1 L_end2")
            if o.calib:
                lo, hi = o.calib // 10 % 10, o.calib % 10
                A("s_cmp_lg_u32 s2, 0")
                A("s_cbranch_scc1 L_end2")
                A("s_mov_b32 s3, %d" % STAMP_OFF)
                A("v_mov_b32 v5, 0")
                A("buffer_load_dword v10, v5, s[16:19], s3 offen")
                A("buffer_load_dword v11, v5, s[16:19], s3 offen offset:%d" % (8 * lo))
                A("buffer_load_dword v12, v5, s[16:19], s3 offen offset:%d" % (8 * hi))
                A("s_waitcnt vmcnt(0)")
                A("v_sub_u32 v11, v12, v11")
                A("s_nop 1")
                A("v_readfirstlane_b32 s20, v10")
                A("v_readfirstlane_b32 s21, v11")
                A("s_nop 3")
                A("s_min_u32 s21, s21, 20000")
                A("s_mul_i32 s21, s21, 10")
                A("s_add_u32 s21, s21, 20000")
                A("L_spin:")
                A("s_memrealtime s[22:23]")
                A("s_waitcnt lgkmcnt(0)")
                A("s_sub_u32 s22, s22, s20")
                A("s_cmp_lt_u32 s22, s21")
                A("s_cbranch_scc1 L_spin")
            elif o.dbg:
                A("s_cmp_lg_u32 s2, 0")
                A("s_cbranch_scc1 L_end2")
                A("s_load_dwordx2 s[20:21], s[0:1], 88")
                A("s_waitcnt lgkmcnt(0)")
                self.emit_all(self.srd(12, 20, 256))
                A("v_mul_u32_u24 v5, %d, v0" % (NSTAMP * 8))
                A("s_mov_b32 s3, %d" % STAMP_OFF)
                A("v_mov_b32 v6, 0")
                for i in range(8):
                    A("buffer_load_dword v%d, v5, s[16:19], s3 offen offset:%d" % (10 + i, 8 * i))
                A("s_waitcnt vmcnt(0)")
                A("v_not_b32 v18, v10")
                A("v_mov_b32 v19, s%d" % (sSTAMP + 16))
                A("v_mov_b32 v20, s%d" % (sSTAMP + 18))
                for i in range(11):
                    A("buffer_atomic_umax v%d, v6, s[12:15], 0 offen offset:%d" % (10 + i, 4 * i))
            else:
                self.write_stamps(8, 10, 4, 16)
        A("L_end2:")
        A("s_endpgm")

    def desc(self, lab, nv, acc, ns):
        A = self.A
        A(".p2align 6")
        A(".amdhsa_kernel %s" % lab)
        A("  .amdhsa_next_free_vgpr %d" % nv)
        A("  .amdhsa_next_free_sgpr %d" % ns)
        A("  .amdhsa_accum_offset %d" % acc)
        A("  .amdhsa_group_segment_fixed_size 0")
        A("  .amdhsa_kernarg_size 104")
        A("  .amdhsa_user_sgpr_count 2")
        A("  .amdhsa_user_sgpr_kernarg_segment_ptr 1")
        A("  .amdhsa_system_sgpr_workgroup_id_x 1")
        A(".end_amdhsa_kernel")

    def build(self):
        A, o = self.A, self.o
        A("; @launch kernel=main_kernel grid=(256,1,1) block=(256,1,1) lds=163840")
        A("; @launch kernel=reduce_kernel grid=(%d,1,1) block=(%d,1,1) lds=0" % (3072 * 64 // o.k2_block, o.k2_block))
        A('.amdgcn_target "amdgcn-amd-amdhsa--gfx950"')
        A(".text")
        self.main_kernel()
        self.reduce_kernel()
        A('.section .rodata,"a"')
        self.desc("main_kernel", 512, 256, 100)
        self.desc("reduce_kernel", 64, 64, 96)
        return "\n".join(self.L) + "\n"


def parse_opts(args):
    kw = {}
    for a in args:
        k, v = a.split("=", 1)
        cur = getattr(Opt, k)
        if isinstance(cur, bool):
            kw[k] = v not in ("0", "False")
        elif isinstance(cur, int):
            kw[k] = int(v)
        else:
            kw[k] = (" " + v.replace("+", " ")) if v else ""
    return kw


if __name__ == "__main__":
    out = sys.argv[1]
    open(out, "w").write(Gen(Opt(**parse_opts(sys.argv[2:]))).build())
```

```python
import math
import struct
import sys

NAME = "concat_heads__mha_block_cached__mha_block_cached__near_ridge"
WS_BYTES = 288358400
STAMP_OFF = WS_BYTES - (1 << 20)
NSTAMP = 10


def f32(x):
    return "0x%08x" % struct.unpack("<I", struct.pack("<f", x))[0]


class Opt:
    stamps = False
    cyc = False
    kv_flag = " nt"
    w_flag = ""
    o1_flag = ""
    x_flag = ""
    st_flag = " sc1"
    ld2_flag = ""
    touch_flag = ""
    touch = True
    skew_kv = True
    skew_wq = True
    k2_block = 256
    nomf = 0
    prof = 0
    dbg = False
    calib = 0
    ctouch = 3
    xsplit = False
    kvtouch = 0
    kv_oob = False
    oplan = 0
    skb = 1
    skq = 8
    sko = 0
    skp = 0
    skk = 0
    single = 0
    htouch = 0
    mtouch = 0
    opre = True
    xrev = False
    w_oob = False
    front = 0
    own = True
    fshift = 7
    pub1 = 9
    pub2 = 13
    out_flag = ""

    def __init__(self, **kw):
        for k, v in kw.items():
            assert hasattr(Opt, k), k
            setattr(self, k, v)


sW, sP, sHF, sB, sBLK, sHG, sT0, sIDX = 4, 5, 6, 7, 8, 9, 10, 11
dK, dV, dW, dX, dS = 12, 16, 32, 36, 40
pX, pK, pV, pWQ, pWO, pWS = 20, 22, 24, 26, 28, 30
sKV, sWOFF, sXO, sM0, sIT, sKVB, sTH, sLO = 44, 45, 46, 47, 48, 49, 50, 51
sA, sB2, sC, sE = 52, 53, 54, 55
sWQB, sWOB, sWT, sXT, sXB, sST, sST2, sSTB = 56, 57, 58, 59, 60, 61, 62, 63
sO1 = 64
sRET = 68
sXM = 70
sCG0 = 71
sSTAMP = 72
sKS, sKW = 92, 96
sKVO, sCGX = sIDX, sXT
dC = dX
pOUT, pDBG, sFLO, sFLC, sGC, sSTP = 20, 22, 24, 25, 26, 27
sHS = sT0
FLAGS = 32 << 20
SPIN = 100000
OOB = 0x7ffffff0
sRQ, sMSK, sL, sEND = 12 + 4, 20 + 2, 10, 3
vOWN = (244, 248, 156)

vLANE, vLK, vB = 1, 2, 3
vO, vL, vNEGM, vS, vP = 4, 100, 112, 124, 148
vF = (160, 192)
vVA, vKA, vOKV, vOW, vT = 224, 232, 236, 240, 244
vEXW, vSTA, vDUM, vCHK = 252, 253, 254, 255
vPA, vPD, vFV, vZ, vOUT = 148, 149, 150, 151, 152
aQC, aBF, aONES = 192, 240, 252

SLOT = 16384
XB = 65536
EX = 65536
EXTRA = 114688
MF = "v_mfma_f32_16x16x32_bf16"


def vr(a, n=1):
    return "v%d" % a if n == 1 else "v[%d:%d]" % (a, a + n - 1)


def ar(a, n=1):
    return "a%d" % a if n == 1 else "a[%d:%d]" % (a, a + n - 1)


def sr(a, n=1):
    return "s%d" % a if n == 1 else "s[%d:%d]" % (a, a + n - 1)


def cost(x):
    t = x[0] if isinstance(x, tuple) else x
    if t.endswith(":"):
        return 0
    if t.startswith(("v_exp", "v_rcp", "v_pk_")):
        return 8
    if t.startswith("buffer_"):
        return 8
    return 4


def spread(base, ins):
    out, k = [], 0
    for i, x in enumerate(base):
        out.append(x)
        while k < len(ins) and (k + 1) * len(base) <= (i + 1) * (len(ins) + 1):
            out.append(ins[k])
            k += 1
    return out + ins[k:]


class Gen:
    def __init__(self, o):
        self.o = o
        self.L = []
        self.vm = []
        self.tail = []
        self.uid = 0

    def A(self, s):
        self.L.append(s)

    def emit(self, x):
        if isinstance(x, tuple):
            self.A(x[0])
            self.vm.append(x[1])
        else:
            self.A(x)

    def emit_all(self, xs):
        for x in xs:
            if isinstance(x, tuple) and x[0].endswith(" lds") and " m0," in self.L[-1]:
                self.A("s_nop 0")
            self.emit(x)

    def stamp(self, i):
        table = {0: {k: k for k in range(10)},
                 1: {0: 0, 2: 1, "q2": 2, "q4": 3, "q8": 4, "q12": 5, 3: 6, 7: 7, 8: 8, 9: 9},
                 2: {0: 0, "a1end": 1, 6: 2, "o0": 3, "o4": 4, "o8": 5, "o16": 6, 7: 7, 8: 8, 9: 9},
                 4: {0: 0, "s1": 1, "s2": 2, "s3": 3, 1: 4, "s4": 5, 2: 6, 7: 7, 8: 8, 9: 9},
                 3: {0: 0, 4: 1, "a0end": 2, "mid1": 3, "mid2": 4, 5: 5, "a1end": 6, 7: 7, 8: 8, 9: 9}}[self.o.prof]
        if i not in table:
            return
        i = table[i]
        if self.o.stamps:
            self.A("%s %s" % ("s_memtime" if self.o.cyc else "s_memrealtime", sr(sSTAMP + 2 * i, 2)))

    def vm_need(self, tags):
        idx = max([i for i, t in enumerate(self.vm) if t in tags] + [-1])
        n = len(self.vm) - 1 - idx
        self.vm = self.vm[idx + 1:]
        return n

    def sync(self, n):
        self.A("s_waitcnt vmcnt(%d) lgkmcnt(0)" % n)
        self.A("s_barrier")

    def weave(self, mf, other, front=1.0):
        total = sum(cost(x) for x in other)
        ngap = max(1, int(len(mf) * front))
        k, acc = 0, 0
        for i, m in enumerate(mf):
            self.A(m if not self.o.nomf else "s_nop 0")
            lim = max(total * (i + 1) / ngap, 0)
            while k < len(other) and (acc + cost(other[k]) / 2.0 <= lim or cost(other[k]) == 0):
                acc += cost(other[k])
                self.emit(other[k])
                k += 1
        self.emit_all(other[k:])

    def pat(self, mf, pattern, ds=(), dq=(), vq=()):
        ds, dq, vq = list(ds), list(dq), list(vq)
        assert len(pattern) == len(mf), (len(pattern), len(mf))
        txt = lambda x: x[0] if isinstance(x, tuple) else x
        labels = lambda q: [self.emit(q.pop(0)) for _ in range(len(q)) if q and not isinstance(q[0], tuple) and q[0].endswith(":")]
        for m, gap in zip(mf, pattern):
            self.A(m if not self.o.nomf else "s_nop 0")
            for ch in gap:
                if ch == "t" and ds:
                    self.emit(ds.pop(0))
                elif ch == "s" and dq and not txt(dq[0]).startswith("buffer_"):
                    self.emit(dq.pop(0))
                    labels(dq)
                elif ch == "d" and dq:
                    while dq and not txt(dq[0]).startswith("buffer_"):
                        self.emit(dq.pop(0))
                    if dq:
                        if " m0," in self.L[-1]:
                            self.A("s_nop 0")
                        self.emit(dq.pop(0))
                elif ch == "n":
                    self.A("s_nop 1")
                elif ch == "v" and vq:
                    self.emit(vq.pop(0))
                    labels(vq)
        self.emit_all(ds)
        for x in dq:
            if txt(x).startswith("buffer_") and " m0," in self.L[-1]:
                self.A("s_nop 0")
            self.emit(x)
        self.emit_all(vq)

    def auto(self, mf, ds=(), dq=(), vq=(), ds_end=None, v0=0):
        n = len(mf)
        txt = lambda x: x[0] if isinstance(x, tuple) else x
        nd = len([x for x in dq if txt(x).startswith("buffer_")])
        ds_end = n - 5 if ds_end is None else ds_end
        first = 3
        dpos = [first + int(k * (n - 2 - first) / max(nd - 1, 1) + 0.5) for k in range(nd)] if nd > 1 else ([first] if nd else [])
        pattern, left, vleft = [], len(ds), [x for x in vq if isinstance(x, tuple) or not x.endswith(":")]
        for g in range(n):
            k = dpos.count(g)
            if k:
                pattern.append("d" * k)
                continue
            gaps_ds = len([h for h in range(g, ds_end + 1) if h not in dpos])
            nds = 0 if left == 0 else min(2, -(-left // max(gaps_ds, 1)))
            left -= nds
            nv = 0
            if g >= v0 and vleft:
                gaps_v = len([h for h in range(g, n) if h not in dpos])
                if isinstance(vleft[0], tuple):
                    nv = 1
                else:
                    nv = max(2 - nds, -(-len(vleft) // gaps_v))
                    for q in range(min(nv, len(vleft))):
                        if q and isinstance(vleft[q], tuple):
                            nv = q
                            break
                vleft = vleft[nv:]
            pattern.append("t" * nds + "s" * max(0, 3 - nds - nv) + "v" * nv)
        self.pat(mf, pattern, ds, dq, vq)

    def srd(self, d, p, size):
        return ["s_mov_b32 %s, %s" % (sr(d), sr(p)), "s_and_b32 %s, %s, 0xffff" % (sr(d + 1), sr(p + 1)),
                "s_mov_b32 %s, %d" % (sr(d + 2), size), "s_mov_b32 %s, 0x20000" % sr(d + 3)]

    def dma(self, loc, srd, voff, soff, flag, tag, cnt=4, m0=sM0, nop=False):
        out = ["s_add_u32 m0, %s, %d" % (sr(m0), loc)] + (["s_nop 0"] if nop else [])
        for i in range(cnt):
            off = " offset:%d" % (1024 * i) if i else ""
            out.append(("buffer_load_dwordx4 %s, %s, %s offen%s%s lds" % (vr(voff + i), sr(srd, 4), sr(soff), off, flag), tag))
        return out

    def voff_std(self, dst, mul_i, mul_r):
        t0, t1 = vT + 6, vT + 7
        return ["v_lshrrev_b32 %s, 4, %s" % (vr(t0), vr(vLANE)),
                "v_and_b32 %s, 15, %s" % (vr(t1), vr(vLANE)),
                "v_lshlrev_b32 %s, 1, %s" % (vr(dst), vr(t0)),
                "v_xor_b32 %s, %s, %s" % (vr(t1), vr(t1), vr(dst)),
                "v_lshlrev_b32 %s, 4, %s" % (vr(t1), vr(t1)),
                "v_mul_u32_u24 %s, %d, %s" % (vr(t0), mul_r, vr(t0)),
                "v_add_u32 %s, %s, %s" % (vr(dst), vr(t0), vr(t1)),
                "v_xor_b32 %s, 0x80, %s" % (vr(t1), vr(t1)),
                "v_add_u32 %s, %s, %s" % (vr(dst + 1), vr(t0), vr(t1)),
                "v_add_u32 %s, %d, %s" % (vr(dst + 2), 2 * mul_i, vr(dst)),
                "v_add_u32 %s, %d, %s" % (vr(dst + 3), 3 * mul_i, vr(dst + 1)),
                "v_add_u32 %s, %d, %s" % (vr(dst + 1), mul_i, vr(dst + 1))]

    def voff_o1(self, dst):
        t0, t1 = vT + 6, vT + 7
        out = ["v_lshrrev_b32 %s, 3, %s" % (vr(t0), vr(vLANE)),
               "v_and_b32 %s, 7, %s" % (vr(t1), vr(vLANE)),
               "v_and_b32 %s, 6, %s" % (vr(dst), vr(t0)),
               "v_xor_b32 %s, %s, %s" % (vr(t1), vr(t1), vr(dst)),
               "v_lshlrev_b32 %s, 4, %s" % (vr(t1), vr(t1)),
               "v_lshl_add_u32 %s, %s, 10, %s" % (vr(dst), vr(t0), vr(t1))]
        for i in range(1, 4):
            out.append("v_add_u32 %s, %d, %s" % (vr(dst + i), 7168 * i, vr(dst)))
        return out

    def cg_of(self, dst, c):
        return ["s_add_u32 %s, %s, %s" % (sr(dst), sr(sCG0), c), "s_and_b32 %s, %s, 3" % (sr(dst), sr(dst))]

    def wq_group(self, c):
        return self.cg_of(sA, c) + ["s_lshl_b32 %s, %s, 20" % (sr(sA), sr(sA)),
                                    "s_add_u32 %s, %s, %s" % (sr(sWT), sr(sA), sr(sWQB))]

    def wq_params(self, i):
        return ["s_add_u32 %s, %s, %s" % (sr(sWOFF), sr(sWT), sr(sKW + i))]

    def x_group(self, c):
        return self.cg_of(sB2, c) + ["s_mul_i32 %s, %s, 24576" % (sr(sB2), sr(sB2)),
                                     "s_add_u32 %s, %s, %s" % (sr(sCGX), sr(sB2), sr(sXB))]

    def x_addr(self, i):
        return ["v_xor_b32 %s, %s, %s" % (vr(vB), sr(sKS + i), vr(vLK)),
                "v_add_u32 %s, %s, %s" % (vr(vB), sr(sCGX), vr(vB))]

    def kv_params(self):
        return ["s_add_u32 %s, %s, %s" % (sr(sKV), sr(sKVO), sr(sKVB)),
                "s_add_u32 %s, %s, 8192" % (sr(sKVO), sr(sKVO)),
                "s_and_b32 %s, %s, 0x1ffff" % (sr(sKVO), sr(sKVO))]

    def kv_ahead(self, n):
        t = vT + 5
        out = ["v_and_b32 %s, 31, %s" % (vr(t), vr(vLANE)), "v_lshlrev_b32 %s, 7, %s" % (vr(t), vr(t))]
        for k in range(n):
            if k == 0:
                out.append(("buffer_load_dword %s, %s, %s, %s offen" % (vr(vDUM), vr(t), sr(dV, 4), sr(sKV)), "touch"))
                continue
            if k % 2 == 1:
                out += ["s_add_u32 %s, %s, %d" % (sr(sA), sr(sKVO), 8192 * (k // 2)),
                        "s_and_b32 %s, %s, 0x1ffff" % (sr(sA), sr(sA)),
                        "s_add_u32 %s, %s, %s" % (sr(sA), sr(sA), sr(sKVB))]
            out.append(("buffer_load_dword %s, %s, %s, %s offen" % (vr(vDUM), vr(t), sr(dK if k % 2 else dV, 4), sr(sA)), "touch"))
        return out if n else []

    def code_touch(self, label, t, back=False):
        self.uid += 1
        k = self.uid
        return ["s_getpc_b64 %s" % sr(dC, 2), "L_pc%d:" % k,
                "s_add_u32 %s, %s, %s-L_pc%d" % (sr(dC), sr(dC), label, k),
                "s_addc_u32 %s, %s, %d" % (sr(dC + 1), sr(dC + 1), -1 if back else 0),
                "s_and_b32 %s, %s, 0xffff" % (sr(dC + 1), sr(dC + 1)),
                "s_mov_b32 %s, L_codeend-%s" % (sr(dC + 2), label),
                "s_lshl_b32 %s, %s, 13" % (sr(sA), sr(sW)),
                "v_lshlrev_b32 %s, 7, %s" % (vr(t), vr(vLANE)),
                ("buffer_load_dword %s, %s, %s, %s offen" % (vr(vDUM), vr(t), sr(dC, 4), sr(sA)), "touch")]

    def zero_regs(self, fn, lo, n):
        out = []
        while n >= 16:
            out.append("v_mfma_f32_32x32x16_bf16 %s, %s, %s, 0" % (fn(lo, 16), vr(vT + 4, 4), ar(aONES, 4)))
            lo, n = lo + 16, n - 16
        while n >= 4:
            out.append("%s %s, %s, %s, 0" % (MF, fn(lo, 4), vr(vT + 4, 4), ar(aONES, 4)))
            lo, n = lo + 4, n - 4
        return out

    def x_dma(self, c, rev=False):
        o = self.o
        out = []
        if rev:
            out += ["s_and_b32 %s, %s, 1" % (sr(sA), sr(sHG)), "s_cselect_b32 %s, %d, %d" % (sr(sA), 4 - c, c)] + self.cg_of(sA, sr(sA))
        else:
            out += self.cg_of(sA, "%d" % c)
        out += ["s_mul_i32 %s, %s, 24576" % (sr(sB2), sr(sA)),
                "s_mul_i32 %s, %s, 6144" % (sr(sXM), sr(sW)),
                "s_add_u32 %s, %s, %s" % (sr(sXM), sr(sXM), sr(sB2)),
                "s_lshl_b32 %s, %s, 8" % (sr(sA), sr(sA)),
                "s_mul_i32 %s, %s, 98304" % (sr(sXO), sr(sB)),
                "s_add_u32 %s, %s, %s" % (sr(sXO), sr(sXO), sr(sA)),
                "s_mul_i32 %s, %s, 24576" % (sr(sA), sr(sW)),
                "s_add_u32 %s, %s, %s" % (sr(sXO), sr(sXO), sr(sA))]
        out += self.dma(XB, dX, vOKV, sXO, o.x_flag, ("x", c), 4, sXM)
        out += ["s_add_u32 %s, %s, 16384" % (sr(sXO), sr(sXO))]
        out += self.dma(XB + 4096, dX, vOKV, sXO, o.x_flag, ("x", c), 2, sXM)
        return out

    def tr_reads(self, fset, slot):
        return ["ds_read_b64_tr_b16 %s, %s offset:%d" % (vr(vF[fset] + 4 * dt + 2 * e, 2), vr(vVA + dt), SLOT * slot + 4096 * e)
                for dt in range(8) for e in range(2)]

    def k_reads(self, fset, slot):
        return ["ds_read_b128 %s, %s offset:%d" % (vr(vF[fset] + 16 * kt + 4 * ks, 4), vr(vKA + ks), SLOT * slot + 4096 * kt)
                for kt in range(2) for ks in range(4)]

    def q_finalize(self, from_agpr):
        cs = math.log2(math.e) / math.sqrt(128.0)
        out = ["s_mov_b32 %s, %s" % (sr(sE), f32(cs))]
        blocks = []
        for ks in range(4):
            for j in range(3):
                pre = []
                if from_agpr:
                    a = vS + 8 * ((3 * ks + j) % 3)
                    b = a + 4
                    pre += ["v_accvgpr_read_b32 %s, %s" % (vr(a + i), ar(24 * ks + 4 * j + i)) for i in range(4)]
                    pre += ["v_accvgpr_read_b32 %s, %s" % (vr(b + i), ar(24 * ks + 12 + 4 * j + i)) for i in range(4)]
                else:
                    a, b = vO + 24 * ks + 4 * j, vO + 24 * ks + 12 + 4 * j
                pre += ["v_mul_f32 %s, %s, %s" % (vr(x + y), sr(sE), vr(x + y)) for x in (a, b) for y in range(4)]
                pre += ["v_cvt_pk_bf16_f32 %s, %s, %s" % (vr(a), vr(a), vr(a + 1)),
                        "v_cvt_pk_bf16_f32 %s, %s, %s" % (vr(a + 1), vr(a + 2), vr(a + 3)),
                        "v_cvt_pk_bf16_f32 %s, %s, %s" % (vr(a + 2), vr(b), vr(b + 1)),
                        "v_cvt_pk_bf16_f32 %s, %s, %s" % (vr(a + 3), vr(b + 2), vr(b + 3))]
                s32 = ["v_permlane32_swap_b32 %s, %s" % (vr(a), vr(a + 2)), "v_permlane32_swap_b32 %s, %s" % (vr(a + 1), vr(a + 3))]
                s16 = ["v_permlane16_swap_b32 %s, %s" % (vr(a), vr(a + 2)), "v_permlane16_swap_b32 %s, %s" % (vr(a + 1), vr(a + 3))]
                wr = ["v_accvgpr_write_b32 %s, %s" % (ar(aQC + 12 * ks + 4 * j + i), vr(a + i)) for i in range(4)]
                blocks.append((pre, s32, s16, wr))
        n = len(blocks)
        for k in range(n + 1):
            if k < n:
                pre = blocks[k][0]
                h = len(pre) // 2
                out += pre[:h]
            if k > 0:
                if k == n:
                    out.append("s_nop 1")
                out += blocks[k - 1][1]
            if k < n:
                out += pre[h:]
            else:
                out.append("s_nop 1")
            if k > 0:
                out += blocks[k - 1][2] + blocks[k - 1][3]
        return out

    def o_finalize(self, kss=(0, 1, 2, 3)):
        out = []
        if kss[0] == 0:
            for j in range(3):
                out += ["v_rcp_f32 %s, %s" % (vr(vT + j), vr(vL + 4 * j))]
            out.append("s_nop 1")
        for ks in kss:
            for j in range(3):
                a, b = vO + 24 * ks + 4 * j, vO + 24 * ks + 12 + 4 * j
                out += ["v_mul_f32 %s, %s, %s" % (vr(x + y), vr(x + y), vr(vT + j)) for x in (a, b) for y in range(4)]
                out += ["v_cvt_pk_bf16_f32 %s, %s, %s" % (vr(a), vr(a), vr(a + 1)),
                        "v_cvt_pk_bf16_f32 %s, %s, %s" % (vr(a + 1), vr(a + 2), vr(a + 3)),
                        "v_cvt_pk_bf16_f32 %s, %s, %s" % (vr(a + 2), vr(b), vr(b + 1)),
                        "v_cvt_pk_bf16_f32 %s, %s, %s" % (vr(a + 3), vr(b + 2), vr(b + 3)),
                        "ds_write_b128 %s, %s offset:%d" % (vr(vEXW), vr(a, 4), 1024 * (3 * ks + j))]
        return out

    def att_reset(self, nacc):
        out = ["v_mov_b32 %s, 0" % vr(vT + 4 + i) for i in range(4)] + ["s_nop 1"]
        out += self.zero_regs(vr, vNEGM - 4, 16) + self.zero_regs(vr, vO, vNEGM - 4 - vO) + self.zero_regs(ar, 0, nacc)
        out += ["s_nop 7"]
        out += ["s_mov_b32 %s, 0xff800000" % sr(sTH), "s_mov_b32 %s, 0xff800000" % sr(sLO), "s_mov_b32 %s, 0" % sr(sIT),
                "s_mov_b32 %s, 0" % sr(sSTP)]
        return out

    def last_only(self, code):
        self.uid += 1
        k = self.uid
        self.tail += ["L_alt%d:" % k] + code + ["s_branch L_altback%d" % k]
        return ["s_cmp_eq_u32 %s, 3" % sr(sIT), "s_cbranch_scc1 L_alt%d" % k, "L_altback%d:" % k]

    def sel_last(self, dst, alt):
        return ["s_cmp_eq_u32 %s, 3" % sr(sIT), "s_cselect_b32 %s, %s, %s" % (sr(dst), sr(alt), sr(dst))]

    def o1_early(self, n):
        code = ["s_add_u32 %s, %s, %d" % (sr(sE), sr(sO1 + n % 4), 128 * (n // 4))] + \
            self.dma(EXTRA + SLOT * (n - 4), dW, vOW, sE, self.o.o1_flag, None, nop=True)
        return self.last_only([x[0] if isinstance(x, tuple) else x for x in code])

    def att_loop(self, rnd):
        A, o = self.A, self.o

        def mx(j):
            s0, s1, m = vS + 4 * j, vS + 12 + 4 * j, vT + j
            return ["v_max3_f32 %s, %s, %s, %s" % (vr(m), vr(s0), vr(s0 + 1), vr(s0 + 2)),
                    "v_max3_f32 %s, %s, %s, %s" % (vr(m), vr(m), vr(s0 + 3), vr(s1)),
                    "v_max3_f32 %s, %s, %s, %s" % (vr(m), vr(m), vr(s1 + 1), vr(s1 + 2)),
                    "v_max_f32 %s, %s, %s" % (vr(m), vr(m), vr(s1 + 3))]

        def ex(kt, j):
            a = vS + 12 * kt + 4 * j
            return ["v_exp_f32 %s, %s" % (vr(a + x), vr(a + x)) for x in range(4)]

        def cv(j):
            return ["v_cvt_pk_bf16_f32 %s, %s, %s" % (vr(vP + 4 * j + 2 * kt + h), vr(vS + 12 * kt + 4 * j + 2 * h), vr(vS + 12 * kt + 4 * j + 2 * h + 1))
                    for kt in range(2) for h in range(2)]

        patK = "tss tss tss tss tts d tv tv t t tt d tv tv tv ttv d t t vv vv d _ _".split()
        patW = "tss tts d tv tv vv vvv v d tv tv tv tv tv d tv tv tv tv ttv d vv vv v".split()
        patV = "sv sv sv sv svv svv sv d v v v v d v v tv tvv tvv tt t d tt t _ d _ _".split()
        if o.front == 1:
            patK = "sssd tss d t d t d tv tv tt t tt tv tv tv ttv tt t t _ vv vv _ _".split()
            patW = "sd tss d tv d tv d vv vvv v tv tv tv tv ttv tv tv ttv tv ttv tv vv vv v".split()
            patV = "sssd sv d vv d v d vvvv _ v v v v v v vv tvv tvv tt t tt t _ _ _ _ _".split()
        if o.front == 2:
            patK = "dddd tss t t t t t tv tv tt t t tv tv tv ttv t t t _ vv vv _ _".split()
            patW = "dddd tss t tv tv t vv vvv v tv tv tv tv tv tv tv tv ttv tv tv v vv vv v".split()
            patV = "dddd sv v v v vv vv v v v v v v v v tvv tvv t t t t t t _ _ _ _".split()
        if o.w_oob:
            A("s_mov_b32 %s, 0" % sr(dW + 2))
        A(".p2align 6")
        A("L_att%d:" % rnd)
        for i in range(4):
            nK, nW, nV = 3 * i, 3 * i + 1, 3 * i + 2
            self.sync(8)
            mf = []
            for j in range(3):
                for kt in range(2):
                    for ks in range(4):
                        acc = vr(vS + 12 * kt + 4 * j, 4)
                        c = vr(vNEGM + 4 * j, 4) if ks == 0 else acc
                        mf.append("%s %s, %s, %s, %s" % (MF, acc, vr(vF[nK % 2] + 16 * kt + 4 * ks, 4), ar(aQC + 12 * ks + 4 * j, 4), c))
            rd = self.tr_reads(nW % 2, nW % 4)
            if rnd == 0:
                par = []
                if i == 0:
                    par += self.x_group(sr(sIT))
                if i == 3:
                    par += ["s_add_u32 %s, %s, 1" % (sr(sC), sr(sIT))] + self.wq_group(sr(sC))
                par += self.wq_params((i + 1) % 4)
                if i == 3:
                    par += self.last_only(self.srd(dW, pWO, 4 << 20)[:2] + self.voff_std(vOW, 3072, 1024) +
                                          ["s_mov_b32 %s, %s" % (sr(sWT), sr(sWOB)), "s_mov_b32 %s, %s" % (sr(sWOFF), sr(sWOB))])
                vq = self.x_addr(i)
                rd += ["ds_read_b128 %s, %s offset:%d" % (ar(aBF + 4 * j, 4), vr(vB), 4096 * j) for j in range(3)]
            else:
                vq = ["s_nop 0", "s_nop 0"]
                if i < 3:
                    par = ["s_add_u32 %s, %s, %d" % (sr(sWOFF), sr(sWT), 32768 * ((i + 1) // 2) + 256 * ((i + 1) % 2))]
                else:
                    par = ["s_mov_b32 %s, 65536" % sr(sA), "s_movk_i32 %s, 6144" % sr(sC), "s_cmp_eq_u32 %s, 1" % sr(sIT),
                           "s_cselect_b32 %s, 196608, %s" % (sr(sA), sr(sA)),
                           "s_cselect_b32 %s, 18432, %s" % (sr(sC), sr(sC)),
                           "s_add_u32 %s, %s, %s" % (sr(sWT), sr(sWT), sr(sA)),
                           "s_cmp_eq_u32 %s, 3" % sr(sIT),
                           "s_cselect_b32 %s, %s, %s" % (sr(sWOFF), sr(sO1 + 1), sr(sWT))]
                    vq = ["s_nop 0", "v_add_u32 %s, %s, %s" % (vr(vB), sr(sC), vr(vB))]
                if i % 2 == 0:
                    rd += ["ds_read_b128 %s, %s offset:%d" % (ar(aBF + 4 * j, 4), vr(vB), 3072 * (i // 2) + 1024 * j) for j in range(3)]
            d = self.dma(SLOT * (nK % 4), dW, vOW, sWOFF, o.w_flag, None)
            pk = list(patK)
            if rnd == 1 and i == 3 and o.opre:
                d += self.o1_early(4)
                pk[22] = "ss"
            self.pat(mf, pk, rd, par + d, vq + mx(0) + mx(1))
            self.sync(8)
            mf = []
            for dt in range(8):
                for j in range(3):
                    acc = ar((0 if rnd == 0 else 96 * (i % 2)) + 12 * dt + 4 * j, 4)
                    mf.append("%s %s, %s, %s, %s" % (MF, acc, vr(vF[nW % 2] + 4 * dt, 4), ar(aBF + 4 * j, 4), acc))
            rd = self.tr_reads(nV % 2, nV % 4)
            self.uid += 1
            k = self.uid
            vq = mx(2) + ["v_max3_f32 %s, %s, %s, %s" % (vr(vT + 3), vr(vT), vr(vT + 1), vr(vT + 2)),
                          "v_cmp_lt_f32 vcc, %s, %s" % (sr(sTH), vr(vT + 3)),
                          "s_cbranch_vccnz L_rs%d" % k, "L_rb%d:" % k]
            self.tail += ["L_rs%d:" % k, "s_call_b64 %s, L_rare" % sr(sRET, 2), "s_branch L_rb%d" % k]
            vq += ex(0, 0) + ex(1, 0) + cv(0) + ex(0, 1)
            par = self.sel_last(sKV, sO1 + 2) if (rnd == 1 and i == 3) else []

            d = self.dma(SLOT * (nW % 4), dV, vOKV, sKV, o.kv_flag, None)
            pw = list(patW)
            if rnd == 1 and i == 3 and o.opre:
                d += self.o1_early(5)
                pw[21] = "ss" + pw[21]
            self.pat(mf, pw, rd, par + d, vq)
            self.sync(8)
            mf = []
            for j in range(3):
                mf.append("%s %s, %s, %s, %s" % (MF, vr(vL + 4 * j, 4), ar(aONES, 4), vr(vP + 4 * j, 4), vr(vL + 4 * j, 4)))
                for dt in range(8):
                    acc = vr(vO + 12 * dt + 4 * j, 4)
                    mf.append("%s %s, %s, %s, %s" % (MF, acc, vr(vF[nV % 2] + 4 * dt, 4), vr(vP + 4 * j, 4), acc))
            mf[17], mf[18] = mf[17], mf[18]
            rd = self.k_reads((nV + 1) % 2, (nV + 1) % 4)
            par = self.kv_params()
            if rnd == 0 and i == 2:
                par = ["s_cmp_eq_u32 %s, 3" % sr(sIT), "s_cselect_b32 %s, 131072, 0" % sr(sA),
                       "s_add_u32 %s, %s, %s" % (sr(sKVB), sr(sKVB), sr(sA))] + par
            if rnd == 1 and i == 2:
                par += self.last_only(self.srd(dK, pWO, 4 << 20)[:3] + self.srd(dV, pWO, 4 << 20)[:3] +
                                      self.voff_o1(vOKV) + ["v_mov_b32 %s, %s" % (vr(vOW + x), vr(vOKV + x)) for x in range(4)] +
                                      ["s_mov_b32 %s, %s" % (sr(sKV), sr(sO1))])
            if rnd == 1 and i == 3:
                par += self.sel_last(sKV, sO1 + 3)
            d = self.dma(SLOT * (nV % 4), dK, vOKV, sKV, o.kv_flag, None)
            if rnd == 1 and i == 0 and o.touch:
                t = vT + 4
                d += self.last_only([
                    "s_lshl_b32 %s, %s, 3" % (sr(sA), sr(sB)),
                    "s_and_b32 %s, %s, 1" % (sr(sB2), sr(sW)),
                    "s_lshl_b32 %s, %s, 2" % (sr(sB2), sr(sB2)),
                    "s_add_u32 %s, %s, %s" % (sr(sA), sr(sA), sr(sB2)),
                    "s_lshl_b32 %s, %s, 10" % (sr(sA), sr(sA)),
                    "s_lshl_b32 %s, %s, 19" % (sr(sB2), sr(sHG)),
                    "s_add_u32 %s, %s, %s" % (sr(sA), sr(sA), sr(sB2)),
                    "s_lshl_b32 %s, %s, 18" % (sr(sB2), sr(sP)),
                    "s_add_u32 %s, %s, %s" % (sr(sA), sr(sA), sr(sB2)),
                    "s_add_u32 %s, %s, 131072" % (sr(sA), sr(sA)),
                    "v_and_b32 %s, 31, %s" % (vr(t), vr(vLANE)),
                    "v_lshlrev_b32 %s, 7, %s" % (vr(t), vr(t)),
                    "buffer_load_dword %s, %s, %s, %s offen%s" % (vr(vDUM), vr(t), sr(dW, 4), sr(sA), o.touch_flag)] +
                    ([x[0] if isinstance(x, tuple) else x for x in self.code_touch("L_o1", t, True)] if o.ctouch & 2 else []))
            if rnd == 1 and i == 3 and o.opre:
                d += self.o1_early(6)
            if i == 3:
                d += ["s_add_u32 %s, %s, 1" % (sr(sIT), sr(sIT)), "s_cmp_lt_u32 %s, 4" % sr(sIT)]
            vq = ex(1, 1) + cv(1) + ex(0, 2) + ex(1, 2) + cv(2)
            pv = list(patV)
            pv[17] += "n"
            pv[25] = "ss"
            pv[26] = "ss"
            self.pat(mf, pv, rd, par + d, vq)
        A("s_cbranch_scc1 L_att%d" % rnd)

    def rare(self):
        A = self.A
        A("L_rare:")
        for j in range(3):
            A("v_mov_b32 %s, %s" % (vr(vT + 3 + j), vr(vT + j)))
        A("s_nop 1")
        for j in range(3):
            A("v_permlane32_swap_b32 %s, %s" % (vr(vT + j), vr(vT + 3 + j)))
        for j in range(3):
            A("v_max_f32 %s, %s, %s" % (vr(vT + j), vr(vT + j), vr(vT + 3 + j)))
        for j in range(3):
            A("v_mov_b32 %s, %s" % (vr(vT + 3 + j), vr(vT + j)))
        A("s_nop 1")
        for j in range(3):
            A("v_permlane16_swap_b32 %s, %s" % (vr(vT + j), vr(vT + 3 + j)))
        for j in range(3):
            A("v_max3_f32 %s, %s, %s, %s" % (vr(vT + j), vr(vT + j), vr(vT + 3 + j), sr(sLO)))
        for j in range(3):
            A("v_max_f32 %s, 0, %s" % (vr(vT + 3 + j), vr(vT + j)))
        for j in range(3):
            A("v_exp_f32 %s, -%s" % (vr(vT + 3 + j), vr(vT + 3 + j)))
        for j in range(3):
            for base in (vS + 4 * j, vS + 12 + 4 * j, vNEGM + 4 * j):
                for i in range(4):
                    A("v_sub_f32 %s, %s, %s" % (vr(base + i), vr(base + i), vr(vT + j)))
        A("s_cmp_lg_u32 %s, 0" % sr(sLO))
        A("s_cbranch_scc1 L_rare_first")
        for j in range(3):
            for base in [vO + 12 * dt + 4 * j for dt in range(8)] + [vL + 4 * j]:
                for i in range(4):
                    A("v_mul_f32 %s, %s, %s" % (vr(base + i), vr(base + i), vr(vT + 3 + j)))
        A("L_rare_first:")
        A("s_mov_b32 %s, %s" % (sr(sTH), f32(8.0)))
        A("s_mov_b32 %s, 0" % sr(sLO))
        A("s_setpc_b64 %s" % sr(sRET, 2))

    def main_kernel(self):
        A, o = self.A, self.o
        lab = NAME + "_kernel" if o.single else "main_kernel"
        A(".globl %s" % lab)
        A(".p2align 8")
        A(".type %s,@function" % lab)
        A("%s:" % lab)
        A("s_cmp_ge_u32 s2, 256")
        A("s_cbranch_scc1 L_end")
        self.stamp(0)
        A("s_and_b32 %s, s2, 7" % sr(sA))
        A("s_lshr_b32 %s, s2, 3" % sr(sB2))
        A("s_lshr_b32 %s, %s, 2" % (sr(sBLK), sr(sA)))
        A("s_mul_i32 %s, %s, 40" % (sr(sC), sr(sBLK)))
        A("s_add_u32 s4, s0, %s" % sr(sC))
        A("s_addc_u32 s5, s1, 0")
        A("s_load_dwordx8 %s, s[4:5], 0" % sr(pX, 8))
        A("s_load_dwordx2 %s, s[4:5], 32" % sr(pWO, 2))
        A("s_load_dwordx2 %s, s[0:1], 96" % sr(pWS, 2))
        A("s_and_b32 %s, %s, 15" % (sr(sB), sr(sB2)))
        A("s_lshr_b32 %s, %s, 4" % (sr(sE), sr(sB2)))
        A("s_and_b32 %s, %s, 3" % (sr(sHG), sr(sA)))
        A("s_lshl_b32 %s, %s, 1" % (sr(sHG), sr(sHG)))
        A("s_add_u32 %s, %s, %s" % (sr(sHG), sr(sHG), sr(sE)))
        if o.skew_wq:
            A("s_lshl_b32 %s, %s, %d" % (sr(sE), sr(sE), 1) if o.xsplit else "s_mov_b32 %s, 0" % sr(sE))
            A("s_add_u32 %s, %s, %s" % (sr(sCG0), sr(sB), sr(sE)))
            A("s_lshr_b32 %s, %s, 2" % (sr(sE), sr(sB)))
        else:
            A("s_mov_b32 %s, 0" % sr(sCG0))
            A("s_mov_b32 %s, 0" % sr(sE))
        for i in range(4):
            A("s_add_u32 %s, %s, %d" % (sr(sC), sr(sE), i))
            A("s_and_b32 %s, %s, 3" % (sr(sC), sr(sC)))
            A("s_lshl_b32 %s, %s, 6" % (sr(sKS + i), sr(sC)))
            A("s_lshl_b32 %s, %s, 18" % (sr(sKW + i), sr(sC)))
        A("v_lshrrev_b32 %s, 6, v0" % vr(vT))
        A("v_and_b32 %s, 63, v0" % vr(vLANE))
        self.emit_all(self.voff_std(vOKV, 3072, 1024))
        self.emit_all(self.voff_std(vOW, 65536 - 1024, 8192))
        self.stamp("s1")
        A("s_waitcnt lgkmcnt(0)")
        self.stamp("s2")
        A("v_readfirstlane_b32 %s, %s" % (sr(sW), vr(vT)))
        self.emit_all(self.srd(dX, pX, 16 * 98304))
        self.emit_all(self.srd(dW, pWQ, 4 << 20))
        A("s_lshr_b32 %s, %s, 1" % (sr(sP), sr(sW)))
        A("s_and_b32 %s, %s, 1" % (sr(sHF), sr(sW)))
        self.emit_all(self.x_dma(0))
        A("s_lshl_b32 %s, %s, 12" % (sr(sM0), sr(sW)))
        A("s_lshl_b32 %s, %s, 1" % (sr(sA), sr(sHG)))
        A("s_add_u32 %s, %s, %s" % (sr(sA), sr(sA), sr(sP)))
        A("s_lshl_b32 %s, %s, 9" % (sr(sWQB), sr(sA)))
        A("s_lshl_b32 %s, %s, 15" % (sr(sA), sr(sHF)))
        A("s_add_u32 %s, %s, %s" % (sr(sWQB), sr(sWQB), sr(sA)))

        def wq_dma(n, k=None):
            k = n if k is None else k
            return (self.wq_group("%d" % (k // 4)) if k % 4 == 0 else []) + self.wq_params(k % 4) + \
                self.dma(SLOT * (n % 4), dW, vOW, sWOFF, o.w_flag, n)

        self.emit_all(wq_dma(0))
        self.stamp("s3")
        self.emit_all(wq_dma(1))
        self.emit_all(self.srd(dK, pK, 0 if o.kv_oob else 64 << 20))
        self.emit_all(self.srd(dV, pV, 0 if o.kv_oob else 64 << 20))
        self.emit_all(self.srd(dS, pWS, WS_BYTES))
        A("s_lshl_b32 %s, %s, 22" % (sr(sKVB), sr(sB)))
        A("s_lshl_b32 %s, %s, 19" % (sr(sWOB), sr(sHG)))
        A("s_add_u32 %s, %s, %s" % (sr(sKVB), sr(sKVB), sr(sWOB)))
        A("s_lshl_b32 %s, %s, 18" % (sr(sA), sr(sP)))
        A("s_add_u32 %s, %s, %s" % (sr(sKVB), sr(sKVB), sr(sA)))
        A("s_lshl_b32 %s, %s, 12" % (sr(sA), sr(sHF)))
        A("s_add_u32 %s, %s, %s" % (sr(sKVB), sr(sKVB), sr(sA)))
        A("s_lshl_b32 %s, %s, 9" % (sr(sA), sr(sP)))
        A("s_add_u32 %s, %s, %s" % (sr(sWOB), sr(sWOB), sr(sA)))
        A("s_lshl_b32 %s, %s, 15" % (sr(sA), sr(sHF)))
        A("s_add_u32 %s, %s, %s" % (sr(sO1), sr(sWOB), sr(sA)))
        A("s_add_u32 %s, %s, 131072" % (sr(sC), sr(sO1)))
        A("s_lshl_b32 %s, %s, 18" % (sr(sA), sr(sP)))
        A("s_add_u32 %s, %s, %s" % (sr(sO1), sr(sC), sr(sA)))
        A("s_xor_b32 %s, %s, 262144" % (sr(sA), sr(sA)))
        A("s_add_u32 %s, %s, %s" % (sr(sO1 + 2), sr(sC), sr(sA)))
        A("s_add_u32 %s, %s, 65536" % (sr(sO1 + 1), sr(sO1)))
        A("s_add_u32 %s, %s, 65536" % (sr(sO1 + 3), sr(sO1 + 2)))
        A("s_lshl_b32 %s, %s, 14" % (sr(sA), sr(sHF)))
        A("s_add_u32 %s, %s, %s" % (sr(sWOB), sr(sWOB), sr(sA)))
        if o.skew_kv:
            A("s_and_b32 %s, %s, 1" % (sr(sA), sr(sHG)))
            A("s_mul_i32 %s, %s, %d" % (sr(sA), sr(sA), o.skq))
            A("s_mul_i32 %s, %s, %d" % (sr(sC), sr(sB), o.skb))
            A("s_add_u32 %s, %s, %s" % (sr(sA), sr(sA), sr(sC)))
            A("s_lshr_b32 %s, %s, 1" % (sr(sC), sr(sHG)))
            A("s_mul_i32 %s, %s, %d" % (sr(sC), sr(sC), o.sko))
            A("s_add_u32 %s, %s, %s" % (sr(sA), sr(sA), sr(sC)))
            A("s_mul_i32 %s, %s, %d" % (sr(sC), sr(sP), o.skp))
            A("s_add_u32 %s, %s, %s" % (sr(sA), sr(sA), sr(sC)))
            A("s_mul_i32 %s, %s, %d" % (sr(sC), sr(sBLK), o.skk))
            A("s_add_u32 %s, %s, %s" % (sr(sA), sr(sA), sr(sC)))
            A("s_and_b32 %s, %s, 15" % (sr(sA), sr(sA)))
            A("s_lshl_b32 %s, %s, 13" % (sr(sKVO), sr(sA)))
        else:
            A("s_mov_b32 %s, 0" % sr(sKVO))
        A("s_mul_i32 %s, %s, 12288" % (sr(sXB), sr(sHF)))
        A("s_add_u32 %s, %s, %d" % (sr(sXB), sr(sXB), XB))
        A("s_lshl_b32 %s, %s, 4" % (sr(sA), sr(sBLK)))
        A("s_add_u32 %s, %s, %s" % (sr(sA), sr(sA), sr(sB)))
        A("s_lshl_b32 %s, %s, 1" % (sr(sA), sr(sA)))
        A("s_add_u32 %s, %s, %s" % (sr(sA), sr(sA), sr(sP)))
        A("s_mul_i32 %s, %s, %d" % (sr(sA), sr(sA), 4 * 98304))
        A("s_lshl_b32 %s, %s, 1" % (sr(sB2), sr(sHG)))
        A("s_add_u32 %s, %s, %s" % (sr(sB2), sr(sB2), sr(sHF)))
        A("s_mul_i32 %s, %s, 6144" % (sr(sB2), sr(sB2)))
        A("s_add_u32 %s, %s, %s" % (sr(sSTB), sr(sA), sr(sB2)))
        if o.single == 2:
            A("s_load_dwordx4 %s, s[0:1], 80" % sr(pOUT, 4))
            A("s_lshl_b32 %s, %s, 4" % (sr(sA), sr(sBLK)))
            A("s_add_u32 %s, %s, %s" % (sr(sA), sr(sA), sr(sB)))
            A("s_lshl_b32 %s, %s, 2" % (sr(sA), sr(sA)))
            A("s_add_u32 %s, %s, %s" % (sr(sA), sr(sA), sr(sW)))
            A("s_lshl_b32 %s, %s, 10" % (sr(sA), sr(sA)))
            A("s_add_u32 %s, %s, %d" % (sr(sFLC), sr(sA), FLAGS))
            A("s_lshl_b32 %s, %s, %d" % (sr(sA), sr(sHG), o.fshift))
            A("s_add_u32 %s, %s, %s" % (sr(sFLO), sr(sFLC), sr(sA)))
            A("v_and_b32 %s, 7, %s" % (vr(vPA), vr(vLANE)))
            A("v_lshlrev_b32 %s, %d, %s" % (vr(vPA), o.fshift, vr(vPA)))
            self.emit(("buffer_load_dword %s, %s, %s, %s offen sc1" % (vr(vCHK), vr(vPA), sr(dS, 4), sr(sFLC)), "fl"))
        t0, t1, t2 = vT, vT + 1, vT + 2
        A("v_and_b32 %s, 15, %s" % (vr(t0), vr(vLANE)))
        A("v_lshrrev_b32 %s, 4, %s" % (vr(t1), vr(vLANE)))
        A("v_and_b32 %s, 7, %s" % (vr(t2), vr(vLANE)))
        A("v_lshlrev_b32 %s, 1, %s" % (vr(t2), vr(t2)))
        A("v_xor_b32 %s, %s, %s" % (vr(t2), vr(t2), vr(t1)))
        A("v_lshlrev_b32 %s, 4, %s" % (vr(t2), vr(t2)))
        A("v_lshl_add_u32 %s, %s, 8, %s" % (vr(vLK), vr(t0), vr(t2)))
        A("v_lshrrev_b32 %s, 2, %s" % (vr(t0), vr(vLANE)))
        A("v_and_b32 %s, 7, %s" % (vr(t1), vr(t0)))
        A("v_lshlrev_b32 %s, 5, %s" % (vr(t1), vr(t1)))
        A("v_lshl_add_u32 %s, %s, 8, %s" % (vr(t0), vr(t0), vr(t1)))
        A("v_and_b32 %s, 3, %s" % (vr(t1), vr(vLANE)))
        A("v_lshl_add_u32 %s, %s, 3, %s" % (vr(t0), vr(t1), vr(t0)))
        A("s_lshl_b32 %s, %s, 13" % (sr(sA), sr(sP)))
        for dt in range(8):
            A("v_xor_b32 %s, %d, %s" % (vr(vVA + dt), dt << 5, vr(t0)))
            A("v_add_u32 %s, %s, %s" % (vr(vVA + dt), sr(sA), vr(vVA + dt)))
        for ks in range(4):
            A("v_xor_b32 %s, %d, %s" % (vr(vKA + ks), ks << 6, vr(vLK)))
            A("v_add_u32 %s, %s, %s" % (vr(vKA + ks), sr(sA), vr(vKA + ks)))
        A("s_mul_i32 %s, %s, 12288" % (sr(sA), sr(sW)))
        A("s_add_u32 %s, %s, %d" % (sr(sA), sr(sA), EX))
        A("v_lshlrev_b32 %s, 4, %s" % (vr(vSTA), vr(vLANE)))
        A("v_add_u32 %s, %s, %s" % (vr(vEXW), sr(sA), vr(vSTA)))
        A("v_mov_b32 %s, 0x3f803f80" % vr(t0))
        for i in range(4):
            A("v_accvgpr_write_b32 %s, %s" % (ar(aONES + i), vr(t0)))

        vBX = (vS, vS + 12)

        def xb_reads(n):
            return (self.x_group("%d" % (n // 4)) if n % 4 == 0 else []) + self.x_addr(n % 4) + \
                ["ds_read_b128 %s, %s offset:%d" % (vr(vBX[n % 2] + 4 * j, 4), vr(vB), 4096 * j) for j in range(3)]

        def kv_touch(k):
            t = vT + 5
            return ["s_add_u32 %s, %s, %d" % (sr(sA), sr(sKVO), 8192 * k),
                    "s_and_b32 %s, %s, 0x1ffff" % (sr(sA), sr(sA)),
                    "s_add_u32 %s, %s, %s" % (sr(sA), sr(sA), sr(sKVB)),
                    "v_and_b32 %s, 31, %s" % (vr(t), vr(vLANE)),
                    "v_lshlrev_b32 %s, 7, %s" % (vr(t), vr(t)),
                    ("buffer_load_dword %s, %s, %s, %s offen" % (vr(vDUM), vr(t), sr(dK, 4), sr(sA)), "touch"),
                    ("buffer_load_dword %s, %s, %s, %s offen" % (vr(vDUM), vr(t), sr(dV, 4), sr(sA)), "touch")]

        self.stamp(1)
        self.sync(self.vm_need([0, ("x", 0)]))
        self.stamp("s4")
        self.emit_all(xb_reads(0) + self.tr_reads(0, 0) + wq_dma(2))
        xplan = {0: 1, 3: 2, 7: 3} if o.xsplit else {0: 1, 4: 2, 8: 3}
        if o.xrev:
            xplan = {0: 1, 1: 2, 2: 3}
        qfin = self.q_finalize(False)
        for n in range(16):
            need = [n + 1] if n < 15 else []
            if n % 4 == 3 and n < 15:
                need.append(("x", 3 if o.xrev else (n + 1) // 4))
            self.sync(self.vm_need(need))
            if n == 0:
                self.stamp(2)
            self.stamp("q%d" % n)
            mf = []
            for dt in range(8):
                for j in range(3):
                    acc = vr(vO + 12 * dt + 4 * j, 4)
                    mf.append("%s %s, %s, %s, %s" % (MF, acc, vr(vF[n % 2] + 4 * dt, 4), vr(vBX[n % 2] + 4 * j, 4), "0" if n == 0 else acc))
            head, rd, vq = [], [], []
            if n < 15:
                xb = xb_reads(n + 1)
                head, vq, rd = xb[:-5], xb[-5:-3], self.tr_reads((n + 1) % 2, (n + 1) % 4) + xb[-3:]
            m = n + 4
            pre, post = [], []
            if n == 0:
                pre = wq_dma(3)
            if n in xplan:
                post = self.x_dma(xplan[n], o.xrev)
            if n == 9 and o.ctouch & 1:
                post = self.code_touch("L_q0end", vT + 5)
            if o.kvtouch and n in (8, 10)[:o.kvtouch]:
                post = kv_touch(1 + (n - 8) // 2)
            if m < 16:
                d = wq_dma(m)
            elif m == 16:
                d = self.voff_std(vOKV, 0, 256) + self.kv_params() + self.dma(SLOT * (m % 4), dK, vOKV, sKV, o.kv_flag, m)
            elif m == 17:
                d = ["s_add_u32 %s, %s, 256" % (sr(sWQB), sr(sWQB))] + wq_dma(m, 0)
            elif m == 18:
                d = self.dma(SLOT * (m % 4), dV, vOKV, sKV, o.kv_flag, m)
            else:
                d = self.kv_params() + self.dma(SLOT * (m % 4), dK, vOKV, sKV, o.kv_flag, m)
            if n < 15:
                self.auto(mf, rd, head + pre + d + post, vq, v0=4)
            else:
                self.auto(mf, [], d, qfin[:24], v0=11)
        A("L_q0end:")
        self.stamp(3)
        self.emit_all(self.kv_ahead(o.htouch))
        self.emit_all(qfin[24:150])
        self.sync(self.vm_need([16]))
        self.emit_all(spread(qfin[150:], self.k_reads(0, 0)))
        self.emit_all(self.att_reset(192))
        self.stamp(4)
        self.att_loop(0)
        self.stamp("a0end")
        self.emit_all(self.kv_ahead(o.mtouch))
        A("s_nop 4")
        self.emit_all(self.o_finalize())
        self.stamp("mid1")
        self.emit_all(self.q_finalize(True))
        self.stamp("mid2")
        A("s_mul_i32 %s, %s, 12288" % (sr(sA), sr(sHF)))
        A("s_add_u32 %s, %s, %d" % (sr(sA), sr(sA), EX))
        A("v_add_u32 %s, %s, %s" % (vr(vB), sr(sA), vr(vSTA)))
        A("s_waitcnt lgkmcnt(0)")
        self.emit_all(self.att_reset(96))
        self.stamp(5)
        self.att_loop(1)

        loc = {}
        for n in range(4):
            loc[n] = SLOT * n
        for n in range(4, 7):
            loc[n] = EXTRA + SLOT * (n - 4)
        for n in range(7, 10):
            loc[n] = SLOT * (n - 7)
        for n in range(10, 13):
            loc[n] = EX + SLOT * (n - 10)
        loc[13] = SLOT * 3
        loc[14], loc[15] = EXTRA, EXTRA + SLOT

        def o1_dma(n):
            return ["s_add_u32 %s, %s, %d" % (sr(sWOFF), sr(sO1 + n % 4), 128 * (n // 4))] + \
                self.dma(loc[n], dW, vOW, sWOFF, o.o1_flag, n)

        self.vm = [1] * 4 + [2] * 4 + [3] * 4
        if o.opre:
            self.vm = [1] * 4 + [4] * 4 + [2] * 4 + [5] * 4 + [3] * 4 + [6] * 4
        vOA = vVA
        t0, t1 = vT + 6, vT + 7
        addr = ["v_lshrrev_b32 %s, 2, %s" % (vr(t0), vr(vLANE)),
                "v_bfe_u32 %s, %s, 3, 2" % (vr(t1), vr(vLANE)),
                "v_lshlrev_b32 %s, 5, %s" % (vr(t1), vr(t1)),
                "v_lshl_add_u32 %s, %s, 7, %s" % (vr(t0), vr(t0), vr(t1)),
                "v_and_b32 %s, 3, %s" % (vr(t1), vr(vLANE)),
                "v_lshl_add_u32 %s, %s, 3, %s" % (vr(t0), vr(t1), vr(t0)),
                "s_lshl_b32 %s, %s, 13" % (sr(sA), sr(sP))]
        for nt in range(4):
            addr += ["v_xor_b32 %s, %d, %s" % (vr(vOA + nt), nt << 5, vr(t0)),
                     "v_add_u32 %s, %s, %s" % (vr(vOA + nt), sr(sA), vr(vOA + nt)),
                     "v_add_u32 %s, 0x10000, %s" % (vr(vOA + 4 + nt), vr(vOA + nt)),
                     "v_add_u32 %s, 0x20000, %s" % (vr(vOA + 8 + nt), vr(vOA + nt))]
        addr2 = ["s_xor_b32 %s, %s, 2" % (sr(sA), sr(sW)),
                 "s_mul_i32 %s, %s, 12288" % (sr(sA), sr(sA)),
                 "s_add_u32 %s, %s, %d" % (sr(sA), sr(sA), EX),
                 "v_add_u32 %s, %s, %s" % (vr(vB), sr(sA), vr(vSTA))]

        def o1_reads(n):
            win, off = loc[n] // 65536, loc[n] % 65536
            return ["ds_read_b64_tr_b16 %s, %s offset:%d" % (vr(vF[n % 2] + 16 * ks + 4 * nt + 2 * e, 2), vr(vOA + 4 * win + nt),
                                                             off + 4096 * ks + 2048 * e)
                    for ks in range(2) for nt in range(4) for e in range(2)]

        A("L_o1:")
        if o.w_oob:
            A("s_mov_b32 %s, %d" % (sr(dW + 2), 4 << 20))
        self.stamp("a1end")
        self.emit_all(addr)
        A("s_waitcnt lgkmcnt(0)")
        self.emit_all(spread(self.o_finalize((0, 1)), o1_reads(0) + ([] if o.opre else o1_dma(4))))
        self.stamp(6)
        brd = ["ds_read_b128 %s, %s offset:%d" % (vr(vO + 24 * (f // 3) + 12 + 4 * (f % 3), 4), vr(vB), 1024 * f) for f in range(12)]

        vSG = vL
        own_blocks = {}

        def stores(c):
            out = ["s_add_u32 %s, %s, %d" % (sr(sST), sr(sSTB), 98304 * c), "s_add_u32 %s, %s, 4096" % (sr(sST2), sr(sST))]
            for jq in range(3):
                for u in range(2):
                    i = 2 * jq + u
                    a = vSG + 8 * i
                    src = 48 * c + 24 * u + 4 * jq
                    out += ["v_accvgpr_read_b32 %s, %s" % (vr(a + x), ar(src + x)) for x in range(4)]
                    out += ["v_accvgpr_read_b32 %s, %s" % (vr(a + 4 + x), ar(src + 12 + x)) for x in range(4)]
                    out += ["v_cvt_pk_bf16_f32 %s, %s, %s" % (vr(a + x), vr(a + 2 * x), vr(a + 2 * x + 1)) for x in range(4)]
                    off = " offset:%d" % (1024 * (i % 4)) if i % 4 else ""
                    st = "buffer_store_dwordx4 %s, %s, %s, %%s offen%s%s" % (vr(a, 4), vr(vSTA), sr(dS, 4), off, o.st_flag)
                    if o.single == 2 and o.own:
                        un = 6 * c + i
                        if un not in own_blocks:
                            own_blocks[un] = True
                            self.tail += ["L_own%d:" % un] + ["v_mov_b32 %s, %s" % (vr(vOWN[un // 8] + x), vr(a + x)) for x in range(4)] + \
                                ["s_mov_b32 %s, %d" % (sr(sE), OOB), st % sr(sE), "s_branch L_ownb%d" % un]
                        out.append(("s_cmp_eq_u32 %s, %d\ns_cbranch_scc1 L_own%d\n%s\nL_ownb%d:" % (
                            sr(sHG), un % 8, un, st % sr(sST if i < 4 else sST2), un), ("st", c), "mem"))
                    else:
                        out.append((st % sr(sST if i < 4 else sST2), ("st", c)))
            return out

        plan = [{0: [5], 1: [6, 7], 2: [8, 9, 10], 3: [11, 12, 13], 4: [14], 5: [15]},
                {0: [5], 1: [6], 2: [7, 8], 3: [9, 10], 4: [11], 5: [12], 6: [13], 7: [14], 8: [15]},
                {1: [5], 2: [6], 3: [7], 4: [8], 5: [9], 6: [10], 7: [11], 8: [12], 9: [13], 10: [14], 11: [15]},
                {0: [5], 1: [6], 2: [7, 8], 3: [9, 10], 4: [11, 12], 5: [13, 14], 6: [15]}][o.oplan]
        if o.opre:
            plan = [{0: [7], 1: [8], 2: [9, 10], 3: [11, 12], 4: [13, 14], 5: [15]},
                    {2: [7, 8], 3: [9, 10], 4: [11, 12], 5: [13, 14], 6: [15]},
                    {1: [7], 2: [8, 9], 3: [10, 11], 4: [12], 5: [13], 6: [14], 7: [15]}][o.oplan]
        for n in range(16):
            if n < 15:
                self.sync(self.vm_need([n + 1]))
            else:
                A("s_waitcnt lgkmcnt(0)")
            self.stamp("o%d" % n)
            c, i = n // 4, n % 4
            mf = []
            for ks in range(2):
                for nt in range(4):
                    for j in range(3):
                        acc = ar(48 * c + 12 * nt + 4 * j, 4)
                        mf.append("%s %s, %s, %s, %s" % (MF, acc, vr(vF[n % 2] + 16 * ks + 4 * nt, 4), vr(vO + 48 * (i % 2) + 24 * ks + 12 * (i // 2) + 4 * j, 4), acc))
            rd = o1_reads(n + 1) if n < 15 else []
            d = []
            for m in plan.get(n, []):
                d += o1_dma(m)
            st = []
            if c > 0:
                s = stores(c - 1)
                st = {0: s[:14], 1: s[14:35], 2: s[35:58], 3: s[58:]}[i]
                if o.single == 2 and c > 1:
                    st = {0: s[:28], 1: s[28:54], 2: s[54:], 3: []}[i]
            if n == 0:
                st = addr2 + self.o_finalize((2, 3))
            if n == 1:
                rd = rd + brd
            if o.single == 2 and n == 8:
                A("v_mov_b32 %s, 0" % vr(vZ))
                A("v_readlane_b32 %s, %s, %s" % (sr(sGC), vr(vCHK), sr(sHG)))
                A("s_nop 0")
                A("s_and_b32 %s, %s, -8" % (sr(sGC), sr(sGC)))
            if o.single == 2 and n == o.pub1:
                self.emit_all(self.publish(1, ("st", 0)) + ["s_nop 3"])
            if o.single == 2 and n == 11:
                xs = self.exchange_setup()
                st = [x for x in xs if x.startswith("v_")]
                d = [x for x in xs if not x.startswith("v_")]
            if o.single == 2 and n == o.pub2:
                self.emit_all(self.publish(2, ("st", 1)) + ["s_nop 3"])
            if o.single == 2 and n == 15:
                d = [("buffer_load_dword %s, %s, %s, %s offen sc1" % (vr(vPD), vr(vPA), sr(dS, 4), sr(sFLC)), "poll")]
            self.auto(mf, rd, d, st, v0=(0 if n == 0 else 3))
        self.stamp("o16")
        A("s_nop 7")
        self.emit_all(stores(3))
        if o.single == 2:
            self.exchange()
        elif o.single:
            self.simple_exchange()
        elif o.stamps:
            A("s_waitcnt vmcnt(0)")
            self.stamp(7)
            self.write_stamps(0, 8, sW, dS)
        A("L_end:")
        A("s_endpgm")
        self.rare()
        for x in self.tail:
            A(x)
        A("L_codeend:")

    def unit_sum(self, src, acc, own=None):
        out = []
        regs = [src + 4 * h for h in range(8)] if own is None else [own] + [src + 4 * h for h in range(7)]
        for h in range(8):
            for i in range(4):
                for e in range(2):
                    c = "0" if h == 0 else vr(acc + 2 * i + e)
                    out.append("v_dot2_f32_bf16 %s, %s, %s, %s" % (vr(acc + 2 * i + e), vr(regs[h] + i), sr(sKS + e), c))
        out.append("s_nop 2")
        for i in range(4):
            out.append("v_cvt_pk_bf16_f32 %s, %s, %s" % (vr(acc + i), vr(acc + 2 * i), vr(acc + 2 * i + 1)))
        out += ["s_nop 1", "v_permlane32_swap_b32 %s, %s" % (vr(acc), vr(acc + 2)), "v_permlane32_swap_b32 %s, %s" % (vr(acc + 1), vr(acc + 3)),
                "s_nop 1", "v_permlane16_swap_b32 %s, %s" % (vr(acc), vr(acc + 2)), "v_permlane16_swap_b32 %s, %s" % (vr(acc + 1), vr(acc + 3))]
        return out

    def publish(self, stage, tag):
        n = self.vm_need([tag]) if not isinstance(tag, int) else tag
        return ["s_add_u32 %s, %s, 8" % (sr(sGC), sr(sGC)), "s_add_u32 %s, %s, %d" % (sr(sE), sr(sGC), stage),
                "v_mov_b32 %s, %s" % (vr(vFV), sr(sE)), "s_waitcnt vmcnt(%d)" % n, "s_mov_b64 exec, 1",
                ("buffer_store_dword %s, %s, %s, %s offen sc1" % (vr(vFV), vr(vZ), sr(dS, 4), sr(sFLO)), "fl"),
                "s_mov_b64 exec, -1"]

    def exchange_setup(self):
        out = ["v_and_b32 %s, 7, %s" % (vr(vPA), vr(vLANE)), "v_lshlrev_b32 %s, %d, %s" % (vr(vPA), self.o.fshift, vr(vPA)),

               "v_and_b32 %s, 15, %s" % (vr(vOUT), vr(vLANE)), "v_lshlrev_b32 %s, 11, %s" % (vr(vOUT), vr(vOUT)),
               "v_lshrrev_b32 %s, 4, %s" % (vr(vPD), vr(vLANE)), "v_lshl_add_u32 %s, %s, 4, %s" % (vr(vOUT), vr(vPD), vr(vOUT)),
               "s_mov_b32 %s, 0x00003f80" % sr(sKS), "s_mov_b32 %s, 0x3f800000" % sr(sKS + 1),
               "s_mul_i32 %s, %s, 12288" % (sr(sA), sr(sHG)), "s_sub_u32 %s, %s, %s" % (sr(sKS + 2), sr(sSTB), sr(sA)),
               "s_mul_i32 %s, %s, 96" % (sr(sA), sr(sB)), "s_mul_i32 %s, %s, 48" % (sr(sB2), sr(sHF)),
               "s_add_u32 %s, %s, %s" % (sr(sA), sr(sA), sr(sB2)), "s_lshl_b32 %s, %s, 11" % (sr(sA), sr(sA)),
               "s_lshl_b32 %s, %s, 10" % (sr(sB2), sr(sBLK)), "s_add_u32 %s, %s, %s" % (sr(sA), sr(sA), sr(sB2)),
               "s_lshl_b32 %s, %s, 9" % (sr(sB2), sr(sP)), "s_add_u32 %s, %s, %s" % (sr(sKS + 3), sr(sA), sr(sB2))]
        out += self.srd(dK, pOUT, 16 * 96 * 1024 * 2)[:3]
        out += ["s_lshl_b32 %s, 0x01010101, %s" % (sr(sMSK), sr(sHG)), "s_not_b32 %s, %s" % (sr(sMSK), sr(sMSK)),
                "s_mov_b32 %s, %s" % (sr(sMSK + 1), sr(sMSK))]
        for k in range(3):
            out += ["s_add_u32 %s, %s, %d" % (sr(sA), sr(sHG), 8 * k),
                    "s_mul_i32 %s, %s, 43" % (sr(sB2), sr(sA)), "s_lshr_b32 %s, %s, 8" % (sr(sB2), sr(sB2)),
                    "s_add_u32 %s, %s, 1" % (sr(sRQ + k), sr(sB2)),
                    "s_mul_i32 %s, %s, 6" % (sr(sC), sr(sB2)), "s_sub_u32 %s, %s, %s" % (sr(sA), sr(sA), sr(sC)),
                    "s_mul_i32 %s, %s, 98304" % (sr(sC), sr(sB2)), "s_add_u32 %s, %s, %s" % (sr(sKW + k), sr(sKS + 2), sr(sC)),
                    "s_lshl_b32 %s, %s, 10" % (sr(sC), sr(sA)), "s_add_u32 %s, %s, %s" % (sr(sKW + k), sr(sKW + k), sr(sC)),
                    "s_lshl_b32 %s, %s, 7" % (sr(sB2), sr(sB2)), "s_add_u32 %s, %s, %s" % (sr(sO1 + k), sr(sKS + 3), sr(sB2)),
                    "s_lshr_b32 %s, %s, 1" % (sr(sC), sr(sA)), "s_lshl_b32 %s, %s, 15" % (sr(sC), sr(sC)),
                    "s_add_u32 %s, %s, %s" % (sr(sO1 + k), sr(sO1 + k), sr(sC)),
                    "s_and_b32 %s, %s, 1" % (sr(sA), sr(sA)), "s_lshl_b32 %s, %s, 6" % (sr(sA), sr(sA)),
                    "s_add_u32 %s, %s, %s" % (sr(sO1 + k), sr(sO1 + k), sr(sA))]
        return out

    def exchange(self):
        A, o = self.A, self.o
        nl = 7 if o.own else 8
        poll = "buffer_load_dword %s, %s, %s, %s offen sc1" % (vr(vPD), vr(vPA), sr(dS, 4), sr(sFLC))

        def test(k):
            A("v_and_b32 %s, 7, %s" % (vr(vPD + 4), vr(vPD)))
            A("v_cmp_eq_u32 %s, %s, %s" % (sr(sRET, 2), vr(vPD), vr(vCHK)))
            A("v_cmp_gt_u32 vcc, %s, %s" % (sr(sRQ + k), vr(vPD + 4)))
            A("s_nop 0")
            A("s_or_b64 vcc, vcc, %s" % sr(sRET, 2))
            A("s_and_b64 vcc, vcc, %s" % sr(sMSK, 2))

        def ensure(k):
            A("s_mov_b32 %s, 0" % sr(sSTP))
            A("L_pt%d:" % k)
            test(k)
            A("s_cbranch_scc0 L_pd%d" % k)
            A(poll)
            A("s_add_u32 %s, %s, 1" % (sr(sSTP), sr(sSTP)))
            A("s_and_b32 %s, %s, 31" % (sr(sA), sr(sSTP)))
            A("s_cbranch_scc0 L_pr%d" % k)
            A("L_pw%d:" % k)
            A("s_waitcnt vmcnt(0)")
            A("s_cmp_lt_u32 %s, %d" % (sr(sSTP), SPIN))
            A("s_cbranch_scc1 L_pt%d" % k)
            A("L_pd%d:" % k)
            self.tail += ["L_pr%d:" % k] + [x[0] if isinstance(x, tuple) else x for x in self.publish(4, 63)] + ["s_branch L_pw%d" % k]

        def loads(k, attempt=False):
            if attempt:
                A("s_cselect_b32 %s, 1, 0" % sr(sL))
                A("s_cselect_b32 %s, %d, %s" % (sr(sC), OOB - 8 * 12288 - 16, sr(sKW + k)))
            else:
                A("s_mov_b32 %s, %s" % (sr(sC), sr(sKW + k)))
            if o.own:
                A("s_add_u32 %s, %s, 98304" % (sr(sEND), sr(sC)))
                A("s_mul_i32 %s, %s, 12288" % (sr(sA), sr(sHG)))
                A("s_add_u32 %s, %s, %s" % (sr(sA), sr(sA), sr(sC)))
                for h in range(7):
                    A("s_add_u32 %s, %s, 12288" % (sr(sA), sr(sA)))
                    A("s_cmp_eq_u32 %s, %s" % (sr(sA), sr(sEND)))
                    A("s_cselect_b32 %s, %s, %s" % (sr(sA), sr(sC), sr(sA)))
                    A("buffer_load_dwordx4 %s, %s, %s, %s offen sc1" % (vr(4 + 32 * k + 4 * h, 4), vr(vSTA), sr(dS, 4), sr(sA)))
            else:
                for h in range(8):
                    A("buffer_load_dwordx4 %s, %s, %s, %s offen sc1" % (vr(4 + 32 * k + 4 * h, 4), vr(vSTA), sr(dS, 4), sr(sC)))
                    if h < 7:
                        A("s_add_u32 %s, %s, 12288" % (sr(sC), sr(sC)))

        def finish(k):
            self.emit_all(self.unit_sum(4 + 32 * k, vF[0] + 8 * k, vOWN[k] if o.own else None))
            A("buffer_store_dwordx4 %s, %s, %s, %s offen%s" % (vr(vF[0] + 8 * k, 4), vr(vOUT), sr(dK, 4), sr(sO1 + k), o.out_flag))

        self.emit_all(self.publish(3, "poll"))
        test(0)
        loads(0, True)
        A(poll)
        self.emit_all(self.publish(4, nl + 2))
        self.stamp(7)
        A("s_waitcnt vmcnt(1)")
        A("s_cmp_eq_u32 %s, 0" % sr(sL))
        A("s_cbranch_scc1 L_have0")
        ensure(0)
        loads(0)
        A("L_have0:")
        ensure(1)
        loads(1)
        test(2)
        loads(2, True)
        A(poll)
        A("s_waitcnt vmcnt(%d)" % (2 * nl + 1))
        finish(0)
        A("s_waitcnt vmcnt(%d)" % (nl + 2))
        finish(1)
        A("s_cmp_eq_u32 %s, 0" % sr(sL))
        A("s_cbranch_scc1 L_have2")
        A("s_waitcnt vmcnt(2)")
        ensure(2)
        self.stamp(8)
        loads(2)
        A("s_waitcnt vmcnt(0)")
        A("L_have2:")
        A("s_waitcnt vmcnt(3)")
        finish(2)
        if o.stamps:
            A("s_waitcnt vmcnt(0)")
            self.stamp(9)
            self.write_stamps(0, 10, sW, dS)

    def simple_exchange(self):
        A, o = self.A, self.o
        A("s_load_dwordx4 %s, s[0:1], 80" % sr(pX, 4))
        A("s_lshl_b32 %s, %s, 4" % (sr(sA), sr(sBLK)))
        A("s_add_u32 %s, %s, %s" % (sr(sA), sr(sA), sr(sB)))
        A("s_lshl_b32 %s, %s, 3" % (sr(sC), sr(sA)))
        A("s_add_u32 %s, %s, %s" % (sr(sB2), sr(sC), sr(sHG)))
        A("s_mul_i32 %s, %s, 98304" % (sr(sB2), sr(sB2)))
        A("s_mul_i32 %s, %s, 3072" % (sr(sE), sr(sW)))
        A("s_add_u32 %s, %s, %s" % (sr(sST), sr(sB2), sr(sE)))
        A("s_mov_b32 %s, 0x00003f80" % sr(sKS))
        A("s_mov_b32 %s, 0x3f800000" % sr(sKS + 1))
        A("v_mov_b32 %s, %s" % (vr(vT + 1), sr(sC)))
        A("v_mov_b32 %s, 1" % vr(vT))
        A("v_and_b32 %s, 15, %s" % (vr(vB), vr(vLANE)))
        A("v_lshlrev_b32 %s, 11, %s" % (vr(vB), vr(vB)))
        A("v_lshrrev_b32 %s, 4, %s" % (vr(vT + 3), vr(vLANE)))
        A("v_lshl_add_u32 %s, %s, 4, %s" % (vr(vB), vr(vT + 3), vr(vB)))
        A("s_waitcnt lgkmcnt(0)")
        self.emit_all(self.srd(dK, pX, 16 * 96 * 1024 * 2))
        self.emit_all(self.srd(dV, pX + 2, 256))
        A("s_waitcnt vmcnt(0)")
        self.stamp(7)
        A("s_barrier")
        A("s_cmp_lg_u32 %s, 0" % sr(sW))
        A("s_cbranch_scc1 L_xwait")
        A("s_mov_b64 exec, 1")
        A("buffer_atomic_add %s, %s, %s, 0 offen sc1" % (vr(vT), vr(vT + 1), sr(dV, 4)))
        A("s_mov_b32 %s, 0" % sr(sIT))
        A("L_xpoll:")
        A("buffer_load_dword %s, %s, %s, 0 offen sc1" % (vr(vT + 2), vr(vT + 1), sr(dV, 4)))
        A("s_add_u32 %s, %s, 1" % (sr(sIT), sr(sIT)))
        A("s_waitcnt vmcnt(0)")
        A("v_readfirstlane_b32 %s, %s" % (sr(sE), vr(vT + 2)))
        A("s_cmp_ge_u32 %s, 200000" % sr(sIT))
        A("s_cbranch_scc1 L_xdone")
        A("s_cmp_lt_u32 %s, 8" % sr(sE))
        A("s_cbranch_scc1 L_xpoll")
        A("L_xdone:")
        A("s_mov_b64 exec, -1")
        A("L_xwait:")
        A("s_barrier")
        self.stamp(8)
        for h in range(8):
            for u in range(3):
                off = " offset:%d" % (1024 * u) if u else ""
                A("buffer_load_dwordx4 %s, %s, %s, %s offen%s sc1" % (vr(4 + 32 * u + 4 * h, 4), vr(vSTA), sr(dS, 4), sr(sST), off))
            if h < 7:
                A("s_add_u32 %s, %s, 12288" % (sr(sST), sr(sST)))
        A("s_mul_i32 %s, %s, %d" % (sr(sA), sr(sB), 96 * 2048))
        A("s_lshl_b32 %s, %s, 10" % (sr(sC), sr(sBLK)))
        A("s_add_u32 %s, %s, %s" % (sr(sA), sr(sA), sr(sC)))
        A("s_lshl_b32 %s, %s, 7" % (sr(sC), sr(sHG)))
        A("s_add_u32 %s, %s, %s" % (sr(sA), sr(sA), sr(sC)))
        A("s_mul_i32 %s, %s, 3" % (sr(sE), sr(sW)))
        A("s_waitcnt vmcnt(0)")
        for u in range(3):
            self.emit_all(self.unit_sum(4 + 32 * u, 104 + 8 * u))
            A("s_add_u32 %s, %s, %d" % (sr(sB2), sr(sE), u))
            A("s_lshr_b32 %s, %s, 1" % (sr(sC), sr(sB2)))
            A("s_lshl_b32 %s, %s, 15" % (sr(sC), sr(sC)))
            A("s_and_b32 %s, %s, 1" % (sr(sB2), sr(sB2)))
            A("s_lshl_b32 %s, %s, 6" % (sr(sB2), sr(sB2)))
            A("s_add_u32 %s, %s, %s" % (sr(sC), sr(sC), sr(sB2)))
            A("s_add_u32 %s, %s, %s" % (sr(sC), sr(sC), sr(sA)))
            A("buffer_store_dwordx4 %s, %s, %s, %s offen%s" % (vr(104 + 8 * u, 4), vr(vB), sr(dK, 4), sr(sC), o.out_flag))
        if o.stamps:
            A("s_waitcnt vmcnt(0)")
            self.stamp(9)
            if o.calib:
                A("s_cmp_lg_u32 s2, 0")
                A("s_cbranch_scc1 L_end")
                A("s_waitcnt lgkmcnt(0)")
                A("L_spin:")
                A("s_memrealtime s[22:23]")
                A("s_waitcnt lgkmcnt(0)")
                A("s_sub_u32 s22, s22, %s" % sr(sSTAMP))
                A("s_cmp_lt_u32 s22, 20000")
                A("s_cbranch_scc1 L_spin")
            else:
                self.write_stamps(0, 10, sW, dS)

    def write_stamps(self, lo, hi, swave, d):
        A = self.A
        A("s_waitcnt lgkmcnt(0)")
        A("s_cmp_lg_u32 %s, 0" % sr(swave))
        A("s_cbranch_scc1 L_nost%d" % lo)
        A("s_mov_b64 exec, 1")
        A("s_mul_i32 s3, s2, %d" % (NSTAMP * 8))
        A("s_add_u32 s3, s3, %d" % STAMP_OFF)
        A("v_mov_b32 v6, 0")
        for i in range(lo, hi):
            A("v_mov_b32 v8, s%d" % (sSTAMP + 2 * i))
            A("v_mov_b32 v9, s%d" % (sSTAMP + 2 * i + 1))
            A("buffer_store_dwordx2 v[8:9], v6, %s, s3 offen offset:%d" % (sr(d, 4), 8 * i))
            A("s_nop 1")
        A("L_nost%d:" % lo)

    def reduce_kernel(self):
        A, o = self.A, self.o
        lab = "reduce_kernel"
        wpb = o.k2_block // 64
        nwg = 3072 // wpb
        A(".globl %s" % lab)
        A(".p2align 8")
        A(".type %s,@function" % lab)
        A("%s:" % lab)
        A("s_cmp_ge_u32 s2, %d" % nwg)
        A("s_cbranch_scc1 L_end2")
        self.stamp(8)
        A("s_load_dwordx2 s[20:21], s[0:1], 80")
        A("s_load_dwordx2 s[22:23], s[0:1], 96")
        A("v_lshrrev_b32 v2, 6, v0")
        A("v_and_b32 v1, 63, v0")
        A("s_mul_i32 s5, s2, %d" % wpb)
        A("v_readfirstlane_b32 s4, v2")
        A("v_lshlrev_b32 v3, 4, v1")
        A("s_add_u32 s5, s5, s4")
        A("s_mul_hi_u32 s6, s5, 0x15555556")
        A("s_mul_i32 s7, s6, 12")
        A("s_sub_u32 s7, s5, s7")
        A("s_mul_i32 s8, s6, 98304")
        A("s_lshl_b32 s9, s7, 10")
        A("s_add_u32 s8, s8, s9")
        A("s_waitcnt lgkmcnt(0)")
        self.emit_all(self.srd(16, 22, WS_BYTES))
        for h in range(8):
            A("buffer_load_dwordx4 %s, v3, s[16:19], s8 offen%s" % (vr(8 + 4 * h, 4), o.ld2_flag))
            if h < 7:
                A("s_add_u32 s8, s8, 12288")
        self.emit_all(self.srd(12, 20, 16 * 96 * 1024 * 2))
        A("s_and_b32 s9, s6, 7")
        A("s_bfe_u32 s10, s6, 0x40003")
        A("s_lshr_b32 s11, s6, 7")
        A("s_mul_i32 s10, s10, 96")
        A("s_lshr_b32 s24, s7, 1")
        A("s_lshl_b32 s24, s24, 4")
        A("s_add_u32 s10, s10, s24")
        A("s_lshl_b32 s10, s10, 11")
        A("s_lshl_b32 s11, s11, 10")
        A("s_add_u32 s10, s10, s11")
        A("s_lshl_b32 s9, s9, 7")
        A("s_add_u32 s10, s10, s9")
        A("s_and_b32 s24, s7, 1")
        A("s_lshl_b32 s24, s24, 6")
        A("s_add_u32 s10, s10, s24")
        A("v_and_b32 v4, 15, v1")
        A("v_lshlrev_b32 v4, 11, v4")
        A("v_lshrrev_b32 v5, 4, v1")
        A("v_lshl_add_u32 v4, v5, 4, v4")
        A("s_mov_b32 s25, 0xffff0000")
        for h in range(8):
            A("s_waitcnt vmcnt(%d)" % (7 - h))
            for i in range(4):
                src = vr(8 + 4 * h + i)
                if h == 0:
                    A("v_lshlrev_b32 %s, 16, %s" % (vr(40 + 2 * i), src))
                    A("v_and_b32 %s, s25, %s" % (vr(41 + 2 * i), src))
                else:
                    A("v_lshlrev_b32 v6, 16, %s" % src)
                    A("v_and_b32 v7, s25, %s" % src)
                    A("v_add_f32 %s, %s, v6" % (vr(40 + 2 * i), vr(40 + 2 * i)))
                    A("v_add_f32 %s, %s, v7" % (vr(41 + 2 * i), vr(41 + 2 * i)))
        for i in range(4):
            A("v_cvt_pk_bf16_f32 %s, %s, %s" % (vr(48 + i), vr(40 + 2 * i), vr(41 + 2 * i)))
        A("s_nop 1")
        A("v_permlane32_swap_b32 v48, v50")
        A("v_permlane32_swap_b32 v49, v51")
        A("s_nop 1")
        A("v_permlane16_swap_b32 v48, v50")
        A("v_permlane16_swap_b32 v49, v51")
        A("buffer_store_dwordx4 v[48:51], v4, s[12:15], s10 offen%s" % o.out_flag)
        if o.stamps:
            A("s_waitcnt vmcnt(0)")
            self.stamp(9)
            A("s_cmp_ge_u32 s2, 256")
            A("s_cbranch_scc1 L_end2")
            if o.calib:
                lo, hi = o.calib // 10 % 10, o.calib % 10
                A("s_cmp_lg_u32 s2, 0")
                A("s_cbranch_scc1 L_end2")
                A("s_mov_b32 s3, %d" % STAMP_OFF)
                A("v_mov_b32 v5, 0")
                A("buffer_load_dword v10, v5, s[16:19], s3 offen")
                A("buffer_load_dword v11, v5, s[16:19], s3 offen offset:%d" % (8 * lo))
                A("buffer_load_dword v12, v5, s[16:19], s3 offen offset:%d" % (8 * hi))
                A("s_waitcnt vmcnt(0)")
                A("v_sub_u32 v11, v12, v11")
                A("s_nop 1")
                A("v_readfirstlane_b32 s20, v10")
                A("v_readfirstlane_b32 s21, v11")
                A("s_nop 3")
                A("s_min_u32 s21, s21, 20000")
                A("s_mul_i32 s21, s21, 10")
                A("s_add_u32 s21, s21, 20000")
                A("L_spin:")
                A("s_memrealtime s[22:23]")
                A("s_waitcnt lgkmcnt(0)")
                A("s_sub_u32 s22, s22, s20")
                A("s_cmp_lt_u32 s22, s21")
                A("s_cbranch_scc1 L_spin")
            elif o.dbg:
                A("s_cmp_lg_u32 s2, 0")
                A("s_cbranch_scc1 L_end2")
                A("s_load_dwordx2 s[20:21], s[0:1], 88")
                A("s_waitcnt lgkmcnt(0)")
                self.emit_all(self.srd(12, 20, 256))
                A("v_mul_u32_u24 v5, %d, v0" % (NSTAMP * 8))
                A("s_mov_b32 s3, %d" % STAMP_OFF)
                A("v_mov_b32 v6, 0")
                for i in range(8):
                    A("buffer_load_dword v%d, v5, s[16:19], s3 offen offset:%d" % (10 + i, 8 * i))
                A("s_waitcnt vmcnt(0)")
                A("v_not_b32 v18, v10")
                A("v_mov_b32 v19, s%d" % (sSTAMP + 16))
                A("v_mov_b32 v20, s%d" % (sSTAMP + 18))
                for i in range(11):
                    A("buffer_atomic_umax v%d, v6, s[12:15], 0 offen offset:%d" % (10 + i, 4 * i))
            else:
                self.write_stamps(8, 10, 4, 16)
        A("L_end2:")
        A("s_endpgm")

    def desc(self, lab, nv, acc, ns):
        A = self.A
        A(".p2align 6")
        A(".amdhsa_kernel %s" % lab)
        A("  .amdhsa_next_free_vgpr %d" % nv)
        A("  .amdhsa_next_free_sgpr %d" % ns)
        A("  .amdhsa_accum_offset %d" % acc)
        A("  .amdhsa_group_segment_fixed_size 0")
        A("  .amdhsa_kernarg_size 104")
        A("  .amdhsa_user_sgpr_count 2")
        A("  .amdhsa_user_sgpr_kernarg_segment_ptr 1")
        A("  .amdhsa_system_sgpr_workgroup_id_x 1")
        A(".end_amdhsa_kernel")

    def build(self):
        A, o = self.A, self.o
        if o.single:
            A("; @launch grid=(256,1,1) block=(256,1,1) lds=163840")
        else:
            A("; @launch kernel=main_kernel grid=(256,1,1) block=(256,1,1) lds=163840")
            A("; @launch kernel=reduce_kernel grid=(%d,1,1) block=(%d,1,1) lds=0" % (3072 * 64 // o.k2_block, o.k2_block))
        A('.amdgcn_target "amdgcn-amd-amdhsa--gfx950"')
        A(".text")
        self.main_kernel()
        if not o.single:
            self.reduce_kernel()
        A('.section .rodata,"a"')
        self.desc(NAME + "_kernel" if o.single else "main_kernel", 512, 256, 100)
        if not o.single:
            self.desc("reduce_kernel", 64, 64, 96)
        return "\n".join(self.L) + "\n"


def parse_opts(args):
    kw = {}
    for a in args:
        k, v = a.split("=", 1)
        cur = getattr(Opt, k)
        if isinstance(cur, bool):
            kw[k] = v not in ("0", "False")
        elif isinstance(cur, int):
            kw[k] = int(v)
        else:
            kw[k] = (" " + v.replace("+", " ")) if v else ""
    return kw


if __name__ == "__main__":
    out = sys.argv[1]
    open(out, "w").write(Gen(Opt(**parse_opts(sys.argv[2:]))).build())
```

```python
import math
import struct
import sys

NAME = "concat_heads__mha_block_cached__mha_block_cached__near_ridge"
WS_BYTES = 288358400
STAMP_OFF = WS_BYTES - (1 << 20)
NSTAMP = 10


def f32(x):
    return "0x%08x" % struct.unpack("<I", struct.pack("<f", x))[0]


class Opt:
    stamps = False
    cyc = False
    prof = 0
    kv_flag = " nt"
    w_flag = ""
    x_flag = ""
    out_flag = ""
    touch = True
    ctouch = 22
    xoct = 1
    xq = 0
    x1pre = False
    xplan = 4
    k1late = False
    kv_oob = False
    nomf = 0
    fshift = 7
    pub1 = 14
    front = 0
    kvt = 2
    kvt0 = 1
    kvtm = 5
    kvtn = 1
    kvti = False
    early = False
    oorder = 0
    tlb = 0
    bfirst = True
    oplan = 1
    vend = 16

    def __init__(self, **kw):
        for k, v in kw.items():
            assert hasattr(Opt, k), k
            setattr(self, k, v)


sW, sP, sHF, sB, sBLK, sHG, sX, sKVO = 4, 5, 6, 7, 8, 9, 10, 11
dK, dV, dW, dX, dS = 12, 16, 32, 36, 40
dC = dX
pX, pK, pV, pWQ, pWO, pWS = 20, 22, 24, 26, 28, 30
pOUT, sFLO, sFLC, sGC, sSTP, sLDB, sOUT, sHX, sXC = 20, 22, 23, 24, 25, 26, 27, 30, 31
sKV, sWOFF, sXO, sM0, sIT, sKVB, sTH, sLO = 44, 45, 46, 47, 48, 49, 50, 51
sA, sB2, sC, sE = 52, 53, 54, 55
sWQB, sWOB, sWT, sCGX, sXB, sST, sL, sSTB = 56, 57, 58, 59, 60, 61, 62, 63
sO1, sRET, sXM, sCG0, sSTAMP = 64, 68, 70, 71, 72
sKS, sKW = 92, 96
sALT, sDOT = sKS, sKW
sTM, sTO = sST, sL

vLANE, vLK, vB = 1, 2, 3
vO, vL, vNEGM, vS, vP = 4, 100, 112, 124, 148
vF = (160, 192)
vVA, vKA, vOKV, vOW, vT = 224, 232, 236, 240, 244
vEXW, vSTA, vDUM, vCHK = 252, 253, 254, 255
vPA, vPD, vFV, vZ, vOUT, vPT = 148, 149, 150, 151, 152, 153
aQC, aBF, aONES = 192, 240, 252

SLOT = 16384
XB = 65536
EX = 65536
EXTRA = 114688
FLAGS = 32 << 20
SPIN = 100000
OOB = 0x7ff00000
MF = "v_mfma_f32_16x16x32_bf16"
O1_TILES = [(0, 0), (1, 0), (0, 1), (1, 1), (0, 2), (0, 3), (1, 2), (1, 3)] + [(2, i) for i in range(4)] + [(3, i) for i in range(4)]
O1_LOC = [SLOT * n for n in range(4)] + [EXTRA + SLOT * n for n in range(3)] + [SLOT * n for n in range(4)] + \
    [EX + SLOT * n for n in range(3)] + [EXTRA, EXTRA + SLOT]
O1_PLAIN = [(c, i) for c in range(4) for i in range(4)]


def vr(a, n=1):
    return "v%d" % a if n == 1 else "v[%d:%d]" % (a, a + n - 1)


def ar(a, n=1):
    return "a%d" % a if n == 1 else "a[%d:%d]" % (a, a + n - 1)


def sr(a, n=1):
    return "s%d" % a if n == 1 else "s[%d:%d]" % (a, a + n - 1)


def txt(x):
    return x[0] if isinstance(x, tuple) else x


def plain(xs):
    return [txt(x) for x in xs]


def is_label(x):
    return not isinstance(x, tuple) and x.endswith(":")


def spread(base, ins):
    out, k = [], 0
    for i, x in enumerate(base):
        out.append(x)
        while k < len(ins) and (k + 1) * len(base) <= (i + 1) * (len(ins) + 1):
            out.append(ins[k])
            k += 1
    return out + ins[k:]


class Gen:
    def __init__(self, o):
        self.o = o
        if o.oorder == 0:
            O1_TILES[:] = O1_PLAIN
        self.L = []
        self.vm = []
        self.tail = []
        self.uid = 0

    def A(self, s):
        self.L.append(s)

    def emit(self, x):
        if txt(x).endswith(" lds") and " m0," in self.L[-1]:
            self.A("s_nop 0")
        self.A(txt(x))
        if isinstance(x, tuple):
            self.vm.append(x[1])

    def emit_all(self, xs):
        for x in xs:
            self.emit(x)

    def stamp(self, name):
        tables = {0: ["start", "q0", "qend", "a0", "a0end", "a1", "a1end", "o16", "pub", "end"],
                  1: ["start"] + ["q%d" % k for k in range(8)] + ["end"],
                  2: ["start"] + ["q%d" % k for k in range(8, 16)] + ["qend"],
                  3: ["start"] + ["o%d" % k for k in range(8)] + ["end"],
                  4: ["start"] + ["o%d" % k for k in range(8, 16)] + ["o16"],
                  5: ["start", "a1end", "o0", "o16", "pub", "xa", "xs", "xb", "xf", "end"]}
        if self.o.prof == 6:
            t = ["start", "a0", "", "a0end", "", "a1", "", "a1end", "", "end"]
            if self.o.stamps and name in t:
                k = t.index(name)
                self.A("s_memrealtime %s" % sr(sSTAMP + 2 * k, 2))
                if 0 < k < 9:
                    self.A("s_memtime %s" % sr(sSTAMP + 2 * k + 2, 2))
            return
        if self.o.prof == 7:
            if self.o.stamps and name in ("start", "end"):
                self.A("s_memrealtime %s" % sr(sSTAMP + (0 if name == "start" else 18), 2))
            if self.o.stamps and name == "iter":
                for k in range(1, 8):
                    self.A("s_mov_b64 %s, %s" % (sr(sSTAMP + 2 * k, 2), sr(sSTAMP + 2 * k + 2, 2)))
                self.A("s_memrealtime %s" % sr(sSTAMP + 16, 2))
            return
        t = tables[self.o.prof]
        if self.o.stamps and name in t:
            self.A("%s %s" % ("s_memtime" if self.o.cyc else "s_memrealtime", sr(sSTAMP + 2 * t.index(name), 2)))

    def vm_need(self, tags):
        idx = max([i for i, t in enumerate(self.vm) if t in tags] + [-1])
        n = len(self.vm) - 1 - idx
        self.vm = self.vm[idx + 1:]
        return n

    def sync(self, n):
        self.A("s_waitcnt vmcnt(%d) lgkmcnt(0)" % n)
        self.A("s_barrier")

    def pat(self, mf, pattern, ds=(), dq=(), vq=()):
        ds, dq, vq = list(ds), list(dq), list(vq)
        assert len(pattern) == len(mf), (len(pattern), len(mf))

        def labels(q):
            while q and is_label(q[0]):
                self.emit(q.pop(0))

        for m, gap in zip(mf, pattern):
            self.A(m if not self.o.nomf else "s_nop 0")
            for ch in gap:
                if ch == "t" and ds:
                    self.emit(ds.pop(0))
                elif ch == "s" and dq and not txt(dq[0]).startswith("buffer_"):
                    self.emit(dq.pop(0))
                    labels(dq)
                elif ch == "d" and dq:
                    while dq and not txt(dq[0]).startswith("buffer_"):
                        self.emit(dq.pop(0))
                    if dq:
                        self.emit(dq.pop(0))
                elif ch == "n":
                    self.A("s_nop 1")
                elif ch == "v" and vq:
                    self.emit(vq.pop(0))
                    labels(vq)
        self.emit_all(ds + dq + vq)

    def auto(self, mf, ds=(), dq=(), vq=(), v0=0, vend=None):
        n = len(mf)
        nd = len([x for x in dq if txt(x).startswith("buffer_")])
        ds_end, first = n - 5, 3
        dpos = [first + int(k * (n - 2 - first) / max(nd - 1, 1) + 0.5) for k in range(nd)] if nd > 1 else ([first] if nd else [])
        pattern, left, vleft = [], len(ds), [x for x in vq if not is_label(x)]
        for g in range(n):
            k = dpos.count(g)
            if k:
                pattern.append("d" * k)
                continue
            gaps_ds = len([h for h in range(g, ds_end + 1) if h not in dpos])
            nds = 0 if left == 0 else min(2, -(-left // max(gaps_ds, 1)))
            nv = 0
            if g >= v0 and vleft:
                gaps_v = max(1, len([h for h in range(g, vend or n) if h not in dpos]))
                if isinstance(vleft[0], tuple):
                    nv = 1
                    if left <= 2 * (gaps_ds - 1):
                        nds = 0
                else:
                    nv = max(2 - nds, -(-len(vleft) // gaps_v))
                    for q in range(min(nv, len(vleft))):
                        if q and isinstance(vleft[q], tuple):
                            nv = q
                            break
                vleft = vleft[nv:]
            left -= nds
            pattern.append("t" * nds + "s" * max(0, 3 - nds - nv) + "v" * nv)
        self.pat(mf, pattern, ds, dq, vq)

    def srd(self, d, p, size):
        return ["s_mov_b32 %s, %s" % (sr(d), sr(p)), "s_and_b32 %s, %s, 0xffff" % (sr(d + 1), sr(p + 1)),
                "s_mov_b32 %s, %d" % (sr(d + 2), size), "s_mov_b32 %s, 0x20000" % sr(d + 3)]

    def dma(self, loc, srd, voff, soff, flag, tag, cnt=4, m0=sM0, nop=False):
        out = ["s_add_u32 m0, %s, %d" % (sr(m0), loc)] + (["s_nop 0"] if nop else [])
        for i in range(cnt):
            off = " offset:%d" % (1024 * i) if i else ""
            out.append(("buffer_load_dwordx4 %s, %s, %s offen%s%s lds" % (vr(voff + i), sr(srd, 4), sr(soff), off, flag), tag))
        return out

    def voff_std(self, dst, mul_i, mul_r, flip=None):
        t0, t1 = vT + 6, vT + 7
        return ["v_lshrrev_b32 %s, 4, %s" % (vr(t0), vr(vLANE)),
                "v_and_b32 %s, 15, %s" % (vr(t1), vr(vLANE)),
                "v_lshlrev_b32 %s, 1, %s" % (vr(dst), vr(t0)),
                "v_xor_b32 %s, %s, %s" % (vr(t1), vr(t1), vr(dst)),
                "v_lshlrev_b32 %s, 4, %s" % (vr(t1), vr(t1))] + \
            (["v_xor_b32 %s, %s, %s" % (vr(t1), sr(flip), vr(t1))] if flip is not None else []) + \
            ["v_mul_u32_u24 %s, %d, %s" % (vr(t0), mul_r, vr(t0)),
             "v_add_u32 %s, %s, %s" % (vr(dst), vr(t0), vr(t1)),
             "v_xor_b32 %s, 0x80, %s" % (vr(t1), vr(t1)),
             "v_add_u32 %s, %s, %s" % (vr(dst + 1), vr(t0), vr(t1)),
             "v_add_u32 %s, %d, %s" % (vr(dst + 2), 2 * mul_i, vr(dst)),
             "v_add_u32 %s, %d, %s" % (vr(dst + 3), 3 * mul_i, vr(dst + 1)),
             "v_add_u32 %s, %d, %s" % (vr(dst + 1), mul_i, vr(dst + 1))]

    def voff_o1(self, dst):
        t0, t1 = vT + 6, vT + 7
        out = ["s_and_b32 %s, %s, 1" % (sr(sA), sr(sX)),
               "s_lshl_b32 %s, %s, 2" % (sr(sA), sr(sA)),
               "v_lshrrev_b32 %s, 3, %s" % (vr(t0), vr(vLANE)),
               "v_and_b32 %s, 7, %s" % (vr(t1), vr(vLANE)),
               "v_and_b32 %s, 6, %s" % (vr(dst), vr(t0)),
               "v_xor_b32 %s, %s, %s" % (vr(t1), vr(t1), vr(dst)),
               "v_xor_b32 %s, %s, %s" % (vr(t1), sr(sA), vr(t1)),
               "v_lshlrev_b32 %s, 4, %s" % (vr(t1), vr(t1)),
               "v_lshl_add_u32 %s, %s, 10, %s" % (vr(dst), vr(t0), vr(t1))]
        for i in range(1, 4):
            out.append("v_add_u32 %s, %d, %s" % (vr(dst + i), 7168 * i, vr(dst)))
        return out

    def cg_of(self, dst, c):
        return ["s_add_u32 %s, %s, %s" % (sr(dst), sr(sCG0), c), "s_and_b32 %s, %s, 3" % (sr(dst), sr(dst))]

    def wq_group(self, c):
        return self.cg_of(sA, c) + ["s_lshl_b32 %s, %s, 20" % (sr(sA), sr(sA)),
                                    "s_add_u32 %s, %s, %s" % (sr(sWT), sr(sA), sr(sWQB))]

    def wq_params(self, i):
        return ["s_add_u32 %s, %s, %s" % (sr(sWOFF), sr(sWT), sr(sKW + i))]

    def x_group(self, c):
        return self.cg_of(sB2, c) + ["s_mul_i32 %s, %s, 24576" % (sr(sB2), sr(sB2)),
                                     "s_add_u32 %s, %s, %s" % (sr(sCGX), sr(sB2), sr(sXB))]

    def x_addr(self, i):
        return ["v_xor_b32 %s, %s, %s" % (vr(vB), sr(sKS + i), vr(vLK)),
                "v_add_u32 %s, %s, %s" % (vr(vB), sr(sCGX), vr(vB))]

    def kv_params(self):
        return ["s_add_u32 %s, %s, %s" % (sr(sKV), sr(sKVO), sr(sKVB)),
                "s_add_u32 %s, %s, 8192" % (sr(sKVO), sr(sKVO)),
                "s_and_b32 %s, %s, 0x1ffff" % (sr(sKVO), sr(sKVO))]

    def o1_off(self, dst, n):
        c, i = O1_TILES[n]
        return ["s_xor_b32 %s, %s, %d" % (sr(dst), sr(sXC), 128 * c), "s_add_u32 %s, %s, %s" % (sr(dst), sr(dst), sr(sO1 + i))]

    def x_dma(self, c):
        o = self.o
        out = self.cg_of(sA, "%d" % c)
        out += ["s_mul_i32 %s, %s, 24576" % (sr(sB2), sr(sA)),
                "s_mul_i32 %s, %s, 6144" % (sr(sXM), sr(sW)),
                "s_add_u32 %s, %s, %s" % (sr(sXM), sr(sXM), sr(sB2)),
                "s_lshl_b32 %s, %s, 8" % (sr(sA), sr(sA)),
                "s_mul_i32 %s, %s, 98304" % (sr(sXO), sr(sB)),
                "s_add_u32 %s, %s, %s" % (sr(sXO), sr(sXO), sr(sA)),
                "s_mul_i32 %s, %s, 24576" % (sr(sA), sr(sW)),
                "s_add_u32 %s, %s, %s" % (sr(sXO), sr(sXO), sr(sA))]
        out += self.dma(XB, dX, vOKV, sXO, o.x_flag, ("x", c), 4, sXM)
        out += ["s_add_u32 %s, %s, 16384" % (sr(sXO), sr(sXO))]
        out += self.dma(XB + 4096, dX, vOKV, sXO, o.x_flag, ("x", c), 2, sXM)
        return out

    def code_touch_small(self, label, t, d):
        self.uid += 1
        k = self.uid
        return ["s_getpc_b64 %s" % sr(d, 2), "L_pc%d:" % k,
                "s_add_u32 %s, %s, %s-L_pc%d" % (sr(d), sr(d), label, k),
                "s_addc_u32 %s, %s, 0" % (sr(d + 1), sr(d + 1)),
                "s_and_b32 %s, %s, 0xffff" % (sr(d + 1), sr(d + 1)),
                "s_mov_b32 %s, L_codeend-%s" % (sr(d + 2), label),
                "s_mov_b32 %s, 0x20000" % sr(d + 3),
                "s_and_b32 %s, %s, 7" % (sr(sA), sr(sB)),
                "s_lshl_b32 %s, %s, 2" % (sr(sA), sr(sA)),
                "s_add_u32 %s, %s, %s" % (sr(sA), sr(sA), sr(sW)),
                "s_lshl_b32 %s, %s, 11" % (sr(sA), sr(sA)),
                "v_and_b32 %s, 15, %s" % (vr(t), vr(vLANE)),
                "v_lshlrev_b32 %s, 7, %s" % (vr(t), vr(t)),
                ("buffer_load_dword %s, %s, %s, %s offen" % (vr(vDUM), vr(t), sr(d, 4), sr(sA)), "touch")]

    def code_touch(self, label, t, back=False):
        self.uid += 1
        k = self.uid
        return ["s_getpc_b64 %s" % sr(dC, 2), "L_pc%d:" % k,
                "s_add_u32 %s, %s, %s-L_pc%d" % (sr(dC), sr(dC), label, k),
                "s_addc_u32 %s, %s, %d" % (sr(dC + 1), sr(dC + 1), -1 if back else 0),
                "s_and_b32 %s, %s, 0xffff" % (sr(dC + 1), sr(dC + 1)),
                "s_mov_b32 %s, L_codeend-%s" % (sr(dC + 2), label),
                "s_lshl_b32 %s, %s, 13" % (sr(sA), sr(sW)),
                "v_lshlrev_b32 %s, 7, %s" % (vr(t), vr(vLANE)),
                ("buffer_load_dword %s, %s, %s, %s offen" % (vr(vDUM), vr(t), sr(dC, 4), sr(sA)), "touch")]

    def tr_reads(self, fset, slot):
        return ["ds_read_b64_tr_b16 %s, %s offset:%d" % (vr(vF[fset] + 4 * dt + 2 * e, 2), vr(vVA + dt), SLOT * slot + 4096 * e)
                for dt in range(8) for e in range(2)]

    def k_reads(self, fset, slot):
        return ["ds_read_b128 %s, %s offset:%d" % (vr(vF[fset] + 16 * kt + 4 * ks, 4), vr(vKA + ks), SLOT * slot + 4096 * kt)
                for kt in range(2) for ks in range(4)]

    def zero_regs(self, fn, lo, n):
        out = []
        while n >= 16:
            out.append("v_mfma_f32_32x32x16_bf16 %s, %s, %s, 0" % (fn(lo, 16), vr(vT + 4, 4), ar(aONES, 4)))
            lo, n = lo + 16, n - 16
        while n >= 4:
            out.append("%s %s, %s, %s, 0" % (MF, fn(lo, 4), vr(vT + 4, 4), ar(aONES, 4)))
            lo, n = lo + 4, n - 4
        return out

    def q_finalize(self, from_agpr):
        out = ["s_mov_b32 %s, %s" % (sr(sE), f32(math.log2(math.e) / math.sqrt(128.0)))]
        blocks = []
        for ks in range(4):
            for j in range(3):
                pre = []
                if from_agpr:
                    a = vS + 8 * ((3 * ks + j) % 3)
                    b = a + 4
                    pre += ["v_accvgpr_read_b32 %s, %s" % (vr(a + i), ar(24 * ks + 4 * j + i)) for i in range(4)]
                    pre += ["v_accvgpr_read_b32 %s, %s" % (vr(b + i), ar(24 * ks + 12 + 4 * j + i)) for i in range(4)]
                else:
                    a, b = vO + 24 * ks + 4 * j, vO + 24 * ks + 12 + 4 * j
                pre += ["v_mul_f32 %s, %s, %s" % (vr(x + y), sr(sE), vr(x + y)) for x in (a, b) for y in range(4)]
                pre += ["v_cvt_pk_bf16_f32 %s, %s, %s" % (vr(a), vr(a), vr(a + 1)),
                        "v_cvt_pk_bf16_f32 %s, %s, %s" % (vr(a + 1), vr(a + 2), vr(a + 3)),
                        "v_cvt_pk_bf16_f32 %s, %s, %s" % (vr(a + 2), vr(b), vr(b + 1)),
                        "v_cvt_pk_bf16_f32 %s, %s, %s" % (vr(a + 3), vr(b + 2), vr(b + 3))]
                s32 = ["v_permlane32_swap_b32 %s, %s" % (vr(a), vr(a + 2)), "v_permlane32_swap_b32 %s, %s" % (vr(a + 1), vr(a + 3))]
                s16 = ["v_permlane16_swap_b32 %s, %s" % (vr(a), vr(a + 2)), "v_permlane16_swap_b32 %s, %s" % (vr(a + 1), vr(a + 3))]
                wr = ["v_accvgpr_write_b32 %s, %s" % (ar(aQC + 12 * ks + 4 * j + i), vr(a + i)) for i in range(4)]
                blocks.append((pre, s32, s16, wr))
        n = len(blocks)
        for k in range(n + 1):
            if k < n:
                pre = blocks[k][0]
                h = len(pre) // 2
                out += pre[:h]
            if k > 0:
                if k == n:
                    out.append("s_nop 1")
                out += blocks[k - 1][1]
            if k < n:
                out += pre[h:]
            else:
                out.append("s_nop 1")
            if k > 0:
                out += blocks[k - 1][2] + blocks[k - 1][3]
        return out

    def o_finalize(self, kss=(0, 1, 2, 3)):
        out = []
        if kss[0] == 0:
            out += ["v_rcp_f32 %s, %s" % (vr(vT + j), vr(vL + 4 * j)) for j in range(3)] + ["s_nop 1"]
        for ks in kss:
            for j in range(3):
                a, b = vO + 24 * ks + 4 * j, vO + 24 * ks + 12 + 4 * j
                out += ["v_mul_f32 %s, %s, %s" % (vr(x + y), vr(x + y), vr(vT + j)) for x in (a, b) for y in range(4)]
                out += ["v_cvt_pk_bf16_f32 %s, %s, %s" % (vr(a), vr(a), vr(a + 1)),
                        "v_cvt_pk_bf16_f32 %s, %s, %s" % (vr(a + 1), vr(a + 2), vr(a + 3)),
                        "v_cvt_pk_bf16_f32 %s, %s, %s" % (vr(a + 2), vr(b), vr(b + 1)),
                        "v_cvt_pk_bf16_f32 %s, %s, %s" % (vr(a + 3), vr(b + 2), vr(b + 3)),
                        "ds_write_b128 %s, %s offset:%d" % (vr(vEXW), vr(a, 4), 1024 * (3 * ks + j))]
        return out

    def att_reset(self, nacc):
        out = ["v_mov_b32 %s, 0" % vr(vT + 4 + i) for i in range(4)] + ["s_nop 1"]
        out += self.zero_regs(vr, vNEGM - 4, 16) + self.zero_regs(vr, vO, vNEGM - 4 - vO) + self.zero_regs(ar, 0, nacc)
        out += ["s_nop 7", "s_mov_b32 %s, 0xff800000" % sr(sTH), "s_mov_b32 %s, 0xff800000" % sr(sLO), "s_mov_b32 %s, 0" % sr(sIT)]
        return out

    def last_only(self, code):
        self.uid += 1
        k = self.uid
        self.tail += ["L_alt%d:" % k] + plain(code) + ["s_branch L_altback%d" % k]
        return ["s_cmp_eq_u32 %s, 3" % sr(sIT), "s_cbranch_scc1 L_alt%d" % k, "L_altback%d:" % k]

    def sel_last(self, dst, alt):
        return ["s_cmp_eq_u32 %s, 3" % sr(sIT), "s_cselect_b32 %s, %s, %s" % (sr(dst), sr(alt), sr(dst))]

    def o1_early(self, n):
        return self.last_only(self.o1_off(sE, n) + self.dma(O1_LOC[n], dW, vOW, sE, self.o.w_flag, None, nop=True))

    def att_loop(self, rnd):
        A, o = self.A, self.o

        def mx(j):
            s0, s1, m = vS + 4 * j, vS + 12 + 4 * j, vT + j
            return ["v_max3_f32 %s, %s, %s, %s" % (vr(m), vr(s0), vr(s0 + 1), vr(s0 + 2)),
                    "v_max3_f32 %s, %s, %s, %s" % (vr(m), vr(m), vr(s0 + 3), vr(s1)),
                    "v_max3_f32 %s, %s, %s, %s" % (vr(m), vr(m), vr(s1 + 1), vr(s1 + 2)),
                    "v_max_f32 %s, %s, %s" % (vr(m), vr(m), vr(s1 + 3))]

        def ex(kt, j):
            a = vS + 12 * kt + 4 * j
            return ["v_exp_f32 %s, %s" % (vr(a + x), vr(a + x)) for x in range(4)]

        def cv(j):
            return ["v_cvt_pk_bf16_f32 %s, %s, %s" % (vr(vP + 4 * j + 2 * kt + h), vr(vS + 12 * kt + 4 * j + 2 * h), vr(vS + 12 * kt + 4 * j + 2 * h + 1))
                    for kt in range(2) for h in range(2)]

        patK = "tss tss tss tss tts d tv tv t t tt d tv tv tv ttv d t t vv vv d ss _".split()
        patW = "tss tts d tv tv vv vvv v d tv tv tv tv tv d tv tv tv tv ttv d ssvv vv v".split()
        patV = "sv sv sv sv svv svv sv d v v v v d v v tv tvv tvvn tt t d tt t _ d ss ss".split()
        if o.front:
            patK = "dddd tss t t t t t tv tv tt t t tv tv tv ttv t t t _ vv vv ss _".split()
            patW = "dddd tss t tv tv t vv vvv v tv tv tv tv tv tv tv tv ttv tv tv v ssvv vv v".split()
            patV = "dddd sv v v v vv vv v v v v v v v v tvv tvv tn t t t t t _ _ ss ss".split()
        A(".p2align 6")
        A("L_att%d:" % rnd)
        self.stamp("iter")
        for i in range(4):
            nK, nW, nV = 3 * i, 3 * i + 1, 3 * i + 2
            last = rnd == 1 and i == 3
            self.sync(8)
            mf = []
            for j in range(3):
                for kt in range(2):
                    for ks in range(4):
                        acc = vr(vS + 12 * kt + 4 * j, 4)
                        c = vr(vNEGM + 4 * j, 4) if ks == 0 else acc
                        mf.append("%s %s, %s, %s, %s" % (MF, acc, vr(vF[nK % 2] + 16 * kt + 4 * ks, 4), ar(aQC + 12 * ks + 4 * j, 4), c))
            rd = self.tr_reads(nW % 2, nW % 4)
            if rnd == 0:
                par = []
                if i == 0:
                    par += self.x_group(sr(sIT))
                if i == 3:
                    par += ["s_add_u32 %s, %s, 1" % (sr(sC), sr(sIT))] + self.wq_group(sr(sC))
                par += self.wq_params((i + 1) % 4)
                if i == 3:
                    par += self.last_only(self.srd(dW, pWO, 4 << 20)[:2] +
                                          ["s_and_b32 %s, %s, 3" % (sr(sA), sr(sX)), "s_lshl_b32 %s, %s, 6" % (sr(sA), sr(sA))] +
                                          self.voff_std(vOW, 3072, 1024, sA) +
                                          ["s_mov_b32 %s, %s" % (sr(sWT), sr(sWOB)), "s_mov_b32 %s, %s" % (sr(sWOFF), sr(sWOB))])
                vq = self.x_addr(i)
                rd += ["ds_read_b128 %s, %s offset:%d" % (ar(aBF + 4 * j, 4), vr(vB), 4096 * j) for j in range(3)]
            else:
                vq = ["s_nop 0", "s_nop 0"]
                if i < 3:
                    par = ["s_add_u32 %s, %s, %d" % (sr(sWOFF), sr(sWT), 32768 * ((i + 1) // 2))]
                    if i % 2 == 0:
                        par += ["s_add_u32 %s, %s, %s" % (sr(sWOFF), sr(sWOFF), sr(sHX))]
                else:
                    par = ["s_mov_b32 %s, 65536" % sr(sA), "s_movk_i32 %s, 6144" % sr(sC), "s_cmp_eq_u32 %s, 1" % sr(sIT),
                           "s_cselect_b32 %s, 196608, %s" % (sr(sA), sr(sA)),
                           "s_cselect_b32 %s, 18432, %s" % (sr(sC), sr(sC)),
                           "s_add_u32 %s, %s, %s" % (sr(sWT), sr(sWT), sr(sA)),
                           "s_cmp_eq_u32 %s, 3" % sr(sIT),
                           "s_cselect_b32 %s, %s, %s" % (sr(sWOFF), sr(sALT + 1), sr(sWT))]
                    vq = ["s_nop 0", "v_add_u32 %s, %s, %s" % (vr(vB), sr(sC), vr(vB))]
                if i % 2 == 0:
                    rd += ["ds_read_b128 %s, %s offset:%d" % (ar(aBF + 4 * j, 4), vr(vB), 3072 * (i // 2) + 1024 * j) for j in range(3)]
            d = self.dma(SLOT * (nK % 4), dW, vOW, sWOFF, o.w_flag, None) + (self.o1_early(4) if last else [])
            self.pat(mf, patK, rd, par + d, vq + mx(0) + mx(1))
            self.sync(8)
            mf = []
            for dt in range(8):
                for j in range(3):
                    acc = ar((0 if rnd == 0 else 96 * (i % 2)) + 12 * dt + 4 * j, 4)
                    mf.append("%s %s, %s, %s, %s" % (MF, acc, vr(vF[nW % 2] + 4 * dt, 4), ar(aBF + 4 * j, 4), acc))
            rd = self.tr_reads(nV % 2, nV % 4)
            self.uid += 1
            k = self.uid
            vq = mx(2) + ["v_max3_f32 %s, %s, %s, %s" % (vr(vT + 3), vr(vT), vr(vT + 1), vr(vT + 2)),
                          "v_cmp_lt_f32 vcc, %s, %s" % (sr(sTH), vr(vT + 3)),
                          "s_cbranch_vccnz L_rs%d" % k, "L_rb%d:" % k]
            self.tail += ["L_rs%d:" % k, "s_call_b64 %s, L_rare" % sr(sRET, 2), "s_branch L_rb%d" % k]
            vq += ex(0, 0) + ex(1, 0) + cv(0) + ex(0, 1)
            par = self.sel_last(sKV, sALT + 2) if last else []
            d = self.dma(SLOT * (nW % 4), dV, vOKV, sKV, o.kv_flag, None) + (self.o1_early(5) if last else [])
            self.pat(mf, patW, rd, par + d, vq)
            self.sync(8)
            mf = []
            for j in range(3):
                mf.append("%s %s, %s, %s, %s" % (MF, vr(vL + 4 * j, 4), ar(aONES, 4), vr(vP + 4 * j, 4), vr(vL + 4 * j, 4)))
                for dt in range(8):
                    acc = vr(vO + 12 * dt + 4 * j, 4)
                    mf.append("%s %s, %s, %s, %s" % (MF, acc, vr(vF[nV % 2] + 4 * dt, 4), vr(vP + 4 * j, 4), acc))
            rd = self.k_reads((nV + 1) % 2, (nV + 1) % 4)
            par = self.kv_params()
            if rnd == 0 and i == 2:
                par = ["s_cmp_eq_u32 %s, 3" % sr(sIT), "s_cselect_b32 %s, 131072, 0" % sr(sA),
                       "s_add_u32 %s, %s, %s" % (sr(sKVB), sr(sKVB), sr(sA))] + par
            if rnd == 1 and i == 2:
                par += self.last_only(self.srd(dK, pWO, 4 << 20)[:3] + self.srd(dV, pWO, 4 << 20)[:3] +
                                      self.voff_o1(vOKV) + ["v_mov_b32 %s, %s" % (vr(vOW + x), vr(vOKV + x)) for x in range(4)] +
                                      ["s_mov_b32 %s, %s" % (sr(sKV), sr(sALT))])
            if last:
                par += self.sel_last(sKV, sALT + 3)
            d = self.dma(SLOT * (nV % 4), dK, vOKV, sKV, o.kv_flag, None)
            if rnd == 1 and i == 0 and o.touch:
                t = vT + 4
                d += self.last_only([
                    "s_lshl_b32 %s, %s, 3" % (sr(sA), sr(sB)),
                    "s_lshl_b32 %s, %s, 2" % (sr(sB2), sr(sHF)),
                    "s_add_u32 %s, %s, %s" % (sr(sA), sr(sA), sr(sB2)),
                    "s_lshl_b32 %s, %s, 10" % (sr(sA), sr(sA)),
                    "s_lshl_b32 %s, %s, 19" % (sr(sB2), sr(sHG)),
                    "s_add_u32 %s, %s, %s" % (sr(sA), sr(sA), sr(sB2)),
                    "s_lshl_b32 %s, %s, 18" % (sr(sB2), sr(sP)),
                    "s_add_u32 %s, %s, %s" % (sr(sA), sr(sA), sr(sB2)),
                    "s_add_u32 %s, %s, 131072" % (sr(sA), sr(sA)),
                    "v_and_b32 %s, 31, %s" % (vr(t), vr(vLANE)),
                    "v_lshlrev_b32 %s, 7, %s" % (vr(t), vr(t)),
                    "buffer_load_dword %s, %s, %s, %s offen" % (vr(vDUM), vr(t), sr(dW, 4), sr(sA))] +
                    (self.code_touch("L_o1", t, True) if o.ctouch & 2 else []))
            if last:
                d += self.o1_early(6)
            if i == 3:
                d += ["s_add_u32 %s, %s, 1" % (sr(sIT), sr(sIT)), "s_cmp_lt_u32 %s, 4" % sr(sIT)]
            self.pat(mf, patV, rd, par + d, ex(1, 1) + cv(1) + ex(0, 2) + ex(1, 2) + cv(2))
        A("s_cbranch_scc1 L_att%d" % rnd)

    def rare(self):
        A = self.A
        A("L_rare:")
        for j in range(3):
            A("v_mov_b32 %s, %s" % (vr(vT + 3 + j), vr(vT + j)))
        A("s_nop 1")
        for j in range(3):
            A("v_permlane32_swap_b32 %s, %s" % (vr(vT + j), vr(vT + 3 + j)))
        for j in range(3):
            A("v_max_f32 %s, %s, %s" % (vr(vT + j), vr(vT + j), vr(vT + 3 + j)))
        for j in range(3):
            A("v_mov_b32 %s, %s" % (vr(vT + 3 + j), vr(vT + j)))
        A("s_nop 1")
        for j in range(3):
            A("v_permlane16_swap_b32 %s, %s" % (vr(vT + j), vr(vT + 3 + j)))
        for j in range(3):
            A("v_max3_f32 %s, %s, %s, %s" % (vr(vT + j), vr(vT + j), vr(vT + 3 + j), sr(sLO)))
        for j in range(3):
            A("v_max_f32 %s, 0, %s" % (vr(vT + 3 + j), vr(vT + j)))
        for j in range(3):
            A("v_exp_f32 %s, -%s" % (vr(vT + 3 + j), vr(vT + 3 + j)))
        for j in range(3):
            for base in (vS + 4 * j, vS + 12 + 4 * j, vNEGM + 4 * j):
                for i in range(4):
                    A("v_sub_f32 %s, %s, %s" % (vr(base + i), vr(base + i), vr(vT + j)))
        A("s_cmp_lg_u32 %s, 0" % sr(sLO))
        A("s_cbranch_scc1 L_rare_first")
        for j in range(3):
            for base in [vO + 12 * dt + 4 * j for dt in range(8)] + [vL + 4 * j]:
                for i in range(4):
                    A("v_mul_f32 %s, %s, %s" % (vr(base + i), vr(base + i), vr(vT + 3 + j)))
        A("L_rare_first:")
        A("s_mov_b32 %s, %s" % (sr(sTH), f32(8.0)))
        A("s_mov_b32 %s, 0" % sr(sLO))
        A("s_setpc_b64 %s" % sr(sRET, 2))

    def prologue(self):
        A, o = self.A, self.o
        A("s_cmp_ge_u32 s2, 256")
        A("s_cbranch_scc1 L_end")
        self.stamp("start")
        A("s_and_b32 %s, s2, 7" % sr(sA))
        A("s_lshr_b32 %s, s2, 3" % sr(sB2))
        A("s_lshr_b32 %s, %s, 2" % (sr(sBLK), sr(sA)))
        A("s_mul_i32 %s, %s, 40" % (sr(sC), sr(sBLK)))
        A("s_add_u32 s4, s0, %s" % sr(sC))
        A("s_addc_u32 s5, s1, 0")
        A("s_load_dwordx8 %s, s[4:5], 0" % sr(pX, 8))
        A("s_load_dwordx2 %s, s[4:5], 32" % sr(pWO, 2))
        A("s_load_dwordx2 %s, s[0:1], 96" % sr(pWS, 2))
        A("s_and_b32 %s, %s, 15" % (sr(sB), sr(sB2)))
        A("s_lshr_b32 %s, %s, 4" % (sr(sE), sr(sB2)))
        A("s_and_b32 %s, %s, 3" % (sr(sA), sr(sA)))
        A("s_lshl_b32 %s, %s, 1" % (sr(sHG), sr(sA)))
        A("s_add_u32 %s, %s, %s" % (sr(sHG), sr(sHG), sr(sE)))
        A("s_mul_i32 %s, %s, %d" % (sr(sA), sr(sA), o.xoct))
        A("s_mul_i32 %s, %s, %d" % (sr(sE), sr(sE), o.xq))
        A("s_add_u32 %s, %s, %s" % (sr(sCG0), sr(sB), sr(sA)))
        A("s_add_u32 %s, %s, %s" % (sr(sCG0), sr(sCG0), sr(sE)))
        A("s_lshr_b32 %s, %s, 2" % (sr(sE), sr(sB)))
        for i in range(4):
            A("s_add_u32 %s, %s, %d" % (sr(sC), sr(sE), i))
            A("s_and_b32 %s, %s, 3" % (sr(sC), sr(sC)))
            A("s_lshl_b32 %s, %s, 6" % (sr(sKS + i), sr(sC)))
            A("s_lshl_b32 %s, %s, 18" % (sr(sKW + i), sr(sC)))
        A("v_lshrrev_b32 %s, 6, v0" % vr(vT))
        A("v_and_b32 %s, 63, v0" % vr(vLANE))
        self.emit_all(self.voff_std(vOKV, 3072, 1024))
        self.emit_all(self.voff_std(vOW, 65536 - 1024, 8192))
        A("s_waitcnt lgkmcnt(0)")
        A("v_readfirstlane_b32 %s, %s" % (sr(sW), vr(vT)))
        self.emit_all(self.srd(dX, pX, 16 * 98304))
        self.emit_all(self.srd(dW, pWQ, 4 << 20))
        A("s_lshr_b32 %s, %s, 1" % (sr(sP), sr(sW)))
        A("s_and_b32 %s, %s, 1" % (sr(sHF), sr(sW)))
        if o.ctouch & 8:
            self.emit_all(self.code_touch_small("L_p1", vT + 5, dK))
            A("L_p1:")
        self.emit_all(self.x_dma(0))
        A("s_lshl_b32 %s, %s, 12" % (sr(sM0), sr(sW)))
        A("s_lshl_b32 %s, %s, 1" % (sr(sA), sr(sHG)))
        A("s_add_u32 %s, %s, %s" % (sr(sA), sr(sA), sr(sP)))
        A("s_lshl_b32 %s, %s, 9" % (sr(sWQB), sr(sA)))
        A("s_lshl_b32 %s, %s, 15" % (sr(sA), sr(sHF)))
        A("s_add_u32 %s, %s, %s" % (sr(sWQB), sr(sWQB), sr(sA)))
        self.emit_all(self.wq_dma(0))
        if o.xplan == 3:
            self.emit_all(self.x_dma(1) + self.x_dma(2) + self.x_dma(3))
        self.emit_all(self.wq_dma(1))
        if o.ctouch & 4:
            self.emit_all(self.code_touch_small("L_q0", vT + 5, dK))
        self.emit_all(self.srd(dK, pK, 0 if o.kv_oob else 64 << 20))
        self.emit_all(self.srd(dV, pV, 0 if o.kv_oob else 64 << 20))
        self.emit_all(self.srd(dS, pWS, WS_BYTES))
        A("s_load_dwordx2 %s, s[0:1], 80" % sr(pOUT, 2))
        A("s_xor_b32 %s, %s, 7" % (sr(sX), sr(sHG)))
        A("s_lshl_b32 %s, %s, 22" % (sr(sKVB), sr(sB)))
        A("s_lshl_b32 %s, %s, 19" % (sr(sWOB), sr(sHG)))
        A("s_add_u32 %s, %s, %s" % (sr(sKVB), sr(sKVB), sr(sWOB)))
        A("s_lshl_b32 %s, %s, 18" % (sr(sA), sr(sP)))
        A("s_add_u32 %s, %s, %s" % (sr(sKVB), sr(sKVB), sr(sA)))
        A("s_lshl_b32 %s, %s, 12" % (sr(sA), sr(sHF)))
        A("s_add_u32 %s, %s, %s" % (sr(sKVB), sr(sKVB), sr(sA)))
        A("s_lshl_b32 %s, %s, 9" % (sr(sA), sr(sP)))
        A("s_add_u32 %s, %s, %s" % (sr(sWOB), sr(sWOB), sr(sA)))
        A("s_lshl_b32 %s, %s, 15" % (sr(sA), sr(sHF)))
        A("s_add_u32 %s, %s, %s" % (sr(sC), sr(sWOB), sr(sA)))
        A("s_add_u32 %s, %s, 131072" % (sr(sC), sr(sC)))
        A("s_lshl_b32 %s, %s, 18" % (sr(sA), sr(sP)))
        A("s_add_u32 %s, %s, %s" % (sr(sO1), sr(sC), sr(sA)))
        A("s_xor_b32 %s, %s, 262144" % (sr(sA), sr(sA)))
        A("s_add_u32 %s, %s, %s" % (sr(sO1 + 2), sr(sC), sr(sA)))
        A("s_add_u32 %s, %s, 65536" % (sr(sO1 + 1), sr(sO1)))
        A("s_add_u32 %s, %s, 65536" % (sr(sO1 + 3), sr(sO1 + 2)))
        A("s_lshl_b32 %s, %s, 14" % (sr(sA), sr(sHF)))
        A("s_add_u32 %s, %s, %s" % (sr(sWOB), sr(sWOB), sr(sA)))
        A("s_lshr_b32 %s, %s, 2" % (sr(sA), sr(sX)))
        A("s_lshl_b32 %s, %s, 8" % (sr(sA), sr(sA)))
        A("s_add_u32 %s, %s, %s" % (sr(sWOB), sr(sWOB), sr(sA)))
        A("s_lshl_b32 %s, %s, 1" % (sr(sA), sr(sA)))
        A("s_sub_u32 %s, 256, %s" % (sr(sHX), sr(sA)))
        A("s_lshr_b32 %s, %s, 1" % (sr(sA), sr(sX)))
        A("s_lshl_b32 %s, %s, 7" % (sr(sXC), sr(sA)))
        A("s_and_b32 %s, %s, 1" % (sr(sA), sr(sHG)))
        A("s_lshl_b32 %s, %s, 3" % (sr(sA), sr(sA)))
        A("s_add_u32 %s, %s, %s" % (sr(sA), sr(sB), sr(sA)))
        A("s_and_b32 %s, %s, 15" % (sr(sA), sr(sA)))
        A("s_lshl_b32 %s, %s, 13" % (sr(sKVO), sr(sA)))
        A("s_mul_i32 %s, %s, 12288" % (sr(sXB), sr(sHF)))
        A("s_add_u32 %s, %s, %d" % (sr(sXB), sr(sXB), XB))
        A("s_lshl_b32 %s, %s, 4" % (sr(sA), sr(sBLK)))
        A("s_add_u32 %s, %s, %s" % (sr(sA), sr(sA), sr(sB)))
        A("s_lshl_b32 %s, %s, 2" % (sr(sA), sr(sA)))
        A("s_add_u32 %s, %s, %s" % (sr(sA), sr(sA), sr(sW)))
        A("s_mul_i32 %s, %s, 196608" % (sr(sB2), sr(sA)))
        A("s_mul_i32 %s, %s, 3072" % (sr(sC), sr(sHG)))
        A("s_add_u32 %s, %s, %s" % (sr(sSTB), sr(sB2), sr(sC)))
        A("s_mul_i32 %s, %s, 24576" % (sr(sC), sr(sHG)))
        A("s_add_u32 %s, %s, %s" % (sr(sLDB), sr(sB2), sr(sC)))
        A("s_lshl_b32 %s, %s, 10" % (sr(sA), sr(sA)))
        A("s_add_u32 %s, %s, %d" % (sr(sFLC), sr(sA), FLAGS))
        A("s_lshl_b32 %s, %s, %d" % (sr(sA), sr(sHG), o.fshift))
        A("s_add_u32 %s, %s, %s" % (sr(sFLO), sr(sFLC), sr(sA)))
        self.emit_all(self.poll_addr())
        self.emit(("buffer_load_dword %s, %s, %s, %s offen sc1" % (vr(vCHK), vr(vPA), sr(dS, 4), sr(sFLC)), "fl"))
        A("s_mul_i32 %s, %s, 96" % (sr(sA), sr(sB)))
        A("s_mul_i32 %s, %s, 48" % (sr(sB2), sr(sHF)))
        A("s_add_u32 %s, %s, %s" % (sr(sA), sr(sA), sr(sB2)))
        A("s_lshl_b32 %s, %s, 11" % (sr(sA), sr(sA)))
        A("s_lshl_b32 %s, %s, 10" % (sr(sB2), sr(sBLK)))
        A("s_add_u32 %s, %s, %s" % (sr(sA), sr(sA), sr(sB2)))
        A("s_lshl_b32 %s, %s, 9" % (sr(sB2), sr(sP)))
        A("s_add_u32 %s, %s, %s" % (sr(sA), sr(sA), sr(sB2)))
        A("s_lshl_b32 %s, %s, 6" % (sr(sB2), sr(sHG)))
        A("s_add_u32 %s, %s, %s" % (sr(sOUT), sr(sA), sr(sB2)))
        if o.tlb:
            A("v_mov_b32 %s, 0" % vr(vZ))
            self.emit(("buffer_load_dword %s, %s, %s, %s offen nt" % (vr(vDUM), vr(vZ), sr(dK, 4), sr(sKVB)), "touch"))
            self.emit(("buffer_load_dword %s, %s, %s, %s offen nt" % (vr(vDUM), vr(vZ), sr(dV, 4), sr(sKVB)), "touch"))
        if o.kvt:
            A("s_mul_hi_u32 %s, %s, %d" % (sr(sA), sr(sB), (1 << 32) // o.kvtm + 1))
            A("s_mul_i32 %s, %s, %d" % (sr(sA), sr(sA), o.kvtm))
            A("s_sub_u32 %s, %s, %s" % (sr(sA), sr(sB), sr(sA)))
            A("s_lshl_b32 %s, %d, %s" % (sr(sTM), sum(1 << (o.kvt0 + o.kvtm * k) for k in range(o.kvt)), sr(sA)))
            A("s_mov_b32 %s, %s" % (sr(sTO), sr(sKVO)))
            t = vT + 4
            A("v_and_b32 %s, 31, %s" % (vr(t), vr(vLANE)))
            A("v_lshlrev_b32 %s, 7, %s" % (vr(t), vr(t)))
            A("s_branch L_kvt_skip")
            A("L_kvt:")
            for k in range(o.kvtn):
                A("s_add_u32 %s, %s, %s" % (sr(sE), sr(sTO), sr(sKVB)))
                A("s_add_u32 %s, %s, 8192" % (sr(sTO), sr(sTO)))
                A("s_and_b32 %s, %s, 0x1ffff" % (sr(sTO), sr(sTO)))
                A("buffer_load_dword %s, %s, %s, %s offen" % (vr(vDUM), vr(t), sr(dK, 4), sr(sE)))
                A("buffer_load_dword %s, %s, %s, %s offen" % (vr(vDUM), vr(t), sr(dV, 4), sr(sE)))
            A("s_add_u32 %s, %s, 4" % (sr(sRET), sr(sRET)))
            A("s_addc_u32 %s, %s, 0" % (sr(sRET + 1), sr(sRET + 1)))
            A("s_setpc_b64 %s" % sr(sRET, 2))
            A("L_kvt_skip:")
        t0, t1, t2 = vT, vT + 1, vT + 2
        A("v_and_b32 %s, 15, %s" % (vr(t0), vr(vLANE)))
        A("v_lshrrev_b32 %s, 4, %s" % (vr(t1), vr(vLANE)))
        A("v_and_b32 %s, 7, %s" % (vr(t2), vr(vLANE)))
        A("v_lshlrev_b32 %s, 1, %s" % (vr(t2), vr(t2)))
        A("v_xor_b32 %s, %s, %s" % (vr(t2), vr(t2), vr(t1)))
        A("v_lshlrev_b32 %s, 4, %s" % (vr(t2), vr(t2)))
        A("v_lshl_add_u32 %s, %s, 8, %s" % (vr(vLK), vr(t0), vr(t2)))
        A("v_lshrrev_b32 %s, 2, %s" % (vr(t0), vr(vLANE)))
        A("v_and_b32 %s, 7, %s" % (vr(t1), vr(t0)))
        A("v_lshlrev_b32 %s, 5, %s" % (vr(t1), vr(t1)))
        A("v_lshl_add_u32 %s, %s, 8, %s" % (vr(t0), vr(t0), vr(t1)))
        A("v_and_b32 %s, 3, %s" % (vr(t1), vr(vLANE)))
        A("v_lshl_add_u32 %s, %s, 3, %s" % (vr(t0), vr(t1), vr(t0)))
        A("s_lshl_b32 %s, %s, 13" % (sr(sA), sr(sP)))
        for dt in range(8):
            A("v_xor_b32 %s, %d, %s" % (vr(vVA + dt), dt << 5, vr(t0)))
            A("v_add_u32 %s, %s, %s" % (vr(vVA + dt), sr(sA), vr(vVA + dt)))
        for ks in range(4):
            A("v_xor_b32 %s, %d, %s" % (vr(vKA + ks), ks << 6, vr(vLK)))
            A("v_add_u32 %s, %s, %s" % (vr(vKA + ks), sr(sA), vr(vKA + ks)))
        A("s_mul_i32 %s, %s, 12288" % (sr(sA), sr(sW)))
        A("s_add_u32 %s, %s, %d" % (sr(sA), sr(sA), EX))
        A("v_lshlrev_b32 %s, 4, %s" % (vr(vSTA), vr(vLANE)))
        A("v_add_u32 %s, %s, %s" % (vr(vEXW), sr(sA), vr(vSTA)))
        A("v_mov_b32 %s, 0x3f803f80" % vr(t0))
        for i in range(4):
            A("v_accvgpr_write_b32 %s, %s" % (ar(aONES + i), vr(t0)))

    def poll_addr(self):
        return ["v_and_b32 %s, 7, %s" % (vr(vPA), vr(vLANE)), "v_xor_b32 %s, %s, %s" % (vr(vPA), sr(sX), vr(vPA)),
                "v_lshlrev_b32 %s, %d, %s" % (vr(vPA), self.o.fshift, vr(vPA))]

    def wq_dma(self, n, k=None):
        k = n if k is None else k
        return (self.wq_group("%d" % (k // 4)) if k % 4 == 0 else []) + self.wq_params(k % 4) + \
            self.dma(SLOT * (n % 4), dW, vOW, sWOFF, self.o.w_flag, n)

    def q0_phase(self):
        A, o = self.A, self.o
        vBX = (vS, vS + 12)

        def xb_reads(n):
            return (self.x_group("%d" % (n // 4)) if n % 4 == 0 else []) + self.x_addr(n % 4) + \
                ["ds_read_b128 %s, %s offset:%d" % (vr(vBX[n % 2] + 4 * j, 4), vr(vB), 4096 * j) for j in range(3)]

        A("L_q0:")
        self.sync(self.vm_need([0, ("x", 0)]))
        self.emit_all(xb_reads(0) + self.tr_reads(0, 0) + self.wq_dma(2) + self.wq_dma(3) + (self.x_dma(1) if o.x1pre else []))
        xplan = {3: 2, 7: 3} if o.x1pre else [{0: 1, 4: 2, 8: 3}, {0: 1, 1: 2, 2: 3}, {0: 1, 2: 2, 4: 3}, {}, {0: 1, 3: 2, 6: 3}, {}][o.xplan]
        if o.xplan == 5:
            self.emit_all(self.x_dma(1) + self.x_dma(2) + self.x_dma(3))
        qfin = self.q_finalize(False)
        k1 = self.kv_params() + self.dma(SLOT * 3, dK, vOKV, sKV, o.kv_flag, 19)
        for n in range(16):
            need = [n + 1] if n < 15 else []
            if n % 4 == 3 and n < 15:
                need.append(("x", (n + 1) // 4))
            self.sync(self.vm_need(need))
            self.stamp("q%d" % n)
            mf = []
            for dt in range(8):
                for j in range(3):
                    acc = vr(vO + 12 * dt + 4 * j, 4)
                    mf.append("%s %s, %s, %s, %s" % (MF, acc, vr(vF[n % 2] + 4 * dt, 4), vr(vBX[n % 2] + 4 * j, 4), "0" if n == 0 else acc))
            if n == 15:
                self.auto(mf, [], [] if o.k1late else k1, qfin[:24], v0=11)
                break
            xb = xb_reads(n + 1)
            head, vq, rd = xb[:-5], xb[-5:-3], self.tr_reads((n + 1) % 2, (n + 1) % 4) + xb[-3:]
            m = n + 4
            post, after = [], []
            if n in xplan:
                post = self.x_dma(xplan[n])
            if n == 9 and o.ctouch & 1:
                post = self.code_touch("L_q0end", vT + 5)
            if n == 9 and o.ctouch & 16:
                post = self.code_touch_small("L_q0end", vT + 5, dC)
            if o.kvt and o.kvt0 <= n < o.kvt0 + o.kvtm * o.kvt:
                if o.kvti:
                    k = (n - o.kvt0) // o.kvtm
                    post = post + ["s_add_u32 %s, %s, %d" % (sr(sE), sr(sTO), 8192 * k), "s_and_b32 %s, %s, 0x1ffff" % (sr(sE), sr(sE)),
                                   "s_add_u32 %s, %s, %s" % (sr(sE), sr(sE), sr(sKVB)),
                                   "s_bitcmp1_b32 %s, %d" % (sr(sTM), n), "s_cselect_b32 %s, %s, %d" % (sr(sE), sr(sE), OOB)]
                    after = [("buffer_load_dword %s, %s, %s, %s offen" % (vr(vDUM), vr(vT + 4), sr(dK, 4), sr(sE)), "touch"),
                             ("buffer_load_dword %s, %s, %s, %s offen" % (vr(vDUM), vr(vT + 4), sr(dV, 4), sr(sE)), "touch")]
                else:
                    post = post + ["s_bitcmp1_b32 %s, %d\ns_getpc_b64 %s\ns_cbranch_scc1 L_kvt" % (sr(sTM), n, sr(sRET, 2))]
            if m < 16:
                d = self.wq_dma(m)
            elif m == 16:
                d = self.voff_std(vOKV, 0, 256) + self.kv_params() + self.dma(SLOT * (m % 4), dK, vOKV, sKV, o.kv_flag, m)
            elif m == 17:
                d = ["s_add_u32 %s, %s, 256" % (sr(sWQB), sr(sWQB))] + self.wq_dma(m, 0)
            else:
                d = self.dma(SLOT * (m % 4), dV, vOKV, sKV, o.kv_flag, m)
            self.auto(mf, rd, head + d + post, vq, v0=4)
            self.emit_all(after)
        A("L_q0end:")
        self.stamp("qend")
        self.emit_all(qfin[24:150])
        self.sync(self.vm_need([16]))
        self.emit_all(spread(qfin[150:], self.k_reads(0, 0) + (k1 if o.k1late else [])))
        self.emit_all(self.att_reset(192))

    def publish(self, stage, n):
        return ["s_add_u32 %s, %s, 8" % (sr(sGC), sr(sGC)), "s_add_u32 %s, %s, %d" % (sr(sE), sr(sGC), stage),
                "v_mov_b32 %s, %s" % (vr(vFV), sr(sE)), "s_waitcnt vmcnt(%d)" % n, "s_mov_b64 exec, 1",
                ("buffer_store_dword %s, %s, %s, %s offen sc1" % (vr(vFV), vr(vZ), sr(dS, 4), sr(sFLO)), "fl"),
                "s_mov_b64 exec, -1"]

    def o1_phase(self):
        A, o = self.A, self.o
        self.vm = [1] * 4 + [4] * 4 + [2] * 4 + [5] * 4 + [3] * 4 + [6] * 4
        vOA, vSG = vVA, vL
        t0, t1 = vT + 6, vT + 7
        addr = ["v_lshrrev_b32 %s, 2, %s" % (vr(t0), vr(vLANE)),
                "v_bfe_u32 %s, %s, 3, 2" % (vr(t1), vr(vLANE)),
                "v_lshlrev_b32 %s, 5, %s" % (vr(t1), vr(t1)),
                "v_lshl_add_u32 %s, %s, 7, %s" % (vr(t0), vr(t0), vr(t1)),
                "v_and_b32 %s, 3, %s" % (vr(t1), vr(vLANE)),
                "v_lshl_add_u32 %s, %s, 3, %s" % (vr(t0), vr(t1), vr(t0)),
                "s_lshl_b32 %s, %s, 13" % (sr(sA), sr(sP))]
        addr1 = []
        for nt in range(4):
            addr += ["v_xor_b32 %s, %d, %s" % (vr(vOA + nt), nt << 5, vr(t0)),
                     "v_add_u32 %s, %s, %s" % (vr(vOA + nt), sr(sA), vr(vOA + nt))]
            addr1 += ["v_add_u32 %s, 0x10000, %s" % (vr(vOA + 4 + nt), vr(vOA + nt)),
                      "v_add_u32 %s, 0x20000, %s" % (vr(vOA + 8 + nt), vr(vOA + nt))]
        addr2 = ["s_xor_b32 %s, %s, 2" % (sr(sA), sr(sW)),
                 "s_mul_i32 %s, %s, 12288" % (sr(sA), sr(sA)),
                 "s_add_u32 %s, %s, %d" % (sr(sA), sr(sA), EX),
                 "v_add_u32 %s, %s, %s" % (vr(vB), sr(sA), vr(vSTA))]
        setup_v = self.poll_addr() + [
            "v_mov_b32 %s, 0" % vr(vZ), "v_readlane_b32 %s, %s, 7" % (sr(sGC), vr(vCHK)),
            "v_and_b32 %s, 15, %s" % (vr(vOUT), vr(vLANE)), "v_lshlrev_b32 %s, 11, %s" % (vr(vOUT), vr(vOUT)),
            "v_lshrrev_b32 %s, 4, %s" % (vr(vPD), vr(vLANE)), "v_lshl_add_u32 %s, %s, 4, %s" % (vr(vOUT), vr(vPD), vr(vOUT))]
        setup_s = ["s_and_b32 %s, %s, -8" % (sr(sGC), sr(sGC)), "s_mov_b32 %s, 0x00003f80" % sr(sDOT),
                   "s_mov_b32 %s, 0x3f800000" % sr(sDOT + 1)] + self.srd(dK, pOUT, 16 * 96 * 1024 * 2)[:3]

        def frags(n):
            if n < 12:
                return [(n, ks, nt) for ks in range(2) for nt in range(4)]
            t, u = 12 + 2 * (n % 2), (n - 12) // 2
            return [(t + h, ks, 2 * u + nt) for h in range(2) for ks in range(2) for nt in range(2)]

        def reads(n):
            out = []
            for f, (t, ks, nt) in enumerate(frags(n)):
                win, off = O1_LOC[t] // 65536, O1_LOC[t] % 65536
                out += ["ds_read_b64_tr_b16 %s, %s offset:%d" % (vr(vF[n % 2] + 4 * f + 2 * e, 2), vr(vOA + 4 * win + nt),
                                                                 off + 4096 * ks + 2048 * e) for e in range(2)]
            return out

        def o1_dma(n):
            return self.o1_off(sWOFF, n) + self.dma(O1_LOC[n], dW, vOW, sWOFF, o.w_flag, n)

        def eighth(e):
            out = ["s_xor_b32 %s, %s, %d" % (sr(sST), sr(sX), e), "s_mul_i32 %s, %s, 24576" % (sr(sST), sr(sST)),
                   "s_add_u32 %s, %s, %s" % (sr(sST), sr(sST), sr(sSTB))]
            for jq in range(3):
                a = vSG + 8 * ((3 * e + jq) % 6)
                src = 24 * e + 4 * jq
                out += ["v_accvgpr_read_b32 %s, %s" % (vr(a + x), ar(src + x)) for x in range(4)]
                out += ["v_accvgpr_read_b32 %s, %s" % (vr(a + 4 + x), ar(src + 12 + x)) for x in range(4)]
                out += ["v_cvt_pk_bf16_f32 %s, %s, %s" % (vr(a + x), vr(a + 2 * x), vr(a + 2 * x + 1)) for x in range(4)]
                off = " offset:%d" % (1024 * jq) if jq else ""
                out.append(("buffer_store_dwordx4 %s, %s, %s, %s offen%s sc1" % (vr(a, 4), vr(vSTA), sr(dS, 4), sr(sST), off), ("st", e)))
            return out

        A("L_o1:")
        self.stamp("a1end")
        self.emit_all(addr)
        A("s_waitcnt lgkmcnt(0)")
        self.emit_all(spread(self.o_finalize((0, 1)), reads(0)))
        brd = ["ds_read_b128 %s, %s offset:%d" % (vr(vO + 24 * (f // 3) + 12 + 4 * (f % 3), 4), vr(vB), 1024 * f) for f in range(12)]
        fin2 = self.o_finalize((2, 3))
        early = eighth(0) + eighth(1) + eighth(2) + eighth(3)
        vqs = {0: fin2[:39], 1: fin2[39:], 2: addr1, 3: setup_v, 6: early[:15], 7: early[15:45], 8: early[45:76], 9: early[76:107],
               10: early[107:138], 11: early[138:], 12: eighth(4), 13: eighth(5), 14: eighth(6)}
        plan = {0: [7], 1: [8], 2: [9], 3: [10], 4: [11, 12], 5: [13, 14], 6: [15]}
        if o.oorder == 0:
            vqs = {0: fin2, 1: addr1, 2: setup_v, 12: eighth(4), 13: eighth(5), 14: eighth(6)}
            for k in range(8):
                vqs[4 + k] = early[21 * k:21 * (k + 1)]
            plan = [{1: [7], 2: [8, 9], 3: [10, 11], 4: [12, 13], 5: [14, 15]},
                    {1: [7], 2: [8, 9], 3: [10, 11], 4: [12], 5: [13], 6: [14], 7: [15]},
                    {0: [7], 1: [8], 2: [9, 11], 3: [10, 12], 4: [13, 14], 5: [15]}][o.oplan]
        poll = "buffer_load_dword %s, %s, %s, %s offen sc1" % (vr(vPD), vr(vPA), sr(dS, 4), sr(sFLC))
        for n in range(16):
            if n < 11:
                self.sync(self.vm_need([n + 1]))
            elif n < 13:
                self.sync(self.vm_need([2 * n - 10, 2 * n - 9]))
            else:
                A("s_waitcnt lgkmcnt(0)")
            self.stamp("o%d" % n)
            mf = []
            for f, (t, ks, nt) in enumerate(frags(n)):
                c, i = O1_TILES[t]
                for j in range(3):
                    acc = ar(48 * c + 12 * nt + 4 * j, 4)
                    mf.append("%s %s, %s, %s, %s" % (MF, acc, vr(vF[n % 2] + 4 * f, 4), vr(vO + 48 * (i % 2) + 24 * ks + 12 * (i // 2) + 4 * j, 4), acc))
            rd = reads(n + 1) if n < 15 else []
            d = []
            for m in plan.get(n, []):
                d += o1_dma(m)
            if n == (1 if o.oorder else 0):
                d = addr2 + d
            if o.oorder and n in (2, 3):
                rd = rd + brd[6 * (n - 2):6 * (n - 1)]
            if not o.oorder and n in (1, 2):
                rd = rd + brd[6 * (n - 1):6 * n]
            if n == 5:
                d = setup_s + d
            if n == o.pub1:
                self.emit_all(self.publish(1, self.vm_need([("st", 3)])) + ["s_nop 3"])
            if n == (14 if o.early else 15):
                d = [(poll, "poll")]
            self.auto(mf, rd, d, vqs.get(n, []), v0=(0 if n < 4 else 3), vend=(o.vend if n == 14 else None))
        self.stamp("o16")

        masks = (0x0f, 0x70)
        groups = ((0, 1, 2, 3), (4, 5, 6))
        vLD, vAC = (vO, vO + 48), vF[0]

        def test(k):
            A("v_and_b32 %s, 7, %s" % (vr(vPT), vr(vPD)))
            A("v_cmp_eq_u32 %s, %s, %s" % (sr(sRET, 2), vr(vPD), vr(vCHK)))
            A("v_cmp_gt_u32 vcc, %d, %s" % (k + 1, vr(vPT)))
            A("s_nop 0")
            A("s_or_b32 %s, vcc_lo, %s" % (sr(sA), sr(sRET)))
            A("s_and_b32 %s, %s, %d" % (sr(sA), sr(sA), masks[k]))

        def ensure(k):
            A("s_mov_b32 %s, 0" % sr(sSTP))
            A("L_pt%d:" % k)
            test(k)
            A("s_cbranch_scc0 L_pd%d" % k)
            A(poll)
            A("s_add_u32 %s, %s, 1" % (sr(sSTP), sr(sSTP)))
            A("s_and_b32 %s, %s, 31" % (sr(sA), sr(sSTP)))
            A("s_cbranch_scc0 L_pr%d" % k)
            A("L_pw%d:" % k)
            A("s_waitcnt vmcnt(0)")
            A("s_cmp_lt_u32 %s, %d" % (sr(sSTP), SPIN))
            A("s_cbranch_scc1 L_pt%d" % k)
            A("L_pd%d:" % k)
            self.tail += ["L_pr%d:" % k] + plain(self.publish(2, 63)) + ["s_branch L_pw%d" % k]

        def loads(k, attempt=False):
            if attempt:
                A("s_cselect_b32 %s, 1, 0" % sr(sL))
                A("s_cselect_b32 %s, %d, %s" % (sr(sC), OOB, sr(sLDB)))
            else:
                A("s_mov_b32 %s, %s" % (sr(sC), sr(sLDB)))
            for h, e in enumerate(groups[k]):
                A("s_xor_b32 %s, %s, %d" % (sr(sA), sr(sX), e))
                A("s_mul_i32 %s, %s, 3072" % (sr(sA), sr(sA)))
                A("s_add_u32 %s, %s, %s" % (sr(sA), sr(sA), sr(sC)))
                for jq in range(3):
                    off = " offset:%d" % (1024 * jq) if jq else ""
                    A("buffer_load_dwordx4 %s, %s, %s, %s offen%s sc1" % (vr(vLD[k] + 12 * h + 4 * jq, 4), vr(vSTA), sr(dS, 4), sr(sA), off))

        def add(k, jqs=(0, 1, 2)):
            for jq in jqs:
                for h in range(len(groups[k])):
                    for i in range(4):
                        for e in range(2):
                            a = vr(vAC + 8 * jq + 2 * i + e)
                            A("v_dot2_f32_bf16 %s, %s, %s, %s" % (a, vr(vLD[k] + 12 * h + 4 * jq + i), sr(sDOT + e), a))

        if o.early:
            A("s_waitcnt vmcnt(%d)" % self.vm_need(["poll"]))
            test(0)
            loads(0, True)
            A(poll)
            self.emit_all(self.publish(2, 13))
        else:
            self.emit_all(self.publish(2, 0))
        self.stamp("pub")
        for jq in range(3):
            for x in range(8):
                A("v_accvgpr_read_b32 %s, %s" % (vr(vAC + 8 * jq + x), ar(168 + 4 * jq + 12 * (x // 4) + x % 4)))
        if o.early:
            A("s_waitcnt vmcnt(1)")
            A("s_cmp_eq_u32 %s, 0" % sr(sL))
            A("s_cbranch_scc1 L_havea")
        ensure(0)
        loads(0)
        A("L_havea:")
        self.stamp("xa")
        test(1)
        loads(1, True)
        A(poll)
        if o.bfirst:
            A("s_cmp_eq_u32 %s, 0" % sr(sL))
            A("s_cbranch_scc1 L_second")
            A("s_waitcnt vmcnt(0)")
            test(1)
            loads(1, True)
            A(poll)
            A("L_second:")
        A("s_waitcnt vmcnt(10)")
        add(0)
        self.stamp("xs")
        A("s_cmp_eq_u32 %s, 0" % sr(sL))
        A("s_cbranch_scc1 L_have")
        A("s_waitcnt vmcnt(0)")
        ensure(1)
        loads(1)
        A("s_waitcnt vmcnt(0)")
        A("L_have:")
        self.stamp("xb")
        A("s_waitcnt vmcnt(1)")
        self.stamp("xf")
        for jq in range(3):
            a = vAC + 8 * jq
            add(1, (jq,))
            A("s_nop 2")
            for i in range(4):
                A("v_cvt_pk_bf16_f32 %s, %s, %s" % (vr(a + i), vr(a + 2 * i), vr(a + 2 * i + 1)))
            A("s_nop 1")
            A("v_permlane32_swap_b32 %s, %s" % (vr(a), vr(a + 2)))
            A("v_permlane32_swap_b32 %s, %s" % (vr(a + 1), vr(a + 3)))
            A("s_nop 1")
            A("v_permlane16_swap_b32 %s, %s" % (vr(a), vr(a + 2)))
            A("v_permlane16_swap_b32 %s, %s" % (vr(a + 1), vr(a + 3)))
            A("buffer_store_dwordx4 %s, %s, %s, %s offen%s" % (vr(a, 4), vr(vOUT), sr(dK, 4), sr(sOUT), o.out_flag))
            if jq < 2:
                A("s_add_u32 %s, %s, 32768" % (sr(sOUT), sr(sOUT)))

    def write_stamps(self):
        A = self.A
        A("s_waitcnt vmcnt(0)")
        self.stamp("end")
        A("s_waitcnt lgkmcnt(0)")
        A("s_cmp_lg_u32 %s, 0" % sr(sW))
        A("s_cbranch_scc1 L_end")
        A("s_mov_b64 exec, 1")
        A("s_mul_i32 s3, s2, %d" % (NSTAMP * 8))
        A("s_add_u32 s3, s3, %d" % STAMP_OFF)
        A("v_mov_b32 v6, 0")
        for i in range(NSTAMP):
            A("v_mov_b32 v8, s%d" % (sSTAMP + 2 * i))
            A("v_mov_b32 v9, s%d" % (sSTAMP + 2 * i + 1))
            A("buffer_store_dwordx2 v[8:9], v6, %s, s3 offen offset:%d" % (sr(dS, 4), 8 * i))
            A("s_nop 1")

    def build(self):
        A, o = self.A, self.o
        lab = NAME + "_kernel"
        A("; @launch grid=(256,1,1) block=(256,1,1) lds=163840")
        A('.amdgcn_target "amdgcn-amd-amdhsa--gfx950"')
        A(".text")
        A(".globl %s" % lab)
        A(".p2align 8")
        A(".type %s,@function" % lab)
        A("%s:" % lab)
        self.prologue()
        self.q0_phase()
        self.stamp("a0")
        self.att_loop(0)
        self.stamp("a0end")
        for n in range(4):
            self.emit_all(self.o1_off(sALT + n, n))
        self.emit_all(self.o_finalize())
        self.emit_all(self.q_finalize(True))
        A("s_mul_i32 %s, %s, 12288" % (sr(sA), sr(sHF)))
        A("s_add_u32 %s, %s, %d" % (sr(sA), sr(sA), EX))
        A("v_add_u32 %s, %s, %s" % (vr(vB), sr(sA), vr(vSTA)))
        A("s_waitcnt lgkmcnt(0)")
        self.emit_all(self.att_reset(96))
        self.stamp("a1")
        self.att_loop(1)
        self.o1_phase()
        if o.stamps:
            self.write_stamps()
        A("L_end:")
        A("s_endpgm")
        self.rare()
        for x in self.tail:
            A(x)
        A("L_codeend:")
        A('.section .rodata,"a"')
        A(".p2align 6")
        A(".amdhsa_kernel %s" % lab)
        A("  .amdhsa_next_free_vgpr 512")
        A("  .amdhsa_next_free_sgpr 100")
        A("  .amdhsa_accum_offset 256")
        A("  .amdhsa_group_segment_fixed_size 0")
        A("  .amdhsa_kernarg_size 104")
        A("  .amdhsa_user_sgpr_count 2")
        A("  .amdhsa_user_sgpr_kernarg_segment_ptr 1")
        A("  .amdhsa_system_sgpr_workgroup_id_x 1")
        A(".end_amdhsa_kernel")
        return "\n".join(self.L) + "\n"


def parse_opts(args):
    kw = {}
    for a in args:
        k, v = a.split("=", 1)
        cur = getattr(Opt, k)
        if isinstance(cur, bool):
            kw[k] = v not in ("0", "False")
        elif isinstance(cur, int):
            kw[k] = int(v)
        else:
            kw[k] = (" " + v.replace("+", " ")) if v else ""
    return kw


if __name__ == "__main__":
    open(sys.argv[1], "w").write(Gen(Opt(**parse_opts(sys.argv[2:]))).build())
```

```python
import math
import struct
import sys

NAME = "concat_heads__mha_block_cached__mha_block_cached__near_ridge"
WS_BYTES = 288358400
STAMP_OFF = WS_BYTES - (1 << 20)
NSTAMP = 10


def f32(x):
    return "0x%08x" % struct.unpack("<I", struct.pack("<f", x))[0]


class Opt:
    stamps = False
    cyc = False
    prof = 0
    kv_flag = " nt"
    w_flag = ""
    x_flag = ""
    out_flag = ""
    touch = True
    ctouch = 22
    xoct = 1
    xq = 0
    x1pre = False
    xplan = 4
    kv_oob = False
    nomf = 0
    fshift = 7
    pub1 = 14
    kvt = 0
    kvt0 = 1
    kvtm = 5
    kvtn = 1
    kvti = False
    tlb = 0
    np0 = "1111111111111111"
    np1 = "0111111111111112"
    retouch = True
    bfirst = True
    oplan = 0
    qsplit = 120
    olim = 1
    opv = 3
    vend = 16

    def __init__(self, **kw):
        for k, v in kw.items():
            assert hasattr(Opt, k), k
            setattr(self, k, v)


sW, sP, sHF, sB, sBLK, sHG, sX, sKVO = 4, 5, 6, 7, 8, 9, 10, 11
dK, dV, dW, dX, dS = 12, 16, 32, 36, 40
dC = dX
pX, pK, pV, pWQ, pWO, pWS = 20, 22, 24, 26, 28, 30
pOUT, sFLO, sFLC, sGC, sSTP, sLDB, sOUT, sHX, sXC = 20, 22, 23, 24, 25, 26, 27, 30, 31
sKV, sWOFF, sXO, sM0, sIT, sKVB, sTH, sLO = 44, 45, 46, 47, 48, 49, 50, 51
sA, sB2, sC, sE = 52, 53, 54, 55
sWQB, sWOB, sWT, sCGX, sXB, sST, sL, sSTB = 56, 57, 58, 59, 60, 61, 62, 63
sO1, sRET, sXM, sCG0, sSTAMP = 64, 68, 70, 71, 72
sKS, sKW = 92, 96
sALT, sDOT = sKS, sKW
sTM, sTO = sST, sL

vLANE, vLK, vB = 1, 2, 3
vO, vL, vNEGM, vS, vP = 4, 100, 112, 124, 148
vQ, vBF, vONES = 160, 208, 220
aF = (192, 224)
vVA, vKA, vOKV, vOW, vT = 224, 232, 236, 240, 244
vEXW, vSTA, vDUM, vCHK = 252, 253, 254, 255
vPA, vPD, vFV, vZ, vOUT, vPT = 148, 149, 150, 151, 152, 153

SLOT = 16384
XB = 65536
EX = 65536
EXTRA = 114688
FLAGS = 32 << 20
SPIN = 100000
OOB = 0x7ff00000
MF = "v_mfma_f32_16x16x32_bf16"
O1_TILES = [(c, i) for c in range(4) for i in range(4)]


def vr(a, n=1):
    return "v%d" % a if n == 1 else "v[%d:%d]" % (a, a + n - 1)


def ar(a, n=1):
    return "a%d" % a if n == 1 else "a[%d:%d]" % (a, a + n - 1)


def sr(a, n=1):
    return "s%d" % a if n == 1 else "s[%d:%d]" % (a, a + n - 1)


def txt(x):
    return x[0] if isinstance(x, tuple) else x


def plain(xs):
    return [txt(x) for x in xs]


def is_label(x):
    return not isinstance(x, tuple) and x.endswith(":")


def spread(base, ins):
    out, k = [], 0
    for i, x in enumerate(base):
        out.append(x)
        while k < len(ins) and (k + 1) * len(base) <= (i + 1) * (len(ins) + 1):
            out.append(ins[k])
            k += 1
    return out + ins[k:]


class Gen:
    def __init__(self, o):
        self.o = o
        self.L = []
        self.vm = []
        self.tail = []
        self.uid = 0

    def A(self, s):
        self.L.append(s)

    def emit(self, x):
        if txt(x).endswith(" lds") and " m0," in self.L[-1]:
            self.A("s_nop 0")
        self.A(txt(x))
        if isinstance(x, tuple):
            self.vm.append(x[1])

    def emit_all(self, xs):
        for x in xs:
            self.emit(x)

    def stamp(self, name):
        tables = {0: ["start", "q0", "qend", "a0", "a0end", "a1", "a1end", "o16", "pub", "end"],
                  1: ["start"] + ["q%d" % k for k in range(8)] + ["end"],
                  2: ["start"] + ["q%d" % k for k in range(8, 16)] + ["qend"],
                  3: ["start"] + ["o%d" % k for k in range(8)] + ["end"],
                  4: ["start"] + ["o%d" % k for k in range(8, 16)] + ["o16"],
                  8: ["start"] + ["s0_%d" % k for k in range(0, 16, 2)] + ["end"],
                  9: ["start"] + ["s1_%d" % k for k in range(0, 16, 2)] + ["end"],
                  5: ["start", "a1end", "o0", "o16", "pub", "xa", "xs", "xb", "xf", "end"]}
        if self.o.prof == 6:
            t = ["start", "a0", "", "a0end", "", "a1", "", "a1end", "", "end"]
            if self.o.stamps and name in t:
                k = t.index(name)
                self.A("s_memrealtime %s" % sr(sSTAMP + 2 * k, 2))
                if 0 < k < 9:
                    self.A("s_memtime %s" % sr(sSTAMP + 2 * k + 2, 2))
            return
        if self.o.prof == 7:
            if self.o.stamps and name in ("start", "end"):
                self.A("s_memrealtime %s" % sr(sSTAMP + (0 if name == "start" else 18), 2))
            if self.o.stamps and name == "iter":
                for k in range(1, 8):
                    self.A("s_mov_b64 %s, %s" % (sr(sSTAMP + 2 * k, 2), sr(sSTAMP + 2 * k + 2, 2)))
                self.A("s_memrealtime %s" % sr(sSTAMP + 16, 2))
            return
        t = tables[self.o.prof]
        if self.o.stamps and name in t:
            self.A("%s %s" % ("s_memtime" if self.o.cyc else "s_memrealtime", sr(sSTAMP + 2 * t.index(name), 2)))

    def vm_need(self, tags):
        idx = max([i for i, t in enumerate(self.vm) if t in tags] + [-1])
        n = len(self.vm) - 1 - idx
        self.vm = self.vm[idx + 1:]
        return n

    def sync(self, n):
        self.A("s_waitcnt vmcnt(%d) lgkmcnt(0)" % n)
        self.A("s_barrier")

    def pat(self, mf, pattern, ds=(), dq=(), vq=()):
        ds, dq, vq = list(ds), list(dq), list(vq)
        assert len(pattern) == len(mf), (len(pattern), len(mf))

        def labels(q):
            while q and is_label(q[0]):
                self.emit(q.pop(0))

        for m, gap in zip(mf, pattern):
            self.A(m if not self.o.nomf else "s_nop 0")
            for ch in gap:
                if ch == "t" and ds:
                    self.emit(ds.pop(0))
                elif ch == "s" and dq and not txt(dq[0]).startswith("buffer_"):
                    self.emit(dq.pop(0))
                    labels(dq)
                elif ch == "d" and dq:
                    while dq and not txt(dq[0]).startswith("buffer_"):
                        self.emit(dq.pop(0))
                    if dq:
                        self.emit(dq.pop(0))
                elif ch == "n":
                    self.A("s_nop 1")
                elif ch == "v" and vq:
                    self.emit(vq.pop(0))
                    labels(vq)
        self.emit_all(ds + dq + vq)

    def auto(self, mf, ds=(), dq=(), vq=(), v0=0, vend=None):
        n = len(mf)
        nd = len([x for x in dq if txt(x).startswith("buffer_")])
        ds_end, first = n - 5, 3
        dpos = [first + int(k * (n - 2 - first) / max(nd - 1, 1) + 0.5) for k in range(nd)] if nd > 1 else ([first] if nd else [])
        pattern, left, vleft = [], len(ds), [x for x in vq if not is_label(x)]
        for g in range(n):
            k = dpos.count(g)
            if k:
                pattern.append("d" * k)
                continue
            gaps_ds = len([h for h in range(g, ds_end + 1) if h not in dpos])
            nds = 0 if left == 0 else min(2, -(-left // max(gaps_ds, 1)))
            nv = 0
            if g >= v0 and vleft:
                gaps_v = max(1, len([h for h in range(g, vend or n) if h not in dpos]))
                if isinstance(vleft[0], tuple):
                    nv = 1
                    if left <= 2 * (gaps_ds - 1):
                        nds = 0
                else:
                    nv = max(2 - nds, -(-len(vleft) // gaps_v))
                    for q in range(min(nv, len(vleft))):
                        if q and isinstance(vleft[q], tuple):
                            nv = q
                            break
                vleft = vleft[nv:]
            left -= nds
            pattern.append("t" * nds + "s" * max(0, 3 - nds - nv) + "v" * nv)
        self.pat(mf, pattern, ds, dq, vq)

    def srd(self, d, p, size):
        return ["s_mov_b32 %s, %s" % (sr(d), sr(p)), "s_and_b32 %s, %s, 0xffff" % (sr(d + 1), sr(p + 1)),
                "s_mov_b32 %s, %d" % (sr(d + 2), size), "s_mov_b32 %s, 0x20000" % sr(d + 3)]

    def dma(self, loc, srd, voff, soff, flag, tag, cnt=4, m0=sM0, nop=False):
        out = ["s_add_u32 m0, %s, %d" % (sr(m0), loc)] + (["s_nop 0"] if nop else [])
        for i in range(cnt):
            off = " offset:%d" % (1024 * i) if i else ""
            out.append(("buffer_load_dwordx4 %s, %s, %s offen%s%s lds" % (vr(voff + i), sr(srd, 4), sr(soff), off, flag), tag))
        return out

    def voff_std(self, dst, mul_i, mul_r, flip=None):
        t0, t1 = vT + 6, vT + 7
        return ["v_lshrrev_b32 %s, 4, %s" % (vr(t0), vr(vLANE)),
                "v_and_b32 %s, 15, %s" % (vr(t1), vr(vLANE)),
                "v_lshlrev_b32 %s, 1, %s" % (vr(dst), vr(t0)),
                "v_xor_b32 %s, %s, %s" % (vr(t1), vr(t1), vr(dst)),
                "v_lshlrev_b32 %s, 4, %s" % (vr(t1), vr(t1))] + \
            (["v_xor_b32 %s, %s, %s" % (vr(t1), sr(flip), vr(t1))] if flip is not None else []) + \
            ["v_mul_u32_u24 %s, %d, %s" % (vr(t0), mul_r, vr(t0)),
             "v_add_u32 %s, %s, %s" % (vr(dst), vr(t0), vr(t1)),
             "v_xor_b32 %s, 0x80, %s" % (vr(t1), vr(t1)),
             "v_add_u32 %s, %s, %s" % (vr(dst + 1), vr(t0), vr(t1)),
             "v_add_u32 %s, %d, %s" % (vr(dst + 2), 2 * mul_i, vr(dst)),
             "v_add_u32 %s, %d, %s" % (vr(dst + 3), 3 * mul_i, vr(dst + 1)),
             "v_add_u32 %s, %d, %s" % (vr(dst + 1), mul_i, vr(dst + 1))]

    def voff_o1(self, dst):
        t0, t1 = vT + 6, vT + 7
        out = ["s_and_b32 %s, %s, 1" % (sr(sA), sr(sX)),
               "s_lshl_b32 %s, %s, 2" % (sr(sA), sr(sA)),
               "v_lshrrev_b32 %s, 3, %s" % (vr(t0), vr(vLANE)),
               "v_and_b32 %s, 7, %s" % (vr(t1), vr(vLANE)),
               "v_and_b32 %s, 6, %s" % (vr(dst), vr(t0)),
               "v_xor_b32 %s, %s, %s" % (vr(t1), vr(t1), vr(dst)),
               "v_xor_b32 %s, %s, %s" % (vr(t1), sr(sA), vr(t1)),
               "v_lshlrev_b32 %s, 4, %s" % (vr(t1), vr(t1)),
               "v_lshl_add_u32 %s, %s, 10, %s" % (vr(dst), vr(t0), vr(t1))]
        for i in range(1, 4):
            out.append("v_add_u32 %s, %d, %s" % (vr(dst + i), 7168 * i, vr(dst)))
        return out

    def cg_of(self, dst, c):
        return ["s_add_u32 %s, %s, %s" % (sr(dst), sr(sCG0), c), "s_and_b32 %s, %s, 3" % (sr(dst), sr(dst))]

    def wq_group(self, c):
        return self.cg_of(sA, c) + ["s_lshl_b32 %s, %s, 20" % (sr(sA), sr(sA)),
                                    "s_add_u32 %s, %s, %s" % (sr(sWT), sr(sA), sr(sWQB))]

    def wq_params(self, i):
        return ["s_add_u32 %s, %s, %s" % (sr(sWOFF), sr(sWT), sr(sKW + i))]

    def x_group(self, c):
        return self.cg_of(sB2, c) + ["s_mul_i32 %s, %s, 24576" % (sr(sB2), sr(sB2)),
                                     "s_add_u32 %s, %s, %s" % (sr(sCGX), sr(sB2), sr(sXB))]

    def x_addr(self, i):
        return ["v_xor_b32 %s, %s, %s" % (vr(vB), sr(sKS + i), vr(vLK)),
                "v_add_u32 %s, %s, %s" % (vr(vB), sr(sCGX), vr(vB))]

    def kv_params(self):
        return ["s_add_u32 %s, %s, %s" % (sr(sKV), sr(sKVO), sr(sKVB)),
                "s_add_u32 %s, %s, 8192" % (sr(sKVO), sr(sKVO)),
                "s_and_b32 %s, %s, 0x1ffff" % (sr(sKVO), sr(sKVO))]

    def o1_off(self, dst, n):
        c, i = O1_TILES[n]
        return ["s_xor_b32 %s, %s, %d" % (sr(dst), sr(sXC), 128 * c), "s_add_u32 %s, %s, %s" % (sr(dst), sr(dst), sr(sO1 + i))]

    def x_dma(self, c):
        o = self.o
        out = self.cg_of(sA, "%d" % c)
        out += ["s_mul_i32 %s, %s, 24576" % (sr(sB2), sr(sA)),
                "s_mul_i32 %s, %s, 6144" % (sr(sXM), sr(sW)),
                "s_add_u32 %s, %s, %s" % (sr(sXM), sr(sXM), sr(sB2)),
                "s_lshl_b32 %s, %s, 8" % (sr(sA), sr(sA)),
                "s_mul_i32 %s, %s, 98304" % (sr(sXO), sr(sB)),
                "s_add_u32 %s, %s, %s" % (sr(sXO), sr(sXO), sr(sA)),
                "s_mul_i32 %s, %s, 24576" % (sr(sA), sr(sW)),
                "s_add_u32 %s, %s, %s" % (sr(sXO), sr(sXO), sr(sA))]
        out += self.dma(XB, dX, vOKV, sXO, o.x_flag, ("x", c), 4, sXM)
        out += ["s_add_u32 %s, %s, 16384" % (sr(sXO), sr(sXO))]
        out += self.dma(XB + 4096, dX, vOKV, sXO, o.x_flag, ("x", c), 2, sXM)
        return out

    def code_touch_small(self, label, t, d, back=False):
        self.uid += 1
        k = self.uid
        return ["s_getpc_b64 %s" % sr(d, 2), "L_pc%d:" % k,
                "s_add_u32 %s, %s, %s-L_pc%d" % (sr(d), sr(d), label, k),
                "s_addc_u32 %s, %s, %d" % (sr(d + 1), sr(d + 1), -1 if back else 0),
                "s_and_b32 %s, %s, 0xffff" % (sr(d + 1), sr(d + 1)),
                "s_mov_b32 %s, L_codeend-%s" % (sr(d + 2), label),
                "s_mov_b32 %s, 0x20000" % sr(d + 3),
                "s_and_b32 %s, %s, 7" % (sr(sA), sr(sB)),
                "s_lshl_b32 %s, %s, 2" % (sr(sA), sr(sA)),
                "s_add_u32 %s, %s, %s" % (sr(sA), sr(sA), sr(sW)),
                "s_lshl_b32 %s, %s, 11" % (sr(sA), sr(sA)),
                "v_and_b32 %s, 15, %s" % (vr(t), vr(vLANE)),
                "v_lshlrev_b32 %s, 7, %s" % (vr(t), vr(t)),
                ("buffer_load_dword %s, %s, %s, %s offen" % (vr(vDUM), vr(t), sr(d, 4), sr(sA)), "touch")]

    def code_touch(self, label, t, back=False):
        self.uid += 1
        k = self.uid
        return ["s_getpc_b64 %s" % sr(dC, 2), "L_pc%d:" % k,
                "s_add_u32 %s, %s, %s-L_pc%d" % (sr(dC), sr(dC), label, k),
                "s_addc_u32 %s, %s, %d" % (sr(dC + 1), sr(dC + 1), -1 if back else 0),
                "s_and_b32 %s, %s, 0xffff" % (sr(dC + 1), sr(dC + 1)),
                "s_mov_b32 %s, L_codeend-%s" % (sr(dC + 2), label),
                "s_lshl_b32 %s, %s, 13" % (sr(sA), sr(sW)),
                "v_lshlrev_b32 %s, 7, %s" % (vr(t), vr(vLANE)),
                ("buffer_load_dword %s, %s, %s, %s offen" % (vr(vDUM), vr(t), sr(dC, 4), sr(sA)), "touch")]

    def tr_reads(self, fset, slot):
        return ["ds_read_b64_tr_b16 %s, %s offset:%d" % (ar(aF[fset] + 4 * dt + 2 * e, 2), vr(vVA + dt), SLOT * slot + 4096 * e)
                for dt in range(8) for e in range(2)]

    def k_reads(self, fset, slot):
        return ["ds_read_b128 %s, %s offset:%d" % (ar(aF[fset] + 16 * kt + 4 * ks, 4), vr(vKA + ks), SLOT * slot + 4096 * kt)
                for kt in range(2) for ks in range(4)]

    def make_tiles(self):
        o = self.o
        n0 = [int(c) for c in o.np0.strip()]
        n1 = [int(c) for c in o.np1.strip()]
        self.nproj = (n0, n1)
        q = [("wq", 0, k) for k in range(16)]
        for rnd in range(2):
            k = 0
            for t in range(16):
                n = self.nproj[rnd][t]
                q.append(("k", rnd, t))
                if n:
                    q.append(("w", rnd, k))
                if n == 2 and (rnd, t) == (1, 15):
                    q.append(("w", rnd, k + 1))
                q.append(("v", rnd, t))
                if n == 2 and (rnd, t) != (1, 15):
                    q.append(("w", rnd, k + 1))
                k += n
            assert k == 16
        q += [("o", 1, n) for n in range(16)]
        self.loadq = q
        self.free = [SLOT * n for n in range(4)]
        self.ofree = []
        self.tofree = []
        self.loc = {}
        self.par = 0
        self.olimit = o.olim

    def tile_dma(self, tile, loc):
        o = self.o
        kind, rnd, k = tile
        if kind == "wq" or (kind == "w" and rnd == 0):
            pre = ["s_add_u32 %s, %s, 256" % (sr(sWQB), sr(sWQB))] if (kind == "w" and k == 0) else []
            pre += (self.wq_group("%d" % (k // 4)) if k % 4 == 0 else []) + self.wq_params(k % 4)
            return pre + self.dma(loc, dW, vOW, sWOFF, o.w_flag, tile)
        if kind in "kv":
            pre = []
            if tile == ("k", 0, 0):
                pre = self.voff_std(vOKV, 0, 256)
            if tile == ("k", 1, 0):
                pre = ["s_add_u32 %s, %s, 131072" % (sr(sKVB), sr(sKVB))]
            pre += ["s_add_u32 %s, %s, %d" % (sr(sKV), sr(sKVO), 8192 * k), "s_and_b32 %s, %s, 0x1ffff" % (sr(sKV), sr(sKV)),
                    "s_add_u32 %s, %s, %s" % (sr(sKV), sr(sKV), sr(sKVB))]
            return pre + self.dma(loc, dK if kind == "k" else dV, vOKV, sKV, o.kv_flag, tile)
        if kind == "w":
            pre = []
            if k == 0:
                pre = self.srd(dW, pWO, 4 << 20)[:2] + ["s_and_b32 %s, %s, 3" % (sr(sA), sr(sX)), "s_lshl_b32 %s, %s, 6" % (sr(sA), sr(sA))] + \
                    self.voff_std(vOW, 3072, 1024, sA)
            ks = k // 2
            pre += ["s_add_u32 %s, %s, %d" % (sr(sWOFF), sr(sWOB), 32768 * (ks % 4) + 262144 * (ks // 4))]
            if k % 2:
                pre += ["s_add_u32 %s, %s, %s" % (sr(sWOFF), sr(sWOFF), sr(sHX))]
            return pre + self.dma(loc, dW, vOW, sWOFF, o.w_flag, tile)
        return (self.voff_o1(vOW) if k == 0 else []) + self.o1_off(sWOFF, k) + self.dma(loc, dW, vOW, sWOFF, o.w_flag, tile)

    def next_loads(self, n):
        out = []
        while n and self.loadq:
            tile = self.loadq[0]
            if tile[0] == "o" and tile[2] > self.olimit:
                break
            if self.free:
                loc = self.free.pop(0)
            elif tile[0] == "o" and self.ofree:
                later = [x for x in self.loadq if x[2] >= 2]
                tile = later[0]
                loc = self.ofree.pop(0)
            else:
                break
            self.loadq.remove(tile)
            self.loc[tile] = loc
            out += self.tile_dma(tile, loc)
            n -= 1
        return out

    def open(self, tiles, also=()):
        for t in tiles:
            assert t in self.loc, t
        self.sync(self.vm_need(list(tiles) + list(also)))
        for loc in self.tofree:
            (self.free if loc < XB else self.ofree).append(loc)
        self.tofree = [self.loc[t] for t in tiles]

    def q_finalize(self, from_agpr):
        out = ["s_mov_b32 %s, %s" % (sr(sE), f32(math.log2(math.e) / math.sqrt(128.0)))]
        blocks = []
        for j in range(3):
            for ks in range(4):
                pre = []
                d = vQ + 12 * ks + 4 * j
                if from_agpr:
                    a, b = d, vBF + 4 * (len(blocks) % 3)
                    pre += ["v_accvgpr_read_b32 %s, %s" % (vr(a + i), ar(24 * ks + 4 * j + i)) for i in range(4)]
                    pre += ["v_accvgpr_read_b32 %s, %s" % (vr(b + i), ar(24 * ks + 12 + 4 * j + i)) for i in range(4)]
                else:
                    a, b = vO + 24 * ks + 4 * j, vO + 24 * ks + 12 + 4 * j
                pre += ["v_mul_f32 %s, %s, %s" % (vr(x + y), sr(sE), vr(x + y)) for x in (a, b) for y in range(4)]
                pre += ["v_cvt_pk_bf16_f32 %s, %s, %s" % (vr(d), vr(a), vr(a + 1)),
                        "v_cvt_pk_bf16_f32 %s, %s, %s" % (vr(d + 1), vr(a + 2), vr(a + 3)),
                        "v_cvt_pk_bf16_f32 %s, %s, %s" % (vr(d + 2), vr(b), vr(b + 1)),
                        "v_cvt_pk_bf16_f32 %s, %s, %s" % (vr(d + 3), vr(b + 2), vr(b + 3))]
                s32 = ["v_permlane32_swap_b32 %s, %s" % (vr(d), vr(d + 2)), "v_permlane32_swap_b32 %s, %s" % (vr(d + 1), vr(d + 3))]
                s16 = ["v_permlane16_swap_b32 %s, %s" % (vr(d), vr(d + 2)), "v_permlane16_swap_b32 %s, %s" % (vr(d + 1), vr(d + 3))]
                blocks.append((pre, s32, s16))
        n = len(blocks)
        for k in range(n + 1):
            if k < n:
                pre = blocks[k][0]
                h = len(pre) // 2
                out += pre[:h]
            if k > 0:
                if k == n:
                    out.append("s_nop 1")
                out += blocks[k - 1][1]
            if k < n:
                out += pre[h:]
            else:
                out.append("s_nop 1")
            if k > 0:
                out += blocks[k - 1][2]
        return out

    def o_rcp(self, j):
        return ["v_rcp_f32 %s, %s" % (vr(vBF + j), vr(vL + 4 * j)), "s_nop 0"]

    def o_block(self, ks, j):
        a, b = vO + 24 * ks + 4 * j, vO + 24 * ks + 12 + 4 * j
        return ["v_mul_f32 %s, %s, %s" % (vr(x + y), vr(x + y), vr(vBF + j)) for x in (a, b) for y in range(4)] + \
            ["v_cvt_pk_bf16_f32 %s, %s, %s" % (vr(a), vr(a), vr(a + 1)),
             "v_cvt_pk_bf16_f32 %s, %s, %s" % (vr(a + 1), vr(a + 2), vr(a + 3)),
             "v_cvt_pk_bf16_f32 %s, %s, %s" % (vr(a + 2), vr(b), vr(b + 1)),
             "v_cvt_pk_bf16_f32 %s, %s, %s" % (vr(a + 3), vr(b + 2), vr(b + 3)),
             "ds_write_b128 %s, %s offset:%d" % (vr(vEXW), vr(a, 4), 1024 * (3 * ks + j))]

    def attention(self):
        A, o = self.A, self.o

        def mx(j):
            s0, s1, m = vS + 4 * j, vS + 12 + 4 * j, vT + j
            return ["v_max3_f32 %s, %s, %s, %s" % (vr(m), vr(s0), vr(s0 + 1), vr(s0 + 2)),
                    "v_max3_f32 %s, %s, %s, %s" % (vr(m), vr(m), vr(s0 + 3), vr(s1)),
                    "v_max3_f32 %s, %s, %s, %s" % (vr(m), vr(m), vr(s1 + 1), vr(s1 + 2)),
                    "v_max_f32 %s, %s, %s" % (vr(m), vr(m), vr(s1 + 3))]

        def ex(kt, j):
            a = vS + 12 * kt + 4 * j
            return ["v_exp_f32 %s, %s" % (vr(a + x), vr(a + x)) for x in range(4)]

        def cv(j):
            return ["v_cvt_pk_bf16_f32 %s, %s, %s" % (vr(vP + 4 * j + 2 * kt + h), vr(vS + 12 * kt + 4 * j + 2 * h), vr(vS + 12 * kt + 4 * j + 2 * h + 1))
                    for kt in range(2) for h in range(2)]

        def check():
            self.uid += 1
            k = self.uid
            self.tail += ["L_rs%d:" % k, "s_call_b64 %s, L_rare" % sr(sRET, 2), "s_branch L_rb%d" % k]
            return ["v_max3_f32 %s, %s, %s, %s" % (vr(vT + 3), vr(vT), vr(vT + 1), vr(vT + 2)),
                    "v_cmp_lt_f32 vcc, %s, %s" % (sr(sTH), vr(vT + 3)), "s_cbranch_vccnz L_rs%d" % k, "L_rb%d:" % k]

        def init():
            out = []
            for op in ("v_permlane32_swap_b32", "v_permlane16_swap_b32"):
                out += ["v_mov_b32 %s, %s" % (vr(vT + 3 + j), vr(vT + j)) for j in range(3)] + ["s_nop 0"]
                out += ["%s %s, %s" % (op, vr(vT + j), vr(vT + 3 + j)) for j in range(3)]
                out += ["v_max_f32 %s, %s, %s" % (vr(vT + j), vr(vT + j), vr(vT + 3 + j)) for j in range(3)]
            for j in range(3):
                out += ["v_sub_f32 %s, %s, %s" % (vr(b + i), vr(b + i), vr(vT + j)) for b in (vS + 4 * j, vS + 12 + 4 * j) for i in range(4)]
                out += ["v_sub_f32 %s, 0, %s" % (vr(vNEGM + 4 * j + i), vr(vT + j)) for i in range(4)]
            return out

        def qk(first):
            mf = []
            for j in range(3):
                for kt in range(2):
                    for ks in range(4):
                        acc = vr(vS + 12 * kt + 4 * j, 4)
                        c = acc if ks else ("0" if first else vr(vNEGM + 4 * j, 4))
                        mf.append("%s %s, %s, %s, %s" % (MF, acc, ar(aF[self.par] + 16 * kt + 4 * ks, 4), vr(vQ + 12 * ks + 4 * j, 4), c))
            return mf

        def pv(first):
            mf = []
            for j in range(3):
                mf.append("%s %s, %s, %s, %s" % (MF, vr(vL + 4 * j, 4), vr(vONES, 4), vr(vP + 4 * j, 4), "0" if first else vr(vL + 4 * j, 4)))
                for dt in range(8):
                    acc = vr(vO + 12 * dt + 4 * j, 4)
                    mf.append("%s %s, %s, %s, %s" % (MF, acc, ar(aF[self.par] + 4 * dt, 4), vr(vP + 4 * j, 4), "0" if first else acc))
            return mf

        def proj(rnd, k):
            mf = []
            for dt in range(8):
                for j in range(3):
                    acc = ar((96 * (k % 2) if rnd else 0) + 12 * dt + 4 * j, 4)
                    mf.append("%s %s, %s, %s, %s" % (MF, acc, ar(aF[self.par] + 4 * dt, 4), vr(vBF + 4 * j, 4), "0" if k < rnd + 1 else acc))
            return mf

        def b_parts(rnd, k):
            if rnd == 0:
                return (self.x_group("%d" % (k // 4)) if k % 4 == 0 else []), self.x_addr(k % 4), \
                    ["ds_read_b128 %s, %s offset:%d" % (vr(vBF + 4 * j, 4), vr(vB), 4096 * j) for j in range(3)]
            ks = k // 2
            rd = [] if k % 2 else ["ds_read_b128 %s, %s offset:%d" % (vr(vBF + 4 * j, 4), vr(vB), 24576 * (ks // 4) + 3072 * (ks % 4) + 1024 * j)
                                   for j in range(3)]
            return [], ["s_nop 0", "s_nop 0"], rd

        def tr(tile):
            return self.tr_reads(1 - self.par, self.loc[tile] // SLOT)

        def kr(tile):
            return self.k_reads(1 - self.par, self.loc[tile] // SLOT)

        patK = "tss tss tss tss tts d tv tv t t tt d tv tv tv ttv d t t vv vv d ss _".split()
        patW = "tss tts d tv tv vv vvv v d tv tv tv tv tv d tv tv tv tv ttv d ssvv vv v".split()
        patV = "sv sv sv sv svv svv sv d v v v v d v v tv tvv tvvn tt t d tt t _ d ss ss".split()
        patV2 = "tsv tsv tsv tsv tvv tvv tsv d tv tv tv tv d tv tv tv tvv tvvn t t d t t _ d ss ss".split()
        self.softmax_parts = (mx, ex, cv, check, qk, pv, proj, b_parts, tr, patK)
        for rnd in range(2):
            k = 0
            self.stamp("a%d" % rnd)
            for t in range(16):
                n, first = self.nproj[rnd][t], t == 0
                K, V, W1, W2 = ("k", rnd, t), ("v", rnd, t), ("w", rnd, k), ("w", rnd, k + 1)
                KN = ("k", rnd + (t + 1) // 16, (t + 1) % 16)
                if (rnd, t) == (1, 15):
                    self.klast = k
                    return
                nd = 1
                self.stamp("s%d_%d" % (rnd, t))
                self.open([W1 if n else V])
                par, vq, brd = b_parts(rnd, k) if n else ([], ["s_nop 0", "s_nop 0"], [])
                self.pat(qk(first), patK, tr(W1 if n else V) + brd, par + self.next_loads(nd), vq + mx(0) + mx(1))
                self.par ^= 1
                vq = mx(2) + (init() if first else check()) + ex(0, 0) + ex(1, 0) + cv(0) + ex(0, 1)
                if n:
                    self.open([V])
                    self.pat(proj(rnd, k), patW, tr(V), self.next_loads(nd), vq)
                    self.par ^= 1
                    if (rnd, t) == (0, 15):
                        assert n == 1
                        self.emit_all(["s_nop 6"] + self.q_finalize(True))
                else:
                    pre = []
                    if (rnd, t) == (1, 0):
                        for j in range(3):
                            pre += self.o_rcp(j)
                            for ks in range(4):
                                pre += self.o_block(ks, j)
                        pre += ["s_mul_i32 %s, %s, 12288" % (sr(sA), sr(sHF)), "s_add_u32 %s, %s, %d" % (sr(sA), sr(sA), EX),
                                "v_add_u32 %s, %s, %s" % (vr(vB), sr(sA), vr(vSTA))]
                    if (rnd, t) == (0, 15):
                        pre = self.q_finalize(True)
                    self.emit_all(pre or ["s_nop 6"])
                    self.emit_all(vq)
                self.open([W2 if n == 2 else KN])
                vq = ex(1, 1) + cv(1) + ex(0, 2) + ex(1, 2) + cv(2)
                d = self.next_loads(nd)
                if o.retouch and t in (2, 10):
                    self.uid += 1
                    d += ["L_here%d:" % self.uid] + self.code_touch_small("L_here%d" % self.uid, vT + 4, dC, True)
                if (rnd, t) == (1, 11) and o.touch:
                    d += self.wo_touch()
                if n == 2:
                    par, va, brd = b_parts(rnd, k + 1)
                    self.pat(pv(first), patV2, tr(W2) + brd, par + (va if rnd == 0 else []) + d, vq)
                    self.par ^= 1
                    self.open([KN])
                    self.auto(proj(rnd, k + 1), kr(KN), self.next_loads(nd))
                else:
                    self.pat(pv(first), patV, kr(KN), d, vq)
                self.par ^= 1
                k += n
            self.stamp("a%dend" % rnd)

    def wo_touch(self):
        t = vT + 4
        return ["s_lshl_b32 %s, %s, 3" % (sr(sA), sr(sB)),
                "s_lshl_b32 %s, %s, 2" % (sr(sB2), sr(sHF)),
                "s_add_u32 %s, %s, %s" % (sr(sA), sr(sA), sr(sB2)),
                "s_lshl_b32 %s, %s, 10" % (sr(sA), sr(sA)),
                "s_lshl_b32 %s, %s, 19" % (sr(sB2), sr(sHG)),
                "s_add_u32 %s, %s, %s" % (sr(sA), sr(sA), sr(sB2)),
                "s_lshl_b32 %s, %s, 18" % (sr(sB2), sr(sP)),
                "s_add_u32 %s, %s, %s" % (sr(sA), sr(sA), sr(sB2)),
                "s_add_u32 %s, %s, 131072" % (sr(sA), sr(sA)),
                "v_and_b32 %s, 31, %s" % (vr(t), vr(vLANE)),
                "v_lshlrev_b32 %s, 7, %s" % (vr(t), vr(t)),
                ("buffer_load_dword %s, %s, %s, %s offen" % (vr(vDUM), vr(t), sr(dW, 4), sr(sA)), "touch")]

    def rare(self):
        A = self.A
        A("L_rare:")
        for j in range(3):
            A("v_mov_b32 %s, %s" % (vr(vT + 3 + j), vr(vT + j)))
        A("s_nop 1")
        for j in range(3):
            A("v_permlane32_swap_b32 %s, %s" % (vr(vT + j), vr(vT + 3 + j)))
        for j in range(3):
            A("v_max_f32 %s, %s, %s" % (vr(vT + j), vr(vT + j), vr(vT + 3 + j)))
        for j in range(3):
            A("v_mov_b32 %s, %s" % (vr(vT + 3 + j), vr(vT + j)))
        A("s_nop 1")
        for j in range(3):
            A("v_permlane16_swap_b32 %s, %s" % (vr(vT + j), vr(vT + 3 + j)))
        for j in range(3):
            A("v_max3_f32 %s, %s, %s, 0" % (vr(vT + j), vr(vT + j), vr(vT + 3 + j)))
        for j in range(3):
            A("v_exp_f32 %s, -%s" % (vr(vT + 3 + j), vr(vT + j)))
        for j in range(3):
            for base in (vS + 4 * j, vS + 12 + 4 * j, vNEGM + 4 * j):
                for i in range(4):
                    A("v_sub_f32 %s, %s, %s" % (vr(base + i), vr(base + i), vr(vT + j)))
        for j in range(3):
            for base in [vO + 12 * dt + 4 * j for dt in range(8)] + [vL + 4 * j]:
                for i in range(4):
                    A("v_mul_f32 %s, %s, %s" % (vr(base + i), vr(base + i), vr(vT + 3 + j)))
        A("s_setpc_b64 %s" % sr(sRET, 2))

    def prologue(self):
        A, o = self.A, self.o
        A("s_cmp_ge_u32 s2, 256")
        A("s_cbranch_scc1 L_end")
        self.stamp("start")
        A("s_and_b32 %s, s2, 7" % sr(sA))
        A("s_lshr_b32 %s, s2, 3" % sr(sB2))
        A("s_lshr_b32 %s, %s, 2" % (sr(sBLK), sr(sA)))
        A("s_mul_i32 %s, %s, 40" % (sr(sC), sr(sBLK)))
        A("s_add_u32 s4, s0, %s" % sr(sC))
        A("s_addc_u32 s5, s1, 0")
        A("s_load_dwordx8 %s, s[4:5], 0" % sr(pX, 8))
        A("s_load_dwordx2 %s, s[4:5], 32" % sr(pWO, 2))
        A("s_load_dwordx2 %s, s[0:1], 96" % sr(pWS, 2))
        A("s_and_b32 %s, %s, 15" % (sr(sB), sr(sB2)))
        A("s_lshr_b32 %s, %s, 4" % (sr(sE), sr(sB2)))
        A("s_and_b32 %s, %s, 3" % (sr(sA), sr(sA)))
        A("s_lshl_b32 %s, %s, 1" % (sr(sHG), sr(sA)))
        A("s_add_u32 %s, %s, %s" % (sr(sHG), sr(sHG), sr(sE)))
        A("s_mul_i32 %s, %s, %d" % (sr(sA), sr(sA), o.xoct))
        A("s_mul_i32 %s, %s, %d" % (sr(sE), sr(sE), o.xq))
        A("s_add_u32 %s, %s, %s" % (sr(sCG0), sr(sB), sr(sA)))
        A("s_add_u32 %s, %s, %s" % (sr(sCG0), sr(sCG0), sr(sE)))
        A("s_lshr_b32 %s, %s, 2" % (sr(sE), sr(sB)))
        for i in range(4):
            A("s_add_u32 %s, %s, %d" % (sr(sC), sr(sE), i))
            A("s_and_b32 %s, %s, 3" % (sr(sC), sr(sC)))
            A("s_lshl_b32 %s, %s, 6" % (sr(sKS + i), sr(sC)))
            A("s_lshl_b32 %s, %s, 18" % (sr(sKW + i), sr(sC)))
        A("v_lshrrev_b32 %s, 6, v0" % vr(vT))
        A("v_and_b32 %s, 63, v0" % vr(vLANE))
        self.emit_all(self.voff_std(vOKV, 3072, 1024))
        self.emit_all(self.voff_std(vOW, 65536 - 1024, 8192))
        A("s_waitcnt lgkmcnt(0)")
        A("v_readfirstlane_b32 %s, %s" % (sr(sW), vr(vT)))
        self.emit_all(self.srd(dX, pX, 16 * 98304))
        self.emit_all(self.srd(dW, pWQ, 4 << 20))
        A("s_lshr_b32 %s, %s, 1" % (sr(sP), sr(sW)))
        A("s_and_b32 %s, %s, 1" % (sr(sHF), sr(sW)))
        if o.ctouch & 8:
            self.emit_all(self.code_touch_small("L_p1", vT + 5, dK))
            A("L_p1:")
        self.emit_all(self.x_dma(0))
        A("s_lshl_b32 %s, %s, 12" % (sr(sM0), sr(sW)))
        A("s_lshl_b32 %s, %s, 1" % (sr(sA), sr(sHG)))
        A("s_add_u32 %s, %s, %s" % (sr(sA), sr(sA), sr(sP)))
        A("s_lshl_b32 %s, %s, 9" % (sr(sWQB), sr(sA)))
        A("s_lshl_b32 %s, %s, 15" % (sr(sA), sr(sHF)))
        A("s_add_u32 %s, %s, %s" % (sr(sWQB), sr(sWQB), sr(sA)))
        self.emit_all(self.next_loads(2))
        if o.ctouch & 4:
            self.emit_all(self.code_touch_small("L_q0", vT + 5, dK))
        self.emit_all(self.srd(dK, pK, 0 if o.kv_oob else 64 << 20))
        self.emit_all(self.srd(dV, pV, 0 if o.kv_oob else 64 << 20))
        self.emit_all(self.srd(dS, pWS, WS_BYTES))
        A("s_load_dwordx2 %s, s[0:1], 80" % sr(pOUT, 2))
        A("s_xor_b32 %s, %s, 7" % (sr(sX), sr(sHG)))
        A("s_lshl_b32 %s, %s, 22" % (sr(sKVB), sr(sB)))
        A("s_lshl_b32 %s, %s, 19" % (sr(sWOB), sr(sHG)))
        A("s_add_u32 %s, %s, %s" % (sr(sKVB), sr(sKVB), sr(sWOB)))
        A("s_lshl_b32 %s, %s, 18" % (sr(sA), sr(sP)))
        A("s_add_u32 %s, %s, %s" % (sr(sKVB), sr(sKVB), sr(sA)))
        A("s_lshl_b32 %s, %s, 12" % (sr(sA), sr(sHF)))
        A("s_add_u32 %s, %s, %s" % (sr(sKVB), sr(sKVB), sr(sA)))
        A("s_lshl_b32 %s, %s, 9" % (sr(sA), sr(sP)))
        A("s_add_u32 %s, %s, %s" % (sr(sWOB), sr(sWOB), sr(sA)))
        A("s_lshl_b32 %s, %s, 15" % (sr(sA), sr(sHF)))
        A("s_add_u32 %s, %s, %s" % (sr(sC), sr(sWOB), sr(sA)))
        A("s_add_u32 %s, %s, 131072" % (sr(sC), sr(sC)))
        A("s_lshl_b32 %s, %s, 18" % (sr(sA), sr(sP)))
        A("s_add_u32 %s, %s, %s" % (sr(sO1), sr(sC), sr(sA)))
        A("s_xor_b32 %s, %s, 262144" % (sr(sA), sr(sA)))
        A("s_add_u32 %s, %s, %s" % (sr(sO1 + 2), sr(sC), sr(sA)))
        A("s_add_u32 %s, %s, 65536" % (sr(sO1 + 1), sr(sO1)))
        A("s_add_u32 %s, %s, 65536" % (sr(sO1 + 3), sr(sO1 + 2)))
        A("s_lshl_b32 %s, %s, 14" % (sr(sA), sr(sHF)))
        A("s_add_u32 %s, %s, %s" % (sr(sWOB), sr(sWOB), sr(sA)))
        A("s_lshr_b32 %s, %s, 2" % (sr(sA), sr(sX)))
        A("s_lshl_b32 %s, %s, 8" % (sr(sA), sr(sA)))
        A("s_add_u32 %s, %s, %s" % (sr(sWOB), sr(sWOB), sr(sA)))
        A("s_lshl_b32 %s, %s, 1" % (sr(sA), sr(sA)))
        A("s_sub_u32 %s, 256, %s" % (sr(sHX), sr(sA)))
        A("s_lshr_b32 %s, %s, 1" % (sr(sA), sr(sX)))
        A("s_lshl_b32 %s, %s, 7" % (sr(sXC), sr(sA)))
        A("s_and_b32 %s, %s, 1" % (sr(sA), sr(sHG)))
        A("s_lshl_b32 %s, %s, 3" % (sr(sA), sr(sA)))
        A("s_add_u32 %s, %s, %s" % (sr(sA), sr(sB), sr(sA)))
        A("s_and_b32 %s, %s, 15" % (sr(sA), sr(sA)))
        A("s_lshl_b32 %s, %s, 13" % (sr(sKVO), sr(sA)))
        A("s_mul_i32 %s, %s, 12288" % (sr(sXB), sr(sHF)))
        A("s_add_u32 %s, %s, %d" % (sr(sXB), sr(sXB), XB))
        A("s_lshl_b32 %s, %s, 4" % (sr(sA), sr(sBLK)))
        A("s_add_u32 %s, %s, %s" % (sr(sA), sr(sA), sr(sB)))
        A("s_lshl_b32 %s, %s, 2" % (sr(sA), sr(sA)))
        A("s_add_u32 %s, %s, %s" % (sr(sA), sr(sA), sr(sW)))
        A("s_mul_i32 %s, %s, 196608" % (sr(sB2), sr(sA)))
        A("s_mul_i32 %s, %s, 3072" % (sr(sC), sr(sHG)))
        A("s_add_u32 %s, %s, %s" % (sr(sSTB), sr(sB2), sr(sC)))
        A("s_mul_i32 %s, %s, 24576" % (sr(sC), sr(sHG)))
        A("s_add_u32 %s, %s, %s" % (sr(sLDB), sr(sB2), sr(sC)))
        A("s_lshl_b32 %s, %s, 10" % (sr(sA), sr(sA)))
        A("s_add_u32 %s, %s, %d" % (sr(sFLC), sr(sA), FLAGS))
        A("s_lshl_b32 %s, %s, %d" % (sr(sA), sr(sHG), o.fshift))
        A("s_add_u32 %s, %s, %s" % (sr(sFLO), sr(sFLC), sr(sA)))
        self.emit_all(self.poll_addr())
        self.emit(("buffer_load_dword %s, %s, %s, %s offen sc1" % (vr(vCHK), vr(vPA), sr(dS, 4), sr(sFLC)), "fl"))
        A("s_mul_i32 %s, %s, 96" % (sr(sA), sr(sB)))
        A("s_mul_i32 %s, %s, 48" % (sr(sB2), sr(sHF)))
        A("s_add_u32 %s, %s, %s" % (sr(sA), sr(sA), sr(sB2)))
        A("s_lshl_b32 %s, %s, 11" % (sr(sA), sr(sA)))
        A("s_lshl_b32 %s, %s, 10" % (sr(sB2), sr(sBLK)))
        A("s_add_u32 %s, %s, %s" % (sr(sA), sr(sA), sr(sB2)))
        A("s_lshl_b32 %s, %s, 9" % (sr(sB2), sr(sP)))
        A("s_add_u32 %s, %s, %s" % (sr(sA), sr(sA), sr(sB2)))
        A("s_lshl_b32 %s, %s, 6" % (sr(sB2), sr(sHG)))
        A("s_add_u32 %s, %s, %s" % (sr(sOUT), sr(sA), sr(sB2)))
        if o.tlb:
            A("v_mov_b32 %s, 0" % vr(vZ))
            self.emit(("buffer_load_dword %s, %s, %s, %s offen nt" % (vr(vDUM), vr(vZ), sr(dK, 4), sr(sKVB)), "touch"))
            self.emit(("buffer_load_dword %s, %s, %s, %s offen nt" % (vr(vDUM), vr(vZ), sr(dV, 4), sr(sKVB)), "touch"))
        if o.kvt:
            A("s_mul_hi_u32 %s, %s, %d" % (sr(sA), sr(sB), (1 << 32) // o.kvtm + 1))
            A("s_mul_i32 %s, %s, %d" % (sr(sA), sr(sA), o.kvtm))
            A("s_sub_u32 %s, %s, %s" % (sr(sA), sr(sB), sr(sA)))
            A("s_lshl_b32 %s, %d, %s" % (sr(sTM), sum(1 << (o.kvt0 + o.kvtm * k) for k in range(o.kvt)), sr(sA)))
            A("s_mov_b32 %s, %s" % (sr(sTO), sr(sKVO)))
            t = vT + 4
            A("v_and_b32 %s, 31, %s" % (vr(t), vr(vLANE)))
            A("v_lshlrev_b32 %s, 7, %s" % (vr(t), vr(t)))
            A("s_branch L_kvt_skip")
            A("L_kvt:")
            for k in range(o.kvtn):
                A("s_add_u32 %s, %s, %s" % (sr(sE), sr(sTO), sr(sKVB)))
                A("s_add_u32 %s, %s, 8192" % (sr(sTO), sr(sTO)))
                A("s_and_b32 %s, %s, 0x1ffff" % (sr(sTO), sr(sTO)))
                A("buffer_load_dword %s, %s, %s, %s offen" % (vr(vDUM), vr(t), sr(dK, 4), sr(sE)))
                A("buffer_load_dword %s, %s, %s, %s offen" % (vr(vDUM), vr(t), sr(dV, 4), sr(sE)))
            A("s_add_u32 %s, %s, 4" % (sr(sRET), sr(sRET)))
            A("s_addc_u32 %s, %s, 0" % (sr(sRET + 1), sr(sRET + 1)))
            A("s_setpc_b64 %s" % sr(sRET, 2))
            A("L_kvt_skip:")
        t0, t1, t2 = vT, vT + 1, vT + 2
        A("v_and_b32 %s, 15, %s" % (vr(t0), vr(vLANE)))
        A("v_lshrrev_b32 %s, 4, %s" % (vr(t1), vr(vLANE)))
        A("v_and_b32 %s, 7, %s" % (vr(t2), vr(vLANE)))
        A("v_lshlrev_b32 %s, 1, %s" % (vr(t2), vr(t2)))
        A("v_xor_b32 %s, %s, %s" % (vr(t2), vr(t2), vr(t1)))
        A("v_lshlrev_b32 %s, 4, %s" % (vr(t2), vr(t2)))
        A("v_lshl_add_u32 %s, %s, 8, %s" % (vr(vLK), vr(t0), vr(t2)))
        A("v_lshrrev_b32 %s, 2, %s" % (vr(t0), vr(vLANE)))
        A("v_and_b32 %s, 7, %s" % (vr(t1), vr(t0)))
        A("v_lshlrev_b32 %s, 5, %s" % (vr(t1), vr(t1)))
        A("v_lshl_add_u32 %s, %s, 8, %s" % (vr(t0), vr(t0), vr(t1)))
        A("v_and_b32 %s, 3, %s" % (vr(t1), vr(vLANE)))
        A("v_lshl_add_u32 %s, %s, 3, %s" % (vr(t0), vr(t1), vr(t0)))
        A("s_lshl_b32 %s, %s, 13" % (sr(sA), sr(sP)))
        for dt in range(8):
            A("v_xor_b32 %s, %d, %s" % (vr(vVA + dt), dt << 5, vr(t0)))
            A("v_add_u32 %s, %s, %s" % (vr(vVA + dt), sr(sA), vr(vVA + dt)))
        for ks in range(4):
            A("v_xor_b32 %s, %d, %s" % (vr(vKA + ks), ks << 6, vr(vLK)))
            A("v_add_u32 %s, %s, %s" % (vr(vKA + ks), sr(sA), vr(vKA + ks)))
        A("s_mul_i32 %s, %s, 12288" % (sr(sA), sr(sW)))
        A("s_add_u32 %s, %s, %d" % (sr(sA), sr(sA), EX))
        A("v_lshlrev_b32 %s, 4, %s" % (vr(vSTA), vr(vLANE)))
        A("v_add_u32 %s, %s, %s" % (vr(vEXW), sr(sA), vr(vSTA)))
        for i in range(4):
            A("v_mov_b32 %s, 0x3f803f80" % vr(vONES + i))
        A("s_mov_b32 %s, %s" % (sr(sTH), f32(8.0)))

    def poll_addr(self):
        return ["v_and_b32 %s, 7, %s" % (vr(vPA), vr(vLANE)), "v_xor_b32 %s, %s, %s" % (vr(vPA), sr(sX), vr(vPA)),
                "v_lshlrev_b32 %s, %d, %s" % (vr(vPA), self.o.fshift, vr(vPA))]

    def q0_phase(self):
        A, o = self.A, self.o
        vBX = (vS, vS + 12)

        def xb_reads(n):
            return (self.x_group("%d" % (n // 4)) if n % 4 == 0 else []) + self.x_addr(n % 4) + \
                ["ds_read_b128 %s, %s offset:%d" % (vr(vBX[n % 2] + 4 * j, 4), vr(vB), 4096 * j) for j in range(3)]

        W = lambda n: ("wq", 0, n)
        A("L_q0:")
        self.open([W(0)], [("x", 0)])
        self.emit_all(xb_reads(0) + self.tr_reads(0, self.loc[W(0)] // SLOT) + self.next_loads(2))
        xplan = [{0: 1, 4: 2, 8: 3}, {0: 1, 1: 2, 2: 3}, {0: 1, 2: 2, 4: 3}, {}, {0: 1, 3: 2, 6: 3}][o.xplan]
        qfin = self.q_finalize(False)
        for n in range(16):
            self.open([W(n + 1)] if n < 15 else [], [("x", (n + 1) // 4)] if n % 4 == 3 else [])
            self.stamp("q%d" % n)
            order = [(dt, j) for dt in range(8) for j in range(3)] if n < 15 else [(dt, j) for j in range(3) for dt in range(8)]
            mf = []
            for dt, j in order:
                acc = vr(vO + 12 * dt + 4 * j, 4)
                mf.append("%s %s, %s, %s, %s" % (MF, acc, ar(aF[n % 2] + 4 * dt, 4), vr(vBX[n % 2] + 4 * j, 4), "0" if n == 0 else acc))
            if n == 15:
                self.auto(mf, [], [], qfin[:30], v0=10)
                break
            xb = xb_reads(n + 1)
            head, vq, rd = xb[:-5], xb[-5:-3], self.tr_reads((n + 1) % 2, self.loc[W(n + 1)] // SLOT) + xb[-3:]
            post = []
            if n in xplan:
                post = self.x_dma(xplan[n])
            if n == 9 and o.ctouch & 16:
                post = self.code_touch_small("L_q0end", vT + 5, dC)
            if o.kvt and o.kvt0 <= n < o.kvt0 + o.kvtm * o.kvt:
                post = post + ["s_bitcmp1_b32 %s, %d\ns_getpc_b64 %s\ns_cbranch_scc1 L_kvt" % (sr(sTM), n, sr(sRET, 2))]
            self.auto(mf, rd, head + self.next_loads(1) + post, vq, v0=4)
        A("L_q0end:")
        self.stamp("qend")
        self.emit_all(spread(qfin[30:o.qsplit], self.next_loads(1)))
        K0 = ("k", 0, 0)
        self.open([K0])
        self.emit_all(spread(qfin[o.qsplit:], self.k_reads(0, self.loc[K0] // SLOT)))
        self.par = 0

    def publish(self, stage, n):
        return ["s_add_u32 %s, %s, 8" % (sr(sGC), sr(sGC)), "s_add_u32 %s, %s, %d" % (sr(sE), sr(sGC), stage),
                "v_mov_b32 %s, %s" % (vr(vFV), sr(sE)), "s_waitcnt vmcnt(%d)" % n, "s_mov_b64 exec, 1",
                ("buffer_store_dword %s, %s, %s, %s offen sc1" % (vr(vFV), vr(vZ), sr(dS, 4), sr(sFLO)), "fl"),
                "s_mov_b64 exec, -1"]

    def o1_phase(self):
        A, o = self.A, self.o
        mx, ex, cv, check, qk, pv, proj, b_parts, tr, patK = self.softmax_parts
        vOA, vSG = (vKA, vVA, vVA + 4), vL
        t0, t1 = vT + 4, vT + 5
        addr = ["v_lshrrev_b32 %s, 2, %s" % (vr(t0), vr(vLANE)),
                "v_bfe_u32 %s, %s, 3, 2" % (vr(t1), vr(vLANE)),
                "v_lshlrev_b32 %s, 5, %s" % (vr(t1), vr(t1)),
                "v_lshl_add_u32 %s, %s, 7, %s" % (vr(t0), vr(t0), vr(t1)),
                "v_and_b32 %s, 3, %s" % (vr(t1), vr(vLANE)),
                "v_lshl_add_u32 %s, %s, 3, %s" % (vr(t0), vr(t1), vr(t0)),
                "s_lshl_b32 %s, %s, 13" % (sr(sB2), sr(sP))]
        addr1 = []
        for nt in range(4):
            addr += ["v_xor_b32 %s, %d, %s" % (vr(vOA[0] + nt), nt << 5, vr(t0)),
                     "v_add_u32 %s, %s, %s" % (vr(vOA[0] + nt), sr(sB2), vr(vOA[0] + nt))]
            addr1 += ["v_add_u32 %s, 0x10000, %s" % (vr(vOA[1] + nt), vr(vOA[0] + nt)),
                      "v_add_u32 %s, 0x20000, %s" % (vr(vOA[2] + nt), vr(vOA[0] + nt))]
        addr += ["s_xor_b32 %s, %s, 2" % (sr(sB2), sr(sW)),
                 "s_mul_i32 %s, %s, 12288" % (sr(sB2), sr(sB2)),
                 "s_add_u32 %s, %s, %d" % (sr(sB2), sr(sB2), EX),
                 "v_add_u32 %s, %s, %s" % (vr(vB), sr(sB2), vr(vSTA))]
        setup_v = self.poll_addr() + [
            "v_mov_b32 %s, 0" % vr(vZ), "v_readlane_b32 %s, %s, 7" % (sr(sGC), vr(vCHK)),
            "v_and_b32 %s, 15, %s" % (vr(vOUT), vr(vLANE)), "v_lshlrev_b32 %s, 11, %s" % (vr(vOUT), vr(vOUT)),
            "v_lshrrev_b32 %s, 4, %s" % (vr(vPD), vr(vLANE)), "v_lshl_add_u32 %s, %s, 4, %s" % (vr(vOUT), vr(vPD), vr(vOUT))]
        setup_s = ["s_and_b32 %s, %s, -8" % (sr(sGC), sr(sGC)), "s_mov_b32 %s, 0x00003f80" % sr(sDOT),
                   "s_mov_b32 %s, 0x3f800000" % sr(sDOT + 1)] + self.srd(dK, pOUT, 16 * 96 * 1024 * 2)[:3]
        T = lambda n: ("o", 1, n)

        def frags(n):
            if n < 12:
                return [(n, ks, nt) for ks in range(2) for nt in range(4)]
            t, u = 12 + 2 * (n % 2), (n - 12) // 2
            return [(t + h, ks, 2 * u + nt) for h in range(2) for ks in range(2) for nt in range(2)]

        def reads(n, fset):
            out = []
            for f, (t, ks, nt) in enumerate(frags(n)):
                win, off = self.loc[T(t)] // 65536, self.loc[T(t)] % 65536
                out += ["ds_read_b64_tr_b16 %s, %s offset:%d" % (ar(aF[fset] + 4 * f + 2 * e, 2), vr(vOA[win] + nt),
                                                                 off + 4096 * ks + 2048 * e) for e in range(2)]
            return out

        def eighth(e):
            out = ["s_xor_b32 %s, %s, %d" % (sr(sST), sr(sX), e), "s_mul_i32 %s, %s, 24576" % (sr(sST), sr(sST)),
                   "s_add_u32 %s, %s, %s" % (sr(sST), sr(sST), sr(sSTB))]
            for jq in range(3):
                a = vSG + 8 * ((3 * e + jq) % 6)
                src = 24 * e + 4 * jq
                out += ["v_accvgpr_read_b32 %s, %s" % (vr(a + x), ar(src + x)) for x in range(4)]
                out += ["v_accvgpr_read_b32 %s, %s" % (vr(a + 4 + x), ar(src + 12 + x)) for x in range(4)]
                out += ["v_cvt_pk_bf16_f32 %s, %s, %s" % (vr(a + x), vr(a + 2 * x), vr(a + 2 * x + 1)) for x in range(4)]
                off = " offset:%d" % (1024 * jq) if jq else ""
                out.append(("buffer_store_dwordx4 %s, %s, %s, %s offen%s sc1" % (vr(a, 4), vr(vSTA), sr(dS, 4), sr(sST), off), ("st", e)))
            return out

        V = ("v", 1, 15)
        nl, k = self.nproj[1][15], self.klast
        soft = mx(2) + check() + ex(0, 0) + ex(1, 0) + ex(0, 1) + cv(0) + ex(1, 1) + ex(0, 2) + cv(1) + ex(1, 2) + ["s_nop 0"] + cv(2)
        if nl == 0:
            self.open([])
            self.pat(qk(False), "ssv ssv d vv d vv d _ d _ _ _ _ _ vv vv _ _ _ _ _ _ nvv vv".split(), [], self.next_loads(1), addr[:6] + mx(0) + mx(1))
            self.par ^= 1
            self.emit_all(addr[6:] + soft)
        else:
            W1, W2 = ("w", 1, k), ("w", 1, k + 1)
            self.open([W1])
            par, vq, brd = b_parts(1, k)
            self.pat(qk(False), patK, tr(W1) + brd, par + self.next_loads(1), vq + mx(0) + mx(1))
            self.par ^= 1
            if nl == 2:
                assert k % 2 == 0
                self.open([W2])
                self.auto(proj(1, k), tr(W2), self.next_loads(1), soft[:26], v0=3)
                self.par ^= 1
                self.open([])
                self.auto(proj(1, k + 1), [], self.next_loads(1), soft[26:] + addr, v0=0)
            else:
                self.open([])
                self.auto(proj(1, k), [], self.next_loads(1), soft + addr, v0=4)
            self.par ^= 1
        kset = 1 - self.par
        assert self.loc[T(0)] < XB
        self.open([V, T(0)])
        self.stamp("a1end")
        self.olimit = 99
        self.ofree += [EXTRA + SLOT * x for x in range(3)]
        vrd = self.tr_reads(self.par, self.loc[V] // SLOT)
        mf = pv(False)
        self.emit_all(vrd[:12])
        A(mf[0])
        self.emit_all(vrd[12:])
        for dt in range(8):
            A("s_waitcnt lgkmcnt(%d)" % (14 - 2 * dt))
            A(mf[1 + dt])
        fin = lambda j: self.o_rcp(j) + self.o_block(0, j) + self.o_block(1, j)
        d = self.next_loads(o.opv)
        nd1 = len(d) * 2 // 3
        self.pat(mf[9:], "tsss td td tvv tdvv tdvv tsvv tsvv tdvv tdvv tvvv tdvv tdvv tvvvv tvvvv tvvvv vvvv vvvv".split(),
                 reads(0, kset), d[:nd1], fin(0) + fin(1))
        A("s_nop 1")
        self.emit_all(spread(fin(2), d[nd1:]))
        self.par = kset
        brd = ["ds_read_b128 %s, %s offset:%d" % (vr(vO + 24 * (f // 3) + 12 + 4 * (f % 3), 4), vr(vB), 1024 * f) for f in range(12)]
        fin2 = []
        for ks in (2, 3):
            for j in range(3):
                fin2 += self.o_block(ks, j)
        early = eighth(0) + eighth(1) + eighth(2) + eighth(3)
        vqs = {0: addr1 + fin2, 2: setup_v, 12: eighth(4), 13: eighth(5), 14: eighth(6)}
        for k in range(8):
            vqs[4 + k] = early[21 * k:21 * (k + 1)]
        nload = [{0: 1, 1: 2, 2: 2, 3: 2, 4: 2, 5: 1, 6: 1, 7: 1}, {0: 1, 1: 1, 2: 2, 3: 2, 4: 2, 5: 2, 6: 2}, {0: 2, 1: 2, 2: 2, 3: 2, 4: 2, 5: 2}][o.oplan]
        poll = "buffer_load_dword %s, %s, %s, %s offen sc1" % (vr(vPD), vr(vPA), sr(dS, 4), sr(sFLC))
        for n in range(16):
            if n < 11:
                self.open([T(n + 1)])
            elif n < 13:
                self.open([T(2 * n - 10), T(2 * n - 9)])
            else:
                A("s_waitcnt lgkmcnt(0)")
            if n == 3:
                self.ofree += [EX + SLOT * x for x in range(3)]
            self.stamp("o%d" % n)
            mf = []
            for f, (t, ks, nt) in enumerate(frags(n)):
                c, i = O1_TILES[t]
                for j in range(3):
                    acc = ar(48 * c + 12 * nt + 4 * j, 4)
                    mf.append("%s %s, %s, %s, %s" % (MF, acc, ar(aF[self.par] + 4 * f, 4), vr(vO + 48 * (i % 2) + 24 * ks + 12 * (i // 2) + 4 * j, 4), acc))
            d = self.next_loads(nload.get(n, 1 if n < 11 else 0))
            rd = reads(n + 1, 1 - self.par) if n < 15 else []
            if n == 0:
                assert self.loc[T(1)] < XB
            if n in (1, 2):
                rd = rd + brd[6 * (n - 1):6 * n]
            if n == 5:
                d = setup_s + d
            if n == o.pub1:
                self.emit_all(self.publish(1, self.vm_need([("st", 3)])) + ["s_nop 3"])
            if n == 15:
                d = [(poll, "poll")]
            self.auto(mf, rd, d, vqs.get(n, []), v0=(0 if n < 4 else 3), vend=(o.vend if n == 14 else None))
            self.par ^= 1
        assert not self.loadq
        self.stamp("o16")

        masks = (0x0f, 0x70)
        groups = ((0, 1, 2, 3), (4, 5, 6))
        vLD, vAC = (vO, vO + 48), vQ

        def test(k):
            A("v_and_b32 %s, 7, %s" % (vr(vPT), vr(vPD)))
            A("v_cmp_eq_u32 %s, %s, %s" % (sr(sRET, 2), vr(vPD), vr(vCHK)))
            A("v_cmp_gt_u32 vcc, %d, %s" % (k + 1, vr(vPT)))
            A("s_nop 0")
            A("s_or_b32 %s, vcc_lo, %s" % (sr(sA), sr(sRET)))
            A("s_and_b32 %s, %s, %d" % (sr(sA), sr(sA), masks[k]))

        def ensure(k):
            A("s_mov_b32 %s, 0" % sr(sSTP))
            A("L_pt%d:" % k)
            test(k)
            A("s_cbranch_scc0 L_pd%d" % k)
            A(poll)
            A("s_add_u32 %s, %s, 1" % (sr(sSTP), sr(sSTP)))
            A("s_and_b32 %s, %s, 31" % (sr(sA), sr(sSTP)))
            A("s_cbranch_scc0 L_pr%d" % k)
            A("L_pw%d:" % k)
            A("s_waitcnt vmcnt(0)")
            A("s_cmp_lt_u32 %s, %d" % (sr(sSTP), SPIN))
            A("s_cbranch_scc1 L_pt%d" % k)
            A("L_pd%d:" % k)
            self.tail += ["L_pr%d:" % k] + plain(self.publish(2, 63)) + ["s_branch L_pw%d" % k]

        def loads(k, attempt=False):
            if attempt:
                A("s_cselect_b32 %s, 1, 0" % sr(sL))
                A("s_cselect_b32 %s, %d, %s" % (sr(sC), OOB, sr(sLDB)))
            else:
                A("s_mov_b32 %s, %s" % (sr(sC), sr(sLDB)))
            for h, e in enumerate(groups[k]):
                A("s_xor_b32 %s, %s, %d" % (sr(sA), sr(sX), e))
                A("s_mul_i32 %s, %s, 3072" % (sr(sA), sr(sA)))
                A("s_add_u32 %s, %s, %s" % (sr(sA), sr(sA), sr(sC)))
                for jq in range(3):
                    off = " offset:%d" % (1024 * jq) if jq else ""
                    A("buffer_load_dwordx4 %s, %s, %s, %s offen%s sc1" % (vr(vLD[k] + 12 * h + 4 * jq, 4), vr(vSTA), sr(dS, 4), sr(sA), off))

        def add(k, jqs=(0, 1, 2)):
            for jq in jqs:
                for h in range(len(groups[k])):
                    for i in range(4):
                        for e in range(2):
                            a = vr(vAC + 8 * jq + 2 * i + e)
                            A("v_dot2_f32_bf16 %s, %s, %s, %s" % (a, vr(vLD[k] + 12 * h + 4 * jq + i), sr(sDOT + e), a))

        self.emit_all(self.publish(2, 0))
        self.stamp("pub")
        for jq in range(3):
            for x in range(8):
                A("v_accvgpr_read_b32 %s, %s" % (vr(vAC + 8 * jq + x), ar(168 + 4 * jq + 12 * (x // 4) + x % 4)))
        ensure(0)
        loads(0)
        self.stamp("xa")
        test(1)
        loads(1, True)
        A(poll)
        if o.bfirst:
            A("s_cmp_eq_u32 %s, 0" % sr(sL))
            A("s_cbranch_scc1 L_second")
            A("s_waitcnt vmcnt(0)")
            test(1)
            loads(1, True)
            A(poll)
            A("L_second:")
        A("s_waitcnt vmcnt(10)")
        add(0)
        self.stamp("xs")
        A("s_cmp_eq_u32 %s, 0" % sr(sL))
        A("s_cbranch_scc1 L_have")
        A("s_waitcnt vmcnt(0)")
        ensure(1)
        loads(1)
        A("s_waitcnt vmcnt(0)")
        A("L_have:")
        self.stamp("xb")
        A("s_waitcnt vmcnt(1)")
        self.stamp("xf")
        for jq in range(3):
            a = vAC + 8 * jq
            add(1, (jq,))
            A("s_nop 2")
            for i in range(4):
                A("v_cvt_pk_bf16_f32 %s, %s, %s" % (vr(a + i), vr(a + 2 * i), vr(a + 2 * i + 1)))
            A("s_nop 1")
            A("v_permlane32_swap_b32 %s, %s" % (vr(a), vr(a + 2)))
            A("v_permlane32_swap_b32 %s, %s" % (vr(a + 1), vr(a + 3)))
            A("s_nop 1")
            A("v_permlane16_swap_b32 %s, %s" % (vr(a), vr(a + 2)))
            A("v_permlane16_swap_b32 %s, %s" % (vr(a + 1), vr(a + 3)))
            A("buffer_store_dwordx4 %s, %s, %s, %s offen%s" % (vr(a, 4), vr(vOUT), sr(dK, 4), sr(sOUT), o.out_flag))
            if jq < 2:
                A("s_add_u32 %s, %s, 32768" % (sr(sOUT), sr(sOUT)))

    def write_stamps(self):
        A = self.A
        A("s_waitcnt vmcnt(0)")
        self.stamp("end")
        A("s_waitcnt lgkmcnt(0)")
        A("s_cmp_lg_u32 %s, 0" % sr(sW))
        A("s_cbranch_scc1 L_end")
        A("s_mov_b64 exec, 1")
        A("s_mul_i32 s3, s2, %d" % (NSTAMP * 8))
        A("s_add_u32 s3, s3, %d" % STAMP_OFF)
        A("v_mov_b32 v6, 0")
        for i in range(NSTAMP):
            A("v_mov_b32 v8, s%d" % (sSTAMP + 2 * i))
            A("v_mov_b32 v9, s%d" % (sSTAMP + 2 * i + 1))
            A("buffer_store_dwordx2 v[8:9], v6, %s, s3 offen offset:%d" % (sr(dS, 4), 8 * i))
            A("s_nop 1")

    def build(self):
        A, o = self.A, self.o
        lab = NAME + "_kernel"
        A("; @launch grid=(256,1,1) block=(256,1,1) lds=163840")
        A('.amdgcn_target "amdgcn-amd-amdhsa--gfx950"')
        A(".text")
        A(".globl %s" % lab)
        A(".p2align 8")
        A(".type %s,@function" % lab)
        A("%s:" % lab)
        self.make_tiles()
        self.prologue()
        self.q0_phase()
        self.attention()
        self.o1_phase()
        if o.stamps:
            self.write_stamps()
        A("L_end:")
        A("s_endpgm")
        self.rare()
        for x in self.tail:
            A(x)
        A("L_codeend:")
        A('.section .rodata,"a"')
        A(".p2align 6")
        A(".amdhsa_kernel %s" % lab)
        A("  .amdhsa_next_free_vgpr 512")
        A("  .amdhsa_next_free_sgpr 100")
        A("  .amdhsa_accum_offset 256")
        A("  .amdhsa_group_segment_fixed_size 0")
        A("  .amdhsa_kernarg_size 104")
        A("  .amdhsa_user_sgpr_count 2")
        A("  .amdhsa_user_sgpr_kernarg_segment_ptr 1")
        A("  .amdhsa_system_sgpr_workgroup_id_x 1")
        A(".end_amdhsa_kernel")
        return "\n".join(self.L) + "\n"


def parse_opts(args):
    kw = {}
    for a in args:
        k, v = a.split("=", 1)
        cur = getattr(Opt, k)
        if isinstance(cur, bool):
            kw[k] = v not in ("0", "False")
        elif isinstance(cur, int):
            kw[k] = int(v)
        else:
            kw[k] = (" " + v.replace("+", " ")) if v else ""
    return kw


if __name__ == "__main__":
    open(sys.argv[1], "w").write(Gen(Opt(**parse_opts(sys.argv[2:]))).build())
```

```python
import math
import struct
import sys

NAME = "concat_heads__mha_block_cached__mha_block_cached__near_ridge"
WS_BYTES = 288358400
STAMP_OFF = WS_BYTES - (1 << 20)
NSTAMP = 10


def f32(x):
    return "0x%08x" % struct.unpack("<I", struct.pack("<f", x))[0]


class Opt:
    stamps = False
    cyc = False
    prof = 0
    kv_flag = " nt"
    w_flag = ""
    x_flag = ""
    out_flag = ""
    touch = True
    ctouch = 22
    xoct = 1
    xq = 0
    x1pre = False
    xplan = 4
    kv_oob = False
    nomf = 0
    fshift = 7
    pub1 = 14
    kvt = 0
    kvt0 = 1
    kvtm = 5
    kvtn = 1
    kvti = False
    tlb = 0
    np0 = "1111111111111111"
    np1 = "0111111111111112"
    retouch = True
    bfirst = True
    oplan = 0
    qsplit = 120
    olim = 1
    t0first = True
    oord = 1
    xhalf = True
    wspread = True
    pmask = False
    kvdefer = 0
    kvtl = 31
    aall = False
    opv = 3
    vend = 16

    def __init__(self, **kw):
        for k, v in kw.items():
            assert hasattr(Opt, k), k
            setattr(self, k, v)


sW, sP, sHF, sB, sBLK, sHG, sX, sKVO = 4, 5, 6, 7, 8, 9, 10, 11
dK, dV, dW, dX, dS = 12, 16, 32, 36, 40
dC = dX
pX, pK, pV, pWQ, pWO, pWS = 20, 22, 24, 26, 28, 30
pOUT, sFLO, sFLC, sGC, sSTP, sLDB, sOUT, sHX, sXC = 20, 22, 23, 24, 25, 26, 27, 30, 31
sKV, sWOFF, sXO, sM0, sIT, sKVB, sTH, sLO = 44, 45, 46, 47, 48, 49, 50, 51
sA, sB2, sC, sE = 52, 53, 54, 55
sWQB, sWOB, sWT, sCGX, sXB, sST, sL, sSTB = 56, 57, 58, 59, 60, 61, 62, 63
sO1, sRET, sXM, sCG0, sSTAMP = 64, 68, 70, 71, 72
sKS, sKW = 92, 96
sALT, sDOT = sKS, sKW
sTM, sTO = sST, sL

vLANE, vLK, vB = 1, 2, 3
vO, vL, vNEGM, vS, vP = 4, 100, 112, 124, 148
vQ, vBF, vONES = 160, 208, 220
aF = (192, 224)
vVA, vKA, vOKV, vOW, vT = 224, 232, 236, 240, 244
vEXW, vSTA, vDUM, vCHK = 252, 253, 254, 255
vPA, vPD, vFV, vZ, vOUT, vPT = 152, 153, 154, 155, 156, 157

SLOT = 16384
XB = 65536
EX = 65536
EXTRA = 114688
FLAGS = 32 << 20
SPIN = 100000
OOB = 0x7ff00000
MF = "v_mfma_f32_16x16x32_bf16"
O1_TILES = [(c, i) for c in range(4) for i in range(4)]
O1_ALT = [(0, 0), (1, 0), (0, 1), (0, 2), (0, 3), (1, 1), (1, 2), (1, 3)] + O1_TILES[8:]
vOX = 148


def vr(a, n=1):
    return "v%d" % a if n == 1 else "v[%d:%d]" % (a, a + n - 1)


def ar(a, n=1):
    return "a%d" % a if n == 1 else "a[%d:%d]" % (a, a + n - 1)


def sr(a, n=1):
    return "s%d" % a if n == 1 else "s[%d:%d]" % (a, a + n - 1)


def txt(x):
    return x[0] if isinstance(x, tuple) else x


def plain(xs):
    return [txt(x) for x in xs]


def is_label(x):
    return not isinstance(x, tuple) and x.endswith(":")


def spread(base, ins):
    out, k = [], 0
    for i, x in enumerate(base):
        out.append(x)
        while k < len(ins) and (k + 1) * len(base) <= (i + 1) * (len(ins) + 1):
            out.append(ins[k])
            k += 1
    return out + ins[k:]


class Gen:
    def __init__(self, o):
        self.o = o
        if o.oord:
            O1_TILES[:] = O1_ALT
        self.L = []
        self.vm = []
        self.tail = []
        self.uid = 0

    def A(self, s):
        self.L.append(s)

    def emit(self, x):
        if txt(x).endswith(" lds") and " m0," in self.L[-1]:
            self.A("s_nop 0")
        self.A(txt(x))
        if isinstance(x, tuple):
            self.vm.append(x[1])

    def emit_all(self, xs):
        for x in xs:
            self.emit(x)

    def stamp(self, name):
        tables = {0: ["start", "q0", "qend", "a0", "a0end", "a1", "a1end", "o16", "pub", "end"],
                  1: ["start"] + ["q%d" % k for k in range(8)] + ["end"],
                  2: ["start"] + ["q%d" % k for k in range(8, 16)] + ["qend"],
                  3: ["start", "a1end"] + ["o%d" % k for k in range(8)],
                  4: ["start"] + ["o%d" % k for k in range(8, 16)] + ["o16"],
                  10: ["start", "q12", "q13", "q14", "q15", "qend", "a0", "s0_1", "s0_2", "s0_3"],
                  11: ["start", "s0_14", "s0_15", "s1_0", "s1_1", "s1_2", "s1_13", "s1_14", "last", "a1end"],
                  8: ["start"] + ["s0_%d" % k for k in range(0, 16, 2)] + ["end"],
                  9: ["start"] + ["s1_%d" % k for k in range(0, 16, 2)] + ["end"],
                  5: ["start", "a1end", "o0", "o16", "pub", "xa", "xs", "xb", "xf", "end"]}
        if self.o.prof == 6:
            t = ["start", "a0", "", "a0end", "", "a1", "", "a1end", "", "end"]
            if self.o.stamps and name in t:
                k = t.index(name)
                self.A("s_memrealtime %s" % sr(sSTAMP + 2 * k, 2))
                if 0 < k < 9:
                    self.A("s_memtime %s" % sr(sSTAMP + 2 * k + 2, 2))
            return
        if self.o.prof == 7:
            if self.o.stamps and name in ("start", "end"):
                self.A("s_memrealtime %s" % sr(sSTAMP + (0 if name == "start" else 18), 2))
            if self.o.stamps and name == "iter":
                for k in range(1, 8):
                    self.A("s_mov_b64 %s, %s" % (sr(sSTAMP + 2 * k, 2), sr(sSTAMP + 2 * k + 2, 2)))
                self.A("s_memrealtime %s" % sr(sSTAMP + 16, 2))
            return
        t = tables[self.o.prof]
        if self.o.stamps and name in t:
            self.A("%s %s" % ("s_memtime" if self.o.cyc else "s_memrealtime", sr(sSTAMP + 2 * t.index(name), 2)))

    def vm_need(self, tags):
        idx = max([i for i, t in enumerate(self.vm) if t in tags] + [-1])
        n = len(self.vm) - 1 - idx
        self.vm = self.vm[idx + 1:]
        return n

    def sync(self, n):
        self.A("s_waitcnt vmcnt(%d) lgkmcnt(0)" % n)
        self.A("s_barrier")

    def pat(self, mf, pattern, ds=(), dq=(), vq=()):
        ds, dq, vq = list(ds), list(dq), list(vq)
        assert len(pattern) == len(mf), (len(pattern), len(mf))

        def labels(q):
            while q and is_label(q[0]):
                self.emit(q.pop(0))

        for m, gap in zip(mf, pattern):
            self.A(m if not self.o.nomf else "s_nop 0")
            for ch in gap:
                if ch == "t" and ds:
                    self.emit(ds.pop(0))
                elif ch == "s" and dq and not txt(dq[0]).startswith("buffer_"):
                    self.emit(dq.pop(0))
                    labels(dq)
                elif ch == "d" and dq:
                    while dq and not txt(dq[0]).startswith("buffer_"):
                        self.emit(dq.pop(0))
                    if dq:
                        self.emit(dq.pop(0))
                elif ch == "n":
                    self.A("s_nop 1")
                elif ch == "v" and vq:
                    self.emit(vq.pop(0))
                    labels(vq)
        self.emit_all(ds + dq + vq)

    def auto(self, mf, ds=(), dq=(), vq=(), v0=0, vend=None):
        n = len(mf)
        nd = len([x for x in dq if txt(x).startswith("buffer_")])
        ds_end, first = n - 5, 3
        dpos = [first + int(k * (n - 2 - first) / max(nd - 1, 1) + 0.5) for k in range(nd)] if nd > 1 else ([first] if nd else [])
        pattern, left, vleft = [], len(ds), [x for x in vq if not is_label(x)]
        for g in range(n):
            k = dpos.count(g)
            if k:
                pattern.append("d" * k)
                continue
            gaps_ds = len([h for h in range(g, ds_end + 1) if h not in dpos])
            nds = 0 if left == 0 else min(2, -(-left // max(gaps_ds, 1)))
            nv = 0
            if g >= v0 and vleft:
                gaps_v = max(1, len([h for h in range(g, vend or n) if h not in dpos]))
                if isinstance(vleft[0], tuple):
                    nv = 1
                    if left <= 2 * (gaps_ds - 1):
                        nds = 0
                else:
                    nv = max(2 - nds, -(-len(vleft) // gaps_v))
                    for q in range(min(nv, len(vleft))):
                        if q and isinstance(vleft[q], tuple):
                            nv = q
                            break
                vleft = vleft[nv:]
            left -= nds
            pattern.append("t" * nds + "s" * max(0, 3 - nds - nv) + "v" * nv)
        self.pat(mf, pattern, ds, dq, vq)

    def srd(self, d, p, size):
        return ["s_mov_b32 %s, %s" % (sr(d), sr(p)), "s_and_b32 %s, %s, 0xffff" % (sr(d + 1), sr(p + 1)),
                "s_mov_b32 %s, %d" % (sr(d + 2), size), "s_mov_b32 %s, 0x20000" % sr(d + 3)]

    def dma(self, loc, srd, voff, soff, flag, tag, cnt=4, m0=sM0, nop=False):
        out = ["s_add_u32 m0, %s, %d" % (sr(m0), loc)] + (["s_nop 0"] if nop else [])
        for i in range(cnt):
            off = " offset:%d" % (1024 * i) if i else ""
            out.append(("buffer_load_dwordx4 %s, %s, %s offen%s%s lds" % (vr(voff + i), sr(srd, 4), sr(soff), off, flag), tag))
        return out

    def voff_std(self, dst, mul_i, mul_r, flip=None):
        t0, t1 = vT + 6, vT + 7
        return ["v_lshrrev_b32 %s, 4, %s" % (vr(t0), vr(vLANE)),
                "v_and_b32 %s, 15, %s" % (vr(t1), vr(vLANE)),
                "v_lshlrev_b32 %s, 1, %s" % (vr(dst), vr(t0)),
                "v_xor_b32 %s, %s, %s" % (vr(t1), vr(t1), vr(dst)),
                "v_lshlrev_b32 %s, 4, %s" % (vr(t1), vr(t1))] + \
            (["v_xor_b32 %s, %s, %s" % (vr(t1), sr(flip), vr(t1))] if flip is not None else []) + \
            ["v_mul_u32_u24 %s, %d, %s" % (vr(t0), mul_r, vr(t0)),
             "v_add_u32 %s, %s, %s" % (vr(dst), vr(t0), vr(t1)),
             "v_xor_b32 %s, 0x80, %s" % (vr(t1), vr(t1)),
             "v_add_u32 %s, %s, %s" % (vr(dst + 1), vr(t0), vr(t1)),
             "v_add_u32 %s, %d, %s" % (vr(dst + 2), 2 * mul_i, vr(dst)),
             "v_add_u32 %s, %d, %s" % (vr(dst + 3), 3 * mul_i, vr(dst + 1)),
             "v_add_u32 %s, %d, %s" % (vr(dst + 1), mul_i, vr(dst + 1))]

    def voff_o1(self, dst):
        t0, t1 = vT + 6, vT + 7
        out = ["s_and_b32 %s, %s, 1" % (sr(sA), sr(sX)),
               "s_lshl_b32 %s, %s, 2" % (sr(sA), sr(sA)),
               "v_lshrrev_b32 %s, 3, %s" % (vr(t0), vr(vLANE)),
               "v_and_b32 %s, 7, %s" % (vr(t1), vr(vLANE)),
               "v_and_b32 %s, 6, %s" % (vr(dst), vr(t0)),
               "v_xor_b32 %s, %s, %s" % (vr(t1), vr(t1), vr(dst)),
               "v_xor_b32 %s, %s, %s" % (vr(t1), sr(sA), vr(t1)),
               "v_lshlrev_b32 %s, 4, %s" % (vr(t1), vr(t1)),
               "v_lshl_add_u32 %s, %s, 10, %s" % (vr(dst), vr(t0), vr(t1))]
        for i in range(1, 4):
            out.append("v_add_u32 %s, %d, %s" % (vr(dst + i), 7168 * i, vr(dst)))
        return out

    def cg_of(self, dst, c):
        return ["s_add_u32 %s, %s, %s" % (sr(dst), sr(sCG0), c), "s_and_b32 %s, %s, 3" % (sr(dst), sr(dst))]

    def wq_group(self, c):
        return self.cg_of(sA, c) + ["s_lshl_b32 %s, %s, 20" % (sr(sA), sr(sA)),
                                    "s_add_u32 %s, %s, %s" % (sr(sWT), sr(sA), sr(sWQB))]

    def wq_params(self, i):
        return ["s_add_u32 %s, %s, %s" % (sr(sWOFF), sr(sWT), sr(sKW + i))]

    def x_group(self, c):
        return self.cg_of(sB2, c) + ["s_mul_i32 %s, %s, 24576" % (sr(sB2), sr(sB2)),
                                     "s_add_u32 %s, %s, %s" % (sr(sCGX), sr(sB2), sr(sXB))]

    def x_addr(self, i):
        return ["v_xor_b32 %s, %s, %s" % (vr(vB), sr(sKS + i), vr(vLK)),
                "v_add_u32 %s, %s, %s" % (vr(vB), sr(sCGX), vr(vB))]

    def kv_params(self):
        return ["s_add_u32 %s, %s, %s" % (sr(sKV), sr(sKVO), sr(sKVB)),
                "s_add_u32 %s, %s, 8192" % (sr(sKVO), sr(sKVO)),
                "s_and_b32 %s, %s, 0x1ffff" % (sr(sKVO), sr(sKVO))]

    def o1_off(self, dst, n):
        c, i = O1_TILES[n]
        return ["s_xor_b32 %s, %s, %d" % (sr(dst), sr(sXC), 128 * c), "s_add_u32 %s, %s, %s" % (sr(dst), sr(dst), sr(sO1 + i))]

    def x_dma(self, c):
        o = self.o
        out = self.cg_of(sA, "%d" % c)
        out += ["s_mul_i32 %s, %s, 24576" % (sr(sB2), sr(sA)),
                "s_mul_i32 %s, %s, 6144" % (sr(sXM), sr(sW)),
                "s_add_u32 %s, %s, %s" % (sr(sXM), sr(sXM), sr(sB2)),
                "s_lshl_b32 %s, %s, 8" % (sr(sA), sr(sA)),
                "s_mul_i32 %s, %s, 98304" % (sr(sXO), sr(sB)),
                "s_add_u32 %s, %s, %s" % (sr(sXO), sr(sXO), sr(sA)),
                "s_mul_i32 %s, %s, 24576" % (sr(sA), sr(sW)),
                "s_add_u32 %s, %s, %s" % (sr(sXO), sr(sXO), sr(sA))]
        out += self.dma(XB, dX, vOX, sXO, o.x_flag, ("x", c), 4, sXM)
        out += ["s_add_u32 %s, %s, 16384" % (sr(sXO), sr(sXO))]
        out += self.dma(XB + 4096, dX, vOX, sXO, o.x_flag, ("x", c), 2, sXM)
        return out

    def code_touch_small(self, label, t, d, back=False):
        self.uid += 1
        k = self.uid
        return ["s_getpc_b64 %s" % sr(d, 2), "L_pc%d:" % k,
                "s_add_u32 %s, %s, %s-L_pc%d" % (sr(d), sr(d), label, k),
                "s_addc_u32 %s, %s, %d" % (sr(d + 1), sr(d + 1), -1 if back else 0),
                "s_and_b32 %s, %s, 0xffff" % (sr(d + 1), sr(d + 1)),
                "s_mov_b32 %s, L_codeend-%s" % (sr(d + 2), label),
                "s_mov_b32 %s, 0x20000" % sr(d + 3),
                "s_and_b32 %s, %s, 7" % (sr(sA), sr(sB)),
                "s_lshl_b32 %s, %s, 2" % (sr(sA), sr(sA)),
                "s_add_u32 %s, %s, %s" % (sr(sA), sr(sA), sr(sW)),
                "s_lshl_b32 %s, %s, 11" % (sr(sA), sr(sA)),
                "v_and_b32 %s, 15, %s" % (vr(t), vr(vLANE)),
                "v_lshlrev_b32 %s, 7, %s" % (vr(t), vr(t)),
                ("buffer_load_dword %s, %s, %s, %s offen" % (vr(vDUM), vr(t), sr(d, 4), sr(sA)), "touch")]

    def code_touch(self, label, t, back=False):
        self.uid += 1
        k = self.uid
        return ["s_getpc_b64 %s" % sr(dC, 2), "L_pc%d:" % k,
                "s_add_u32 %s, %s, %s-L_pc%d" % (sr(dC), sr(dC), label, k),
                "s_addc_u32 %s, %s, %d" % (sr(dC + 1), sr(dC + 1), -1 if back else 0),
                "s_and_b32 %s, %s, 0xffff" % (sr(dC + 1), sr(dC + 1)),
                "s_mov_b32 %s, L_codeend-%s" % (sr(dC + 2), label),
                "s_lshl_b32 %s, %s, 13" % (sr(sA), sr(sW)),
                "v_lshlrev_b32 %s, 7, %s" % (vr(t), vr(vLANE)),
                ("buffer_load_dword %s, %s, %s, %s offen" % (vr(vDUM), vr(t), sr(dC, 4), sr(sA)), "touch")]

    def tr_reads(self, fset, slot):
        return ["ds_read_b64_tr_b16 %s, %s offset:%d" % (ar(aF[fset] + 4 * dt + 2 * e, 2), vr(vVA + dt), SLOT * slot + 4096 * e)
                for dt in range(8) for e in range(2)]

    def k_reads(self, fset, slot):
        return ["ds_read_b128 %s, %s offset:%d" % (ar(aF[fset] + 16 * kt + 4 * ks, 4), vr(vKA + ks), SLOT * slot + 4096 * kt)
                for kt in range(2) for ks in range(4)]

    def make_tiles(self):
        o = self.o
        n0 = [int(c) for c in o.np0.strip()]
        n1 = [int(c) for c in o.np1.strip()]
        self.nproj = (n0, n1)
        q = [("wq", 0, k) for k in range(16)]
        for rnd in range(2):
            k = 0
            for t in range(16):
                n = self.nproj[rnd][t]
                q.append(("k", rnd, t))
                if n:
                    q.append(("w", rnd, k))
                if n == 2 and (rnd, t) == (1, 15):
                    q.append(("w", rnd, k + 1))
                q.append(("v", rnd, t))
                if n == 2 and (rnd, t) != (1, 15):
                    q.append(("w", rnd, k + 1))
                k += n
            assert k == 16
        q += [("o", 1, n) for n in range(16)]
        if o.t0first:
            q.remove(("o", 1, 0))
            q.insert(q.index(("v", 1, 15)), ("o", 1, 0))
        self.loadq = q
        self.free = [SLOT * n for n in range(4)]
        self.ofree = []
        self.tofree = []
        self.loc = {}
        self.par = 0
        self.olimit = o.olim

    def tile_dma(self, tile, loc):
        o = self.o
        kind, rnd, k = tile
        if kind == "wq" or (kind == "w" and rnd == 0):
            pre = ["s_add_u32 %s, %s, 256" % (sr(sWQB), sr(sWQB))] if (kind == "w" and k == 0) else []
            pre += (self.wq_group("%d" % (k // 4)) if k % 4 == 0 else []) + self.wq_params(k % 4)
            return pre + self.dma(loc, dW, vOW, sWOFF, o.w_flag, tile)
        if kind in "kv":
            pre = []
            if tile == ("k", 1, 0):
                pre = ["s_add_u32 %s, %s, 131072" % (sr(sKVB), sr(sKVB))]
            pre += ["s_add_u32 %s, %s, %d" % (sr(sKV), sr(sKVO), 8192 * k), "s_and_b32 %s, %s, 0x1ffff" % (sr(sKV), sr(sKV)),
                    "s_add_u32 %s, %s, %s" % (sr(sKV), sr(sKV), sr(sKVB))]
            return pre + self.dma(loc, dK if kind == "k" else dV, vOKV, sKV, o.kv_flag, tile)
        if kind == "w":
            pre = []
            if k == 0:
                pre = self.srd(dW, pWO, 4 << 20)[:2] + ["s_and_b32 %s, %s, 3" % (sr(sA), sr(sX)), "s_lshl_b32 %s, %s, 6" % (sr(sA), sr(sA))] + \
                    self.voff_std(vOW, 3072, 1024, sA)
            ks = k // 2
            pre += ["s_add_u32 %s, %s, %d" % (sr(sWOFF), sr(sWOB), 32768 * (ks % 4) + 262144 * (ks // 4))]
            if k % 2:
                pre += ["s_add_u32 %s, %s, %s" % (sr(sWOFF), sr(sWOFF), sr(sHX))]
            return pre + self.dma(loc, dW, vOW, sWOFF, o.w_flag, tile)
        return (self.voff_o1(vOW) if k == 0 else []) + self.o1_off(sWOFF, k) + self.dma(loc, dW, vOW, sWOFF, o.w_flag, tile)

    def next_loads(self, n):
        out = []
        while n and self.loadq:
            tile = self.loadq[0]
            if tile[0] == "o" and tile[2] > self.olimit:
                break
            if self.free:
                loc = self.free.pop(0)
            elif tile[0] == "o" and self.ofree:
                later = [x for x in self.loadq if x[2] >= 2]
                tile = later[0]
                loc = self.ofree.pop(0)
            else:
                break
            self.loadq.remove(tile)
            self.loc[tile] = loc
            out += self.tile_dma(tile, loc)
            n -= 1
        return out

    def open(self, tiles, also=()):
        for t in tiles:
            assert t in self.loc, t
        self.sync(self.vm_need(list(tiles) + list(also)))
        for loc in self.tofree:
            (self.free if loc < XB else self.ofree).append(loc)
        self.tofree = [self.loc[t] for t in tiles]

    def q_finalize(self, from_agpr):
        out = ["s_mov_b32 %s, %s" % (sr(sE), f32(math.log2(math.e) / math.sqrt(128.0)))]
        blocks = []
        for j in range(3):
            for ks in range(4):
                pre = []
                d = vQ + 12 * ks + 4 * j
                if from_agpr:
                    a, b = d, vBF + 4 * (len(blocks) % 3)
                    pre += ["v_accvgpr_read_b32 %s, %s" % (vr(a + i), ar(24 * ks + 4 * j + i)) for i in range(4)]
                    pre += ["v_accvgpr_read_b32 %s, %s" % (vr(b + i), ar(24 * ks + 12 + 4 * j + i)) for i in range(4)]
                else:
                    a, b = vO + 24 * ks + 4 * j, vO + 24 * ks + 12 + 4 * j
                pre += ["v_mul_f32 %s, %s, %s" % (vr(x + y), sr(sE), vr(x + y)) for x in (a, b) for y in range(4)]
                pre += ["v_cvt_pk_bf16_f32 %s, %s, %s" % (vr(d), vr(a), vr(a + 1)),
                        "v_cvt_pk_bf16_f32 %s, %s, %s" % (vr(d + 1), vr(a + 2), vr(a + 3)),
                        "v_cvt_pk_bf16_f32 %s, %s, %s" % (vr(d + 2), vr(b), vr(b + 1)),
                        "v_cvt_pk_bf16_f32 %s, %s, %s" % (vr(d + 3), vr(b + 2), vr(b + 3))]
                s32 = ["v_permlane32_swap_b32 %s, %s" % (vr(d), vr(d + 2)), "v_permlane32_swap_b32 %s, %s" % (vr(d + 1), vr(d + 3))]
                s16 = ["v_permlane16_swap_b32 %s, %s" % (vr(d), vr(d + 2)), "v_permlane16_swap_b32 %s, %s" % (vr(d + 1), vr(d + 3))]
                blocks.append((pre, s32, s16))
        n = len(blocks)
        for k in range(n + 1):
            if k < n:
                pre = blocks[k][0]
                h = len(pre) // 2
                out += pre[:h]
            if k > 0:
                if k == n:
                    out.append("s_nop 1")
                out += blocks[k - 1][1]
            if k < n:
                out += pre[h:]
            else:
                out.append("s_nop 1")
            if k > 0:
                out += blocks[k - 1][2]
        return out

    def o_rcp(self, j):
        return ["v_rcp_f32 %s, %s" % (vr(vBF + j), vr(vL + 4 * j)), "s_nop 0"]

    def o_block(self, ks, j, write=True):
        a, b = vO + 24 * ks + 4 * j, vO + 24 * ks + 12 + 4 * j
        return ["v_mul_f32 %s, %s, %s" % (vr(x + y), vr(x + y), vr(vBF + j)) for x in (a, b) for y in range(4)] + \
            ["v_cvt_pk_bf16_f32 %s, %s, %s" % (vr(a), vr(a), vr(a + 1)),
             "v_cvt_pk_bf16_f32 %s, %s, %s" % (vr(a + 1), vr(a + 2), vr(a + 3)),
             "v_cvt_pk_bf16_f32 %s, %s, %s" % (vr(a + 2), vr(b), vr(b + 1)),
             "v_cvt_pk_bf16_f32 %s, %s, %s" % (vr(a + 3), vr(b + 2), vr(b + 3))] + ([self.o_write(ks, j)] if write else [])

    def o_write(self, ks, j):
        return "ds_write_b128 %s, %s offset:%d" % (vr(vEXW), vr(vO + 24 * ks + 4 * j, 4), 1024 * (3 * ks + j))

    def attention(self):
        A, o = self.A, self.o

        def mx(j):
            s0, s1, m = vS + 4 * j, vS + 12 + 4 * j, vT + j
            return ["v_max3_f32 %s, %s, %s, %s" % (vr(m), vr(s0), vr(s0 + 1), vr(s0 + 2)),
                    "v_max3_f32 %s, %s, %s, %s" % (vr(m), vr(m), vr(s0 + 3), vr(s1)),
                    "v_max3_f32 %s, %s, %s, %s" % (vr(m), vr(m), vr(s1 + 1), vr(s1 + 2)),
                    "v_max_f32 %s, %s, %s" % (vr(m), vr(m), vr(s1 + 3))]

        def ex(kt, j):
            a = vS + 12 * kt + 4 * j
            return ["v_exp_f32 %s, %s" % (vr(a + x), vr(a + x)) for x in range(4)]

        def cv(j):
            return ["v_cvt_pk_bf16_f32 %s, %s, %s" % (vr(vP + 4 * j + 2 * kt + h), vr(vS + 12 * kt + 4 * j + 2 * h), vr(vS + 12 * kt + 4 * j + 2 * h + 1))
                    for kt in range(2) for h in range(2)]

        def check():
            self.uid += 1
            k = self.uid
            self.tail += ["L_rs%d:" % k, "s_call_b64 %s, L_rare" % sr(sRET, 2), "s_branch L_rb%d" % k]
            return ["v_max3_f32 %s, %s, %s, %s" % (vr(vT + 3), vr(vT), vr(vT + 1), vr(vT + 2)),
                    "v_cmp_lt_f32 vcc, %s, %s" % (sr(sTH), vr(vT + 3)), "s_cbranch_vccnz L_rs%d" % k, "L_rb%d:" % k]

        def init():
            out = []
            for op in ("v_permlane32_swap_b32", "v_permlane16_swap_b32"):
                out += ["v_mov_b32 %s, %s" % (vr(vT + 3 + j), vr(vT + j)) for j in range(3)] + ["s_nop 0"]
                out += ["%s %s, %s" % (op, vr(vT + j), vr(vT + 3 + j)) for j in range(3)]
                out += ["v_max_f32 %s, %s, %s" % (vr(vT + j), vr(vT + j), vr(vT + 3 + j)) for j in range(3)]
            for j in range(3):
                out += ["v_sub_f32 %s, %s, %s" % (vr(b + i), vr(b + i), vr(vT + j)) for b in (vS + 4 * j, vS + 12 + 4 * j) for i in range(4)]
                out += ["v_sub_f32 %s, 0, %s" % (vr(vNEGM + 4 * j + i), vr(vT + j)) for i in range(4)]
            return out

        def qk(first):
            mf = []
            for j in range(3):
                for kt in range(2):
                    for ks in range(4):
                        acc = vr(vS + 12 * kt + 4 * j, 4)
                        c = acc if ks else ("0" if first else vr(vNEGM + 4 * j, 4))
                        mf.append("%s %s, %s, %s, %s" % (MF, acc, ar(aF[self.par] + 16 * kt + 4 * ks, 4), vr(vQ + 12 * ks + 4 * j, 4), c))
            return mf

        def pv(first):
            mf = []
            for j in range(3):
                mf.append("%s %s, %s, %s, %s" % (MF, vr(vL + 4 * j, 4), vr(vONES, 4), vr(vP + 4 * j, 4), "0" if first else vr(vL + 4 * j, 4)))
                for dt in range(8):
                    acc = vr(vO + 12 * dt + 4 * j, 4)
                    mf.append("%s %s, %s, %s, %s" % (MF, acc, ar(aF[self.par] + 4 * dt, 4), vr(vP + 4 * j, 4), "0" if first else acc))
            return mf

        def proj(rnd, k):
            mf = []
            for dt in range(8):
                for j in range(3):
                    acc = ar((96 * (k % 2) if rnd else 0) + 12 * dt + 4 * j, 4)
                    mf.append("%s %s, %s, %s, %s" % (MF, acc, ar(aF[self.par] + 4 * dt, 4), vr(vBF + 4 * j, 4), "0" if k < rnd + 1 else acc))
            return mf

        def b_parts(rnd, k):
            if rnd == 0:
                return (self.x_group("%d" % (k // 4)) if k % 4 == 0 else []), self.x_addr(k % 4), \
                    ["ds_read_b128 %s, %s offset:%d" % (vr(vBF + 4 * j, 4), vr(vB), 4096 * j) for j in range(3)]
            ks = k // 2
            rd = [] if k % 2 else ["ds_read_b128 %s, %s offset:%d" % (vr(vBF + 4 * j, 4), vr(vB), 24576 * (ks // 4) + 3072 * (ks % 4) + 1024 * j)
                                   for j in range(3)]
            return [], ["s_nop 0", "s_nop 0"], rd

        def tr(tile):
            return self.tr_reads(1 - self.par, self.loc[tile] // SLOT)

        def kr(tile):
            return self.k_reads(1 - self.par, self.loc[tile] // SLOT)

        patK = "tss tss tss tss tts d tv tv t t tt d tv tv tv ttv d t t vv vv d ss _".split()
        patW = "tss tts d tv tv vv vvv v d tv tv tv tv tv d tv tv tv tv ttv d ssvv vv v".split()
        patV = "sv sv sv sv svv svv sv d v v v v d v v tv tvv tvvn tt t d tt t _ d ss ss".split()
        patV2 = "tsv tsv tsv tsv tvv tvv tsv d tv tv tv tv d tv tv tv tvv tvvn t t d t t _ d ss ss".split()
        self.softmax_parts = (mx, ex, cv, check, qk, pv, proj, b_parts, tr, patK)
        for rnd in range(2):
            k = 0
            self.stamp("a%d" % rnd)
            for t in range(16):
                n, first = self.nproj[rnd][t], t == 0
                K, V, W1, W2 = ("k", rnd, t), ("v", rnd, t), ("w", rnd, k), ("w", rnd, k + 1)
                KN = ("k", rnd + (t + 1) // 16, (t + 1) % 16)
                if (rnd, t) == (1, 15):
                    self.klast = k
                    return
                nd = 1
                self.stamp("s%d_%d" % (rnd, t))
                self.open([W1 if n else V])
                par, vq, brd = b_parts(rnd, k) if n else ([], ["s_nop 0", "s_nop 0"], [])
                self.pat(qk(first), patK, tr(W1 if n else V) + brd, par + self.next_loads(nd), vq + mx(0) + mx(1))
                self.par ^= 1
                vq = mx(2) + (init() if first else check()) + ex(0, 0) + ex(1, 0) + cv(0) + ex(0, 1)
                if n:
                    self.open([V])
                    self.pat(proj(rnd, k), patW, tr(V), self.next_loads(nd), vq)
                    self.par ^= 1
                    if (rnd, t) == (0, 15):
                        assert n == 1
                        self.emit_all(["s_nop 6"] + self.q_finalize(True))
                else:
                    pre = []
                    if (rnd, t) == (1, 0):
                        for j in range(3):
                            pre += self.o_rcp(j)
                            for ks in range(4):
                                pre += self.o_block(ks, j)
                        pre += ["s_mul_i32 %s, %s, 12288" % (sr(sA), sr(sHF)), "s_add_u32 %s, %s, %d" % (sr(sA), sr(sA), EX),
                                "v_add_u32 %s, %s, %s" % (vr(vB), sr(sA), vr(vSTA))]
                    if (rnd, t) == (0, 15):
                        pre = self.q_finalize(True)
                    self.emit_all(pre or ["s_nop 6"])
                    self.emit_all(vq)
                self.open([W2 if n == 2 else KN])
                vq = ex(1, 1) + cv(1) + ex(0, 2) + ex(1, 2) + cv(2)
                d = self.next_loads(nd)
                if o.retouch and t in (2, 10):
                    self.uid += 1
                    d += ["L_here%d:" % self.uid] + self.code_touch_small("L_here%d" % self.uid, vT + 4, dC, True)
                if (rnd, t) == (1, 11) and o.touch:
                    d += self.wo_touch()
                if n == 2:
                    par, va, brd = b_parts(rnd, k + 1)
                    self.pat(pv(first), patV2, tr(W2) + brd, par + (va if rnd == 0 else []) + d, vq)
                    self.par ^= 1
                    self.open([KN])
                    self.auto(proj(rnd, k + 1), kr(KN), self.next_loads(nd))
                else:
                    self.pat(pv(first), patV, kr(KN), d, vq)
                self.par ^= 1
                k += n
            self.stamp("a%dend" % rnd)

    def wo_touch(self):
        t = vT + 4
        return ["s_lshl_b32 %s, %s, 3" % (sr(sA), sr(sB)),
                "s_lshl_b32 %s, %s, 2" % (sr(sB2), sr(sHF)),
                "s_add_u32 %s, %s, %s" % (sr(sA), sr(sA), sr(sB2)),
                "s_lshl_b32 %s, %s, 10" % (sr(sA), sr(sA)),
                "s_lshl_b32 %s, %s, 19" % (sr(sB2), sr(sHG)),
                "s_add_u32 %s, %s, %s" % (sr(sA), sr(sA), sr(sB2)),
                "s_lshl_b32 %s, %s, 18" % (sr(sB2), sr(sP)),
                "s_add_u32 %s, %s, %s" % (sr(sA), sr(sA), sr(sB2)),
                "s_add_u32 %s, %s, 131072" % (sr(sA), sr(sA)),
                "v_and_b32 %s, 31, %s" % (vr(t), vr(vLANE)),
                "v_lshlrev_b32 %s, 7, %s" % (vr(t), vr(t)),
                ("buffer_load_dword %s, %s, %s, %s offen" % (vr(vDUM), vr(t), sr(dW, 4), sr(sA)), "touch")]

    def rare(self):
        A = self.A
        A("L_rare:")
        for j in range(3):
            A("v_mov_b32 %s, %s" % (vr(vT + 3 + j), vr(vT + j)))
        A("s_nop 1")
        for j in range(3):
            A("v_permlane32_swap_b32 %s, %s" % (vr(vT + j), vr(vT + 3 + j)))
        for j in range(3):
            A("v_max_f32 %s, %s, %s" % (vr(vT + j), vr(vT + j), vr(vT + 3 + j)))
        for j in range(3):
            A("v_mov_b32 %s, %s" % (vr(vT + 3 + j), vr(vT + j)))
        A("s_nop 1")
        for j in range(3):
            A("v_permlane16_swap_b32 %s, %s" % (vr(vT + j), vr(vT + 3 + j)))
        for j in range(3):
            A("v_max3_f32 %s, %s, %s, 0" % (vr(vT + j), vr(vT + j), vr(vT + 3 + j)))
        for j in range(3):
            A("v_exp_f32 %s, -%s" % (vr(vT + 3 + j), vr(vT + j)))
        for j in range(3):
            for base in (vS + 4 * j, vS + 12 + 4 * j, vNEGM + 4 * j):
                for i in range(4):
                    A("v_sub_f32 %s, %s, %s" % (vr(base + i), vr(base + i), vr(vT + j)))
        for j in range(3):
            for base in [vO + 12 * dt + 4 * j for dt in range(8)] + [vL + 4 * j]:
                for i in range(4):
                    A("v_mul_f32 %s, %s, %s" % (vr(base + i), vr(base + i), vr(vT + 3 + j)))
        A("s_setpc_b64 %s" % sr(sRET, 2))

    def prologue(self):
        A, o = self.A, self.o
        A("s_cmp_ge_u32 s2, 256")
        A("s_cbranch_scc1 L_end")
        self.stamp("start")
        A("s_and_b32 %s, s2, 7" % sr(sA))
        A("s_lshr_b32 %s, s2, 3" % sr(sB2))
        A("s_lshr_b32 %s, %s, 2" % (sr(sBLK), sr(sA)))
        A("s_mul_i32 %s, %s, 40" % (sr(sC), sr(sBLK)))
        A("s_add_u32 s4, s0, %s" % sr(sC))
        A("s_addc_u32 s5, s1, 0")
        A("s_load_dwordx8 %s, s[4:5], 0" % sr(pX, 8))
        A("s_load_dwordx2 %s, s[4:5], 32" % sr(pWO, 2))
        A("s_load_dwordx2 %s, s[0:1], 96" % sr(pWS, 2))
        A("s_and_b32 %s, %s, 15" % (sr(sB), sr(sB2)))
        A("s_lshr_b32 %s, %s, 4" % (sr(sE), sr(sB2)))
        A("s_and_b32 %s, %s, 3" % (sr(sA), sr(sA)))
        A("s_lshl_b32 %s, %s, 1" % (sr(sHG), sr(sA)))
        A("s_add_u32 %s, %s, %s" % (sr(sHG), sr(sHG), sr(sE)))
        A("s_mul_i32 %s, %s, %d" % (sr(sA), sr(sA), o.xoct))
        A("s_mul_i32 %s, %s, %d" % (sr(sE), sr(sE), o.xq))
        A("s_add_u32 %s, %s, %s" % (sr(sCG0), sr(sB), sr(sA)))
        A("s_add_u32 %s, %s, %s" % (sr(sCG0), sr(sCG0), sr(sE)))
        A("s_lshr_b32 %s, %s, 2" % (sr(sE), sr(sB)))
        for i in range(4):
            A("s_add_u32 %s, %s, %d" % (sr(sC), sr(sE), i))
            A("s_and_b32 %s, %s, 3" % (sr(sC), sr(sC)))
            A("s_lshl_b32 %s, %s, 6" % (sr(sKS + i), sr(sC)))
            A("s_lshl_b32 %s, %s, 18" % (sr(sKW + i), sr(sC)))
        A("v_lshrrev_b32 %s, 6, v0" % vr(vT))
        A("v_and_b32 %s, 63, v0" % vr(vLANE))
        self.emit_all(self.voff_std(vOX, 3072, 1024))
        self.emit_all(self.voff_std(vOW, 65536 - 1024, 8192))
        A("s_waitcnt lgkmcnt(0)")
        A("v_readfirstlane_b32 %s, %s" % (sr(sW), vr(vT)))
        self.emit_all(self.srd(dX, pX, 16 * 98304))
        self.emit_all(self.srd(dW, pWQ, 4 << 20))
        A("s_lshr_b32 %s, %s, 1" % (sr(sP), sr(sW)))
        A("s_and_b32 %s, %s, 1" % (sr(sHF), sr(sW)))
        if o.ctouch & 8:
            self.emit_all(self.code_touch_small("L_p1", vT + 5, dK))
            A("L_p1:")
        self.emit_all(self.x_dma(0))
        A("s_lshl_b32 %s, %s, 12" % (sr(sM0), sr(sW)))
        A("s_lshl_b32 %s, %s, 1" % (sr(sA), sr(sHG)))
        A("s_add_u32 %s, %s, %s" % (sr(sA), sr(sA), sr(sP)))
        A("s_lshl_b32 %s, %s, 9" % (sr(sWQB), sr(sA)))
        A("s_lshl_b32 %s, %s, 15" % (sr(sA), sr(sHF)))
        A("s_add_u32 %s, %s, %s" % (sr(sWQB), sr(sWQB), sr(sA)))
        self.emit_all(self.next_loads(2))
        if o.ctouch & 4:
            self.emit_all(self.code_touch_small("L_q0", vT + 5, dK))
        self.emit_all(self.srd(dK, pK, 0 if o.kv_oob else 64 << 20))
        self.emit_all(self.srd(dV, pV, 0 if o.kv_oob else 64 << 20))
        self.emit_all(self.srd(dS, pWS, WS_BYTES))
        A("s_load_dwordx2 %s, s[0:1], 80" % sr(pOUT, 2))
        A("s_xor_b32 %s, %s, 7" % (sr(sX), sr(sHG)))
        A("s_lshl_b32 %s, %s, 22" % (sr(sKVB), sr(sB)))
        A("s_lshl_b32 %s, %s, 19" % (sr(sWOB), sr(sHG)))
        A("s_add_u32 %s, %s, %s" % (sr(sKVB), sr(sKVB), sr(sWOB)))
        A("s_lshl_b32 %s, %s, 18" % (sr(sA), sr(sP)))
        A("s_add_u32 %s, %s, %s" % (sr(sKVB), sr(sKVB), sr(sA)))
        A("s_lshl_b32 %s, %s, 12" % (sr(sA), sr(sHF)))
        A("s_add_u32 %s, %s, %s" % (sr(sKVB), sr(sKVB), sr(sA)))
        A("s_lshl_b32 %s, %s, 9" % (sr(sA), sr(sP)))
        A("s_add_u32 %s, %s, %s" % (sr(sWOB), sr(sWOB), sr(sA)))
        A("s_lshl_b32 %s, %s, 15" % (sr(sA), sr(sHF)))
        A("s_add_u32 %s, %s, %s" % (sr(sC), sr(sWOB), sr(sA)))
        A("s_add_u32 %s, %s, 131072" % (sr(sC), sr(sC)))
        A("s_lshl_b32 %s, %s, 18" % (sr(sA), sr(sP)))
        A("s_add_u32 %s, %s, %s" % (sr(sO1), sr(sC), sr(sA)))
        A("s_xor_b32 %s, %s, 262144" % (sr(sA), sr(sA)))
        A("s_add_u32 %s, %s, %s" % (sr(sO1 + 2), sr(sC), sr(sA)))
        A("s_add_u32 %s, %s, 65536" % (sr(sO1 + 1), sr(sO1)))
        A("s_add_u32 %s, %s, 65536" % (sr(sO1 + 3), sr(sO1 + 2)))
        A("s_lshl_b32 %s, %s, 14" % (sr(sA), sr(sHF)))
        A("s_add_u32 %s, %s, %s" % (sr(sWOB), sr(sWOB), sr(sA)))
        A("s_lshr_b32 %s, %s, 2" % (sr(sA), sr(sX)))
        A("s_lshl_b32 %s, %s, 8" % (sr(sA), sr(sA)))
        A("s_add_u32 %s, %s, %s" % (sr(sWOB), sr(sWOB), sr(sA)))
        A("s_lshl_b32 %s, %s, 1" % (sr(sA), sr(sA)))
        A("s_sub_u32 %s, 256, %s" % (sr(sHX), sr(sA)))
        A("s_lshr_b32 %s, %s, 1" % (sr(sA), sr(sX)))
        A("s_lshl_b32 %s, %s, 7" % (sr(sXC), sr(sA)))
        A("s_and_b32 %s, %s, 1" % (sr(sA), sr(sHG)))
        A("s_lshl_b32 %s, %s, 3" % (sr(sA), sr(sA)))
        A("s_add_u32 %s, %s, %s" % (sr(sA), sr(sB), sr(sA)))
        A("s_and_b32 %s, %s, 15" % (sr(sA), sr(sA)))
        A("s_lshl_b32 %s, %s, 13" % (sr(sKVO), sr(sA)))
        A("s_mul_i32 %s, %s, 12288" % (sr(sXB), sr(sHF)))
        A("s_add_u32 %s, %s, %d" % (sr(sXB), sr(sXB), XB))
        A("s_lshl_b32 %s, %s, 4" % (sr(sA), sr(sBLK)))
        A("s_add_u32 %s, %s, %s" % (sr(sA), sr(sA), sr(sB)))
        A("s_lshl_b32 %s, %s, 2" % (sr(sA), sr(sA)))
        A("s_add_u32 %s, %s, %s" % (sr(sA), sr(sA), sr(sW)))
        A("s_mul_i32 %s, %s, 196608" % (sr(sB2), sr(sA)))
        A("s_mul_i32 %s, %s, 3072" % (sr(sC), sr(sHG)))
        A("s_add_u32 %s, %s, %s" % (sr(sSTB), sr(sB2), sr(sC)))
        A("s_mul_i32 %s, %s, 24576" % (sr(sC), sr(sHG)))
        A("s_add_u32 %s, %s, %s" % (sr(sLDB), sr(sB2), sr(sC)))
        A("s_lshl_b32 %s, %s, 10" % (sr(sA), sr(sA)))
        A("s_add_u32 %s, %s, %d" % (sr(sFLC), sr(sA), FLAGS))
        A("s_lshl_b32 %s, %s, %d" % (sr(sA), sr(sHG), o.fshift))
        A("s_add_u32 %s, %s, %s" % (sr(sFLO), sr(sFLC), sr(sA)))
        self.emit_all(self.poll_addr())
        self.emit(("buffer_load_dword %s, %s, %s, %s offen sc1" % (vr(vCHK), vr(vPA), sr(dS, 4), sr(sFLC)), "fl"))
        A("s_mul_i32 %s, %s, 96" % (sr(sA), sr(sB)))
        A("s_mul_i32 %s, %s, 48" % (sr(sB2), sr(sHF)))
        A("s_add_u32 %s, %s, %s" % (sr(sA), sr(sA), sr(sB2)))
        A("s_lshl_b32 %s, %s, 11" % (sr(sA), sr(sA)))
        A("s_lshl_b32 %s, %s, 10" % (sr(sB2), sr(sBLK)))
        A("s_add_u32 %s, %s, %s" % (sr(sA), sr(sA), sr(sB2)))
        A("s_lshl_b32 %s, %s, 9" % (sr(sB2), sr(sP)))
        A("s_add_u32 %s, %s, %s" % (sr(sA), sr(sA), sr(sB2)))
        A("s_lshl_b32 %s, %s, 6" % (sr(sB2), sr(sHG)))
        A("s_add_u32 %s, %s, %s" % (sr(sOUT), sr(sA), sr(sB2)))
        if o.tlb:
            A("v_mov_b32 %s, 0" % vr(vZ))
            self.emit(("buffer_load_dword %s, %s, %s, %s offen nt" % (vr(vDUM), vr(vZ), sr(dK, 4), sr(sKVB)), "touch"))
            self.emit(("buffer_load_dword %s, %s, %s, %s offen nt" % (vr(vDUM), vr(vZ), sr(dV, 4), sr(sKVB)), "touch"))
        if o.kvt:
            A("s_mul_hi_u32 %s, %s, %d" % (sr(sA), sr(sB), (1 << 32) // o.kvtm + 1))
            A("s_mul_i32 %s, %s, %d" % (sr(sA), sr(sA), o.kvtm))
            A("s_sub_u32 %s, %s, %s" % (sr(sA), sr(sB), sr(sA)))
            A("s_lshl_b32 %s, %d, %s" % (sr(sTM), sum(1 << (o.kvt0 + o.kvtm * k) for k in range(o.kvt)), sr(sA)))
            A("s_mov_b32 %s, %s" % (sr(sTO), sr(sKVO)))
            t = vT + 4
            A("v_and_b32 %s, %d, %s" % (vr(t), o.kvtl, vr(vLANE)))
            A("v_lshlrev_b32 %s, 7, %s" % (vr(t), vr(t)))
            A("s_branch L_kvt_skip")
            A("L_kvt:")
            for k in range(o.kvtn):
                A("s_add_u32 %s, %s, %s" % (sr(sE), sr(sTO), sr(sKVB)))
                A("s_add_u32 %s, %s, 8192" % (sr(sTO), sr(sTO)))
                A("s_and_b32 %s, %s, 0x1ffff" % (sr(sTO), sr(sTO)))
                A("buffer_load_dword %s, %s, %s, %s offen" % (vr(vDUM), vr(t), sr(dK, 4), sr(sE)))
                A("buffer_load_dword %s, %s, %s, %s offen" % (vr(vDUM), vr(t), sr(dV, 4), sr(sE)))
            A("s_add_u32 %s, %s, 4" % (sr(sRET), sr(sRET)))
            A("s_addc_u32 %s, %s, 0" % (sr(sRET + 1), sr(sRET + 1)))
            A("s_setpc_b64 %s" % sr(sRET, 2))
            A("L_kvt_skip:")
        self.emit_all(self.voff_std(vOKV, 0, 256))
        t0, t1, t2 = vT, vT + 1, vT + 2
        A("v_and_b32 %s, 15, %s" % (vr(t0), vr(vLANE)))
        A("v_lshrrev_b32 %s, 4, %s" % (vr(t1), vr(vLANE)))
        A("v_and_b32 %s, 7, %s" % (vr(t2), vr(vLANE)))
        A("v_lshlrev_b32 %s, 1, %s" % (vr(t2), vr(t2)))
        A("v_xor_b32 %s, %s, %s" % (vr(t2), vr(t2), vr(t1)))
        A("v_lshlrev_b32 %s, 4, %s" % (vr(t2), vr(t2)))
        A("v_lshl_add_u32 %s, %s, 8, %s" % (vr(vLK), vr(t0), vr(t2)))
        A("v_lshrrev_b32 %s, 2, %s" % (vr(t0), vr(vLANE)))
        A("v_and_b32 %s, 7, %s" % (vr(t1), vr(t0)))
        A("v_lshlrev_b32 %s, 5, %s" % (vr(t1), vr(t1)))
        A("v_lshl_add_u32 %s, %s, 8, %s" % (vr(t0), vr(t0), vr(t1)))
        A("v_and_b32 %s, 3, %s" % (vr(t1), vr(vLANE)))
        A("v_lshl_add_u32 %s, %s, 3, %s" % (vr(t0), vr(t1), vr(t0)))
        A("s_lshl_b32 %s, %s, 13" % (sr(sA), sr(sP)))
        for dt in range(8):
            A("v_xor_b32 %s, %d, %s" % (vr(vVA + dt), dt << 5, vr(t0)))
            A("v_add_u32 %s, %s, %s" % (vr(vVA + dt), sr(sA), vr(vVA + dt)))
        for ks in range(4):
            A("v_xor_b32 %s, %d, %s" % (vr(vKA + ks), ks << 6, vr(vLK)))
            A("v_add_u32 %s, %s, %s" % (vr(vKA + ks), sr(sA), vr(vKA + ks)))
        A("s_mul_i32 %s, %s, 12288" % (sr(sA), sr(sW)))
        A("s_add_u32 %s, %s, %d" % (sr(sA), sr(sA), EX))
        A("v_lshlrev_b32 %s, 4, %s" % (vr(vSTA), vr(vLANE)))
        A("v_add_u32 %s, %s, %s" % (vr(vEXW), sr(sA), vr(vSTA)))
        for i in range(4):
            A("v_mov_b32 %s, 0x3f803f80" % vr(vONES + i))
        A("s_mov_b32 %s, %s" % (sr(sTH), f32(8.0)))

    def poll_addr(self):
        return ["v_and_b32 %s, 7, %s" % (vr(vPA), vr(vLANE)), "v_xor_b32 %s, %s, %s" % (vr(vPA), sr(sX), vr(vPA)),
                "v_lshlrev_b32 %s, %d, %s" % (vr(vPA), self.o.fshift, vr(vPA))]

    def q0_phase(self):
        A, o = self.A, self.o
        vBX = (vS, vS + 12)

        def xb_reads(n):
            return (self.x_group("%d" % (n // 4)) if n % 4 == 0 else []) + self.x_addr(n % 4) + \
                ["ds_read_b128 %s, %s offset:%d" % (vr(vBX[n % 2] + 4 * j, 4), vr(vB), 4096 * j) for j in range(3)]

        W = lambda n: ("wq", 0, n)
        A("L_q0:")
        self.open([W(0)], [("x", 0)])
        self.emit_all(xb_reads(0) + self.tr_reads(0, self.loc[W(0)] // SLOT) + self.next_loads(2))
        xplan = [{0: 1, 4: 2, 8: 3}, {0: 1, 1: 2, 2: 3}, {0: 1, 2: 2, 4: 3}, {}, {0: 1, 3: 2, 6: 3}][o.xplan]
        qfin = self.q_finalize(False)
        for n in range(16):
            self.open([W(n + 1)] if n < 15 else [], [("x", (n + 1) // 4)] if n % 4 == 3 else [])
            self.stamp("q%d" % n)
            order = [(dt, j) for dt in range(8) for j in range(3)] if n < 15 else [(dt, j) for j in range(3) for dt in range(8)]
            mf = []
            for dt, j in order:
                acc = vr(vO + 12 * dt + 4 * j, 4)
                mf.append("%s %s, %s, %s, %s" % (MF, acc, ar(aF[n % 2] + 4 * dt, 4), vr(vBX[n % 2] + 4 * j, 4), "0" if n == 0 else acc))
            if n == 15:
                self.auto(mf, [], [], qfin[:30], v0=10)
                break
            xb = xb_reads(n + 1)
            head, vq, rd = xb[:-5], xb[-5:-3], self.tr_reads((n + 1) % 2, self.loc[W(n + 1)] // SLOT) + xb[-3:]
            post = []
            if n in xplan:
                post = self.x_dma(xplan[n])
                carry = []
                if o.xhalf and n > 0:
                    post, carry = post[:-4], post[-4:]
            elif n - 1 in xplan and o.xhalf:
                post = carry
            if n == 9 and o.ctouch & 16:
                post = self.code_touch_small("L_q0end", vT + 5, dC)
            if o.kvt and o.kvt0 <= n < o.kvt0 + o.kvtm * o.kvt:
                post = post + ["s_bitcmp1_b32 %s, %d\ns_getpc_b64 %s\ns_cbranch_scc1 L_kvt" % (sr(sTM), n, sr(sRET, 2))]
            self.auto(mf, rd, head + self.next_loads(0 if n >= 15 - o.kvdefer else 1) + post, vq, v0=4)
        A("L_q0end:")
        self.stamp("qend")
        self.emit_all(spread(qfin[30:o.qsplit], self.next_loads(1 + o.kvdefer)))
        K0 = ("k", 0, 0)
        self.open([K0])
        self.emit_all(spread(qfin[o.qsplit:], self.k_reads(0, self.loc[K0] // SLOT)))
        self.par = 0

    def publish(self, stage, n):
        return ["s_add_u32 %s, %s, 8" % (sr(sGC), sr(sGC)), "s_add_u32 %s, %s, %d" % (sr(sE), sr(sGC), stage),
                "v_mov_b32 %s, %s" % (vr(vFV), sr(sE)), "s_waitcnt vmcnt(%d)" % n, "s_mov_b64 exec, 1",
                ("buffer_store_dword %s, %s, %s, %s offen sc1" % (vr(vFV), vr(vZ), sr(dS, 4), sr(sFLO)), "fl"),
                "s_mov_b64 exec, -1"]

    def o1_phase(self):
        A, o = self.A, self.o
        mx, ex, cv, check, qk, pv, proj, b_parts, tr, patK = self.softmax_parts
        vOA, vSG = (vKA, vVA, vVA + 4), vL
        t0, t1 = vT + 4, vT + 5
        addr = ["v_lshrrev_b32 %s, 2, %s" % (vr(t0), vr(vLANE)),
                "v_bfe_u32 %s, %s, 3, 2" % (vr(t1), vr(vLANE)),
                "v_lshlrev_b32 %s, 5, %s" % (vr(t1), vr(t1)),
                "v_lshl_add_u32 %s, %s, 7, %s" % (vr(t0), vr(t0), vr(t1)),
                "v_and_b32 %s, 3, %s" % (vr(t1), vr(vLANE)),
                "v_lshl_add_u32 %s, %s, 3, %s" % (vr(t0), vr(t1), vr(t0)),
                "s_lshl_b32 %s, %s, 13" % (sr(sB2), sr(sP))]
        addr1 = []
        for nt in range(4):
            addr += ["v_xor_b32 %s, %d, %s" % (vr(vOA[0] + nt), nt << 5, vr(t0)),
                     "v_add_u32 %s, %s, %s" % (vr(vOA[0] + nt), sr(sB2), vr(vOA[0] + nt))]
            addr1 += ["v_add_u32 %s, 0x10000, %s" % (vr(vOA[1] + nt), vr(vOA[0] + nt)),
                      "v_add_u32 %s, 0x20000, %s" % (vr(vOA[2] + nt), vr(vOA[0] + nt))]
        addr += ["s_xor_b32 %s, %s, 2" % (sr(sB2), sr(sW)),
                 "s_mul_i32 %s, %s, 12288" % (sr(sB2), sr(sB2)),
                 "s_add_u32 %s, %s, %d" % (sr(sB2), sr(sB2), EX),
                 "v_add_u32 %s, %s, %s" % (vr(vB), sr(sB2), vr(vSTA))]
        setup_v = self.poll_addr() + [
            "v_mov_b32 %s, 0" % vr(vZ), "v_readlane_b32 %s, %s, 7" % (sr(sGC), vr(vCHK)),
            "v_and_b32 %s, 15, %s" % (vr(vOUT), vr(vLANE)), "v_lshlrev_b32 %s, 11, %s" % (vr(vOUT), vr(vOUT)),
            "v_lshrrev_b32 %s, 4, %s" % (vr(vPD), vr(vLANE)), "v_lshl_add_u32 %s, %s, 4, %s" % (vr(vOUT), vr(vPD), vr(vOUT))]
        setup_s = ["s_and_b32 %s, %s, -8" % (sr(sGC), sr(sGC)), "s_mov_b32 %s, 0x00003f80" % sr(sDOT),
                   "s_mov_b32 %s, 0x3f800000" % sr(sDOT + 1)] + self.srd(dK, pOUT, 16 * 96 * 1024 * 2)[:3]
        T = lambda n: ("o", 1, n)

        def frags(n):
            if n < 12:
                return [(n, ks, nt) for ks in range(2) for nt in range(4)]
            t, u = 12 + 2 * (n % 2), (n - 12) // 2
            return [(t + h, ks, 2 * u + nt) for h in range(2) for ks in range(2) for nt in range(2)]

        def reads(n, fset):
            out = []
            for f, (t, ks, nt) in enumerate(frags(n)):
                win, off = self.loc[T(t)] // 65536, self.loc[T(t)] % 65536
                out += ["ds_read_b64_tr_b16 %s, %s offset:%d" % (ar(aF[fset] + 4 * f + 2 * e, 2), vr(vOA[win] + nt),
                                                                 off + 4096 * ks + 2048 * e) for e in range(2)]
            return out

        def eighth(e):
            out = ["s_xor_b32 %s, %s, %d" % (sr(sST), sr(sX), e), "s_mul_i32 %s, %s, 24576" % (sr(sST), sr(sST)),
                   "s_add_u32 %s, %s, %s" % (sr(sST), sr(sST), sr(sSTB))]
            for jq in range(3):
                a = vSG + 8 * ((3 * e + jq) % 6)
                src = 24 * e + 4 * jq
                out += ["v_accvgpr_read_b32 %s, %s" % (vr(a + x), ar(src + x)) for x in range(4)]
                out += ["v_accvgpr_read_b32 %s, %s" % (vr(a + 4 + x), ar(src + 12 + x)) for x in range(4)]
                out += ["v_cvt_pk_bf16_f32 %s, %s, %s" % (vr(a + x), vr(a + 2 * x), vr(a + 2 * x + 1)) for x in range(4)]
                off = " offset:%d" % (1024 * jq) if jq else ""
                out.append(("buffer_store_dwordx4 %s, %s, %s, %s offen%s sc1" % (vr(a, 4), vr(vSTA), sr(dS, 4), sr(sST), off), ("st", e)))
            return out

        V = ("v", 1, 15)
        self.stamp("last")
        nl, k = self.nproj[1][15], self.klast
        soft = mx(2) + check() + ex(0, 0) + ex(1, 0) + ex(0, 1) + cv(0) + ex(1, 1) + ex(0, 2) + cv(1) + ex(1, 2) + ["s_nop 0"] + cv(2)
        if nl == 0:
            self.open([])
            self.pat(qk(False), "ssv ssv d vv d vv d _ d _ _ _ _ _ vv vv _ _ _ _ _ _ nvv vv".split(), [], self.next_loads(1), addr[:6] + mx(0) + mx(1))
            self.par ^= 1
            self.emit_all(addr[6:] + soft)
        else:
            W1, W2 = ("w", 1, k), ("w", 1, k + 1)
            self.open([W1])
            par, vq, brd = b_parts(1, k)
            self.pat(qk(False), patK, tr(W1) + brd, par + self.next_loads(1), vq + mx(0) + mx(1))
            self.par ^= 1
            if nl == 2:
                assert k % 2 == 0
                self.open([W2])
                self.auto(proj(1, k), tr(W2), self.next_loads(1), soft[:26], v0=3)
                self.par ^= 1
                self.open([])
                self.auto(proj(1, k + 1), [], self.next_loads(1), soft[26:] + addr, v0=0)
            else:
                self.open([])
                self.auto(proj(1, k), [], self.next_loads(1), soft + addr, v0=4)
            self.par ^= 1
        kset = 1 - self.par
        assert self.loc[T(0)] < XB
        fin = lambda j, w: self.o_rcp(j) + self.o_block(0, j, w) + self.o_block(1, j, w)
        if o.t0first:
            self.open([T(0)])
            self.emit_all(reads(0, kset) + self.next_loads(1))
            self.open([V])
        else:
            self.open([V, T(0)])
        self.stamp("a1end")
        self.olimit = 99
        self.ofree += [EXTRA + SLOT * x for x in range(3)]
        vrd = self.tr_reads(self.par, self.loc[V] // SLOT)
        mf = pv(False)
        self.emit_all(vrd[:12])
        A(mf[0])
        self.emit_all(vrd[12:])
        d = self.next_loads(o.opv)
        if o.t0first:
            for dt in range(8):
                A("s_waitcnt lgkmcnt(%d)" % (14 - 2 * dt))
                A(mf[1 + dt])
                if dt % 2:
                    while d and not isinstance(d[0], tuple):
                        self.emit(d.pop(0))
                    if d:
                        self.emit(d.pop(0))
            self.pat(mf[9:], "sss d _ vv vv vv vv d vv vv vv vv d vv vv vv vv d".split(), [], d, (fin(0, False) + fin(1, False))[:26])
            self.emit_all((fin(0, False) + fin(1, False))[26:] + fin(2, False))
            wr01 = [self.o_write(ks, j) for ks in (0, 1) for j in range(3)]
        else:
            for dt in range(8):
                A("s_waitcnt lgkmcnt(%d)" % (14 - 2 * dt))
                A(mf[1 + dt])
            nd1 = len(d) * 2 // 3
            self.pat(mf[9:], "tsss td td tvv tdvv tdvv tsvv tsvv tdvv tdvv tvvv tdvv tdvv tvvvv tvvvv tvvvv vvvv vvvv".split(),
                     reads(0, kset), d[:nd1], fin(0, True) + fin(1, True))
            A("s_nop 1")
            self.emit_all(spread(fin(2, True), d[nd1:]))
            wr01 = []
        self.par = kset
        brd = ["ds_read_b128 %s, %s offset:%d" % (vr(vO + 24 * (f // 3) + 12 + 4 * (f % 3), 4), vr(vB), 1024 * f) for f in range(12)]
        fin2 = []
        for ks in (2, 3):
            for j in range(3):
                fin2 += self.o_block(ks, j, not o.oord)
        wr23 = [self.o_write(ks, j) for ks in (2, 3) for j in range(3)]
        early = eighth(0) + eighth(1) + eighth(2) + eighth(3)
        vqs = {12: eighth(4), 13: eighth(5), 14: eighth(6)}
        if o.oord:
            vqs.update({0: fin2[:36] + addr1, 1: fin2[36:], 3: setup_v})
            xds = {0: wr01[:3], 1: wr01[3:], 2: wr23 + brd[:6], 3: brd[6:]}
            if o.wspread:
                xds = {0: wr01[:5], 1: wr01[5:] + wr23[:3], 2: brd[:2] + wr23[3:4] + brd[2:4] + wr23[4:5] + brd[4:6] + wr23[5:], 3: brd[6:]}
            for k in range(3):
                vqs[5 + k] = early[28 * k:28 * (k + 1)]
            for k in range(4):
                vqs[8 + k] = early[84 + 21 * k:84 + 21 * (k + 1)]
            nex = 4
        else:
            vqs.update({0: addr1 + fin2, 2: setup_v})
            xds = {0: wr01, 1: brd[:6], 2: brd[6:]}
            for k in range(8):
                vqs[4 + k] = early[21 * k:21 * (k + 1)]
            nex = 3
        nload = [{0: 1, 1: 2, 2: 2, 3: 2, 4: 2, 5: 1, 6: 1, 7: 1}, {0: 1, 1: 1, 2: 2, 3: 2, 4: 2, 5: 2, 6: 2}, {0: 2, 1: 2, 2: 2, 3: 2, 4: 2, 5: 2},
                 {0: 1, 1: 1, 2: 1, 3: 2, 4: 2, 5: 2, 6: 1, 7: 1}, {0: 0, 1: 1, 2: 1, 3: 2, 4: 2, 5: 2, 6: 2, 7: 1}][o.oplan]
        poll = "buffer_load_dword %s, %s, %s, %s offen sc1" % (vr(vPD), vr(vPA), sr(dS, 4), sr(sFLC))
        for n in range(16):
            if n < 11:
                self.open([T(n + 1)])
            elif n < 13:
                self.open([T(2 * n - 10), T(2 * n - 9)])
            else:
                A("s_waitcnt lgkmcnt(0)")
            if n == nex:
                self.ofree += [EX + SLOT * x for x in range(3)]
            self.stamp("o%d" % n)
            mf = []
            for f, (t, ks, nt) in enumerate(frags(n)):
                c, i = O1_TILES[t]
                for j in range(3):
                    acc = ar(48 * c + 12 * nt + 4 * j, 4)
                    mf.append("%s %s, %s, %s, %s" % (MF, acc, ar(aF[self.par] + 4 * f, 4), vr(vO + 48 * (i % 2) + 24 * ks + 12 * (i // 2) + 4 * j, 4), acc))
            d = self.next_loads(nload.get(n, 1 if n < 11 else 0))
            rd = reads(n + 1, 1 - self.par) if n < 15 else []
            if n == 0:
                assert self.loc[T(1)] < XB
            rd = spread(rd, xds.get(n, []))
            if n == 5:
                d = setup_s + d
            if n == o.pub1:
                self.emit_all(self.publish(1, self.vm_need([("st", 3)])) + ["s_nop 3"])
            if n == 15:
                d = [(poll, "poll")]
            self.auto(mf, rd, d, vqs.get(n, []), v0=(0 if n < 4 else 3), vend=(o.vend if n == 14 else None))
            self.par ^= 1
        assert not self.loadq
        self.stamp("o16")

        masks = (0x0f, 0x70)
        groups = ((0, 1, 2, 3), (4, 5, 6))
        vLD, vAC = (vO, vO + 48), vQ

        def test(k):
            A("v_and_b32 %s, 7, %s" % (vr(vPT), vr(vPD)))
            A("v_cmp_eq_u32 %s, %s, %s" % (sr(sRET, 2), vr(vPD), vr(vCHK)))
            A("v_cmp_gt_u32 vcc, %d, %s" % (2 if o.aall else k + 1, vr(vPT)))
            A("s_nop 0")
            A("s_or_b32 %s, vcc_lo, %s" % (sr(sA), sr(sRET)))
            A("s_and_b32 %s, %s, %d" % (sr(sA), sr(sA), masks[k]))

        def ensure(k):
            A("s_mov_b32 %s, 0" % sr(sSTP))
            A("L_pt%d:" % k)
            test(k)
            A("s_cbranch_scc0 L_pd%d" % k)
            if o.pmask:
                A("s_mov_b64 exec, %d" % (0x7f if k == 0 else 0x70))
            A(poll)
            if o.pmask:
                A("s_mov_b64 exec, -1")
            A("s_add_u32 %s, %s, 1" % (sr(sSTP), sr(sSTP)))
            A("s_and_b32 %s, %s, 31" % (sr(sA), sr(sSTP)))
            A("s_cbranch_scc0 L_pr%d" % k)
            A("L_pw%d:" % k)
            A("s_waitcnt vmcnt(0)")
            A("s_cmp_lt_u32 %s, %d" % (sr(sSTP), SPIN))
            A("s_cbranch_scc1 L_pt%d" % k)
            A("L_pd%d:" % k)
            self.tail += ["L_pr%d:" % k] + plain(self.publish(2, 63)) + ["s_branch L_pw%d" % k]

        def loads(k, attempt=False):
            if attempt:
                A("s_cselect_b32 %s, 1, 0" % sr(sL))
                A("s_cselect_b32 %s, %d, %s" % (sr(sC), OOB, sr(sLDB)))
            else:
                A("s_mov_b32 %s, %s" % (sr(sC), sr(sLDB)))
            for h, e in enumerate(groups[k]):
                A("s_xor_b32 %s, %s, %d" % (sr(sA), sr(sX), e))
                A("s_mul_i32 %s, %s, 3072" % (sr(sA), sr(sA)))
                A("s_add_u32 %s, %s, %s" % (sr(sA), sr(sA), sr(sC)))
                for jq in range(3):
                    off = " offset:%d" % (1024 * jq) if jq else ""
                    A("buffer_load_dwordx4 %s, %s, %s, %s offen%s sc1" % (vr(vLD[k] + 12 * h + 4 * jq, 4), vr(vSTA), sr(dS, 4), sr(sA), off))

        def add(k, jqs=(0, 1, 2)):
            for jq in jqs:
                for h in range(len(groups[k])):
                    for i in range(4):
                        for e in range(2):
                            a = vr(vAC + 8 * jq + 2 * i + e)
                            A("v_dot2_f32_bf16 %s, %s, %s, %s" % (a, vr(vLD[k] + 12 * h + 4 * jq + i), sr(sDOT + e), a))

        self.emit_all(self.publish(2, 0))
        self.stamp("pub")
        for jq in range(3):
            for x in range(8):
                A("v_accvgpr_read_b32 %s, %s" % (vr(vAC + 8 * jq + x), ar(168 + 4 * jq + 12 * (x // 4) + x % 4)))
        ensure(0)
        loads(0)
        self.stamp("xa")
        test(1)
        loads(1, True)
        A(poll)
        if o.bfirst:
            A("s_cmp_eq_u32 %s, 0" % sr(sL))
            A("s_cbranch_scc1 L_second")
            A("s_waitcnt vmcnt(0)")
            test(1)
            loads(1, True)
            A(poll)
            A("L_second:")
        A("s_waitcnt vmcnt(10)")
        add(0)
        self.stamp("xs")
        A("s_cmp_eq_u32 %s, 0" % sr(sL))
        A("s_cbranch_scc1 L_have")
        A("s_waitcnt vmcnt(0)")
        ensure(1)
        loads(1)
        A("s_waitcnt vmcnt(0)")
        A("L_have:")
        self.stamp("xb")
        A("s_waitcnt vmcnt(1)")
        self.stamp("xf")
        for jq in range(3):
            a = vAC + 8 * jq
            add(1, (jq,))
            A("s_nop 2")
            for i in range(4):
                A("v_cvt_pk_bf16_f32 %s, %s, %s" % (vr(a + i), vr(a + 2 * i), vr(a + 2 * i + 1)))
            A("s_nop 1")
            A("v_permlane32_swap_b32 %s, %s" % (vr(a), vr(a + 2)))
            A("v_permlane32_swap_b32 %s, %s" % (vr(a + 1), vr(a + 3)))
            A("s_nop 1")
            A("v_permlane16_swap_b32 %s, %s" % (vr(a), vr(a + 2)))
            A("v_permlane16_swap_b32 %s, %s" % (vr(a + 1), vr(a + 3)))
            A("buffer_store_dwordx4 %s, %s, %s, %s offen%s" % (vr(a, 4), vr(vOUT), sr(dK, 4), sr(sOUT), o.out_flag))
            if jq < 2:
                A("s_add_u32 %s, %s, 32768" % (sr(sOUT), sr(sOUT)))

    def write_stamps(self):
        A = self.A
        A("s_waitcnt vmcnt(0)")
        self.stamp("end")
        A("s_waitcnt lgkmcnt(0)")
        A("s_cmp_lg_u32 %s, 0" % sr(sW))
        A("s_cbranch_scc1 L_end")
        A("s_mov_b64 exec, 1")
        A("s_mul_i32 s3, s2, %d" % (NSTAMP * 8))
        A("s_add_u32 s3, s3, %d" % STAMP_OFF)
        A("v_mov_b32 v6, 0")
        for i in range(NSTAMP):
            A("v_mov_b32 v8, s%d" % (sSTAMP + 2 * i))
            A("v_mov_b32 v9, s%d" % (sSTAMP + 2 * i + 1))
            A("buffer_store_dwordx2 v[8:9], v6, %s, s3 offen offset:%d" % (sr(dS, 4), 8 * i))
            A("s_nop 1")

    def build(self):
        A, o = self.A, self.o
        lab = NAME + "_kernel"
        A("; @launch grid=(256,1,1) block=(256,1,1) lds=163840")
        A('.amdgcn_target "amdgcn-amd-amdhsa--gfx950"')
        A(".text")
        A(".globl %s" % lab)
        A(".p2align 8")
        A(".type %s,@function" % lab)
        A("%s:" % lab)
        self.make_tiles()
        self.prologue()
        self.q0_phase()
        self.attention()
        self.o1_phase()
        if o.stamps:
            self.write_stamps()
        A("L_end:")
        A("s_endpgm")
        self.rare()
        for x in self.tail:
            A(x)
        A("L_codeend:")
        A('.section .rodata,"a"')
        A(".p2align 6")
        A(".amdhsa_kernel %s" % lab)
        A("  .amdhsa_next_free_vgpr 512")
        A("  .amdhsa_next_free_sgpr 100")
        A("  .amdhsa_accum_offset 256")
        A("  .amdhsa_group_segment_fixed_size 0")
        A("  .amdhsa_kernarg_size 104")
        A("  .amdhsa_user_sgpr_count 2")
        A("  .amdhsa_user_sgpr_kernarg_segment_ptr 1")
        A("  .amdhsa_system_sgpr_workgroup_id_x 1")
        A(".end_amdhsa_kernel")
        return "\n".join(self.L) + "\n"


def parse_opts(args):
    kw = {}
    for a in args:
        k, v = a.split("=", 1)
        cur = getattr(Opt, k)
        if isinstance(cur, bool):
            kw[k] = v not in ("0", "False")
        elif isinstance(cur, int):
            kw[k] = int(v)
        else:
            kw[k] = (" " + v.replace("+", " ")) if v else ""
    return kw


if __name__ == "__main__":
    open(sys.argv[1], "w").write(Gen(Opt(**parse_opts(sys.argv[2:]))).build())
```

```python
import math
import struct
import sys

NAME = "concat_heads__mha_block_cached__mha_block_cached__near_ridge"
WS_BYTES = 288358400
STAMP_OFF = WS_BYTES - (1 << 20)
NSTAMP = 10


def f32(x):
    return "0x%08x" % struct.unpack("<I", struct.pack("<f", x))[0]


class Opt:
    stamps = False
    cyc = False
    prof = 0
    kv_flag = " nt"
    w_flag = ""
    x_flag = ""
    out_flag = ""
    touch = False
    ctouch = 22
    xoct = 1
    xq = 0
    x1pre = False
    xplan = 4
    kv_oob = False
    nomf = 0
    fshift = 7
    pub1 = 14
    ev = "qab"
    pre = ""
    kvt0 = 0
    kvtm = 4
    kvtn = 1
    kvti = False
    tlb = 0
    np0 = "1111111111111111"
    np1 = "0111111111111112"
    retouch = True
    bfirst = True
    oplan = 0
    qsplit = 120
    olim = 1
    t0first = True
    oord = 1
    xhalf = True
    wspread = True
    pmask = False
    kvdefer = 0
    kvtl = 7
    aall = False
    opv = 3
    vend = 16

    def __init__(self, **kw):
        for k, v in kw.items():
            assert hasattr(Opt, k), k
            setattr(self, k, v)


sW, sP, sHF, sB, sBLK, sHG, sX, sKVO = 4, 5, 6, 7, 8, 9, 10, 11
dK, dV, dW, dX, dS = 12, 16, 32, 36, 40
dC = dX
pX, pK, pV, pWQ, pWO, pWS = 20, 22, 24, 26, 28, 30
pOUT, sFLO, sFLC, sGC, sSTP, sLDB, sOUT, sHX, sXC = 20, 22, 23, 24, 25, 26, 27, 30, 31
sKV, sWOFF, sXO, sM0, sIT, sKVB, sTH, sLO = 44, 45, 46, 47, 48, 49, 50, 51
sA, sB2, sC, sE = 52, 53, 54, 55
sWQB, sWOB, sWT, sCGX, sXB, sST, sL, sSTB = 56, 57, 58, 59, 60, 61, 62, 63
sO1, sRET, sXM, sCG0, sSTAMP = 64, 68, 70, 71, 72
sKS, sKW = 92, 96
sALT, sDOT = sKS, sKW
sTM, sTO, sTQ, sTW = sST, sL, sIT, sLO
dT = 88

vLANE, vLK, vB = 1, 2, 3
vO, vL, vNEGM, vS, vP = 4, 100, 112, 124, 148
vQ, vBF, vONES = 160, 208, 220
aF = (192, 224)
vVA, vKA, vOKV, vOW, vT = 224, 232, 236, 240, 244
vEXW, vSTA, vDUM, vCHK = 252, 253, 254, 255
vPA, vPD, vFV, vZ, vOUT, vPT = 152, 153, 154, 155, 156, 157

SLOT = 16384
XB = 65536
EX = 65536
EXTRA = 114688
FLAGS = 32 << 20
SPIN = 100000
OOB = 0x7ff00000
MF = "v_mfma_f32_16x16x32_bf16"
O1_TILES = [(c, i) for c in range(4) for i in range(4)]
O1_ALT = [(0, 0), (1, 0), (0, 1), (0, 2), (0, 3), (1, 1), (1, 2), (1, 3)] + O1_TILES[8:]
vOX = 148


def vr(a, n=1):
    return "v%d" % a if n == 1 else "v[%d:%d]" % (a, a + n - 1)


def ar(a, n=1):
    return "a%d" % a if n == 1 else "a[%d:%d]" % (a, a + n - 1)


def sr(a, n=1):
    return "s%d" % a if n == 1 else "s[%d:%d]" % (a, a + n - 1)


def txt(x):
    return x[0] if isinstance(x, tuple) else x


def plain(xs):
    return [txt(x) for x in xs]


def is_label(x):
    return not isinstance(x, tuple) and x.endswith(":")


def spread(base, ins):
    out, k = [], 0
    for i, x in enumerate(base):
        out.append(x)
        while k < len(ins) and (k + 1) * len(base) <= (i + 1) * (len(ins) + 1):
            out.append(ins[k])
            k += 1
    return out + ins[k:]


class Gen:
    def __init__(self, o):
        self.o = o
        if o.oord:
            O1_TILES[:] = O1_ALT
        self.L = []
        self.vm = []
        self.tail = []
        self.uid = 0

    def A(self, s):
        self.L.append(s)

    def emit(self, x):
        if txt(x).endswith(" lds") and " m0," in self.L[-1]:
            self.A("s_nop 0")
        self.A(txt(x))
        if isinstance(x, tuple):
            self.vm.append(x[1])

    def emit_all(self, xs):
        for x in xs:
            self.emit(x)

    def stamp(self, name):
        tables = {0: ["start", "q0", "qend", "a0", "a0end", "a1", "a1end", "o16", "pub", "end"],
                  1: ["start"] + ["q%d" % k for k in range(8)] + ["end"],
                  2: ["start"] + ["q%d" % k for k in range(8, 16)] + ["qend"],
                  3: ["start", "a1end"] + ["o%d" % k for k in range(8)],
                  4: ["start"] + ["o%d" % k for k in range(8, 16)] + ["o16"],
                  10: ["start", "q12", "q13", "q14", "q15", "qend", "a0", "s0_1", "s0_2", "s0_3"],
                  11: ["start", "s0_14", "s0_15", "s1_0", "s1_1", "s1_2", "s1_13", "s1_14", "last", "a1end"],
                  8: ["start"] + ["s0_%d" % k for k in range(0, 16, 2)] + ["end"],
                  9: ["start"] + ["s1_%d" % k for k in range(0, 16, 2)] + ["end"],
                  5: ["start", "a1end", "o0", "o16", "pub", "xa", "xs", "xb", "xf", "end"]}
        if self.o.prof == 6:
            t = ["start", "a0", "", "a0end", "", "a1", "", "a1end", "", "end"]
            if self.o.stamps and name in t:
                k = t.index(name)
                self.A("s_memrealtime %s" % sr(sSTAMP + 2 * k, 2))
                if 0 < k < 9:
                    self.A("s_memtime %s" % sr(sSTAMP + 2 * k + 2, 2))
            return
        if self.o.prof == 7:
            if self.o.stamps and name in ("start", "end"):
                self.A("s_memrealtime %s" % sr(sSTAMP + (0 if name == "start" else 18), 2))
            if self.o.stamps and name == "iter":
                for k in range(1, 8):
                    self.A("s_mov_b64 %s, %s" % (sr(sSTAMP + 2 * k, 2), sr(sSTAMP + 2 * k + 2, 2)))
                self.A("s_memrealtime %s" % sr(sSTAMP + 16, 2))
            return
        t = tables[self.o.prof]
        if self.o.stamps and name in t:
            self.A("%s %s" % ("s_memtime" if self.o.cyc else "s_memrealtime", sr(sSTAMP + 2 * t.index(name), 2)))

    def vm_need(self, tags):
        idx = max([i for i, t in enumerate(self.vm) if t in tags] + [-1])
        n = len(self.vm) - 1 - idx
        self.vm = self.vm[idx + 1:]
        return n

    def sync(self, n):
        self.A("s_waitcnt vmcnt(%d) lgkmcnt(0)" % n)
        self.A("s_barrier")

    def pat(self, mf, pattern, ds=(), dq=(), vq=()):
        ds, dq, vq = list(ds), list(dq), list(vq)
        assert len(pattern) == len(mf), (len(pattern), len(mf))

        def labels(q):
            while q and is_label(q[0]):
                self.emit(q.pop(0))

        for m, gap in zip(mf, pattern):
            self.A(m if not self.o.nomf else "s_nop 0")
            for ch in gap:
                if ch == "t" and ds:
                    self.emit(ds.pop(0))
                elif ch == "s" and dq and not txt(dq[0]).startswith("buffer_"):
                    self.emit(dq.pop(0))
                    labels(dq)
                elif ch == "d" and dq:
                    while dq and not txt(dq[0]).startswith("buffer_"):
                        self.emit(dq.pop(0))
                    if dq:
                        self.emit(dq.pop(0))
                elif ch == "n":
                    self.A("s_nop 1")
                elif ch == "v" and vq:
                    self.emit(vq.pop(0))
                    labels(vq)
        self.emit_all(ds + dq + vq)

    def auto(self, mf, ds=(), dq=(), vq=(), v0=0, vend=None):
        n = len(mf)
        nd = len([x for x in dq if txt(x).startswith("buffer_")])
        ds_end, first = n - 5, 3
        dpos = [first + int(k * (n - 2 - first) / max(nd - 1, 1) + 0.5) for k in range(nd)] if nd > 1 else ([first] if nd else [])
        pattern, left, vleft = [], len(ds), [x for x in vq if not is_label(x)]
        for g in range(n):
            k = dpos.count(g)
            if k:
                pattern.append("d" * k)
                continue
            gaps_ds = len([h for h in range(g, ds_end + 1) if h not in dpos])
            nds = 0 if left == 0 else min(2, -(-left // max(gaps_ds, 1)))
            nv = 0
            if g >= v0 and vleft:
                gaps_v = max(1, len([h for h in range(g, vend or n) if h not in dpos]))
                if isinstance(vleft[0], tuple):
                    nv = 1
                    if left <= 2 * (gaps_ds - 1):
                        nds = 0
                else:
                    nv = max(2 - nds, -(-len(vleft) // gaps_v))
                    for q in range(min(nv, len(vleft))):
                        if q and isinstance(vleft[q], tuple):
                            nv = q
                            break
                vleft = vleft[nv:]
            left -= nds
            pattern.append("t" * nds + "s" * max(0, 3 - nds - nv) + "v" * nv)
        self.pat(mf, pattern, ds, dq, vq)

    def srd(self, d, p, size):
        return ["s_mov_b32 %s, %s" % (sr(d), sr(p)), "s_and_b32 %s, %s, 0xffff" % (sr(d + 1), sr(p + 1)),
                "s_mov_b32 %s, %d" % (sr(d + 2), size), "s_mov_b32 %s, 0x20000" % sr(d + 3)]

    def dma(self, loc, srd, voff, soff, flag, tag, cnt=4, m0=sM0, nop=False):
        out = ["s_add_u32 m0, %s, %d" % (sr(m0), loc)] + (["s_nop 0"] if nop else [])
        for i in range(cnt):
            off = " offset:%d" % (1024 * i) if i else ""
            out.append(("buffer_load_dwordx4 %s, %s, %s offen%s%s lds" % (vr(voff + i), sr(srd, 4), sr(soff), off, flag), tag))
        return out

    def voff_std(self, dst, mul_i, mul_r, flip=None):
        t0, t1 = vT + 6, vT + 7
        return ["v_lshrrev_b32 %s, 4, %s" % (vr(t0), vr(vLANE)),
                "v_and_b32 %s, 15, %s" % (vr(t1), vr(vLANE)),
                "v_lshlrev_b32 %s, 1, %s" % (vr(dst), vr(t0)),
                "v_xor_b32 %s, %s, %s" % (vr(t1), vr(t1), vr(dst)),
                "v_lshlrev_b32 %s, 4, %s" % (vr(t1), vr(t1))] + \
            (["v_xor_b32 %s, %s, %s" % (vr(t1), sr(flip), vr(t1))] if flip is not None else []) + \
            ["v_mul_u32_u24 %s, %d, %s" % (vr(t0), mul_r, vr(t0)),
             "v_add_u32 %s, %s, %s" % (vr(dst), vr(t0), vr(t1)),
             "v_xor_b32 %s, 0x80, %s" % (vr(t1), vr(t1)),
             "v_add_u32 %s, %s, %s" % (vr(dst + 1), vr(t0), vr(t1)),
             "v_add_u32 %s, %d, %s" % (vr(dst + 2), 2 * mul_i, vr(dst)),
             "v_add_u32 %s, %d, %s" % (vr(dst + 3), 3 * mul_i, vr(dst + 1)),
             "v_add_u32 %s, %d, %s" % (vr(dst + 1), mul_i, vr(dst + 1))]

    def voff_o1(self, dst):
        t0, t1 = vT + 6, vT + 7
        out = ["s_and_b32 %s, %s, 1" % (sr(sA), sr(sX)),
               "s_lshl_b32 %s, %s, 2" % (sr(sA), sr(sA)),
               "v_lshrrev_b32 %s, 3, %s" % (vr(t0), vr(vLANE)),
               "v_and_b32 %s, 7, %s" % (vr(t1), vr(vLANE)),
               "v_and_b32 %s, 6, %s" % (vr(dst), vr(t0)),
               "v_xor_b32 %s, %s, %s" % (vr(t1), vr(t1), vr(dst)),
               "v_xor_b32 %s, %s, %s" % (vr(t1), sr(sA), vr(t1)),
               "v_lshlrev_b32 %s, 4, %s" % (vr(t1), vr(t1)),
               "v_lshl_add_u32 %s, %s, 10, %s" % (vr(dst), vr(t0), vr(t1))]
        for i in range(1, 4):
            out.append("v_add_u32 %s, %d, %s" % (vr(dst + i), 7168 * i, vr(dst)))
        return out

    def cg_of(self, dst, c):
        return ["s_add_u32 %s, %s, %s" % (sr(dst), sr(sCG0), c), "s_and_b32 %s, %s, 3" % (sr(dst), sr(dst))]

    def wq_group(self, c):
        return self.cg_of(sA, c) + ["s_lshl_b32 %s, %s, 20" % (sr(sA), sr(sA)),
                                    "s_add_u32 %s, %s, %s" % (sr(sWT), sr(sA), sr(sWQB))]

    def wq_params(self, i):
        return ["s_add_u32 %s, %s, %s" % (sr(sWOFF), sr(sWT), sr(sKW + i))]

    def x_group(self, c):
        return self.cg_of(sB2, c) + ["s_mul_i32 %s, %s, 24576" % (sr(sB2), sr(sB2)),
                                     "s_add_u32 %s, %s, %s" % (sr(sCGX), sr(sB2), sr(sXB))]

    def x_addr(self, i):
        return ["v_xor_b32 %s, %s, %s" % (vr(vB), sr(sKS + i), vr(vLK)),
                "v_add_u32 %s, %s, %s" % (vr(vB), sr(sCGX), vr(vB))]

    def kv_params(self):
        return ["s_add_u32 %s, %s, %s" % (sr(sKV), sr(sKVO), sr(sKVB)),
                "s_add_u32 %s, %s, 8192" % (sr(sKVO), sr(sKVO)),
                "s_and_b32 %s, %s, 0x1ffff" % (sr(sKVO), sr(sKVO))]

    def o1_off(self, dst, n):
        c, i = O1_TILES[n]
        return ["s_xor_b32 %s, %s, %d" % (sr(dst), sr(sXC), 128 * c), "s_add_u32 %s, %s, %s" % (sr(dst), sr(dst), sr(sO1 + i))]

    def x_dma(self, c):
        o = self.o
        out = self.cg_of(sA, "%d" % c)
        out += ["s_mul_i32 %s, %s, 24576" % (sr(sB2), sr(sA)),
                "s_mul_i32 %s, %s, 6144" % (sr(sXM), sr(sW)),
                "s_add_u32 %s, %s, %s" % (sr(sXM), sr(sXM), sr(sB2)),
                "s_lshl_b32 %s, %s, 8" % (sr(sA), sr(sA)),
                "s_mul_i32 %s, %s, 98304" % (sr(sXO), sr(sB)),
                "s_add_u32 %s, %s, %s" % (sr(sXO), sr(sXO), sr(sA)),
                "s_mul_i32 %s, %s, 24576" % (sr(sA), sr(sW)),
                "s_add_u32 %s, %s, %s" % (sr(sXO), sr(sXO), sr(sA))]
        out += self.dma(XB, dX, vOX, sXO, o.x_flag, ("x", c), 4, sXM)
        out += ["s_add_u32 %s, %s, 16384" % (sr(sXO), sr(sXO))]
        out += self.dma(XB + 4096, dX, vOX, sXO, o.x_flag, ("x", c), 2, sXM)
        return out

    def code_touch_small(self, label, t, d, back=False):
        self.uid += 1
        k = self.uid
        return ["s_getpc_b64 %s" % sr(d, 2), "L_pc%d:" % k,
                "s_add_u32 %s, %s, %s-L_pc%d" % (sr(d), sr(d), label, k),
                "s_addc_u32 %s, %s, %d" % (sr(d + 1), sr(d + 1), -1 if back else 0),
                "s_and_b32 %s, %s, 0xffff" % (sr(d + 1), sr(d + 1)),
                "s_mov_b32 %s, L_codeend-%s" % (sr(d + 2), label),
                "s_mov_b32 %s, 0x20000" % sr(d + 3),
                "s_and_b32 %s, %s, 7" % (sr(sA), sr(sB)),
                "s_lshl_b32 %s, %s, 2" % (sr(sA), sr(sA)),
                "s_add_u32 %s, %s, %s" % (sr(sA), sr(sA), sr(sW)),
                "s_lshl_b32 %s, %s, 11" % (sr(sA), sr(sA)),
                "v_and_b32 %s, 15, %s" % (vr(t), vr(vLANE)),
                "v_lshlrev_b32 %s, 7, %s" % (vr(t), vr(t)),
                ("buffer_load_dword %s, %s, %s, %s offen" % (vr(vDUM), vr(t), sr(d, 4), sr(sA)), "touch")]

    def code_touch(self, label, t, back=False):
        self.uid += 1
        k = self.uid
        return ["s_getpc_b64 %s" % sr(dC, 2), "L_pc%d:" % k,
                "s_add_u32 %s, %s, %s-L_pc%d" % (sr(dC), sr(dC), label, k),
                "s_addc_u32 %s, %s, %d" % (sr(dC + 1), sr(dC + 1), -1 if back else 0),
                "s_and_b32 %s, %s, 0xffff" % (sr(dC + 1), sr(dC + 1)),
                "s_mov_b32 %s, L_codeend-%s" % (sr(dC + 2), label),
                "s_lshl_b32 %s, %s, 13" % (sr(sA), sr(sW)),
                "v_lshlrev_b32 %s, 7, %s" % (vr(t), vr(vLANE)),
                ("buffer_load_dword %s, %s, %s, %s offen" % (vr(vDUM), vr(t), sr(dC, 4), sr(sA)), "touch")]

    def tr_reads(self, fset, slot):
        return ["ds_read_b64_tr_b16 %s, %s offset:%d" % (ar(aF[fset] + 4 * dt + 2 * e, 2), vr(vVA + dt), SLOT * slot + 4096 * e)
                for dt in range(8) for e in range(2)]

    def k_reads(self, fset, slot):
        return ["ds_read_b128 %s, %s offset:%d" % (ar(aF[fset] + 16 * kt + 4 * ks, 4), vr(vKA + ks), SLOT * slot + 4096 * kt)
                for kt in range(2) for ks in range(4)]

    def make_tiles(self):
        o = self.o
        n0 = [int(c) for c in o.np0.strip()]
        n1 = [int(c) for c in o.np1.strip()]
        self.nproj = (n0, n1)
        q = [("wq", 0, k) for k in range(16)]
        for rnd in range(2):
            k = 0
            for t in range(16):
                n = self.nproj[rnd][t]
                q.append(("k", rnd, t))
                if n:
                    q.append(("w", rnd, k))
                if n == 2 and (rnd, t) == (1, 15):
                    q.append(("w", rnd, k + 1))
                q.append(("v", rnd, t))
                if n == 2 and (rnd, t) != (1, 15):
                    q.append(("w", rnd, k + 1))
                k += n
            assert k == 16
        q += [("o", 1, n) for n in range(16)]
        if o.t0first:
            q.remove(("o", 1, 0))
            q.insert(q.index(("v", 1, 15)), ("o", 1, 0))
        self.loadq = q
        self.free = [SLOT * n for n in range(4)]
        self.ofree = []
        self.tofree = []
        self.loc = {}
        self.par = 0
        self.olimit = o.olim

    def tile_dma(self, tile, loc):
        o = self.o
        kind, rnd, k = tile
        if kind == "wq" or (kind == "w" and rnd == 0):
            pre = ["s_add_u32 %s, %s, 256" % (sr(sWQB), sr(sWQB))] if (kind == "w" and k == 0) else []
            pre += (self.wq_group("%d" % (k // 4)) if k % 4 == 0 else []) + self.wq_params(k % 4)
            return pre + self.dma(loc, dW, vOW, sWOFF, o.w_flag, tile)
        if kind in "kv":
            pre = []
            if tile == ("k", 1, 0):
                pre = ["s_add_u32 %s, %s, 131072" % (sr(sKVB), sr(sKVB))]
            pre += ["s_add_u32 %s, %s, %d" % (sr(sKV), sr(sKVO), 8192 * k), "s_and_b32 %s, %s, 0x1ffff" % (sr(sKV), sr(sKV)),
                    "s_add_u32 %s, %s, %s" % (sr(sKV), sr(sKV), sr(sKVB))]
            return pre + self.dma(loc, dK if kind == "k" else dV, vOKV, sKV, o.kv_flag, tile)
        if kind == "w":
            pre = []
            if k == 0:
                pre = self.srd(dW, pWO, 4 << 20)[:2] + ["s_and_b32 %s, %s, 3" % (sr(sA), sr(sX)), "s_lshl_b32 %s, %s, 6" % (sr(sA), sr(sA))] + \
                    self.voff_std(vOW, 3072, 1024, sA)
            ks = k // 2
            pre += ["s_add_u32 %s, %s, %d" % (sr(sWOFF), sr(sWOB), 32768 * (ks % 4) + 262144 * (ks // 4))]
            if k % 2:
                pre += ["s_add_u32 %s, %s, %s" % (sr(sWOFF), sr(sWOFF), sr(sHX))]
            return pre + self.dma(loc, dW, vOW, sWOFF, o.w_flag, tile)
        return (self.voff_o1(vOW) if k == 0 else []) + self.o1_off(sWOFF, k) + self.dma(loc, dW, vOW, sWOFF, o.w_flag, tile)

    def next_loads(self, n):
        out = []
        while n and self.loadq:
            tile = self.loadq[0]
            if tile[0] == "o" and tile[2] > self.olimit:
                break
            if self.free:
                loc = self.free.pop(0)
            elif tile[0] == "o" and self.ofree:
                later = [x for x in self.loadq if x[2] >= 2]
                tile = later[0]
                loc = self.ofree.pop(0)
            else:
                break
            self.loadq.remove(tile)
            self.loc[tile] = loc
            out += self.tile_dma(tile, loc)
            n -= 1
        return out

    def open(self, tiles, also=()):
        for t in tiles:
            assert t in self.loc, t
        self.sync(self.vm_need(list(tiles) + list(also)))
        for loc in self.tofree:
            (self.free if loc < XB else self.ofree).append(loc)
        self.tofree = [self.loc[t] for t in tiles]

    def q_finalize(self, from_agpr):
        out = ["s_mov_b32 %s, %s" % (sr(sE), f32(math.log2(math.e) / math.sqrt(128.0)))]
        blocks = []
        for j in range(3):
            for ks in range(4):
                pre = []
                d = vQ + 12 * ks + 4 * j
                if from_agpr:
                    a, b = d, vBF + 4 * (len(blocks) % 3)
                    pre += ["v_accvgpr_read_b32 %s, %s" % (vr(a + i), ar(24 * ks + 4 * j + i)) for i in range(4)]
                    pre += ["v_accvgpr_read_b32 %s, %s" % (vr(b + i), ar(24 * ks + 12 + 4 * j + i)) for i in range(4)]
                else:
                    a, b = vO + 24 * ks + 4 * j, vO + 24 * ks + 12 + 4 * j
                pre += ["v_mul_f32 %s, %s, %s" % (vr(x + y), sr(sE), vr(x + y)) for x in (a, b) for y in range(4)]
                pre += ["v_cvt_pk_bf16_f32 %s, %s, %s" % (vr(d), vr(a), vr(a + 1)),
                        "v_cvt_pk_bf16_f32 %s, %s, %s" % (vr(d + 1), vr(a + 2), vr(a + 3)),
                        "v_cvt_pk_bf16_f32 %s, %s, %s" % (vr(d + 2), vr(b), vr(b + 1)),
                        "v_cvt_pk_bf16_f32 %s, %s, %s" % (vr(d + 3), vr(b + 2), vr(b + 3))]
                s32 = ["v_permlane32_swap_b32 %s, %s" % (vr(d), vr(d + 2)), "v_permlane32_swap_b32 %s, %s" % (vr(d + 1), vr(d + 3))]
                s16 = ["v_permlane16_swap_b32 %s, %s" % (vr(d), vr(d + 2)), "v_permlane16_swap_b32 %s, %s" % (vr(d + 1), vr(d + 3))]
                blocks.append((pre, s32, s16))
        n = len(blocks)
        for k in range(n + 1):
            if k < n:
                pre = blocks[k][0]
                h = len(pre) // 2
                out += pre[:h]
            if k > 0:
                if k == n:
                    out.append("s_nop 1")
                out += blocks[k - 1][1]
            if k < n:
                out += pre[h:]
            else:
                out.append("s_nop 1")
            if k > 0:
                out += blocks[k - 1][2]
        return out

    def o_rcp(self, j):
        return ["v_rcp_f32 %s, %s" % (vr(vBF + j), vr(vL + 4 * j)), "s_nop 0"]

    def o_block(self, ks, j, write=True):
        a, b = vO + 24 * ks + 4 * j, vO + 24 * ks + 12 + 4 * j
        return ["v_mul_f32 %s, %s, %s" % (vr(x + y), vr(x + y), vr(vBF + j)) for x in (a, b) for y in range(4)] + \
            ["v_cvt_pk_bf16_f32 %s, %s, %s" % (vr(a), vr(a), vr(a + 1)),
             "v_cvt_pk_bf16_f32 %s, %s, %s" % (vr(a + 1), vr(a + 2), vr(a + 3)),
             "v_cvt_pk_bf16_f32 %s, %s, %s" % (vr(a + 2), vr(b), vr(b + 1)),
             "v_cvt_pk_bf16_f32 %s, %s, %s" % (vr(a + 3), vr(b + 2), vr(b + 3))] + ([self.o_write(ks, j)] if write else [])

    def o_write(self, ks, j):
        return "ds_write_b128 %s, %s offset:%d" % (vr(vEXW), vr(vO + 24 * ks + 4 * j, 4), 1024 * (3 * ks + j))

    def attention(self):
        A, o = self.A, self.o

        def mx(j):
            s0, s1, m = vS + 4 * j, vS + 12 + 4 * j, vT + j
            return ["v_max3_f32 %s, %s, %s, %s" % (vr(m), vr(s0), vr(s0 + 1), vr(s0 + 2)),
                    "v_max3_f32 %s, %s, %s, %s" % (vr(m), vr(m), vr(s0 + 3), vr(s1)),
                    "v_max3_f32 %s, %s, %s, %s" % (vr(m), vr(m), vr(s1 + 1), vr(s1 + 2)),
                    "v_max_f32 %s, %s, %s" % (vr(m), vr(m), vr(s1 + 3))]

        def ex(kt, j):
            a = vS + 12 * kt + 4 * j
            return ["v_exp_f32 %s, %s" % (vr(a + x), vr(a + x)) for x in range(4)]

        def cv(j):
            return ["v_cvt_pk_bf16_f32 %s, %s, %s" % (vr(vP + 4 * j + 2 * kt + h), vr(vS + 12 * kt + 4 * j + 2 * h), vr(vS + 12 * kt + 4 * j + 2 * h + 1))
                    for kt in range(2) for h in range(2)]

        def check():
            self.uid += 1
            k = self.uid
            self.tail += ["L_rs%d:" % k, "s_call_b64 %s, L_rare" % sr(sRET, 2), "s_branch L_rb%d" % k]
            return ["v_max3_f32 %s, %s, %s, %s" % (vr(vT + 3), vr(vT), vr(vT + 1), vr(vT + 2)),
                    "v_cmp_lt_f32 vcc, %s, %s" % (sr(sTH), vr(vT + 3)), "s_cbranch_vccnz L_rs%d" % k, "L_rb%d:" % k]

        def init():
            out = []
            for op in ("v_permlane32_swap_b32", "v_permlane16_swap_b32"):
                out += ["v_mov_b32 %s, %s" % (vr(vT + 3 + j), vr(vT + j)) for j in range(3)] + ["s_nop 0"]
                out += ["%s %s, %s" % (op, vr(vT + j), vr(vT + 3 + j)) for j in range(3)]
                out += ["v_max_f32 %s, %s, %s" % (vr(vT + j), vr(vT + j), vr(vT + 3 + j)) for j in range(3)]
            for j in range(3):
                out += ["v_sub_f32 %s, %s, %s" % (vr(b + i), vr(b + i), vr(vT + j)) for b in (vS + 4 * j, vS + 12 + 4 * j) for i in range(4)]
                out += ["v_sub_f32 %s, 0, %s" % (vr(vNEGM + 4 * j + i), vr(vT + j)) for i in range(4)]
            return out

        def qk(first):
            mf = []
            for j in range(3):
                for kt in range(2):
                    for ks in range(4):
                        acc = vr(vS + 12 * kt + 4 * j, 4)
                        c = acc if ks else ("0" if first else vr(vNEGM + 4 * j, 4))
                        mf.append("%s %s, %s, %s, %s" % (MF, acc, ar(aF[self.par] + 16 * kt + 4 * ks, 4), vr(vQ + 12 * ks + 4 * j, 4), c))
            return mf

        def pv(first):
            mf = []
            for j in range(3):
                mf.append("%s %s, %s, %s, %s" % (MF, vr(vL + 4 * j, 4), vr(vONES, 4), vr(vP + 4 * j, 4), "0" if first else vr(vL + 4 * j, 4)))
                for dt in range(8):
                    acc = vr(vO + 12 * dt + 4 * j, 4)
                    mf.append("%s %s, %s, %s, %s" % (MF, acc, ar(aF[self.par] + 4 * dt, 4), vr(vP + 4 * j, 4), "0" if first else acc))
            return mf

        def proj(rnd, k):
            mf = []
            for dt in range(8):
                for j in range(3):
                    acc = ar((96 * (k % 2) if rnd else 0) + 12 * dt + 4 * j, 4)
                    mf.append("%s %s, %s, %s, %s" % (MF, acc, ar(aF[self.par] + 4 * dt, 4), vr(vBF + 4 * j, 4), "0" if k < rnd + 1 else acc))
            return mf

        def b_parts(rnd, k):
            if rnd == 0:
                return (self.x_group("%d" % (k // 4)) if k % 4 == 0 else []), self.x_addr(k % 4), \
                    ["ds_read_b128 %s, %s offset:%d" % (vr(vBF + 4 * j, 4), vr(vB), 4096 * j) for j in range(3)]
            ks = k // 2
            rd = [] if k % 2 else ["ds_read_b128 %s, %s offset:%d" % (vr(vBF + 4 * j, 4), vr(vB), 24576 * (ks // 4) + 3072 * (ks % 4) + 1024 * j)
                                   for j in range(3)]
            return [], ["s_nop 0", "s_nop 0"], rd

        def tr(tile):
            return self.tr_reads(1 - self.par, self.loc[tile] // SLOT)

        def kr(tile):
            return self.k_reads(1 - self.par, self.loc[tile] // SLOT)

        patK = "tss tss tss tss tts d tv tv t t tt d tv tv tv ttv d t t vv vv d ss _".split()
        patW = "tss tts d tv tv vv vvv v d tv tv tv tv tv d tv tv tv tv ttv d ssvv vv v".split()
        patV = "sv sv sv sv svv svv sv d v v v v d v v tv tvv tvvn tt t d tt t _ d ss ss".split()
        patV2 = "tsv tsv tsv tsv tvv tvv tsv d tv tv tv tv d tv tv tv tvv tvvn t t d t t _ d ss ss".split()
        self.softmax_parts = (mx, ex, cv, check, qk, pv, proj, b_parts, tr, patK)
        for rnd in range(2):
            k = 0
            self.stamp("a%d" % rnd)
            for t in range(16):
                n, first = self.nproj[rnd][t], t == 0
                K, V, W1, W2 = ("k", rnd, t), ("v", rnd, t), ("w", rnd, k), ("w", rnd, k + 1)
                KN = ("k", rnd + (t + 1) // 16, (t + 1) % 16)
                if (rnd, t) == (1, 15):
                    self.klast = k
                    return
                nd = 1
                self.stamp("s%d_%d" % (rnd, t))
                self.open([W1 if n else V])
                par, vq, brd = b_parts(rnd, k) if n else ([], ["s_nop 0", "s_nop 0"], [])
                self.pat(qk(first), patK, tr(W1 if n else V) + brd, par + self.next_loads(nd), vq + mx(0) + mx(1))
                self.par ^= 1
                vq = mx(2) + (init() if first else check()) + ex(0, 0) + ex(1, 0) + cv(0) + ex(0, 1)
                if n:
                    self.open([V])
                    self.pat(proj(rnd, k), patW, tr(V), self.next_loads(nd), vq)
                    self.par ^= 1
                    if (rnd, t) == (0, 15):
                        assert n == 1
                        self.emit_all(["s_nop 6"] + self.q_finalize(True))
                else:
                    pre = []
                    if (rnd, t) == (1, 0):
                        for j in range(3):
                            pre += self.o_rcp(j)
                            for ks in range(4):
                                pre += self.o_block(ks, j)
                        pre += ["s_mul_i32 %s, %s, 12288" % (sr(sA), sr(sHF)), "s_add_u32 %s, %s, %d" % (sr(sA), sr(sA), EX),
                                "v_add_u32 %s, %s, %s" % (vr(vB), sr(sA), vr(vSTA))]
                    if (rnd, t) == (0, 15):
                        pre = self.q_finalize(True)
                    self.emit_all(pre or ["s_nop 6"])
                    self.emit_all(vq)
                self.open([W2 if n == 2 else KN])
                vq = ex(1, 1) + cv(1) + ex(0, 2) + ex(1, 2) + cv(2)
                d = self.next_loads(nd)
                if o.retouch and t in (2, 10):
                    self.uid += 1
                    d += ["L_here%d:" % self.uid] + self.code_touch_small("L_here%d" % self.uid, vT + 4, dC, True)
                if (rnd, t) == (1, 11) and o.touch:
                    d += self.wo_touch()
                if n == 2:
                    par, va, brd = b_parts(rnd, k + 1)
                    self.pat(pv(first), patV2, tr(W2) + brd, par + (va if rnd == 0 else []) + d, vq)
                    self.par ^= 1
                    self.open([KN])
                    self.auto(proj(rnd, k + 1), kr(KN), self.next_loads(nd))
                else:
                    self.pat(pv(first), patV, kr(KN), d, vq)
                self.par ^= 1
                k += n
            self.stamp("a%dend" % rnd)

    def wo_touch(self):
        t = vT + 4
        return ["s_lshl_b32 %s, %s, 3" % (sr(sA), sr(sB)),
                "s_lshl_b32 %s, %s, 2" % (sr(sB2), sr(sHF)),
                "s_add_u32 %s, %s, %s" % (sr(sA), sr(sA), sr(sB2)),
                "s_lshl_b32 %s, %s, 10" % (sr(sA), sr(sA)),
                "s_lshl_b32 %s, %s, 19" % (sr(sB2), sr(sHG)),
                "s_add_u32 %s, %s, %s" % (sr(sA), sr(sA), sr(sB2)),
                "s_lshl_b32 %s, %s, 18" % (sr(sB2), sr(sP)),
                "s_add_u32 %s, %s, %s" % (sr(sA), sr(sA), sr(sB2)),
                "s_add_u32 %s, %s, 131072" % (sr(sA), sr(sA)),
                "v_and_b32 %s, 31, %s" % (vr(t), vr(vLANE)),
                "v_lshlrev_b32 %s, 7, %s" % (vr(t), vr(t)),
                ("buffer_load_dword %s, %s, %s, %s offen" % (vr(vDUM), vr(t), sr(dW, 4), sr(sA)), "touch")]

    def rare(self):
        A = self.A
        A("L_rare:")
        for j in range(3):
            A("v_mov_b32 %s, %s" % (vr(vT + 3 + j), vr(vT + j)))
        A("s_nop 1")
        for j in range(3):
            A("v_permlane32_swap_b32 %s, %s" % (vr(vT + j), vr(vT + 3 + j)))
        for j in range(3):
            A("v_max_f32 %s, %s, %s" % (vr(vT + j), vr(vT + j), vr(vT + 3 + j)))
        for j in range(3):
            A("v_mov_b32 %s, %s" % (vr(vT + 3 + j), vr(vT + j)))
        A("s_nop 1")
        for j in range(3):
            A("v_permlane16_swap_b32 %s, %s" % (vr(vT + j), vr(vT + 3 + j)))
        for j in range(3):
            A("v_max3_f32 %s, %s, %s, 0" % (vr(vT + j), vr(vT + j), vr(vT + 3 + j)))
        for j in range(3):
            A("v_exp_f32 %s, -%s" % (vr(vT + 3 + j), vr(vT + j)))
        for j in range(3):
            for base in (vS + 4 * j, vS + 12 + 4 * j, vNEGM + 4 * j):
                for i in range(4):
                    A("v_sub_f32 %s, %s, %s" % (vr(base + i), vr(base + i), vr(vT + j)))
        for j in range(3):
            for base in [vO + 12 * dt + 4 * j for dt in range(8)] + [vL + 4 * j]:
                for i in range(4):
                    A("v_mul_f32 %s, %s, %s" % (vr(base + i), vr(base + i), vr(vT + 3 + j)))
        A("s_setpc_b64 %s" % sr(sRET, 2))

    def prologue(self):
        A, o = self.A, self.o
        A("s_cmp_ge_u32 s2, 256")
        A("s_cbranch_scc1 L_end")
        self.stamp("start")
        A("s_and_b32 %s, s2, 7" % sr(sA))
        A("s_lshr_b32 %s, s2, 3" % sr(sB2))
        A("s_lshr_b32 %s, %s, 2" % (sr(sBLK), sr(sA)))
        A("s_mul_i32 %s, %s, 40" % (sr(sC), sr(sBLK)))
        A("s_add_u32 s4, s0, %s" % sr(sC))
        A("s_addc_u32 s5, s1, 0")
        A("s_load_dwordx8 %s, s[4:5], 0" % sr(pX, 8))
        A("s_load_dwordx2 %s, s[4:5], 32" % sr(pWO, 2))
        A("s_load_dwordx2 %s, s[0:1], 96" % sr(pWS, 2))
        A("s_and_b32 %s, %s, 15" % (sr(sB), sr(sB2)))
        A("s_lshr_b32 %s, %s, 4" % (sr(sE), sr(sB2)))
        A("s_and_b32 %s, %s, 3" % (sr(sA), sr(sA)))
        A("s_lshl_b32 %s, %s, 1" % (sr(sHG), sr(sA)))
        A("s_add_u32 %s, %s, %s" % (sr(sHG), sr(sHG), sr(sE)))
        A("s_mul_i32 %s, %s, %d" % (sr(sA), sr(sA), o.xoct))
        A("s_mul_i32 %s, %s, %d" % (sr(sE), sr(sE), o.xq))
        A("s_add_u32 %s, %s, %s" % (sr(sCG0), sr(sB), sr(sA)))
        A("s_add_u32 %s, %s, %s" % (sr(sCG0), sr(sCG0), sr(sE)))
        A("s_lshr_b32 %s, %s, 2" % (sr(sE), sr(sB)))
        for i in range(4):
            A("s_add_u32 %s, %s, %d" % (sr(sC), sr(sE), i))
            A("s_and_b32 %s, %s, 3" % (sr(sC), sr(sC)))
            A("s_lshl_b32 %s, %s, 6" % (sr(sKS + i), sr(sC)))
            A("s_lshl_b32 %s, %s, 18" % (sr(sKW + i), sr(sC)))
        A("v_lshrrev_b32 %s, 6, v0" % vr(vT))
        A("v_and_b32 %s, 63, v0" % vr(vLANE))
        self.emit_all(self.voff_std(vOX, 3072, 1024))
        self.emit_all(self.voff_std(vOW, 65536 - 1024, 8192))
        A("s_waitcnt lgkmcnt(0)")
        A("v_readfirstlane_b32 %s, %s" % (sr(sW), vr(vT)))
        self.emit_all(self.srd(dX, pX, 16 * 98304))
        self.emit_all(self.srd(dW, pWQ, 4 << 20))
        A("s_lshr_b32 %s, %s, 1" % (sr(sP), sr(sW)))
        A("s_and_b32 %s, %s, 1" % (sr(sHF), sr(sW)))
        if o.ctouch & 8:
            self.emit_all(self.code_touch_small("L_p1", vT + 5, dK))
            A("L_p1:")
        self.emit_all(self.x_dma(0))
        A("s_lshl_b32 %s, %s, 12" % (sr(sM0), sr(sW)))
        A("s_lshl_b32 %s, %s, 1" % (sr(sA), sr(sHG)))
        A("s_add_u32 %s, %s, %s" % (sr(sA), sr(sA), sr(sP)))
        A("s_lshl_b32 %s, %s, 9" % (sr(sWQB), sr(sA)))
        A("s_lshl_b32 %s, %s, 15" % (sr(sA), sr(sHF)))
        A("s_add_u32 %s, %s, %s" % (sr(sWQB), sr(sWQB), sr(sA)))
        self.emit_all(self.next_loads(2))
        if o.ctouch & 4:
            self.emit_all(self.code_touch_small("L_q0", vT + 5, dK))
        self.emit_all(self.srd(dK, pK, 0 if o.kv_oob else 64 << 20))
        self.emit_all(self.srd(dV, pV, 0 if o.kv_oob else 64 << 20))
        self.emit_all(self.srd(dS, pWS, WS_BYTES))
        A("s_load_dwordx2 %s, s[0:1], 80" % sr(pOUT, 2))
        A("s_xor_b32 %s, %s, 7" % (sr(sX), sr(sHG)))
        A("s_lshl_b32 %s, %s, 22" % (sr(sKVB), sr(sB)))
        A("s_lshl_b32 %s, %s, 19" % (sr(sWOB), sr(sHG)))
        A("s_add_u32 %s, %s, %s" % (sr(sKVB), sr(sKVB), sr(sWOB)))
        A("s_lshl_b32 %s, %s, 18" % (sr(sA), sr(sP)))
        A("s_add_u32 %s, %s, %s" % (sr(sKVB), sr(sKVB), sr(sA)))
        A("s_lshl_b32 %s, %s, 12" % (sr(sA), sr(sHF)))
        A("s_add_u32 %s, %s, %s" % (sr(sKVB), sr(sKVB), sr(sA)))
        A("s_lshl_b32 %s, %s, 9" % (sr(sA), sr(sP)))
        A("s_add_u32 %s, %s, %s" % (sr(sWOB), sr(sWOB), sr(sA)))
        A("s_lshl_b32 %s, %s, 15" % (sr(sA), sr(sHF)))
        A("s_add_u32 %s, %s, %s" % (sr(sC), sr(sWOB), sr(sA)))
        A("s_add_u32 %s, %s, 131072" % (sr(sC), sr(sC)))
        A("s_lshl_b32 %s, %s, 18" % (sr(sA), sr(sP)))
        A("s_add_u32 %s, %s, %s" % (sr(sO1), sr(sC), sr(sA)))
        A("s_xor_b32 %s, %s, 262144" % (sr(sA), sr(sA)))
        A("s_add_u32 %s, %s, %s" % (sr(sO1 + 2), sr(sC), sr(sA)))
        A("s_add_u32 %s, %s, 65536" % (sr(sO1 + 1), sr(sO1)))
        A("s_add_u32 %s, %s, 65536" % (sr(sO1 + 3), sr(sO1 + 2)))
        A("s_lshl_b32 %s, %s, 14" % (sr(sA), sr(sHF)))
        A("s_add_u32 %s, %s, %s" % (sr(sWOB), sr(sWOB), sr(sA)))
        A("s_lshr_b32 %s, %s, 2" % (sr(sA), sr(sX)))
        A("s_lshl_b32 %s, %s, 8" % (sr(sA), sr(sA)))
        A("s_add_u32 %s, %s, %s" % (sr(sWOB), sr(sWOB), sr(sA)))
        A("s_lshl_b32 %s, %s, 1" % (sr(sA), sr(sA)))
        A("s_sub_u32 %s, 256, %s" % (sr(sHX), sr(sA)))
        A("s_lshr_b32 %s, %s, 1" % (sr(sA), sr(sX)))
        A("s_lshl_b32 %s, %s, 7" % (sr(sXC), sr(sA)))
        A("s_and_b32 %s, %s, 1" % (sr(sA), sr(sHG)))
        A("s_lshl_b32 %s, %s, 3" % (sr(sA), sr(sA)))
        A("s_add_u32 %s, %s, %s" % (sr(sA), sr(sB), sr(sA)))
        A("s_and_b32 %s, %s, 15" % (sr(sA), sr(sA)))
        A("s_lshl_b32 %s, %s, 13" % (sr(sKVO), sr(sA)))
        A("s_mul_i32 %s, %s, 12288" % (sr(sXB), sr(sHF)))
        A("s_add_u32 %s, %s, %d" % (sr(sXB), sr(sXB), XB))
        A("s_lshl_b32 %s, %s, 4" % (sr(sA), sr(sBLK)))
        A("s_add_u32 %s, %s, %s" % (sr(sA), sr(sA), sr(sB)))
        A("s_lshl_b32 %s, %s, 2" % (sr(sA), sr(sA)))
        A("s_add_u32 %s, %s, %s" % (sr(sA), sr(sA), sr(sW)))
        A("s_mul_i32 %s, %s, 196608" % (sr(sB2), sr(sA)))
        A("s_mul_i32 %s, %s, 3072" % (sr(sC), sr(sHG)))
        A("s_add_u32 %s, %s, %s" % (sr(sSTB), sr(sB2), sr(sC)))
        A("s_mul_i32 %s, %s, 24576" % (sr(sC), sr(sHG)))
        A("s_add_u32 %s, %s, %s" % (sr(sLDB), sr(sB2), sr(sC)))
        A("s_lshl_b32 %s, %s, 10" % (sr(sA), sr(sA)))
        A("s_add_u32 %s, %s, %d" % (sr(sFLC), sr(sA), FLAGS))
        A("s_lshl_b32 %s, %s, %d" % (sr(sA), sr(sHG), o.fshift))
        A("s_add_u32 %s, %s, %s" % (sr(sFLO), sr(sFLC), sr(sA)))
        self.emit_all(self.poll_addr())
        self.emit(("buffer_load_dword %s, %s, %s, %s offen sc1" % (vr(vCHK), vr(vPA), sr(dS, 4), sr(sFLC)), "fl"))
        A("s_mul_i32 %s, %s, 96" % (sr(sA), sr(sB)))
        A("s_mul_i32 %s, %s, 48" % (sr(sB2), sr(sHF)))
        A("s_add_u32 %s, %s, %s" % (sr(sA), sr(sA), sr(sB2)))
        A("s_lshl_b32 %s, %s, 11" % (sr(sA), sr(sA)))
        A("s_lshl_b32 %s, %s, 10" % (sr(sB2), sr(sBLK)))
        A("s_add_u32 %s, %s, %s" % (sr(sA), sr(sA), sr(sB2)))
        A("s_lshl_b32 %s, %s, 9" % (sr(sB2), sr(sP)))
        A("s_add_u32 %s, %s, %s" % (sr(sA), sr(sA), sr(sB2)))
        A("s_lshl_b32 %s, %s, 6" % (sr(sB2), sr(sHG)))
        A("s_add_u32 %s, %s, %s" % (sr(sOUT), sr(sA), sr(sB2)))
        if o.tlb:
            A("v_mov_b32 %s, 0" % vr(vZ))
            self.emit(("buffer_load_dword %s, %s, %s, %s offen nt" % (vr(vDUM), vr(vZ), sr(dK, 4), sr(sKVB)), "touch"))
            self.emit(("buffer_load_dword %s, %s, %s, %s offen nt" % (vr(vDUM), vr(vZ), sr(dV, 4), sr(sKVB)), "touch"))
        ev = o.ev.strip()
        assert not (o.stamps and o.prof in (1, 2, 10) and ev), "these profiles reuse the registers of the touch descriptor"
        if ev:
            A("s_mul_hi_u32 %s, %s, %d" % (sr(sA), sr(sB), (1 << 32) // o.kvtm + 1))
            A("s_mul_i32 %s, %s, %d" % (sr(sA), sr(sA), o.kvtm))
            A("s_sub_u32 %s, %s, %s" % (sr(sA), sr(sB), sr(sA)))
            A("s_lshl_b32 %s, %d, %s" % (sr(sTM), sum(1 << (o.kvt0 + o.kvtm * k) for k in range(len(ev))), sr(sA)))
            A("s_mov_b32 %s, %s" % (sr(sTO), sr(sKVO)))
            tk, tw, tq = vT + 4, vOX + 5, vOX + 6
            A("v_and_b32 %s, %d, %s" % (vr(tk), o.kvtl, vr(vLANE)))
            A("v_lshlrev_b32 %s, 7, %s" % (vr(tk), vr(tk)))
            A("v_and_b32 %s, 31, %s" % (vr(tw), vr(vLANE)))
            A("v_lshrrev_b32 %s, 1, %s" % (vr(tq), vr(tw)))
            A("v_lshlrev_b32 %s, 13, %s" % (vr(tq), vr(tq)))
            A("v_and_b32 %s, 1, %s" % (vr(vT), vr(vLANE)))
            A("v_lshl_add_u32 %s, %s, 7, %s" % (vr(tq), vr(vT), vr(tq)))
            A("v_lshlrev_b32 %s, 7, %s" % (vr(tw), vr(tw)))
            self.emit_all(self.srd(dT, pWO, 4 << 20))
            A("s_lshl_b32 %s, %s, 1" % (sr(sA), sr(sB)))
            A("s_add_u32 %s, %s, %s" % (sr(sA), sr(sA), sr(sHF)))
            A("s_lshl_b32 %s, %s, 17" % (sr(sTQ), sr(sA)))
            A("s_lshl_b32 %s, %s, 12" % (sr(sTW), sr(sA)))
            A("s_lshl_b32 %s, %s, 1" % (sr(sA), sr(sHG)))
            A("s_add_u32 %s, %s, %s" % (sr(sA), sr(sA), sr(sP)))
            A("s_lshl_b32 %s, %s, 18" % (sr(sB2), sr(sA)))
            A("s_add_u32 %s, %s, %s" % (sr(sTW), sr(sTW), sr(sB2)))
            A("s_lshl_b32 %s, %s, 9" % (sr(sB2), sr(sA)))
            A("s_add_u32 %s, %s, %s" % (sr(sTQ), sr(sTQ), sr(sB2)))
            A("s_add_u32 %s, %s, 256" % (sr(sTQ), sr(sTQ)))
            for c in o.pre.strip():
                if c == "q":
                    self.emit(("buffer_load_dword %s, %s, %s, %s offen" % (vr(vDUM), vr(tq), sr(dW, 4), sr(sTQ)), "touch"))
                else:
                    A("s_add_u32 %s, %s, %d" % (sr(sE), sr(sTW), 0 if c == "a" else 131072))
                    self.emit(("buffer_load_dword %s, %s, %s, %s offen" % (vr(vDUM), vr(tw), sr(dT, 4), sr(sE)), "touch"))
            A("s_branch L_kvt_skip")
            for ch in sorted(set(ev)):
                A("L_kvt_%s:" % ch)
                for c in {"x": "qab", "y": "qa", "z": "ab", "u": "qk", "v": "ak", "w": "bk"}.get(ch, ch):
                    if c == "k":
                        A("s_add_u32 %s, %s, %s" % (sr(sE), sr(sTO), sr(sKVB)))
                        A("s_add_u32 %s, %s, 8192" % (sr(sTO), sr(sTO)))
                        A("s_and_b32 %s, %s, 0x1ffff" % (sr(sTO), sr(sTO)))
                        A("buffer_load_dword %s, %s, %s, %s offen" % (vr(vDUM), vr(tk), sr(dK, 4), sr(sE)))
                        A("buffer_load_dword %s, %s, %s, %s offen" % (vr(vDUM), vr(tk), sr(dV, 4), sr(sE)))
                    elif c == "q":
                        A("buffer_load_dword %s, %s, %s, %s offen" % (vr(vDUM), vr(tq), sr(dW, 4), sr(sTQ)))
                    else:
                        A("s_add_u32 %s, %s, %d" % (sr(sE), sr(sTW), 0 if c == "a" else 131072))
                        A("buffer_load_dword %s, %s, %s, %s offen" % (vr(vDUM), vr(tw), sr(dT, 4), sr(sE)))
                A("s_add_u32 %s, %s, 4" % (sr(sRET), sr(sRET)))
                A("s_addc_u32 %s, %s, 0" % (sr(sRET + 1), sr(sRET + 1)))
                A("s_setpc_b64 %s" % sr(sRET, 2))
            A("L_kvt_skip:")
        self.emit_all(self.voff_std(vOKV, 0, 256))
        t0, t1, t2 = vT, vT + 1, vT + 2
        A("v_and_b32 %s, 15, %s" % (vr(t0), vr(vLANE)))
        A("v_lshrrev_b32 %s, 4, %s" % (vr(t1), vr(vLANE)))
        A("v_and_b32 %s, 7, %s" % (vr(t2), vr(vLANE)))
        A("v_lshlrev_b32 %s, 1, %s" % (vr(t2), vr(t2)))
        A("v_xor_b32 %s, %s, %s" % (vr(t2), vr(t2), vr(t1)))
        A("v_lshlrev_b32 %s, 4, %s" % (vr(t2), vr(t2)))
        A("v_lshl_add_u32 %s, %s, 8, %s" % (vr(vLK), vr(t0), vr(t2)))
        A("v_lshrrev_b32 %s, 2, %s" % (vr(t0), vr(vLANE)))
        A("v_and_b32 %s, 7, %s" % (vr(t1), vr(t0)))
        A("v_lshlrev_b32 %s, 5, %s" % (vr(t1), vr(t1)))
        A("v_lshl_add_u32 %s, %s, 8, %s" % (vr(t0), vr(t0), vr(t1)))
        A("v_and_b32 %s, 3, %s" % (vr(t1), vr(vLANE)))
        A("v_lshl_add_u32 %s, %s, 3, %s" % (vr(t0), vr(t1), vr(t0)))
        A("s_lshl_b32 %s, %s, 13" % (sr(sA), sr(sP)))
        for dt in range(8):
            A("v_xor_b32 %s, %d, %s" % (vr(vVA + dt), dt << 5, vr(t0)))
            A("v_add_u32 %s, %s, %s" % (vr(vVA + dt), sr(sA), vr(vVA + dt)))
        for ks in range(4):
            A("v_xor_b32 %s, %d, %s" % (vr(vKA + ks), ks << 6, vr(vLK)))
            A("v_add_u32 %s, %s, %s" % (vr(vKA + ks), sr(sA), vr(vKA + ks)))
        A("s_mul_i32 %s, %s, 12288" % (sr(sA), sr(sW)))
        A("s_add_u32 %s, %s, %d" % (sr(sA), sr(sA), EX))
        A("v_lshlrev_b32 %s, 4, %s" % (vr(vSTA), vr(vLANE)))
        A("v_add_u32 %s, %s, %s" % (vr(vEXW), sr(sA), vr(vSTA)))
        for i in range(4):
            A("v_mov_b32 %s, 0x3f803f80" % vr(vONES + i))
        A("s_mov_b32 %s, %s" % (sr(sTH), f32(8.0)))

    def poll_addr(self):
        return ["v_and_b32 %s, 7, %s" % (vr(vPA), vr(vLANE)), "v_xor_b32 %s, %s, %s" % (vr(vPA), sr(sX), vr(vPA)),
                "v_lshlrev_b32 %s, %d, %s" % (vr(vPA), self.o.fshift, vr(vPA))]

    def q0_phase(self):
        A, o = self.A, self.o
        vBX = (vS, vS + 12)

        def xb_reads(n):
            return (self.x_group("%d" % (n // 4)) if n % 4 == 0 else []) + self.x_addr(n % 4) + \
                ["ds_read_b128 %s, %s offset:%d" % (vr(vBX[n % 2] + 4 * j, 4), vr(vB), 4096 * j) for j in range(3)]

        W = lambda n: ("wq", 0, n)
        A("L_q0:")
        self.open([W(0)], [("x", 0)])
        self.emit_all(xb_reads(0) + self.tr_reads(0, self.loc[W(0)] // SLOT) + self.next_loads(2))
        xplan = [{0: 1, 4: 2, 8: 3}, {0: 1, 1: 2, 2: 3}, {0: 1, 2: 2, 4: 3}, {}, {0: 1, 3: 2, 6: 3}][o.xplan]
        qfin = self.q_finalize(False)
        for n in range(16):
            self.open([W(n + 1)] if n < 15 else [], [("x", (n + 1) // 4)] if n % 4 == 3 else [])
            self.stamp("q%d" % n)
            order = [(dt, j) for dt in range(8) for j in range(3)] if n < 15 else [(dt, j) for j in range(3) for dt in range(8)]
            mf = []
            for dt, j in order:
                acc = vr(vO + 12 * dt + 4 * j, 4)
                mf.append("%s %s, %s, %s, %s" % (MF, acc, ar(aF[n % 2] + 4 * dt, 4), vr(vBX[n % 2] + 4 * j, 4), "0" if n == 0 else acc))
            if n == 15:
                self.auto(mf, [], [], qfin[:30], v0=10)
                break
            xb = xb_reads(n + 1)
            head, vq, rd = xb[:-5], xb[-5:-3], self.tr_reads((n + 1) % 2, self.loc[W(n + 1)] // SLOT) + xb[-3:]
            post = []
            if n in xplan:
                post = self.x_dma(xplan[n])
                carry = []
                if o.xhalf and n > 0:
                    post, carry = post[:-4], post[-4:]
            elif n - 1 in xplan and o.xhalf:
                post = carry
            if n == 9 and o.ctouch & 16:
                assert not post
                post = self.code_touch_small("L_q0end", vT + 5, dC)
            ev = o.ev.strip()
            if o.kvt0 <= n < o.kvt0 + o.kvtm * len(ev):
                post = post + ["s_bitcmp1_b32 %s, %d\ns_getpc_b64 %s\ns_cbranch_scc1 L_kvt_%s" % (sr(sTM), n, sr(sRET, 2), ev[(n - o.kvt0) // o.kvtm])]
            self.auto(mf, rd, head + self.next_loads(0 if n >= 15 - o.kvdefer else 1) + post, vq, v0=4)
        A("L_q0end:")
        self.stamp("qend")
        self.emit_all(spread(qfin[30:o.qsplit], self.next_loads(1 + o.kvdefer)))
        K0 = ("k", 0, 0)
        self.open([K0])
        self.emit_all(spread(qfin[o.qsplit:], self.k_reads(0, self.loc[K0] // SLOT)))
        self.par = 0

    def publish(self, stage, n):
        return ["s_add_u32 %s, %s, 8" % (sr(sGC), sr(sGC)), "s_add_u32 %s, %s, %d" % (sr(sE), sr(sGC), stage),
                "v_mov_b32 %s, %s" % (vr(vFV), sr(sE)), "s_waitcnt vmcnt(%d)" % n, "s_mov_b64 exec, 1",
                ("buffer_store_dword %s, %s, %s, %s offen sc1" % (vr(vFV), vr(vZ), sr(dS, 4), sr(sFLO)), "fl"),
                "s_mov_b64 exec, -1"]

    def o1_phase(self):
        A, o = self.A, self.o
        mx, ex, cv, check, qk, pv, proj, b_parts, tr, patK = self.softmax_parts
        vOA, vSG = (vKA, vVA, vVA + 4), vL
        t0, t1 = vT + 4, vT + 5
        addr = ["v_lshrrev_b32 %s, 2, %s" % (vr(t0), vr(vLANE)),
                "v_bfe_u32 %s, %s, 3, 2" % (vr(t1), vr(vLANE)),
                "v_lshlrev_b32 %s, 5, %s" % (vr(t1), vr(t1)),
                "v_lshl_add_u32 %s, %s, 7, %s" % (vr(t0), vr(t0), vr(t1)),
                "v_and_b32 %s, 3, %s" % (vr(t1), vr(vLANE)),
                "v_lshl_add_u32 %s, %s, 3, %s" % (vr(t0), vr(t1), vr(t0)),
                "s_lshl_b32 %s, %s, 13" % (sr(sB2), sr(sP))]
        addr1 = []
        for nt in range(4):
            addr += ["v_xor_b32 %s, %d, %s" % (vr(vOA[0] + nt), nt << 5, vr(t0)),
                     "v_add_u32 %s, %s, %s" % (vr(vOA[0] + nt), sr(sB2), vr(vOA[0] + nt))]
            addr1 += ["v_add_u32 %s, 0x10000, %s" % (vr(vOA[1] + nt), vr(vOA[0] + nt)),
                      "v_add_u32 %s, 0x20000, %s" % (vr(vOA[2] + nt), vr(vOA[0] + nt))]
        addr += ["s_xor_b32 %s, %s, 2" % (sr(sB2), sr(sW)),
                 "s_mul_i32 %s, %s, 12288" % (sr(sB2), sr(sB2)),
                 "s_add_u32 %s, %s, %d" % (sr(sB2), sr(sB2), EX),
                 "v_add_u32 %s, %s, %s" % (vr(vB), sr(sB2), vr(vSTA))]
        setup_v = self.poll_addr() + [
            "v_mov_b32 %s, 0" % vr(vZ), "v_readlane_b32 %s, %s, 7" % (sr(sGC), vr(vCHK)),
            "v_and_b32 %s, 15, %s" % (vr(vOUT), vr(vLANE)), "v_lshlrev_b32 %s, 11, %s" % (vr(vOUT), vr(vOUT)),
            "v_lshrrev_b32 %s, 4, %s" % (vr(vPD), vr(vLANE)), "v_lshl_add_u32 %s, %s, 4, %s" % (vr(vOUT), vr(vPD), vr(vOUT))]
        setup_s = ["s_and_b32 %s, %s, -8" % (sr(sGC), sr(sGC)), "s_mov_b32 %s, 0x00003f80" % sr(sDOT),
                   "s_mov_b32 %s, 0x3f800000" % sr(sDOT + 1)] + self.srd(dK, pOUT, 16 * 96 * 1024 * 2)[:3]
        T = lambda n: ("o", 1, n)

        def frags(n):
            if n < 12:
                return [(n, ks, nt) for ks in range(2) for nt in range(4)]
            t, u = 12 + 2 * (n % 2), (n - 12) // 2
            return [(t + h, ks, 2 * u + nt) for h in range(2) for ks in range(2) for nt in range(2)]

        def reads(n, fset):
            out = []
            for f, (t, ks, nt) in enumerate(frags(n)):
                win, off = self.loc[T(t)] // 65536, self.loc[T(t)] % 65536
                out += ["ds_read_b64_tr_b16 %s, %s offset:%d" % (ar(aF[fset] + 4 * f + 2 * e, 2), vr(vOA[win] + nt),
                                                                 off + 4096 * ks + 2048 * e) for e in range(2)]
            return out

        def eighth(e):
            out = ["s_xor_b32 %s, %s, %d" % (sr(sST), sr(sX), e), "s_mul_i32 %s, %s, 24576" % (sr(sST), sr(sST)),
                   "s_add_u32 %s, %s, %s" % (sr(sST), sr(sST), sr(sSTB))]
            for jq in range(3):
                a = vSG + 8 * ((3 * e + jq) % 6)
                src = 24 * e + 4 * jq
                out += ["v_accvgpr_read_b32 %s, %s" % (vr(a + x), ar(src + x)) for x in range(4)]
                out += ["v_accvgpr_read_b32 %s, %s" % (vr(a + 4 + x), ar(src + 12 + x)) for x in range(4)]
                out += ["v_cvt_pk_bf16_f32 %s, %s, %s" % (vr(a + x), vr(a + 2 * x), vr(a + 2 * x + 1)) for x in range(4)]
                off = " offset:%d" % (1024 * jq) if jq else ""
                out.append(("buffer_store_dwordx4 %s, %s, %s, %s offen%s sc1" % (vr(a, 4), vr(vSTA), sr(dS, 4), sr(sST), off), ("st", e)))
            return out

        V = ("v", 1, 15)
        self.stamp("last")
        nl, k = self.nproj[1][15], self.klast
        soft = mx(2) + check() + ex(0, 0) + ex(1, 0) + ex(0, 1) + cv(0) + ex(1, 1) + ex(0, 2) + cv(1) + ex(1, 2) + ["s_nop 0"] + cv(2)
        if nl == 0:
            self.open([])
            self.pat(qk(False), "ssv ssv d vv d vv d _ d _ _ _ _ _ vv vv _ _ _ _ _ _ nvv vv".split(), [], self.next_loads(1), addr[:6] + mx(0) + mx(1))
            self.par ^= 1
            self.emit_all(addr[6:] + soft)
        else:
            W1, W2 = ("w", 1, k), ("w", 1, k + 1)
            self.open([W1])
            par, vq, brd = b_parts(1, k)
            self.pat(qk(False), patK, tr(W1) + brd, par + self.next_loads(1), vq + mx(0) + mx(1))
            self.par ^= 1
            if nl == 2:
                assert k % 2 == 0
                self.open([W2])
                self.auto(proj(1, k), tr(W2), self.next_loads(1), soft[:26], v0=3)
                self.par ^= 1
                self.open([])
                self.auto(proj(1, k + 1), [], self.next_loads(1), soft[26:] + addr, v0=0)
            else:
                self.open([])
                self.auto(proj(1, k), [], self.next_loads(1), soft + addr, v0=4)
            self.par ^= 1
        kset = 1 - self.par
        assert self.loc[T(0)] < XB
        fin = lambda j, w: self.o_rcp(j) + self.o_block(0, j, w) + self.o_block(1, j, w)
        if o.t0first:
            self.open([T(0)])
            self.emit_all(reads(0, kset) + self.next_loads(1))
            self.open([V])
        else:
            self.open([V, T(0)])
        self.stamp("a1end")
        self.olimit = 99
        self.ofree += [EXTRA + SLOT * x for x in range(3)]
        vrd = self.tr_reads(self.par, self.loc[V] // SLOT)
        mf = pv(False)
        self.emit_all(vrd[:12])
        A(mf[0])
        self.emit_all(vrd[12:])
        d = self.next_loads(o.opv)
        if o.t0first:
            for dt in range(8):
                A("s_waitcnt lgkmcnt(%d)" % (14 - 2 * dt))
                A(mf[1 + dt])
                if dt % 2:
                    while d and not isinstance(d[0], tuple):
                        self.emit(d.pop(0))
                    if d:
                        self.emit(d.pop(0))
            self.pat(mf[9:], "sss d _ vv vv vv vv d vv vv vv vv d vv vv vv vv d".split(), [], d, (fin(0, False) + fin(1, False))[:26])
            self.emit_all((fin(0, False) + fin(1, False))[26:] + fin(2, False))
            wr01 = [self.o_write(ks, j) for ks in (0, 1) for j in range(3)]
        else:
            for dt in range(8):
                A("s_waitcnt lgkmcnt(%d)" % (14 - 2 * dt))
                A(mf[1 + dt])
            nd1 = len(d) * 2 // 3
            self.pat(mf[9:], "tsss td td tvv tdvv tdvv tsvv tsvv tdvv tdvv tvvv tdvv tdvv tvvvv tvvvv tvvvv vvvv vvvv".split(),
                     reads(0, kset), d[:nd1], fin(0, True) + fin(1, True))
            A("s_nop 1")
            self.emit_all(spread(fin(2, True), d[nd1:]))
            wr01 = []
        self.par = kset
        brd = ["ds_read_b128 %s, %s offset:%d" % (vr(vO + 24 * (f // 3) + 12 + 4 * (f % 3), 4), vr(vB), 1024 * f) for f in range(12)]
        fin2 = []
        for ks in (2, 3):
            for j in range(3):
                fin2 += self.o_block(ks, j, not o.oord)
        wr23 = [self.o_write(ks, j) for ks in (2, 3) for j in range(3)]
        early = eighth(0) + eighth(1) + eighth(2) + eighth(3)
        vqs = {12: eighth(4), 13: eighth(5), 14: eighth(6)}
        if o.oord:
            vqs.update({0: fin2[:36] + addr1, 1: fin2[36:], 3: setup_v})
            xds = {0: wr01[:3], 1: wr01[3:], 2: wr23 + brd[:6], 3: brd[6:]}
            if o.wspread:
                xds = {0: wr01[:5], 1: wr01[5:] + wr23[:3], 2: brd[:2] + wr23[3:4] + brd[2:4] + wr23[4:5] + brd[4:6] + wr23[5:], 3: brd[6:]}
            for k in range(3):
                vqs[5 + k] = early[28 * k:28 * (k + 1)]
            for k in range(4):
                vqs[8 + k] = early[84 + 21 * k:84 + 21 * (k + 1)]
            nex = 4
        else:
            vqs.update({0: addr1 + fin2, 2: setup_v})
            xds = {0: wr01, 1: brd[:6], 2: brd[6:]}
            for k in range(8):
                vqs[4 + k] = early[21 * k:21 * (k + 1)]
            nex = 3
        nload = [{0: 1, 1: 2, 2: 2, 3: 2, 4: 2, 5: 1, 6: 1, 7: 1}, {0: 1, 1: 1, 2: 2, 3: 2, 4: 2, 5: 2, 6: 2}, {0: 2, 1: 2, 2: 2, 3: 2, 4: 2, 5: 2},
                 {0: 1, 1: 1, 2: 1, 3: 2, 4: 2, 5: 2, 6: 1, 7: 1}, {0: 0, 1: 1, 2: 1, 3: 2, 4: 2, 5: 2, 6: 2, 7: 1}][o.oplan]
        poll = "buffer_load_dword %s, %s, %s, %s offen sc1" % (vr(vPD), vr(vPA), sr(dS, 4), sr(sFLC))
        for n in range(16):
            if n < 11:
                self.open([T(n + 1)])
            elif n < 13:
                self.open([T(2 * n - 10), T(2 * n - 9)])
            else:
                A("s_waitcnt lgkmcnt(0)")
            if n == nex:
                self.ofree += [EX + SLOT * x for x in range(3)]
            self.stamp("o%d" % n)
            mf = []
            for f, (t, ks, nt) in enumerate(frags(n)):
                c, i = O1_TILES[t]
                for j in range(3):
                    acc = ar(48 * c + 12 * nt + 4 * j, 4)
                    mf.append("%s %s, %s, %s, %s" % (MF, acc, ar(aF[self.par] + 4 * f, 4), vr(vO + 48 * (i % 2) + 24 * ks + 12 * (i // 2) + 4 * j, 4), acc))
            d = self.next_loads(nload.get(n, 1 if n < 11 else 0))
            rd = reads(n + 1, 1 - self.par) if n < 15 else []
            if n == 0:
                assert self.loc[T(1)] < XB
            rd = spread(rd, xds.get(n, []))
            if n == 5:
                d = setup_s + d
            if n == o.pub1:
                self.emit_all(self.publish(1, self.vm_need([("st", 3)])) + ["s_nop 3"])
            if n == 15:
                d = [(poll, "poll")]
            self.auto(mf, rd, d, vqs.get(n, []), v0=(0 if n < 4 else 3), vend=(o.vend if n == 14 else None))
            self.par ^= 1
        assert not self.loadq
        self.stamp("o16")

        masks = (0x0f, 0x70)
        groups = ((0, 1, 2, 3), (4, 5, 6))
        vLD, vAC = (vO, vO + 48), vQ

        def test(k):
            A("v_and_b32 %s, 7, %s" % (vr(vPT), vr(vPD)))
            A("v_cmp_eq_u32 %s, %s, %s" % (sr(sRET, 2), vr(vPD), vr(vCHK)))
            A("v_cmp_gt_u32 vcc, %d, %s" % (2 if o.aall else k + 1, vr(vPT)))
            A("s_nop 0")
            A("s_or_b32 %s, vcc_lo, %s" % (sr(sA), sr(sRET)))
            A("s_and_b32 %s, %s, %d" % (sr(sA), sr(sA), masks[k]))

        def ensure(k):
            A("s_mov_b32 %s, 0" % sr(sSTP))
            A("L_pt%d:" % k)
            test(k)
            A("s_cbranch_scc0 L_pd%d" % k)
            if o.pmask:
                A("s_mov_b64 exec, %d" % (0x7f if k == 0 else 0x70))
            A(poll)
            if o.pmask:
                A("s_mov_b64 exec, -1")
            A("s_add_u32 %s, %s, 1" % (sr(sSTP), sr(sSTP)))
            A("s_and_b32 %s, %s, 31" % (sr(sA), sr(sSTP)))
            A("s_cbranch_scc0 L_pr%d" % k)
            A("L_pw%d:" % k)
            A("s_waitcnt vmcnt(0)")
            A("s_cmp_lt_u32 %s, %d" % (sr(sSTP), SPIN))
            A("s_cbranch_scc1 L_pt%d" % k)
            A("L_pd%d:" % k)
            self.tail += ["L_pr%d:" % k] + plain(self.publish(2, 63)) + ["s_branch L_pw%d" % k]

        def loads(k, attempt=False):
            if attempt:
                A("s_cselect_b32 %s, 1, 0" % sr(sL))
                A("s_cselect_b32 %s, %d, %s" % (sr(sC), OOB, sr(sLDB)))
            else:
                A("s_mov_b32 %s, %s" % (sr(sC), sr(sLDB)))
            for h, e in enumerate(groups[k]):
                A("s_xor_b32 %s, %s, %d" % (sr(sA), sr(sX), e))
                A("s_mul_i32 %s, %s, 3072" % (sr(sA), sr(sA)))
                A("s_add_u32 %s, %s, %s" % (sr(sA), sr(sA), sr(sC)))
                for jq in range(3):
                    off = " offset:%d" % (1024 * jq) if jq else ""
                    A("buffer_load_dwordx4 %s, %s, %s, %s offen%s sc1" % (vr(vLD[k] + 12 * h + 4 * jq, 4), vr(vSTA), sr(dS, 4), sr(sA), off))

        def add(k, jqs=(0, 1, 2)):
            for jq in jqs:
                for h in range(len(groups[k])):
                    for i in range(4):
                        for e in range(2):
                            a = vr(vAC + 8 * jq + 2 * i + e)
                            A("v_dot2_f32_bf16 %s, %s, %s, %s" % (a, vr(vLD[k] + 12 * h + 4 * jq + i), sr(sDOT + e), a))

        self.emit_all(self.publish(2, 0))
        self.stamp("pub")
        for jq in range(3):
            for x in range(8):
                A("v_accvgpr_read_b32 %s, %s" % (vr(vAC + 8 * jq + x), ar(168 + 4 * jq + 12 * (x // 4) + x % 4)))
        ensure(0)
        loads(0)
        self.stamp("xa")
        test(1)
        loads(1, True)
        A(poll)
        if o.bfirst:
            A("s_cmp_eq_u32 %s, 0" % sr(sL))
            A("s_cbranch_scc1 L_second")
            A("s_waitcnt vmcnt(0)")
            test(1)
            loads(1, True)
            A(poll)
            A("L_second:")
        A("s_waitcnt vmcnt(10)")
        add(0)
        self.stamp("xs")
        A("s_cmp_eq_u32 %s, 0" % sr(sL))
        A("s_cbranch_scc1 L_have")
        A("s_waitcnt vmcnt(0)")
        ensure(1)
        loads(1)
        A("s_waitcnt vmcnt(0)")
        A("L_have:")
        self.stamp("xb")
        A("s_waitcnt vmcnt(1)")
        self.stamp("xf")
        for jq in range(3):
            a = vAC + 8 * jq
            add(1, (jq,))
            A("s_nop 2")
            for i in range(4):
                A("v_cvt_pk_bf16_f32 %s, %s, %s" % (vr(a + i), vr(a + 2 * i), vr(a + 2 * i + 1)))
            A("s_nop 1")
            A("v_permlane32_swap_b32 %s, %s" % (vr(a), vr(a + 2)))
            A("v_permlane32_swap_b32 %s, %s" % (vr(a + 1), vr(a + 3)))
            A("s_nop 1")
            A("v_permlane16_swap_b32 %s, %s" % (vr(a), vr(a + 2)))
            A("v_permlane16_swap_b32 %s, %s" % (vr(a + 1), vr(a + 3)))
            A("buffer_store_dwordx4 %s, %s, %s, %s offen%s" % (vr(a, 4), vr(vOUT), sr(dK, 4), sr(sOUT), o.out_flag))
            if jq < 2:
                A("s_add_u32 %s, %s, 32768" % (sr(sOUT), sr(sOUT)))

    def write_stamps(self):
        A = self.A
        A("s_waitcnt vmcnt(0)")
        self.stamp("end")
        A("s_waitcnt lgkmcnt(0)")
        A("s_cmp_lg_u32 %s, 0" % sr(sW))
        A("s_cbranch_scc1 L_end")
        A("s_mov_b64 exec, 1")
        A("s_mul_i32 s3, s2, %d" % (NSTAMP * 8))
        A("s_add_u32 s3, s3, %d" % STAMP_OFF)
        A("v_mov_b32 v6, 0")
        for i in range(NSTAMP):
            A("v_mov_b32 v8, s%d" % (sSTAMP + 2 * i))
            A("v_mov_b32 v9, s%d" % (sSTAMP + 2 * i + 1))
            A("buffer_store_dwordx2 v[8:9], v6, %s, s3 offen offset:%d" % (sr(dS, 4), 8 * i))
            A("s_nop 1")

    def build(self):
        A, o = self.A, self.o
        lab = NAME + "_kernel"
        A("; @launch grid=(256,1,1) block=(256,1,1) lds=163840")
        A('.amdgcn_target "amdgcn-amd-amdhsa--gfx950"')
        A(".text")
        A(".globl %s" % lab)
        A(".p2align 8")
        A(".type %s,@function" % lab)
        A("%s:" % lab)
        self.make_tiles()
        self.prologue()
        self.q0_phase()
        self.attention()
        self.o1_phase()
        if o.stamps:
            self.write_stamps()
        A("L_end:")
        A("s_endpgm")
        self.rare()
        for x in self.tail:
            A(x)
        A("L_codeend:")
        A('.section .rodata,"a"')
        A(".p2align 6")
        A(".amdhsa_kernel %s" % lab)
        A("  .amdhsa_next_free_vgpr 512")
        A("  .amdhsa_next_free_sgpr 100")
        A("  .amdhsa_accum_offset 256")
        A("  .amdhsa_group_segment_fixed_size 0")
        A("  .amdhsa_kernarg_size 104")
        A("  .amdhsa_user_sgpr_count 2")
        A("  .amdhsa_user_sgpr_kernarg_segment_ptr 1")
        A("  .amdhsa_system_sgpr_workgroup_id_x 1")
        A(".end_amdhsa_kernel")
        return "\n".join(self.L) + "\n"


def parse_opts(args):
    kw = {}
    for a in args:
        k, v = a.split("=", 1)
        cur = getattr(Opt, k)
        if isinstance(cur, bool):
            kw[k] = v not in ("0", "False")
        elif isinstance(cur, int):
            kw[k] = int(v)
        else:
            kw[k] = (" " + v.replace("+", " ")) if v else ""
    return kw


if __name__ == "__main__":
    open(sys.argv[1], "w").write(Gen(Opt(**parse_opts(sys.argv[2:]))).build())
```

```python
import math
import struct
import sys

NAME = "concat_heads__mha_block_cached__mha_block_cached__near_ridge"
WS_BYTES = 288358400
STAMP_OFF = WS_BYTES - (1 << 20)
NSTAMP = 10


def f32(x):
    return "0x%08x" % struct.unpack("<I", struct.pack("<f", x))[0]


class Opt:
    stamps = False
    cyc = False
    prof = 0
    kv_flag = " nt"
    w_flag = ""
    x_flag = ""
    out_flag = ""
    touch = False
    ctouch = 22
    xoct = 1
    xq = 0
    x1pre = False
    xplan = 4
    kv_oob = False
    nomf = 0
    fshift = 7
    pub1 = 14
    ev = "uvw"
    pre = ""
    kvt0 = -1
    kvtm = 4
    kvtn = 1
    kvti = False
    tlb = 0
    np0 = "1111111111111111"
    np1 = "0111111111111112"
    retouch = True
    bfirst = True
    oplan = 0
    qsplit = 120
    olim = 1
    t0first = True
    oord = 1
    xhalf = True
    wspread = True
    pmask = False
    wtlb = 0
    midbar = False
    skb = 1
    skq = 8
    sko = 0
    skp = 0
    skk = 0
    a0skew = 2
    midpos = 120
    ksrot = 3
    npre = 2
    wfirst = False
    kvdefer = 0
    kvtl = 3
    aall = False
    opv = 3
    vend = 16

    def __init__(self, **kw):
        for k, v in kw.items():
            assert hasattr(Opt, k), k
            setattr(self, k, v)


sW, sP, sHF, sB, sBLK, sHG, sX, sKVO = 4, 5, 6, 7, 8, 9, 10, 11
dK, dV, dW, dX, dS = 12, 16, 32, 36, 40
dC = dX
pX, pK, pV, pWQ, pWO, pWS = 20, 22, 24, 26, 28, 30
pOUT, sFLO, sFLC, sGC, sSTP, sLDB, sOUT, sHX, sXC = 20, 22, 23, 24, 25, 26, 27, 30, 31
sKV, sWOFF, sXO, sM0, sIT, sKVB, sTH, sLO = 44, 45, 46, 47, 48, 49, 50, 51
sA, sB2, sC, sE = 52, 53, 54, 55
sWQB, sWOB, sWT, sCGX, sXB, sST, sL, sSTB = 56, 57, 58, 59, 60, 61, 62, 63
sO1, sRET, sXM, sCG0, sSTAMP = 64, 68, 70, 71, 72
sKS, sKW = 92, 96
sALT, sDOT = sKS, sKW
sTM, sTO, sTQ, sTW = sST, sL, sIT, sLO
dT = 88

vLANE, vLK, vB = 1, 2, 3
vO, vL, vNEGM, vS, vP = 4, 100, 112, 124, 148
vQ, vBF, vONES = 160, 208, 220
aF = (192, 224)
vVA, vKA, vOKV, vOW, vT = 224, 232, 236, 240, 244
vEXW, vSTA, vDUM, vCHK = 252, 253, 254, 255
vPA, vPD, vFV, vZ, vOUT, vPT = 152, 153, 154, 155, 156, 157

SLOT = 16384
XB = 65536
EX = 65536
EXTRA = 114688
FLAGS = 32 << 20
SPIN = 100000
OOB = 0x7ff00000
MF = "v_mfma_f32_16x16x32_bf16"
O1_TILES = [(c, i) for c in range(4) for i in range(4)]
O1_ALT = [(0, 0), (1, 0), (0, 1), (0, 2), (0, 3), (1, 1), (1, 2), (1, 3)] + O1_TILES[8:]
vOX = 148


def vr(a, n=1):
    return "v%d" % a if n == 1 else "v[%d:%d]" % (a, a + n - 1)


def ar(a, n=1):
    return "a%d" % a if n == 1 else "a[%d:%d]" % (a, a + n - 1)


def sr(a, n=1):
    return "s%d" % a if n == 1 else "s[%d:%d]" % (a, a + n - 1)


def txt(x):
    return x[0] if isinstance(x, tuple) else x


def plain(xs):
    return [txt(x) for x in xs]


def is_label(x):
    return not isinstance(x, tuple) and x.endswith(":")


def spread(base, ins):
    out, k = [], 0
    for i, x in enumerate(base):
        out.append(x)
        while k < len(ins) and (k + 1) * len(base) <= (i + 1) * (len(ins) + 1):
            out.append(ins[k])
            k += 1
    return out + ins[k:]


class Gen:
    def __init__(self, o):
        self.o = o
        if o.oord:
            O1_TILES[:] = O1_ALT
        self.L = []
        self.vm = []
        self.tail = []
        self.uid = 0
        self.phase = 1

    def A(self, s):
        self.L.append(s)

    def emit(self, x):
        if txt(x).endswith(" lds") and " m0," in self.L[-1]:
            self.A("s_nop 0")
        self.A(txt(x))
        if isinstance(x, tuple):
            self.vm.append(x[1])

    def emit_all(self, xs):
        for x in xs:
            self.emit(x)

    def stamp(self, name):
        tables = {0: ["start", "q0", "qend", "a0", "a0end", "a1", "a1end", "o16", "pub", "end"],
                  1: ["start"] + ["q%d" % k for k in range(8)] + ["end"],
                  2: ["start"] + ["q%d" % k for k in range(8, 16)] + ["qend"],
                  3: ["start", "a1end"] + ["o%d" % k for k in range(8)],
                  4: ["start"] + ["o%d" % k for k in range(8, 16)] + ["o16"],
                  10: ["start", "q12", "q13", "q14", "q15", "qend", "a0", "s0_1", "s0_2", "s0_3"],
                  11: ["start", "s0_14", "s0_15", "s1_0", "s1_1", "s1_2", "s1_13", "s1_14", "last", "a1end"],
                  8: ["start"] + ["s0_%d" % k for k in range(0, 16, 2)] + ["end"],
                  9: ["start"] + ["s1_%d" % k for k in range(0, 16, 2)] + ["end"],
                  5: ["start", "a1end", "o0", "o16", "pub", "xa", "xs", "xb", "xf", "end"]}
        if self.o.prof == 6:
            t = ["start", "a0", "", "a0end", "", "a1", "", "a1end", "", "end"]
            if self.o.stamps and name in t:
                k = t.index(name)
                self.A("s_memrealtime %s" % sr(sSTAMP + 2 * k, 2))
                if 0 < k < 9:
                    self.A("s_memtime %s" % sr(sSTAMP + 2 * k + 2, 2))
            return
        if self.o.prof == 7:
            if self.o.stamps and name in ("start", "end"):
                self.A("s_memrealtime %s" % sr(sSTAMP + (0 if name == "start" else 18), 2))
            if self.o.stamps and name == "iter":
                for k in range(1, 8):
                    self.A("s_mov_b64 %s, %s" % (sr(sSTAMP + 2 * k, 2), sr(sSTAMP + 2 * k + 2, 2)))
                self.A("s_memrealtime %s" % sr(sSTAMP + 16, 2))
            return
        t = tables[self.o.prof]
        if self.o.stamps and name in t:
            self.A("%s %s" % ("s_memtime" if self.o.cyc else "s_memrealtime", sr(sSTAMP + 2 * t.index(name), 2)))

    def vm_need(self, tags):
        idx = max([i for i, t in enumerate(self.vm) if t in tags] + [-1])
        n = len(self.vm) - 1 - idx
        self.vm = self.vm[idx + 1:]
        return n

    def sync(self, n):
        self.A("s_waitcnt vmcnt(%d) lgkmcnt(0)" % n)
        self.A("s_barrier")

    def pat(self, mf, pattern, ds=(), dq=(), vq=()):
        ds, dq, vq = list(ds), list(dq), list(vq)
        assert len(pattern) == len(mf), (len(pattern), len(mf))

        def labels(q):
            while q and q[0] is not None and is_label(q[0]):
                self.emit(q.pop(0))

        for m, gap in zip(mf, pattern):
            self.A(m if not (self.o.nomf & self.phase) else "s_nop 0")
            for ch in gap:
                if ch == "t" and ds:
                    self.emit(ds.pop(0))
                elif ch == "s" and dq and not txt(dq[0]).startswith("buffer_"):
                    self.emit(dq.pop(0))
                    labels(dq)
                elif ch == "d" and dq:
                    while dq and not txt(dq[0]).startswith("buffer_"):
                        self.emit(dq.pop(0))
                    if dq:
                        self.emit(dq.pop(0))
                elif ch == "n":
                    self.A("s_nop 1")
                elif ch == "v" and vq:
                    x = vq.pop(0)
                    if x is not None:
                        self.emit(x)
                    labels(vq)
        self.emit_all(ds + dq + vq)

    def auto(self, mf, ds=(), dq=(), vq=(), v0=0, vend=None):
        n = len(mf)
        nd = len([x for x in dq if txt(x).startswith("buffer_")])
        ds_end, first = n - 5, 3
        dpos = [first + int(k * (n - 2 - first) / max(nd - 1, 1) + 0.5) for k in range(nd)] if nd > 1 else ([first] if nd else [])
        pattern, left, vleft = [], len(ds), [x for x in vq if not is_label(x)]
        for g in range(n):
            k = dpos.count(g)
            if k:
                pattern.append("d" * k)
                continue
            gaps_ds = len([h for h in range(g, ds_end + 1) if h not in dpos])
            nds = 0 if left == 0 else min(2, -(-left // max(gaps_ds, 1)))
            nv = 0
            if g >= v0 and vleft:
                gaps_v = max(1, len([h for h in range(g, vend or n) if h not in dpos]))
                if isinstance(vleft[0], tuple):
                    nv = 1
                    if left <= 2 * (gaps_ds - 1):
                        nds = 0
                else:
                    nv = max(2 - nds, -(-len(vleft) // gaps_v))
                    for q in range(min(nv, len(vleft))):
                        if q and isinstance(vleft[q], tuple):
                            nv = q
                            break
                vleft = vleft[nv:]
            left -= nds
            pattern.append("t" * nds + "s" * max(0, 3 - nds - nv) + "v" * nv)
        self.pat(mf, pattern, ds, dq, vq)

    def srd(self, d, p, size):
        return ["s_mov_b32 %s, %s" % (sr(d), sr(p)), "s_and_b32 %s, %s, 0xffff" % (sr(d + 1), sr(p + 1)),
                "s_mov_b32 %s, %d" % (sr(d + 2), size), "s_mov_b32 %s, 0x20000" % sr(d + 3)]

    def dma(self, loc, srd, voff, soff, flag, tag, cnt=4, m0=sM0, nop=False):
        out = ["s_add_u32 m0, %s, %d" % (sr(m0), loc)] + (["s_nop 0"] if nop else [])
        for i in range(cnt):
            off = " offset:%d" % (1024 * i) if i else ""
            out.append(("buffer_load_dwordx4 %s, %s, %s offen%s%s lds" % (vr(voff + i), sr(srd, 4), sr(soff), off, flag), tag))
        return out

    def voff_std(self, dst, mul_i, mul_r, flip=None):
        t0, t1 = vT + 6, vT + 7
        return ["v_lshrrev_b32 %s, 4, %s" % (vr(t0), vr(vLANE)),
                "v_and_b32 %s, 15, %s" % (vr(t1), vr(vLANE)),
                "v_lshlrev_b32 %s, 1, %s" % (vr(dst), vr(t0)),
                "v_xor_b32 %s, %s, %s" % (vr(t1), vr(t1), vr(dst)),
                "v_lshlrev_b32 %s, 4, %s" % (vr(t1), vr(t1))] + \
            (["v_xor_b32 %s, %s, %s" % (vr(t1), sr(flip), vr(t1))] if flip is not None else []) + \
            ["v_mul_u32_u24 %s, %d, %s" % (vr(t0), mul_r, vr(t0)),
             "v_add_u32 %s, %s, %s" % (vr(dst), vr(t0), vr(t1)),
             "v_xor_b32 %s, 0x80, %s" % (vr(t1), vr(t1)),
             "v_add_u32 %s, %s, %s" % (vr(dst + 1), vr(t0), vr(t1)),
             "v_add_u32 %s, %d, %s" % (vr(dst + 2), 2 * mul_i, vr(dst)),
             "v_add_u32 %s, %d, %s" % (vr(dst + 3), 3 * mul_i, vr(dst + 1)),
             "v_add_u32 %s, %d, %s" % (vr(dst + 1), mul_i, vr(dst + 1))]

    def voff_o1(self, dst):
        t0, t1 = vT + 6, vT + 7
        out = ["s_and_b32 %s, %s, 1" % (sr(sA), sr(sX)),
               "s_lshl_b32 %s, %s, 2" % (sr(sA), sr(sA)),
               "v_lshrrev_b32 %s, 3, %s" % (vr(t0), vr(vLANE)),
               "v_and_b32 %s, 7, %s" % (vr(t1), vr(vLANE)),
               "v_and_b32 %s, 6, %s" % (vr(dst), vr(t0)),
               "v_xor_b32 %s, %s, %s" % (vr(t1), vr(t1), vr(dst)),
               "v_xor_b32 %s, %s, %s" % (vr(t1), sr(sA), vr(t1)),
               "v_lshlrev_b32 %s, 4, %s" % (vr(t1), vr(t1)),
               "v_lshl_add_u32 %s, %s, 10, %s" % (vr(dst), vr(t0), vr(t1))]
        for i in range(1, 4):
            out.append("v_add_u32 %s, %d, %s" % (vr(dst + i), 7168 * i, vr(dst)))
        return out

    def cg_of(self, dst, c):
        return ["s_add_u32 %s, %s, %s" % (sr(dst), sr(sCG0), c), "s_and_b32 %s, %s, 3" % (sr(dst), sr(dst))]

    def wq_group(self, c):
        return self.cg_of(sA, c) + ["s_lshl_b32 %s, %s, 20" % (sr(sA), sr(sA)),
                                    "s_add_u32 %s, %s, %s" % (sr(sWT), sr(sA), sr(sWQB))]

    def wq_params(self, i):
        return ["s_add_u32 %s, %s, %s" % (sr(sWOFF), sr(sWT), sr(sKW + i))]

    def x_group(self, c):
        return self.cg_of(sB2, c) + ["s_mul_i32 %s, %s, 24576" % (sr(sB2), sr(sB2)),
                                     "s_add_u32 %s, %s, %s" % (sr(sCGX), sr(sB2), sr(sXB))]

    def x_addr(self, i):
        return ["v_xor_b32 %s, %s, %s" % (vr(vB), sr(sKS + i), vr(vLK)),
                "v_add_u32 %s, %s, %s" % (vr(vB), sr(sCGX), vr(vB))]

    def kv_params(self):
        return ["s_add_u32 %s, %s, %s" % (sr(sKV), sr(sKVO), sr(sKVB)),
                "s_add_u32 %s, %s, 8192" % (sr(sKVO), sr(sKVO)),
                "s_and_b32 %s, %s, 0x1ffff" % (sr(sKVO), sr(sKVO))]

    def o1_off(self, dst, n):
        c, i = O1_TILES[n]
        return ["s_xor_b32 %s, %s, %d" % (sr(dst), sr(sXC), 128 * c), "s_add_u32 %s, %s, %s" % (sr(dst), sr(dst), sr(sO1 + i))]

    def x_dma(self, c):
        o = self.o
        out = self.cg_of(sA, "%d" % c)
        out += ["s_mul_i32 %s, %s, 24576" % (sr(sB2), sr(sA)),
                "s_mul_i32 %s, %s, 6144" % (sr(sXM), sr(sW)),
                "s_add_u32 %s, %s, %s" % (sr(sXM), sr(sXM), sr(sB2)),
                "s_lshl_b32 %s, %s, 8" % (sr(sA), sr(sA)),
                "s_mul_i32 %s, %s, 98304" % (sr(sXO), sr(sB)),
                "s_add_u32 %s, %s, %s" % (sr(sXO), sr(sXO), sr(sA)),
                "s_mul_i32 %s, %s, 24576" % (sr(sA), sr(sW)),
                "s_add_u32 %s, %s, %s" % (sr(sXO), sr(sXO), sr(sA))]
        out += self.dma(XB, dX, vOX, sXO, o.x_flag, ("x", c), 4, sXM)
        out += ["s_add_u32 %s, %s, 16384" % (sr(sXO), sr(sXO))]
        out += self.dma(XB + 4096, dX, vOX, sXO, o.x_flag, ("x", c), 2, sXM)
        return out

    def code_touch_small(self, label, t, d, back=False):
        self.uid += 1
        k = self.uid
        return ["s_getpc_b64 %s" % sr(d, 2), "L_pc%d:" % k,
                "s_add_u32 %s, %s, %s-L_pc%d" % (sr(d), sr(d), label, k),
                "s_addc_u32 %s, %s, %d" % (sr(d + 1), sr(d + 1), -1 if back else 0),
                "s_and_b32 %s, %s, 0xffff" % (sr(d + 1), sr(d + 1)),
                "s_mov_b32 %s, L_codeend-%s" % (sr(d + 2), label),
                "s_mov_b32 %s, 0x20000" % sr(d + 3),
                "s_and_b32 %s, %s, 7" % (sr(sA), sr(sB)),
                "s_lshl_b32 %s, %s, 2" % (sr(sA), sr(sA)),
                "s_add_u32 %s, %s, %s" % (sr(sA), sr(sA), sr(sW)),
                "s_lshl_b32 %s, %s, 11" % (sr(sA), sr(sA)),
                "v_and_b32 %s, 15, %s" % (vr(t), vr(vLANE)),
                "v_lshlrev_b32 %s, 7, %s" % (vr(t), vr(t)),
                ("buffer_load_dword %s, %s, %s, %s offen" % (vr(vDUM), vr(t), sr(d, 4), sr(sA)), "touch")]

    def code_touch(self, label, t, back=False):
        self.uid += 1
        k = self.uid
        return ["s_getpc_b64 %s" % sr(dC, 2), "L_pc%d:" % k,
                "s_add_u32 %s, %s, %s-L_pc%d" % (sr(dC), sr(dC), label, k),
                "s_addc_u32 %s, %s, %d" % (sr(dC + 1), sr(dC + 1), -1 if back else 0),
                "s_and_b32 %s, %s, 0xffff" % (sr(dC + 1), sr(dC + 1)),
                "s_mov_b32 %s, L_codeend-%s" % (sr(dC + 2), label),
                "s_lshl_b32 %s, %s, 13" % (sr(sA), sr(sW)),
                "v_lshlrev_b32 %s, 7, %s" % (vr(t), vr(vLANE)),
                ("buffer_load_dword %s, %s, %s, %s offen" % (vr(vDUM), vr(t), sr(dC, 4), sr(sA)), "touch")]

    def tr_reads(self, fset, slot):
        return ["ds_read_b64_tr_b16 %s, %s offset:%d" % (ar(aF[fset] + 4 * dt + 2 * e, 2), vr(vVA + dt), SLOT * slot + 4096 * e)
                for dt in range(8) for e in range(2)]

    def k_reads(self, fset, slot):
        return ["ds_read_b128 %s, %s offset:%d" % (ar(aF[fset] + 16 * kt + 4 * ks, 4), vr(vKA + ks), SLOT * slot + 4096 * kt)
                for kt in range(2) for ks in range(4)]

    def make_tiles(self):
        o = self.o
        n0 = [int(c) for c in o.np0.strip()]
        n1 = [int(c) for c in o.np1.strip()]
        self.nproj = (n0, n1)
        q = [("wq", 0, k) for k in range(16)]
        for rnd in range(2):
            k = 0
            for t in range(16):
                n = self.nproj[rnd][t]
                q.append(("k", rnd, t))
                if n:
                    q.append(("w", rnd, k))
                if n == 2 and (rnd, t) == (1, 15):
                    q.append(("w", rnd, k + 1))
                q.append(("v", rnd, t))
                if n == 2 and (rnd, t) != (1, 15):
                    q.append(("w", rnd, k + 1))
                k += n
            assert k == 16
        q += [("o", 1, n) for n in range(16)]
        if o.t0first:
            q.remove(("o", 1, 0))
            q.insert(q.index(("v", 1, 15)), ("o", 1, 0))
        self.loadq = q
        self.free = [SLOT * n for n in range(4)]
        self.ofree = []
        self.tofree = []
        self.loc = {}
        self.par = 0
        self.olimit = o.olim

    def tile_dma(self, tile, loc):
        o = self.o
        kind, rnd, k = tile
        if kind == "w" and rnd == 0 and o.a0skew == 0:
            return ["s_add_u32 %s, %s, %d" % (sr(sWOFF), sr(sWQB), 256 + 262144 * k)] + self.dma(loc, dW, vOW, sWOFF, o.w_flag, tile)
        if kind == "w" and rnd == 0 and o.a0skew == 1:
            pre = ["s_add_u32 %s, %s, 256" % (sr(sWQB), sr(sWQB))] if k == 0 else []
            pre += (self.wq_group("%d" % (k // 4)) if k % 4 == 0 else []) + ["s_add_u32 %s, %s, %d" % (sr(sWOFF), sr(sWT), 262144 * (k % 4))]
            return pre + self.dma(loc, dW, vOW, sWOFF, o.w_flag, tile)
        if kind == "wq" or (kind == "w" and rnd == 0):
            pre = ["s_add_u32 %s, %s, 256" % (sr(sWQB), sr(sWQB))] if (kind == "w" and k == 0) else []
            pre += (self.wq_group("%d" % (k // 4)) if k % 4 == 0 else []) + self.wq_params(k % 4)
            return pre + self.dma(loc, dW, vOW, sWOFF, o.w_flag, tile)
        if kind in "kv":
            pre = []
            if tile == ("k", 1, 0):
                pre = ["s_add_u32 %s, %s, 131072" % (sr(sKVB), sr(sKVB))]
            pre += ["s_add_u32 %s, %s, %d" % (sr(sKV), sr(sKVO), 8192 * k), "s_and_b32 %s, %s, 0x1ffff" % (sr(sKV), sr(sKV)),
                    "s_add_u32 %s, %s, %s" % (sr(sKV), sr(sKV), sr(sKVB))]
            return pre + self.dma(loc, dK if kind == "k" else dV, vOKV, sKV, o.kv_flag, tile)
        if kind == "w":
            pre = []
            if k == 0:
                pre = self.srd(dW, pWO, 4 << 20)[:2] + ["s_and_b32 %s, %s, 3" % (sr(sA), sr(sX)), "s_lshl_b32 %s, %s, 6" % (sr(sA), sr(sA))] + \
                    self.voff_std(vOW, 3072, 1024, sA)
            ks = k // 2
            pre += ["s_add_u32 %s, %s, %d" % (sr(sWOFF), sr(sWOB), 32768 * (ks % 4) + 262144 * (ks // 4))]
            if k % 2:
                pre += ["s_add_u32 %s, %s, %s" % (sr(sWOFF), sr(sWOFF), sr(sHX))]
            return pre + self.dma(loc, dW, vOW, sWOFF, o.w_flag, tile)
        return (self.voff_o1(vOW) if k == 0 else []) + self.o1_off(sWOFF, k) + self.dma(loc, dW, vOW, sWOFF, o.w_flag, tile)

    def next_loads(self, n):
        out = []
        while n and self.loadq:
            tile = self.loadq[0]
            if tile[0] == "o" and tile[2] > self.olimit:
                break
            if self.free:
                loc = self.free.pop(0)
            elif tile[0] == "o" and self.ofree:
                later = [x for x in self.loadq if x[2] >= 2]
                tile = later[0]
                loc = self.ofree.pop(0)
            else:
                break
            self.loadq.remove(tile)
            self.loc[tile] = loc
            out += self.tile_dma(tile, loc)
            n -= 1
        return out

    def open(self, tiles, also=()):
        for t in tiles:
            assert t in self.loc, t
        self.sync(self.vm_need(list(tiles) + list(also)))
        for loc in self.tofree:
            (self.free if loc < XB else self.ofree).append(loc)
        self.tofree = [self.loc[t] for t in tiles]

    def q_finalize(self, from_agpr):
        out = ["s_mov_b32 %s, %s" % (sr(sE), f32(math.log2(math.e) / math.sqrt(128.0)))]
        blocks = []
        for j in range(3):
            for ks in range(4):
                pre = []
                d = vQ + 12 * ks + 4 * j
                if from_agpr:
                    a, b = d, vBF + 4 * (len(blocks) % 3)
                    pre += ["v_accvgpr_read_b32 %s, %s" % (vr(a + i), ar(24 * ks + 4 * j + i)) for i in range(4)]
                    pre += ["v_accvgpr_read_b32 %s, %s" % (vr(b + i), ar(24 * ks + 12 + 4 * j + i)) for i in range(4)]
                else:
                    a, b = vO + 24 * ks + 4 * j, vO + 24 * ks + 12 + 4 * j
                pre += ["v_mul_f32 %s, %s, %s" % (vr(x + y), sr(sE), vr(x + y)) for x in (a, b) for y in range(4)]
                pre += ["v_cvt_pk_bf16_f32 %s, %s, %s" % (vr(d), vr(a), vr(a + 1)),
                        "v_cvt_pk_bf16_f32 %s, %s, %s" % (vr(d + 1), vr(a + 2), vr(a + 3)),
                        "v_cvt_pk_bf16_f32 %s, %s, %s" % (vr(d + 2), vr(b), vr(b + 1)),
                        "v_cvt_pk_bf16_f32 %s, %s, %s" % (vr(d + 3), vr(b + 2), vr(b + 3))]
                s32 = ["v_permlane32_swap_b32 %s, %s" % (vr(d), vr(d + 2)), "v_permlane32_swap_b32 %s, %s" % (vr(d + 1), vr(d + 3))]
                s16 = ["v_permlane16_swap_b32 %s, %s" % (vr(d), vr(d + 2)), "v_permlane16_swap_b32 %s, %s" % (vr(d + 1), vr(d + 3))]
                blocks.append((pre, s32, s16))
        n = len(blocks)
        for k in range(n + 1):
            if k < n:
                pre = blocks[k][0]
                h = len(pre) // 2
                out += pre[:h]
            if k > 0:
                if k == n:
                    out.append("s_nop 1")
                out += blocks[k - 1][1]
            if k < n:
                out += pre[h:]
            else:
                out.append("s_nop 1")
            if k > 0:
                out += blocks[k - 1][2]
        return out

    def o_rcp(self, j):
        return ["v_rcp_f32 %s, %s" % (vr(vBF + j), vr(vL + 4 * j)), "s_nop 0"]

    def o_block(self, ks, j, write=True):
        a, b = vO + 24 * ks + 4 * j, vO + 24 * ks + 12 + 4 * j
        return ["v_mul_f32 %s, %s, %s" % (vr(x + y), vr(x + y), vr(vBF + j)) for x in (a, b) for y in range(4)] + \
            ["v_cvt_pk_bf16_f32 %s, %s, %s" % (vr(a), vr(a), vr(a + 1)),
             "v_cvt_pk_bf16_f32 %s, %s, %s" % (vr(a + 1), vr(a + 2), vr(a + 3)),
             "v_cvt_pk_bf16_f32 %s, %s, %s" % (vr(a + 2), vr(b), vr(b + 1)),
             "v_cvt_pk_bf16_f32 %s, %s, %s" % (vr(a + 3), vr(b + 2), vr(b + 3))] + ([self.o_write(ks, j)] if write else [])

    def o_write(self, ks, j):
        return "ds_write_b128 %s, %s offset:%d" % (vr(vEXW), vr(vO + 24 * ks + 4 * j, 4), 1024 * (3 * ks + j))

    def attention(self):
        A, o = self.A, self.o

        def mx(j):
            s0, s1, m = vS + 4 * j, vS + 12 + 4 * j, vT + j
            return ["v_max3_f32 %s, %s, %s, %s" % (vr(m), vr(s0), vr(s0 + 1), vr(s0 + 2)),
                    "v_max3_f32 %s, %s, %s, %s" % (vr(m), vr(m), vr(s0 + 3), vr(s1)),
                    "v_max3_f32 %s, %s, %s, %s" % (vr(m), vr(m), vr(s1 + 1), vr(s1 + 2)),
                    "v_max_f32 %s, %s, %s" % (vr(m), vr(m), vr(s1 + 3))]

        def ex(kt, j):
            a = vS + 12 * kt + 4 * j
            return ["v_exp_f32 %s, %s" % (vr(a + x), vr(a + x)) for x in range(4)]

        def cv(j):
            return ["v_cvt_pk_bf16_f32 %s, %s, %s" % (vr(vP + 4 * j + 2 * kt + h), vr(vS + 12 * kt + 4 * j + 2 * h), vr(vS + 12 * kt + 4 * j + 2 * h + 1))
                    for kt in range(2) for h in range(2)]

        def check():
            self.uid += 1
            k = self.uid
            self.tail += ["L_rs%d:" % k, "s_call_b64 %s, L_rare" % sr(sRET, 2), "s_branch L_rb%d" % k]
            return ["v_max3_f32 %s, %s, %s, %s" % (vr(vT + 3), vr(vT), vr(vT + 1), vr(vT + 2)),
                    "v_cmp_lt_f32 vcc, %s, %s" % (sr(sTH), vr(vT + 3)), "s_cbranch_vccnz L_rs%d" % k, "L_rb%d:" % k]

        def init():
            out = []
            for op in ("v_permlane32_swap_b32", "v_permlane16_swap_b32"):
                out += ["v_mov_b32 %s, %s" % (vr(vT + 3 + j), vr(vT + j)) for j in range(3)] + ["s_nop 0"]
                out += ["%s %s, %s" % (op, vr(vT + j), vr(vT + 3 + j)) for j in range(3)]
                out += ["v_max_f32 %s, %s, %s" % (vr(vT + j), vr(vT + j), vr(vT + 3 + j)) for j in range(3)]
            for j in range(3):
                out += ["v_sub_f32 %s, %s, %s" % (vr(b + i), vr(b + i), vr(vT + j)) for b in (vS + 4 * j, vS + 12 + 4 * j) for i in range(4)]
                out += ["v_sub_f32 %s, 0, %s" % (vr(vNEGM + 4 * j + i), vr(vT + j)) for i in range(4)]
            return out

        def qk(first):
            mf = []
            for j in range(3):
                for kt in range(2):
                    for ks in range(4):
                        acc = vr(vS + 12 * kt + 4 * j, 4)
                        c = acc if ks else ("0" if first else vr(vNEGM + 4 * j, 4))
                        mf.append("%s %s, %s, %s, %s" % (MF, acc, ar(aF[self.par] + 16 * kt + 4 * ks, 4), vr(vQ + 12 * ks + 4 * j, 4), c))
            return mf

        def pv(first):
            mf = []
            for j in range(3):
                mf.append("%s %s, %s, %s, %s" % (MF, vr(vL + 4 * j, 4), vr(vONES, 4), vr(vP + 4 * j, 4), "0" if first else vr(vL + 4 * j, 4)))
                for dt in range(8):
                    acc = vr(vO + 12 * dt + 4 * j, 4)
                    mf.append("%s %s, %s, %s, %s" % (MF, acc, ar(aF[self.par] + 4 * dt, 4), vr(vP + 4 * j, 4), "0" if first else acc))
            return mf

        def proj(rnd, k):
            mf = []
            for dt in range(8):
                for j in range(3):
                    acc = ar((96 * (k % 2) if rnd else 0) + 12 * dt + 4 * j, 4)
                    mf.append("%s %s, %s, %s, %s" % (MF, acc, ar(aF[self.par] + 4 * dt, 4), vr(vBF + 4 * j, 4), "0" if k < rnd + 1 else acc))
            return mf

        def b_parts(rnd, k):
            if rnd == 0 and o.a0skew < 2:
                sc = []
                if k % 4 == 0:
                    sc = self.x_group("%d" % (k // 4)) if o.a0skew else ["s_add_u32 %s, %s, %d" % (sr(sCGX), sr(sXB), 24576 * (k // 4))]
                return sc, ["v_xor_b32 %s, %d, %s" % (vr(vB), 64 * (k % 4), vr(vLK)), "v_add_u32 %s, %s, %s" % (vr(vB), sr(sCGX), vr(vB))], \
                    ["ds_read_b128 %s, %s offset:%d" % (vr(vBF + 4 * j, 4), vr(vB), 4096 * j) for j in range(3)]
            if rnd == 0:
                return (self.x_group("%d" % (k // 4)) if k % 4 == 0 else []), self.x_addr(k % 4), \
                    ["ds_read_b128 %s, %s offset:%d" % (vr(vBF + 4 * j, 4), vr(vB), 4096 * j) for j in range(3)]
            ks = k // 2
            rd = [] if k % 2 else ["ds_read_b128 %s, %s offset:%d" % (vr(vBF + 4 * j, 4), vr(vB), 24576 * (ks // 4) + 3072 * (ks % 4) + 1024 * j)
                                   for j in range(3)]
            return [], [None, None], rd

        def tr(tile):
            return self.tr_reads(1 - self.par, self.loc[tile] // SLOT)

        def kr(tile):
            return self.k_reads(1 - self.par, self.loc[tile] // SLOT)

        patK = "tss tss tss tss tts d tv tv t t tt d tv tv tv ttv d t t vv vv d ss _".split()
        patW = "tss tts d tv tv vv vvv v d tv tv tv tv tv d tv tv tv tv ttv d ssvv vv v".split()
        patV = "sv sv sv sv svv svv sv d v v v v d v v tv tvv tvvn tt t d tt t _ d ss ss".split()
        patV2 = "tsv tsv tsv tsv tvv tvv tsv d tv tv tv tv d tv tv tv tvv tvvn t t d t t _ d ss ss".split()
        self.softmax_parts = (mx, ex, cv, check, qk, pv, proj, b_parts, tr, patK)
        for rnd in range(2):
            k = 0
            self.stamp("a%d" % rnd)
            for t in range(16):
                n, first = self.nproj[rnd][t], t == 0
                K, V, W1, W2 = ("k", rnd, t), ("v", rnd, t), ("w", rnd, k), ("w", rnd, k + 1)
                KN = ("k", rnd + (t + 1) // 16, (t + 1) % 16)
                if (rnd, t) == (1, 15):
                    self.klast = k
                    return
                nd = 1
                self.stamp("s%d_%d" % (rnd, t))
                self.open([W1 if n else V])
                par, vq, brd = b_parts(rnd, k) if n else ([], [None, None], [])
                self.pat(qk(first), patK, tr(W1 if n else V) + brd, par + self.next_loads(nd), vq + mx(0) + mx(1))
                self.par ^= 1
                vq = mx(2) + (init() if first else check()) + ex(0, 0) + ex(1, 0) + cv(0) + ex(0, 1)
                if n:
                    self.open([V])
                    self.pat(proj(rnd, k), patW, tr(V), self.next_loads(nd), vq)
                    self.par ^= 1
                    if (rnd, t) == (0, 15):
                        assert n == 1
                        fin = self.q_finalize(True)
                        if o.midbar:
                            self.open([])
                            fin = spread(fin[:o.midpos], self.next_loads(1)) + fin[o.midpos:]
                        self.emit_all(["s_nop 6"] + fin)
                else:
                    pre = []
                    if (rnd, t) == (1, 0):
                        for j in range(3):
                            pre += self.o_rcp(j)
                            for ks in range(4):
                                pre += self.o_block(ks, j)
                        pre += ["s_mul_i32 %s, %s, 12288" % (sr(sA), sr(sHF)), "s_add_u32 %s, %s, %d" % (sr(sA), sr(sA), EX),
                                "v_add_u32 %s, %s, %s" % (vr(vB), sr(sA), vr(vSTA))]
                    if (rnd, t) == (0, 15):
                        pre = self.q_finalize(True)
                    if pre and o.midbar:
                        self.open([])
                        pre = spread(pre[:o.midpos], self.next_loads(1)) + pre[o.midpos:]
                    self.emit_all(pre or ["s_nop 6"])
                    self.emit_all(vq)
                self.open([W2 if n == 2 else KN])
                vq = ex(1, 1) + cv(1) + ex(0, 2) + ex(1, 2) + cv(2)
                d = self.next_loads(nd)
                if o.retouch and t in (2, 10):
                    self.uid += 1
                    d += ["L_here%d:" % self.uid] + self.code_touch_small("L_here%d" % self.uid, vT + 4, dC, True)
                if (rnd, t) == (1, 11) and o.touch:
                    d += self.wo_touch()
                if (rnd, t) == (1, o.wtlb) and o.wtlb:
                    d += ["s_mul_i32 %s, %s, 3072" % (sr(sA), sr(sHG)), "s_add_u32 %s, %s, %s" % (sr(sA), sr(sA), sr(sLDB)),
                          "v_mov_b32 %s, 0" % vr(vT + 4),
                          ("buffer_load_dword %s, %s, %s, %s offen nt" % (vr(vDUM), vr(vT + 4), sr(dS, 4), sr(sA)), "touch")]
                    d += self.srd(dC, pOUT, 16 * 96 * 1024 * 2)
                    d += [("buffer_load_dword %s, %s, %s, %s offen nt" % (vr(vDUM), vr(vT + 4), sr(dC, 4), sr(sOUT)), "touch")]
                if n == 2:
                    par, va, brd = b_parts(rnd, k + 1)
                    self.pat(pv(first), patV2, tr(W2) + brd, par + (va if rnd == 0 else []) + d, vq)
                    self.par ^= 1
                    self.open([KN])
                    self.auto(proj(rnd, k + 1), kr(KN), self.next_loads(nd))
                else:
                    self.pat(pv(first), patV, kr(KN), d, vq)
                self.par ^= 1
                k += n
            self.stamp("a%dend" % rnd)

    def wo_touch(self):
        t = vT + 4
        return ["s_lshl_b32 %s, %s, 3" % (sr(sA), sr(sB)),
                "s_lshl_b32 %s, %s, 2" % (sr(sB2), sr(sHF)),
                "s_add_u32 %s, %s, %s" % (sr(sA), sr(sA), sr(sB2)),
                "s_lshl_b32 %s, %s, 10" % (sr(sA), sr(sA)),
                "s_lshl_b32 %s, %s, 19" % (sr(sB2), sr(sHG)),
                "s_add_u32 %s, %s, %s" % (sr(sA), sr(sA), sr(sB2)),
                "s_lshl_b32 %s, %s, 18" % (sr(sB2), sr(sP)),
                "s_add_u32 %s, %s, %s" % (sr(sA), sr(sA), sr(sB2)),
                "s_add_u32 %s, %s, 131072" % (sr(sA), sr(sA)),
                "v_and_b32 %s, 31, %s" % (vr(t), vr(vLANE)),
                "v_lshlrev_b32 %s, 7, %s" % (vr(t), vr(t)),
                ("buffer_load_dword %s, %s, %s, %s offen" % (vr(vDUM), vr(t), sr(dW, 4), sr(sA)), "touch")]

    def rare(self):
        A = self.A
        A("L_rare:")
        for j in range(3):
            A("v_mov_b32 %s, %s" % (vr(vT + 3 + j), vr(vT + j)))
        A("s_nop 1")
        for j in range(3):
            A("v_permlane32_swap_b32 %s, %s" % (vr(vT + j), vr(vT + 3 + j)))
        for j in range(3):
            A("v_max_f32 %s, %s, %s" % (vr(vT + j), vr(vT + j), vr(vT + 3 + j)))
        for j in range(3):
            A("v_mov_b32 %s, %s" % (vr(vT + 3 + j), vr(vT + j)))
        A("s_nop 1")
        for j in range(3):
            A("v_permlane16_swap_b32 %s, %s" % (vr(vT + j), vr(vT + 3 + j)))
        for j in range(3):
            A("v_max3_f32 %s, %s, %s, 0" % (vr(vT + j), vr(vT + j), vr(vT + 3 + j)))
        for j in range(3):
            A("v_exp_f32 %s, -%s" % (vr(vT + 3 + j), vr(vT + j)))
        for j in range(3):
            for base in (vS + 4 * j, vS + 12 + 4 * j, vNEGM + 4 * j):
                for i in range(4):
                    A("v_sub_f32 %s, %s, %s" % (vr(base + i), vr(base + i), vr(vT + j)))
        for j in range(3):
            for base in [vO + 12 * dt + 4 * j for dt in range(8)] + [vL + 4 * j]:
                for i in range(4):
                    A("v_mul_f32 %s, %s, %s" % (vr(base + i), vr(base + i), vr(vT + 3 + j)))
        A("s_setpc_b64 %s" % sr(sRET, 2))

    def prologue(self):
        A, o = self.A, self.o
        A("s_cmp_ge_u32 s2, 256")
        A("s_cbranch_scc1 L_end")
        self.stamp("start")
        A("s_and_b32 %s, s2, 7" % sr(sA))
        A("s_lshr_b32 %s, s2, 3" % sr(sB2))
        A("s_lshr_b32 %s, %s, 2" % (sr(sBLK), sr(sA)))
        A("s_mul_i32 %s, %s, 40" % (sr(sC), sr(sBLK)))
        A("s_add_u32 s4, s0, %s" % sr(sC))
        A("s_addc_u32 s5, s1, 0")
        A("s_load_dwordx8 %s, s[4:5], 0" % sr(pX, 8))
        A("s_load_dwordx2 %s, s[4:5], 32" % sr(pWO, 2))
        A("s_load_dwordx2 %s, s[0:1], 96" % sr(pWS, 2))
        A("s_and_b32 %s, %s, 15" % (sr(sB), sr(sB2)))
        A("s_lshr_b32 %s, %s, 4" % (sr(sE), sr(sB2)))
        A("s_and_b32 %s, %s, 3" % (sr(sA), sr(sA)))
        A("s_lshl_b32 %s, %s, 1" % (sr(sHG), sr(sA)))
        A("s_add_u32 %s, %s, %s" % (sr(sHG), sr(sHG), sr(sE)))
        A("s_mul_i32 %s, %s, %d" % (sr(sA), sr(sA), o.xoct))
        A("s_mul_i32 %s, %s, %d" % (sr(sE), sr(sE), o.xq))
        A("s_add_u32 %s, %s, %s" % (sr(sCG0), sr(sB), sr(sA)))
        A("s_add_u32 %s, %s, %s" % (sr(sCG0), sr(sCG0), sr(sE)))
        A("s_lshr_b32 %s, %s, 2" % (sr(sE), sr(sB)))
        A("s_and_b32 %s, %s, %d" % (sr(sE), sr(sE), o.ksrot))
        for i in range(4):
            A("s_add_u32 %s, %s, %d" % (sr(sC), sr(sE), i))
            A("s_and_b32 %s, %s, 3" % (sr(sC), sr(sC)))
            A("s_lshl_b32 %s, %s, 6" % (sr(sKS + i), sr(sC)))
            A("s_lshl_b32 %s, %s, 18" % (sr(sKW + i), sr(sC)))
        A("v_lshrrev_b32 %s, 6, v0" % vr(vT))
        A("v_and_b32 %s, 63, v0" % vr(vLANE))
        self.emit_all(self.voff_std(vOX, 3072, 1024))
        self.emit_all(self.voff_std(vOW, 65536 - 1024, 8192))
        A("s_waitcnt lgkmcnt(0)")
        A("v_readfirstlane_b32 %s, %s" % (sr(sW), vr(vT)))
        self.emit_all(self.srd(dX, pX, 16 * 98304))
        self.emit_all(self.srd(dW, pWQ, 4 << 20))
        A("s_lshr_b32 %s, %s, 1" % (sr(sP), sr(sW)))
        A("s_and_b32 %s, %s, 1" % (sr(sHF), sr(sW)))
        if o.ctouch & 8:
            self.emit_all(self.code_touch_small("L_p1", vT + 5, dK))
            A("L_p1:")
        if not o.wfirst:
            self.emit_all(self.x_dma(0))
        A("s_lshl_b32 %s, %s, 12" % (sr(sM0), sr(sW)))
        A("s_lshl_b32 %s, %s, 1" % (sr(sA), sr(sHG)))
        A("s_add_u32 %s, %s, %s" % (sr(sA), sr(sA), sr(sP)))
        A("s_lshl_b32 %s, %s, 9" % (sr(sWQB), sr(sA)))
        A("s_lshl_b32 %s, %s, 15" % (sr(sA), sr(sHF)))
        A("s_add_u32 %s, %s, %s" % (sr(sWQB), sr(sWQB), sr(sA)))
        if o.wfirst:
            self.emit_all(self.next_loads(1) + self.x_dma(0) + self.next_loads(o.npre - 1))
        else:
            self.emit_all(self.next_loads(o.npre))
        if o.ctouch & 4:
            self.emit_all(self.code_touch_small("L_q0", vT + 5, dK))
        self.emit_all(self.srd(dK, pK, 0 if o.kv_oob else 64 << 20))
        self.emit_all(self.srd(dV, pV, 0 if o.kv_oob else 64 << 20))
        self.emit_all(self.srd(dS, pWS, WS_BYTES))
        A("s_load_dwordx2 %s, s[0:1], 80" % sr(pOUT, 2))
        A("s_xor_b32 %s, %s, 7" % (sr(sX), sr(sHG)))
        A("s_lshl_b32 %s, %s, 22" % (sr(sKVB), sr(sB)))
        A("s_lshl_b32 %s, %s, 19" % (sr(sWOB), sr(sHG)))
        A("s_add_u32 %s, %s, %s" % (sr(sKVB), sr(sKVB), sr(sWOB)))
        A("s_lshl_b32 %s, %s, 18" % (sr(sA), sr(sP)))
        A("s_add_u32 %s, %s, %s" % (sr(sKVB), sr(sKVB), sr(sA)))
        A("s_lshl_b32 %s, %s, 12" % (sr(sA), sr(sHF)))
        A("s_add_u32 %s, %s, %s" % (sr(sKVB), sr(sKVB), sr(sA)))
        A("s_lshl_b32 %s, %s, 9" % (sr(sA), sr(sP)))
        A("s_add_u32 %s, %s, %s" % (sr(sWOB), sr(sWOB), sr(sA)))
        A("s_lshl_b32 %s, %s, 15" % (sr(sA), sr(sHF)))
        A("s_add_u32 %s, %s, %s" % (sr(sC), sr(sWOB), sr(sA)))
        A("s_add_u32 %s, %s, 131072" % (sr(sC), sr(sC)))
        A("s_lshl_b32 %s, %s, 18" % (sr(sA), sr(sP)))
        A("s_add_u32 %s, %s, %s" % (sr(sO1), sr(sC), sr(sA)))
        A("s_xor_b32 %s, %s, 262144" % (sr(sA), sr(sA)))
        A("s_add_u32 %s, %s, %s" % (sr(sO1 + 2), sr(sC), sr(sA)))
        A("s_add_u32 %s, %s, 65536" % (sr(sO1 + 1), sr(sO1)))
        A("s_add_u32 %s, %s, 65536" % (sr(sO1 + 3), sr(sO1 + 2)))
        A("s_lshl_b32 %s, %s, 14" % (sr(sA), sr(sHF)))
        A("s_add_u32 %s, %s, %s" % (sr(sWOB), sr(sWOB), sr(sA)))
        A("s_lshr_b32 %s, %s, 2" % (sr(sA), sr(sX)))
        A("s_lshl_b32 %s, %s, 8" % (sr(sA), sr(sA)))
        A("s_add_u32 %s, %s, %s" % (sr(sWOB), sr(sWOB), sr(sA)))
        A("s_lshl_b32 %s, %s, 1" % (sr(sA), sr(sA)))
        A("s_sub_u32 %s, 256, %s" % (sr(sHX), sr(sA)))
        A("s_lshr_b32 %s, %s, 1" % (sr(sA), sr(sX)))
        A("s_lshl_b32 %s, %s, 7" % (sr(sXC), sr(sA)))
        A("s_and_b32 %s, %s, 1" % (sr(sA), sr(sHG)))
        A("s_mul_i32 %s, %s, %d" % (sr(sA), sr(sA), o.skq))
        A("s_mul_i32 %s, %s, %d" % (sr(sC), sr(sB), o.skb))
        A("s_add_u32 %s, %s, %s" % (sr(sA), sr(sC), sr(sA)))
        for reg, sh, mul in ((sHG, 1, o.sko), (sP, 0, o.skp), (sBLK, 0, o.skk)):
            if mul:
                A("s_lshr_b32 %s, %s, %d" % (sr(sC), sr(reg), sh))
                A("s_mul_i32 %s, %s, %d" % (sr(sC), sr(sC), mul))
                A("s_add_u32 %s, %s, %s" % (sr(sA), sr(sC), sr(sA)))
        A("s_and_b32 %s, %s, 15" % (sr(sA), sr(sA)))
        A("s_lshl_b32 %s, %s, 13" % (sr(sKVO), sr(sA)))
        A("s_mul_i32 %s, %s, 12288" % (sr(sXB), sr(sHF)))
        A("s_add_u32 %s, %s, %d" % (sr(sXB), sr(sXB), XB))
        A("s_lshl_b32 %s, %s, 4" % (sr(sA), sr(sBLK)))
        A("s_add_u32 %s, %s, %s" % (sr(sA), sr(sA), sr(sB)))
        A("s_lshl_b32 %s, %s, 2" % (sr(sA), sr(sA)))
        A("s_add_u32 %s, %s, %s" % (sr(sA), sr(sA), sr(sW)))
        A("s_mul_i32 %s, %s, 196608" % (sr(sB2), sr(sA)))
        A("s_mul_i32 %s, %s, 3072" % (sr(sC), sr(sHG)))
        A("s_add_u32 %s, %s, %s" % (sr(sSTB), sr(sB2), sr(sC)))
        A("s_mul_i32 %s, %s, 24576" % (sr(sC), sr(sHG)))
        A("s_add_u32 %s, %s, %s" % (sr(sLDB), sr(sB2), sr(sC)))
        A("s_lshl_b32 %s, %s, 10" % (sr(sA), sr(sA)))
        A("s_add_u32 %s, %s, %d" % (sr(sFLC), sr(sA), FLAGS))
        A("s_lshl_b32 %s, %s, %d" % (sr(sA), sr(sHG), o.fshift))
        A("s_add_u32 %s, %s, %s" % (sr(sFLO), sr(sFLC), sr(sA)))
        self.emit_all(self.poll_addr())
        self.emit(("buffer_load_dword %s, %s, %s, %s offen sc1" % (vr(vCHK), vr(vPA), sr(dS, 4), sr(sFLC)), "fl"))
        A("s_mul_i32 %s, %s, 96" % (sr(sA), sr(sB)))
        A("s_mul_i32 %s, %s, 48" % (sr(sB2), sr(sHF)))
        A("s_add_u32 %s, %s, %s" % (sr(sA), sr(sA), sr(sB2)))
        A("s_lshl_b32 %s, %s, 11" % (sr(sA), sr(sA)))
        A("s_lshl_b32 %s, %s, 10" % (sr(sB2), sr(sBLK)))
        A("s_add_u32 %s, %s, %s" % (sr(sA), sr(sA), sr(sB2)))
        A("s_lshl_b32 %s, %s, 9" % (sr(sB2), sr(sP)))
        A("s_add_u32 %s, %s, %s" % (sr(sA), sr(sA), sr(sB2)))
        A("s_lshl_b32 %s, %s, 6" % (sr(sB2), sr(sHG)))
        A("s_add_u32 %s, %s, %s" % (sr(sOUT), sr(sA), sr(sB2)))
        if o.tlb:
            A("v_mov_b32 %s, 0" % vr(vZ))
            self.emit(("buffer_load_dword %s, %s, %s, %s offen nt" % (vr(vDUM), vr(vZ), sr(dK, 4), sr(sKVB)), "touch"))
            self.emit(("buffer_load_dword %s, %s, %s, %s offen nt" % (vr(vDUM), vr(vZ), sr(dV, 4), sr(sKVB)), "touch"))
        ev = o.ev.strip()
        assert not (o.stamps and o.prof in (1, 2, 10) and ev), "these profiles reuse the registers of the touch descriptor"
        if ev:
            A("s_mul_hi_u32 %s, %s, %d" % (sr(sA), sr(sB), (1 << 32) // o.kvtm + 1))
            A("s_mul_i32 %s, %s, %d" % (sr(sA), sr(sA), o.kvtm))
            A("s_sub_u32 %s, %s, %s" % (sr(sA), sr(sB), sr(sA)))
            A("s_lshl_b32 %s, %d, %s" % (sr(sTM), sum(1 << (2 + o.kvt0 + o.kvtm * k) for k in range(len(ev))), sr(sA)))
            A("s_mov_b32 %s, %s" % (sr(sTO), sr(sKVO)))
            tk, tw, tq = vT + 4, vOX + 5, vOX + 6
            A("v_and_b32 %s, %d, %s" % (vr(tk), o.kvtl, vr(vLANE)))
            A("v_lshlrev_b32 %s, 7, %s" % (vr(tk), vr(tk)))
            A("v_and_b32 %s, 31, %s" % (vr(tw), vr(vLANE)))
            A("v_lshrrev_b32 %s, 1, %s" % (vr(tq), vr(tw)))
            A("v_lshlrev_b32 %s, 13, %s" % (vr(tq), vr(tq)))
            A("v_and_b32 %s, 1, %s" % (vr(vT), vr(vLANE)))
            A("v_lshl_add_u32 %s, %s, 7, %s" % (vr(tq), vr(vT), vr(tq)))
            A("v_lshlrev_b32 %s, 7, %s" % (vr(tw), vr(tw)))
            self.emit_all(self.srd(dT, pWO, 4 << 20))
            A("s_lshl_b32 %s, %s, 1" % (sr(sA), sr(sB)))
            A("s_add_u32 %s, %s, %s" % (sr(sA), sr(sA), sr(sHF)))
            A("s_lshl_b32 %s, %s, 17" % (sr(sTQ), sr(sA)))
            A("s_lshl_b32 %s, %s, 12" % (sr(sTW), sr(sA)))
            A("s_lshl_b32 %s, %s, 1" % (sr(sA), sr(sHG)))
            A("s_add_u32 %s, %s, %s" % (sr(sA), sr(sA), sr(sP)))
            A("s_lshl_b32 %s, %s, 18" % (sr(sB2), sr(sA)))
            A("s_add_u32 %s, %s, %s" % (sr(sTW), sr(sTW), sr(sB2)))
            A("s_lshl_b32 %s, %s, 9" % (sr(sB2), sr(sA)))
            A("s_add_u32 %s, %s, %s" % (sr(sTQ), sr(sTQ), sr(sB2)))
            A("s_add_u32 %s, %s, 256" % (sr(sTQ), sr(sTQ)))
            for c in o.pre.strip():
                if c == "q":
                    self.emit(("buffer_load_dword %s, %s, %s, %s offen" % (vr(vDUM), vr(tq), sr(dW, 4), sr(sTQ)), "touch"))
                else:
                    A("s_add_u32 %s, %s, %d" % (sr(sE), sr(sTW), 0 if c == "a" else 131072))
                    self.emit(("buffer_load_dword %s, %s, %s, %s offen" % (vr(vDUM), vr(tw), sr(dT, 4), sr(sE)), "touch"))
            A("s_branch L_kvt_skip")
            for ch in sorted(set(ev)):
                A("L_kvt_%s:" % ch)
                for c in {"x": "qab", "y": "qa", "z": "ab", "u": "qk", "v": "ak", "w": "bk"}.get(ch, ch):
                    if c == "k":
                        A("s_add_u32 %s, %s, %s" % (sr(sE), sr(sTO), sr(sKVB)))
                        A("s_add_u32 %s, %s, 8192" % (sr(sTO), sr(sTO)))
                        A("s_and_b32 %s, %s, 0x1ffff" % (sr(sTO), sr(sTO)))
                        A("buffer_load_dword %s, %s, %s, %s offen" % (vr(vDUM), vr(tk), sr(dK, 4), sr(sE)))
                        A("buffer_load_dword %s, %s, %s, %s offen" % (vr(vDUM), vr(tk), sr(dV, 4), sr(sE)))
                    elif c == "q":
                        A("buffer_load_dword %s, %s, %s, %s offen" % (vr(vDUM), vr(tq), sr(dW, 4), sr(sTQ)))
                    else:
                        A("s_add_u32 %s, %s, %d" % (sr(sE), sr(sTW), 0 if c == "a" else 131072))
                        A("buffer_load_dword %s, %s, %s, %s offen" % (vr(vDUM), vr(tw), sr(dT, 4), sr(sE)))
                A("s_add_u32 %s, %s, 4" % (sr(sRET), sr(sRET)))
                A("s_addc_u32 %s, %s, 0" % (sr(sRET + 1), sr(sRET + 1)))
                A("s_setpc_b64 %s" % sr(sRET, 2))
            A("L_kvt_skip:")
        self.emit_all(self.voff_std(vOKV, 0, 256))
        t0, t1, t2 = vT, vT + 1, vT + 2
        A("v_and_b32 %s, 15, %s" % (vr(t0), vr(vLANE)))
        A("v_lshrrev_b32 %s, 4, %s" % (vr(t1), vr(vLANE)))
        A("v_and_b32 %s, 7, %s" % (vr(t2), vr(vLANE)))
        A("v_lshlrev_b32 %s, 1, %s" % (vr(t2), vr(t2)))
        A("v_xor_b32 %s, %s, %s" % (vr(t2), vr(t2), vr(t1)))
        A("v_lshlrev_b32 %s, 4, %s" % (vr(t2), vr(t2)))
        A("v_lshl_add_u32 %s, %s, 8, %s" % (vr(vLK), vr(t0), vr(t2)))
        A("v_lshrrev_b32 %s, 2, %s" % (vr(t0), vr(vLANE)))
        A("v_and_b32 %s, 7, %s" % (vr(t1), vr(t0)))
        A("v_lshlrev_b32 %s, 5, %s" % (vr(t1), vr(t1)))
        A("v_lshl_add_u32 %s, %s, 8, %s" % (vr(t0), vr(t0), vr(t1)))
        A("v_and_b32 %s, 3, %s" % (vr(t1), vr(vLANE)))
        A("v_lshl_add_u32 %s, %s, 3, %s" % (vr(t0), vr(t1), vr(t0)))
        A("s_lshl_b32 %s, %s, 13" % (sr(sA), sr(sP)))
        for dt in range(8):
            A("v_xor_b32 %s, %d, %s" % (vr(vVA + dt), dt << 5, vr(t0)))
            A("v_add_u32 %s, %s, %s" % (vr(vVA + dt), sr(sA), vr(vVA + dt)))
        for ks in range(4):
            A("v_xor_b32 %s, %d, %s" % (vr(vKA + ks), ks << 6, vr(vLK)))
            A("v_add_u32 %s, %s, %s" % (vr(vKA + ks), sr(sA), vr(vKA + ks)))
        A("s_mul_i32 %s, %s, 12288" % (sr(sA), sr(sW)))
        A("s_add_u32 %s, %s, %d" % (sr(sA), sr(sA), EX))
        A("v_lshlrev_b32 %s, 4, %s" % (vr(vSTA), vr(vLANE)))
        A("v_add_u32 %s, %s, %s" % (vr(vEXW), sr(sA), vr(vSTA)))
        for i in range(4):
            A("v_mov_b32 %s, 0x3f803f80" % vr(vONES + i))
        A("s_mov_b32 %s, %s" % (sr(sTH), f32(8.0)))

    def touch_site(self, n):
        o, ev = self.o, self.o.ev.strip()
        if o.kvt0 <= n < o.kvt0 + o.kvtm * len(ev):
            return ["s_bitcmp1_b32 %s, %d\ns_getpc_b64 %s\ns_cbranch_scc1 L_kvt_%s" % (sr(sTM), n + 2, sr(sRET, 2), ev[(n - o.kvt0) // o.kvtm])]
        return []

    def poll_addr(self):
        return ["v_and_b32 %s, 7, %s" % (vr(vPA), vr(vLANE)), "v_xor_b32 %s, %s, %s" % (vr(vPA), sr(sX), vr(vPA)),
                "v_lshlrev_b32 %s, %d, %s" % (vr(vPA), self.o.fshift, vr(vPA))]

    def q0_phase(self):
        A, o = self.A, self.o
        vBX = (vS, vS + 12)

        def xb_reads(n):
            return (self.x_group("%d" % (n // 4)) if n % 4 == 0 else []) + self.x_addr(n % 4) + \
                ["ds_read_b128 %s, %s offset:%d" % (vr(vBX[n % 2] + 4 * j, 4), vr(vB), 4096 * j) for j in range(3)]

        W = lambda n: ("wq", 0, n)
        A("L_q0:")
        self.emit_all(self.touch_site(-2))
        self.open([W(0)], [("x", 0)])
        self.emit_all(xb_reads(0) + self.tr_reads(0, self.loc[W(0)] // SLOT) + self.next_loads(4 - o.npre) + self.touch_site(-1))
        xplan = [{0: 1, 4: 2, 8: 3}, {0: 1, 1: 2, 2: 3}, {0: 1, 2: 2, 4: 3}, {}, {0: 1, 3: 2, 6: 3}][o.xplan]
        qfin = self.q_finalize(False)
        for n in range(16):
            self.open([W(n + 1)] if n < 15 else [], [("x", (n + 1) // 4)] if n % 4 == 3 else [])
            self.stamp("q%d" % n)
            order = [(dt, j) for dt in range(8) for j in range(3)] if n < 15 else [(dt, j) for j in range(3) for dt in range(8)]
            mf = []
            for dt, j in order:
                acc = vr(vO + 12 * dt + 4 * j, 4)
                mf.append("%s %s, %s, %s, %s" % (MF, acc, ar(aF[n % 2] + 4 * dt, 4), vr(vBX[n % 2] + 4 * j, 4), "0" if n == 0 else acc))
            if n == 15:
                self.auto(mf, [], [], qfin[:30], v0=10)
                break
            xb = xb_reads(n + 1)
            head, vq, rd = xb[:-5], xb[-5:-3], self.tr_reads((n + 1) % 2, self.loc[W(n + 1)] // SLOT) + xb[-3:]
            post = []
            if n in xplan:
                post = self.x_dma(xplan[n])
                carry = []
                if o.xhalf and n > 0:
                    post, carry = post[:-4], post[-4:]
            elif n - 1 in xplan and o.xhalf:
                post = carry
            if n == 9 and o.ctouch & 16:
                assert not post
                post = self.code_touch_small("L_q0end", vT + 5, dC)
            post = post + self.touch_site(n)
            self.auto(mf, rd, head + self.next_loads(0 if n >= 15 - o.kvdefer else 1) + post, vq, v0=4)
        A("L_q0end:")
        self.stamp("qend")
        self.emit_all(spread(qfin[30:o.qsplit], self.next_loads(1 + o.kvdefer)))
        K0 = ("k", 0, 0)
        self.open([K0])
        self.emit_all(spread(qfin[o.qsplit:], self.k_reads(0, self.loc[K0] // SLOT)))
        self.par = 0

    def publish(self, stage, n):
        return ["s_add_u32 %s, %s, 8" % (sr(sGC), sr(sGC)), "s_add_u32 %s, %s, %d" % (sr(sE), sr(sGC), stage),
                "v_mov_b32 %s, %s" % (vr(vFV), sr(sE)), "s_waitcnt vmcnt(%d)" % n, "s_mov_b64 exec, 1",
                ("buffer_store_dword %s, %s, %s, %s offen sc1" % (vr(vFV), vr(vZ), sr(dS, 4), sr(sFLO)), "fl"),
                "s_mov_b64 exec, -1"]

    def o1_phase(self):
        A, o = self.A, self.o
        mx, ex, cv, check, qk, pv, proj, b_parts, tr, patK = self.softmax_parts
        vOA, vSG = (vKA, vVA, vVA + 4), vL
        t0, t1 = vT + 4, vT + 5
        addr = ["v_lshrrev_b32 %s, 2, %s" % (vr(t0), vr(vLANE)),
                "v_bfe_u32 %s, %s, 3, 2" % (vr(t1), vr(vLANE)),
                "v_lshlrev_b32 %s, 5, %s" % (vr(t1), vr(t1)),
                "v_lshl_add_u32 %s, %s, 7, %s" % (vr(t0), vr(t0), vr(t1)),
                "v_and_b32 %s, 3, %s" % (vr(t1), vr(vLANE)),
                "v_lshl_add_u32 %s, %s, 3, %s" % (vr(t0), vr(t1), vr(t0)),
                "s_lshl_b32 %s, %s, 13" % (sr(sB2), sr(sP))]
        addr1 = []
        for nt in range(4):
            addr += ["v_xor_b32 %s, %d, %s" % (vr(vOA[0] + nt), nt << 5, vr(t0)),
                     "v_add_u32 %s, %s, %s" % (vr(vOA[0] + nt), sr(sB2), vr(vOA[0] + nt))]
            addr1 += ["v_add_u32 %s, 0x10000, %s" % (vr(vOA[1] + nt), vr(vOA[0] + nt)),
                      "v_add_u32 %s, 0x20000, %s" % (vr(vOA[2] + nt), vr(vOA[0] + nt))]
        addr += ["s_xor_b32 %s, %s, 2" % (sr(sB2), sr(sW)),
                 "s_mul_i32 %s, %s, 12288" % (sr(sB2), sr(sB2)),
                 "s_add_u32 %s, %s, %d" % (sr(sB2), sr(sB2), EX),
                 "v_add_u32 %s, %s, %s" % (vr(vB), sr(sB2), vr(vSTA))]
        setup_v = self.poll_addr() + [
            "v_mov_b32 %s, 0" % vr(vZ), "v_readlane_b32 %s, %s, 7" % (sr(sGC), vr(vCHK)),
            "v_and_b32 %s, 15, %s" % (vr(vOUT), vr(vLANE)), "v_lshlrev_b32 %s, 11, %s" % (vr(vOUT), vr(vOUT)),
            "v_lshrrev_b32 %s, 4, %s" % (vr(vPD), vr(vLANE)), "v_lshl_add_u32 %s, %s, 4, %s" % (vr(vOUT), vr(vPD), vr(vOUT))]
        setup_s = ["s_and_b32 %s, %s, -8" % (sr(sGC), sr(sGC)), "s_mov_b32 %s, 0x00003f80" % sr(sDOT),
                   "s_mov_b32 %s, 0x3f800000" % sr(sDOT + 1)] + self.srd(dK, pOUT, 16 * 96 * 1024 * 2)[:3]
        T = lambda n: ("o", 1, n)

        def frags(n):
            if n < 12:
                return [(n, ks, nt) for ks in range(2) for nt in range(4)]
            t, u = 12 + 2 * (n % 2), (n - 12) // 2
            return [(t + h, ks, 2 * u + nt) for h in range(2) for ks in range(2) for nt in range(2)]

        def reads(n, fset):
            out = []
            for f, (t, ks, nt) in enumerate(frags(n)):
                win, off = self.loc[T(t)] // 65536, self.loc[T(t)] % 65536
                out += ["ds_read_b64_tr_b16 %s, %s offset:%d" % (ar(aF[fset] + 4 * f + 2 * e, 2), vr(vOA[win] + nt),
                                                                 off + 4096 * ks + 2048 * e) for e in range(2)]
            return out

        def eighth(e):
            out = ["s_xor_b32 %s, %s, %d" % (sr(sST), sr(sX), e), "s_mul_i32 %s, %s, 24576" % (sr(sST), sr(sST)),
                   "s_add_u32 %s, %s, %s" % (sr(sST), sr(sST), sr(sSTB))]
            for jq in range(3):
                a = vSG + 8 * ((3 * e + jq) % 6)
                src = 24 * e + 4 * jq
                out += ["v_accvgpr_read_b32 %s, %s" % (vr(a + x), ar(src + x)) for x in range(4)]
                out += ["v_accvgpr_read_b32 %s, %s" % (vr(a + 4 + x), ar(src + 12 + x)) for x in range(4)]
                out += ["v_cvt_pk_bf16_f32 %s, %s, %s" % (vr(a + x), vr(a + 2 * x), vr(a + 2 * x + 1)) for x in range(4)]
                off = " offset:%d" % (1024 * jq) if jq else ""
                out.append(("buffer_store_dwordx4 %s, %s, %s, %s offen%s sc1" % (vr(a, 4), vr(vSTA), sr(dS, 4), sr(sST), off), ("st", e)))
            return out

        V = ("v", 1, 15)
        self.stamp("last")
        nl, k = self.nproj[1][15], self.klast
        soft = mx(2) + check() + ex(0, 0) + ex(1, 0) + ex(0, 1) + cv(0) + ex(1, 1) + ex(0, 2) + cv(1) + ex(1, 2) + ["s_nop 0"] + cv(2)
        if nl == 0:
            self.open([])
            self.pat(qk(False), "ssv ssv d vv d vv d _ d _ _ _ _ _ vv vv _ _ _ _ _ _ nvv vv".split(), [], self.next_loads(1), addr[:6] + mx(0) + mx(1))
            self.par ^= 1
            self.emit_all(addr[6:] + soft)
        else:
            W1, W2 = ("w", 1, k), ("w", 1, k + 1)
            self.open([W1])
            par, vq, brd = b_parts(1, k)
            self.pat(qk(False), patK, tr(W1) + brd, par + self.next_loads(1), vq + mx(0) + mx(1))
            self.par ^= 1
            if nl == 2:
                assert k % 2 == 0
                self.open([W2])
                self.auto(proj(1, k), tr(W2), self.next_loads(1), soft[:26], v0=3)
                self.par ^= 1
                self.open([])
                self.auto(proj(1, k + 1), [], self.next_loads(1), soft[26:] + addr, v0=0)
            else:
                self.open([])
                self.auto(proj(1, k), [], self.next_loads(1), soft + addr, v0=4)
            self.par ^= 1
        kset = 1 - self.par
        assert self.loc[T(0)] < XB
        fin = lambda j, w: self.o_rcp(j) + self.o_block(0, j, w) + self.o_block(1, j, w)
        if o.t0first:
            self.open([T(0)])
            self.emit_all(reads(0, kset) + self.next_loads(1))
            self.open([V])
        else:
            self.open([V, T(0)])
        self.stamp("a1end")
        self.olimit = 99
        self.ofree += [EXTRA + SLOT * x for x in range(3)]
        vrd = self.tr_reads(self.par, self.loc[V] // SLOT)
        mf = pv(False)
        self.emit_all(vrd[:12])
        A(mf[0])
        self.emit_all(vrd[12:])
        d = self.next_loads(o.opv)
        if o.t0first:
            for dt in range(8):
                A("s_waitcnt lgkmcnt(%d)" % (14 - 2 * dt))
                A(mf[1 + dt])
                if dt % 2:
                    while d and not isinstance(d[0], tuple):
                        self.emit(d.pop(0))
                    if d:
                        self.emit(d.pop(0))
            self.pat(mf[9:], "sss d _ vv vv vv vv d vv vv vv vv d vv vv vv vv d".split(), [], d, (fin(0, False) + fin(1, False))[:26])
            self.emit_all((fin(0, False) + fin(1, False))[26:] + fin(2, False))
            wr01 = [self.o_write(ks, j) for ks in (0, 1) for j in range(3)]
        else:
            for dt in range(8):
                A("s_waitcnt lgkmcnt(%d)" % (14 - 2 * dt))
                A(mf[1 + dt])
            nd1 = len(d) * 2 // 3
            self.pat(mf[9:], "tsss td td tvv tdvv tdvv tsvv tsvv tdvv tdvv tvvv tdvv tdvv tvvvv tvvvv tvvvv vvvv vvvv".split(),
                     reads(0, kset), d[:nd1], fin(0, True) + fin(1, True))
            A("s_nop 1")
            self.emit_all(spread(fin(2, True), d[nd1:]))
            wr01 = []
        self.par = kset
        brd = ["ds_read_b128 %s, %s offset:%d" % (vr(vO + 24 * (f // 3) + 12 + 4 * (f % 3), 4), vr(vB), 1024 * f) for f in range(12)]
        fin2 = []
        for ks in (2, 3):
            for j in range(3):
                fin2 += self.o_block(ks, j, not o.oord)
        wr23 = [self.o_write(ks, j) for ks in (2, 3) for j in range(3)]
        early = eighth(0) + eighth(1) + eighth(2) + eighth(3)
        vqs = {12: eighth(4), 13: eighth(5), 14: eighth(6)}
        if o.oord:
            vqs.update({0: fin2[:36] + addr1, 1: fin2[36:], 3: setup_v})
            xds = {0: wr01[:3], 1: wr01[3:], 2: wr23 + brd[:6], 3: brd[6:]}
            if o.wspread:
                xds = {0: wr01[:5], 1: wr01[5:] + wr23[:3], 2: brd[:2] + wr23[3:4] + brd[2:4] + wr23[4:5] + brd[4:6] + wr23[5:], 3: brd[6:]}
            for k in range(3):
                vqs[5 + k] = early[28 * k:28 * (k + 1)]
            for k in range(4):
                vqs[8 + k] = early[84 + 21 * k:84 + 21 * (k + 1)]
            nex = 4
        else:
            vqs.update({0: addr1 + fin2, 2: setup_v})
            xds = {0: wr01, 1: brd[:6], 2: brd[6:]}
            for k in range(8):
                vqs[4 + k] = early[21 * k:21 * (k + 1)]
            nex = 3
        nload = [{0: 1, 1: 2, 2: 2, 3: 2, 4: 2, 5: 1, 6: 1, 7: 1}, {0: 1, 1: 1, 2: 2, 3: 2, 4: 2, 5: 2, 6: 2}, {0: 2, 1: 2, 2: 2, 3: 2, 4: 2, 5: 2},
                 {0: 1, 1: 1, 2: 1, 3: 2, 4: 2, 5: 2, 6: 1, 7: 1}, {0: 0, 1: 1, 2: 1, 3: 2, 4: 2, 5: 2, 6: 2, 7: 1}][o.oplan]
        poll = "buffer_load_dword %s, %s, %s, %s offen sc1" % (vr(vPD), vr(vPA), sr(dS, 4), sr(sFLC))
        for n in range(16):
            if n < 11:
                self.open([T(n + 1)])
            elif n < 13:
                self.open([T(2 * n - 10), T(2 * n - 9)])
            else:
                A("s_waitcnt lgkmcnt(0)")
            if n == nex:
                self.ofree += [EX + SLOT * x for x in range(3)]
            self.stamp("o%d" % n)
            mf = []
            for f, (t, ks, nt) in enumerate(frags(n)):
                c, i = O1_TILES[t]
                for j in range(3):
                    acc = ar(48 * c + 12 * nt + 4 * j, 4)
                    mf.append("%s %s, %s, %s, %s" % (MF, acc, ar(aF[self.par] + 4 * f, 4), vr(vO + 48 * (i % 2) + 24 * ks + 12 * (i // 2) + 4 * j, 4), acc))
            d = self.next_loads(nload.get(n, 1 if n < 11 else 0))
            rd = reads(n + 1, 1 - self.par) if n < 15 else []
            if n == 0:
                assert self.loc[T(1)] < XB
            rd = spread(rd, xds.get(n, []))
            if n == 5:
                d = setup_s + d
            if n == o.pub1:
                self.emit_all(self.publish(1, self.vm_need([("st", 3)])) + ["s_nop 3"])
            if n == 15:
                d = [(poll, "poll")]
            self.auto(mf, rd, d, vqs.get(n, []), v0=(0 if n < 4 else 3), vend=(o.vend if n == 14 else None))
            self.par ^= 1
        assert not self.loadq
        self.stamp("o16")

        masks = (0x0f, 0x70)
        groups = ((0, 1, 2, 3), (4, 5, 6))
        vLD, vAC = (vO, vO + 48), vQ

        def test(k):
            A("v_and_b32 %s, 7, %s" % (vr(vPT), vr(vPD)))
            A("v_cmp_eq_u32 %s, %s, %s" % (sr(sRET, 2), vr(vPD), vr(vCHK)))
            A("v_cmp_gt_u32 vcc, %d, %s" % (2 if o.aall else k + 1, vr(vPT)))
            A("s_nop 0")
            A("s_or_b32 %s, vcc_lo, %s" % (sr(sA), sr(sRET)))
            A("s_and_b32 %s, %s, %d" % (sr(sA), sr(sA), masks[k]))

        def ensure(k):
            A("s_mov_b32 %s, 0" % sr(sSTP))
            A("L_pt%d:" % k)
            test(k)
            A("s_cbranch_scc0 L_pd%d" % k)
            if o.pmask:
                A("s_mov_b64 exec, %d" % (0x7f if k == 0 else 0x70))
            A(poll)
            if o.pmask:
                A("s_mov_b64 exec, -1")
            A("s_add_u32 %s, %s, 1" % (sr(sSTP), sr(sSTP)))
            A("s_and_b32 %s, %s, 31" % (sr(sA), sr(sSTP)))
            A("s_cbranch_scc0 L_pr%d" % k)
            A("L_pw%d:" % k)
            A("s_waitcnt vmcnt(0)")
            A("s_cmp_lt_u32 %s, %d" % (sr(sSTP), SPIN))
            A("s_cbranch_scc1 L_pt%d" % k)
            A("L_pd%d:" % k)
            self.tail += ["L_pr%d:" % k] + plain(self.publish(2, 63)) + ["s_branch L_pw%d" % k]

        def loads(k, attempt=False):
            if attempt:
                A("s_cselect_b32 %s, 1, 0" % sr(sL))
                A("s_cselect_b32 %s, %d, %s" % (sr(sC), OOB, sr(sLDB)))
            else:
                A("s_mov_b32 %s, %s" % (sr(sC), sr(sLDB)))
            for h, e in enumerate(groups[k]):
                A("s_xor_b32 %s, %s, %d" % (sr(sA), sr(sX), e))
                A("s_mul_i32 %s, %s, 3072" % (sr(sA), sr(sA)))
                A("s_add_u32 %s, %s, %s" % (sr(sA), sr(sA), sr(sC)))
                for jq in range(3):
                    off = " offset:%d" % (1024 * jq) if jq else ""
                    A("buffer_load_dwordx4 %s, %s, %s, %s offen%s sc1" % (vr(vLD[k] + 12 * h + 4 * jq, 4), vr(vSTA), sr(dS, 4), sr(sA), off))

        def add(k, jqs=(0, 1, 2)):
            for jq in jqs:
                for h in range(len(groups[k])):
                    for i in range(4):
                        for e in range(2):
                            a = vr(vAC + 8 * jq + 2 * i + e)
                            A("v_dot2_f32_bf16 %s, %s, %s, %s" % (a, vr(vLD[k] + 12 * h + 4 * jq + i), sr(sDOT + e), a))

        self.emit_all(self.publish(2, 0))
        self.stamp("pub")
        for jq in range(3):
            for x in range(8):
                A("v_accvgpr_read_b32 %s, %s" % (vr(vAC + 8 * jq + x), ar(168 + 4 * jq + 12 * (x // 4) + x % 4)))
        ensure(0)
        loads(0)
        self.stamp("xa")
        test(1)
        loads(1, True)
        A(poll)
        if o.bfirst:
            A("s_cmp_eq_u32 %s, 0" % sr(sL))
            A("s_cbranch_scc1 L_second")
            A("s_waitcnt vmcnt(0)")
            test(1)
            loads(1, True)
            A(poll)
            A("L_second:")
        A("s_waitcnt vmcnt(10)")
        add(0)
        self.stamp("xs")
        A("s_cmp_eq_u32 %s, 0" % sr(sL))
        A("s_cbranch_scc1 L_have")
        A("s_waitcnt vmcnt(0)")
        ensure(1)
        loads(1)
        A("s_waitcnt vmcnt(0)")
        A("L_have:")
        self.stamp("xb")
        A("s_waitcnt vmcnt(1)")
        self.stamp("xf")
        for jq in range(3):
            a = vAC + 8 * jq
            add(1, (jq,))
            A("s_nop 2")
            for i in range(4):
                A("v_cvt_pk_bf16_f32 %s, %s, %s" % (vr(a + i), vr(a + 2 * i), vr(a + 2 * i + 1)))
            A("s_nop 1")
            A("v_permlane32_swap_b32 %s, %s" % (vr(a), vr(a + 2)))
            A("v_permlane32_swap_b32 %s, %s" % (vr(a + 1), vr(a + 3)))
            A("s_nop 1")
            A("v_permlane16_swap_b32 %s, %s" % (vr(a), vr(a + 2)))
            A("v_permlane16_swap_b32 %s, %s" % (vr(a + 1), vr(a + 3)))
            A("buffer_store_dwordx4 %s, %s, %s, %s offen%s" % (vr(a, 4), vr(vOUT), sr(dK, 4), sr(sOUT), o.out_flag))
            if jq < 2:
                A("s_add_u32 %s, %s, 32768" % (sr(sOUT), sr(sOUT)))

    def write_stamps(self):
        A = self.A
        A("s_waitcnt vmcnt(0)")
        self.stamp("end")
        A("s_waitcnt lgkmcnt(0)")
        A("s_cmp_lg_u32 %s, 0" % sr(sW))
        A("s_cbranch_scc1 L_end")
        A("s_mov_b64 exec, 1")
        A("s_mul_i32 s3, s2, %d" % (NSTAMP * 8))
        A("s_add_u32 s3, s3, %d" % STAMP_OFF)
        A("v_mov_b32 v6, 0")
        for i in range(NSTAMP):
            A("v_mov_b32 v8, s%d" % (sSTAMP + 2 * i))
            A("v_mov_b32 v9, s%d" % (sSTAMP + 2 * i + 1))
            A("buffer_store_dwordx2 v[8:9], v6, %s, s3 offen offset:%d" % (sr(dS, 4), 8 * i))
            A("s_nop 1")

    def build(self):
        A, o = self.A, self.o
        lab = NAME + "_kernel"
        A("; @launch grid=(256,1,1) block=(256,1,1) lds=163840")
        A('.amdgcn_target "amdgcn-amd-amdhsa--gfx950"')
        A(".text")
        A(".globl %s" % lab)
        A(".p2align 8")
        A(".type %s,@function" % lab)
        A("%s:" % lab)
        self.make_tiles()
        self.prologue()
        self.q0_phase()
        self.phase = 2
        self.attention()
        self.phase = 4
        self.o1_phase()
        if o.stamps:
            self.write_stamps()
        A("L_end:")
        A("s_endpgm")
        self.rare()
        for x in self.tail:
            A(x)
        A("L_codeend:")
        A('.section .rodata,"a"')
        A(".p2align 6")
        A(".amdhsa_kernel %s" % lab)
        A("  .amdhsa_next_free_vgpr 512")
        A("  .amdhsa_next_free_sgpr 100")
        A("  .amdhsa_accum_offset 256")
        A("  .amdhsa_group_segment_fixed_size 0")
        A("  .amdhsa_kernarg_size 104")
        A("  .amdhsa_user_sgpr_count 2")
        A("  .amdhsa_user_sgpr_kernarg_segment_ptr 1")
        A("  .amdhsa_system_sgpr_workgroup_id_x 1")
        A(".end_amdhsa_kernel")
        return "\n".join(self.L) + "\n"


def parse_opts(args):
    kw = {}
    for a in args:
        k, v = a.split("=", 1)
        cur = getattr(Opt, k)
        if isinstance(cur, bool):
            kw[k] = v not in ("0", "False")
        elif isinstance(cur, int):
            kw[k] = int(v)
        else:
            kw[k] = (" " + v.replace("+", " ")) if v else ""
    return kw


if __name__ == "__main__":
    open(sys.argv[1], "w").write(Gen(Opt(**parse_opts(sys.argv[2:]))).build())
```

```python
import math
import struct
import sys

NAME = "concat_heads__mha_block_cached__mha_block_cached__near_ridge"
WS_BYTES = 288358400
STAMP_OFF = WS_BYTES - (1 << 20)
NSTAMP = 10


def f32(x):
    return "0x%08x" % struct.unpack("<I", struct.pack("<f", x))[0]


class Opt:
    stamps = False
    cyc = False
    prof = 0
    kv_flag = " nt"
    w_flag = ""
    x_flag = ""
    out_flag = ""
    touch = True
    ctouch = 22
    xoct = 1
    xq = 0
    x1pre = False
    xplan = 4
    kv_oob = False
    nomf = 0
    fshift = 7
    pub1 = 14
    ev = "kkkk"
    pre = ""
    kvt0 = -1
    kvtm = 3
    kvtn = 1
    kvti = False
    tlb = 0
    np0 = "1111111111111111"
    np1 = "0111111111111112"
    retouch = True
    bfirst = True
    oplan = 0
    qsplit = 120
    olim = 1
    t0first = True
    oord = 1
    xhalf = True
    wspread = True
    pmask = False
    wtlb = 0
    midbar = False
    drop = 0
    skb = 1
    skq = 8
    sko = 0
    skp = 0
    skk = 0
    a0skew = 2
    midpos = 120
    ksrot = 3
    npre = 2
    wfirst = False
    kvdefer = 0
    kvtl = 7
    aall = False
    opv = 3
    vend = 16

    def __init__(self, **kw):
        for k, v in kw.items():
            assert hasattr(Opt, k), k
            setattr(self, k, v)


sW, sP, sHF, sB, sBLK, sHG, sX, sKVO = 4, 5, 6, 7, 8, 9, 10, 11
dK, dV, dW, dX, dS = 12, 16, 32, 36, 40
dC = dX
pX, pK, pV, pWQ, pWO, pWS = 20, 22, 24, 26, 28, 30
pOUT, sFLO, sFLC, sGC, sSTP, sLDB, sOUT, sHX, sXC = 20, 22, 23, 24, 25, 26, 27, 30, 31
sKV, sWOFF, sXO, sM0, sIT, sKVB, sTH, sLO = 44, 45, 46, 47, 48, 49, 50, 51
sA, sB2, sC, sE = 52, 53, 54, 55
sWQB, sWOB, sWT, sCGX, sXB, sST, sL, sSTB = 56, 57, 58, 59, 60, 61, 62, 63
sO1, sRET, sXM, sCG0, sSTAMP = 64, 68, 70, 71, 72
sKS, sKW = 92, 96
sALT, sDOT = sKS, sKW
sTM, sTO, sTQ, sTW = sST, sL, sIT, sLO
dT = 88

vLANE, vLK, vB = 1, 2, 3
vO, vL, vNEGM, vS, vP = 4, 100, 112, 124, 148
vQ, vBF, vONES = 160, 208, 220
aF = (192, 224)
vVA, vKA, vOKV, vOW, vT = 224, 232, 236, 240, 244
vEXW, vSTA, vDUM, vCHK = 252, 253, 254, 255
vPA, vPD, vFV, vZ, vOUT, vPT = 152, 153, 154, 155, 156, 157

SLOT = 16384
XB = 65536
EX = 65536
EXTRA = 114688
FLAGS = 32 << 20
SPIN = 100000
OOB = 0x7ff00000
MF = "v_mfma_f32_16x16x32_bf16"
O1_TILES = [(c, i) for c in range(4) for i in range(4)]
O1_ALT = [(0, 0), (1, 0), (0, 1), (0, 2), (0, 3), (1, 1), (1, 2), (1, 3)] + O1_TILES[8:]
vOX = 148


def vr(a, n=1):
    return "v%d" % a if n == 1 else "v[%d:%d]" % (a, a + n - 1)


def ar(a, n=1):
    return "a%d" % a if n == 1 else "a[%d:%d]" % (a, a + n - 1)


def sr(a, n=1):
    return "s%d" % a if n == 1 else "s[%d:%d]" % (a, a + n - 1)


def txt(x):
    return x[0] if isinstance(x, tuple) else x


def plain(xs):
    return [txt(x) for x in xs]


def is_label(x):
    return not isinstance(x, tuple) and x.endswith(":")


def spread(base, ins):
    out, k = [], 0
    for i, x in enumerate(base):
        out.append(x)
        while k < len(ins) and (k + 1) * len(base) <= (i + 1) * (len(ins) + 1):
            out.append(ins[k])
            k += 1
    return out + ins[k:]


class Gen:
    def __init__(self, o):
        self.o = o
        if o.oord:
            O1_TILES[:] = O1_ALT
        self.L = []
        self.vm = []
        self.tail = []
        self.uid = 0
        self.phase = 1

    def A(self, s):
        self.L.append(s)

    def emit(self, x):
        if txt(x).endswith(" lds") and " m0," in self.L[-1]:
            self.A("s_nop 0")
        self.A(txt(x))
        if isinstance(x, tuple):
            self.vm.append(x[1])

    def emit_all(self, xs):
        for x in xs:
            self.emit(x)

    def stamp(self, name):
        tables = {0: ["start", "q0", "qend", "a0", "a0end", "a1", "a1end", "o16", "pub", "end"],
                  1: ["start"] + ["q%d" % k for k in range(8)] + ["end"],
                  2: ["start"] + ["q%d" % k for k in range(8, 16)] + ["qend"],
                  3: ["start", "a1end"] + ["o%d" % k for k in range(8)],
                  4: ["start"] + ["o%d" % k for k in range(8, 16)] + ["o16"],
                  10: ["start", "q12", "q13", "q14", "q15", "qend", "a0", "s0_1", "s0_2", "s0_3"],
                  11: ["start", "s0_14", "s0_15", "s1_0", "s1_1", "s1_2", "s1_13", "s1_14", "last", "a1end"],
                  12: ["start", "K0_6", "W0_6", "V0_6", "K0_7", "K1_6", "W1_6", "V1_6", "K1_7", "end"],
                  8: ["start"] + ["s0_%d" % k for k in range(0, 16, 2)] + ["end"],
                  9: ["start"] + ["s1_%d" % k for k in range(0, 16, 2)] + ["end"],
                  5: ["start", "a1end", "o0", "o16", "pub", "xa", "xs", "xb", "xf", "end"]}
        if self.o.prof == 6:
            t = ["start", "a0", "", "a0end", "", "a1", "", "a1end", "", "end"]
            if self.o.stamps and name in t:
                k = t.index(name)
                self.A("s_memrealtime %s" % sr(sSTAMP + 2 * k, 2))
                if 0 < k < 9:
                    self.A("s_memtime %s" % sr(sSTAMP + 2 * k + 2, 2))
            return
        if self.o.prof == 7:
            if self.o.stamps and name in ("start", "end"):
                self.A("s_memrealtime %s" % sr(sSTAMP + (0 if name == "start" else 18), 2))
            if self.o.stamps and name == "iter":
                for k in range(1, 8):
                    self.A("s_mov_b64 %s, %s" % (sr(sSTAMP + 2 * k, 2), sr(sSTAMP + 2 * k + 2, 2)))
                self.A("s_memrealtime %s" % sr(sSTAMP + 16, 2))
            return
        t = tables[self.o.prof]
        if self.o.stamps and name in t:
            self.A("%s %s" % ("s_memtime" if self.o.cyc else "s_memrealtime", sr(sSTAMP + 2 * t.index(name), 2)))

    def vm_need(self, tags):
        idx = max([i for i, t in enumerate(self.vm) if t in tags] + [-1])
        n = len(self.vm) - 1 - idx
        self.vm = self.vm[idx + 1:]
        return n

    def sync(self, n):
        self.A("s_waitcnt vmcnt(%d) lgkmcnt(0)" % n)
        self.A("s_barrier")

    def pat(self, mf, pattern, ds=(), dq=(), vq=()):
        ds, dq, vq = list(ds), list(dq), list(vq)
        assert len(pattern) == len(mf), (len(pattern), len(mf))

        def labels(q):
            while q and q[0] is not None and is_label(q[0]):
                self.emit(q.pop(0))

        for m, gap in zip(mf, pattern):
            self.A(m if not (self.o.nomf & self.phase) else "s_nop 0")
            for ch in gap:
                if ch == "t" and ds:
                    self.emit(ds.pop(0))
                elif ch == "s" and dq and not txt(dq[0]).startswith("buffer_"):
                    self.emit(dq.pop(0))
                    labels(dq)
                elif ch == "d" and dq:
                    while dq and not txt(dq[0]).startswith("buffer_"):
                        self.emit(dq.pop(0))
                    if dq:
                        self.emit(dq.pop(0))
                elif ch == "n":
                    self.A("s_nop 1")
                elif ch == "v" and vq:
                    x = vq.pop(0)
                    if x is not None:
                        self.emit(x)
                    labels(vq)
        self.emit_all(ds + dq + vq)

    def auto(self, mf, ds=(), dq=(), vq=(), v0=0, vend=None):
        n = len(mf)
        nd = len([x for x in dq if txt(x).startswith("buffer_")])
        ds_end, first = n - 5, 3
        dpos = [first + int(k * (n - 2 - first) / max(nd - 1, 1) + 0.5) for k in range(nd)] if nd > 1 else ([first] if nd else [])
        pattern, left, vleft = [], len(ds), [x for x in vq if not is_label(x)]
        for g in range(n):
            k = dpos.count(g)
            if k:
                pattern.append("d" * k)
                continue
            gaps_ds = len([h for h in range(g, ds_end + 1) if h not in dpos])
            nds = 0 if left == 0 else min(2, -(-left // max(gaps_ds, 1)))
            nv = 0
            if g >= v0 and vleft:
                gaps_v = max(1, len([h for h in range(g, vend or n) if h not in dpos]))
                if isinstance(vleft[0], tuple):
                    nv = 1
                    if left <= 2 * (gaps_ds - 1):
                        nds = 0
                else:
                    nv = max(2 - nds, -(-len(vleft) // gaps_v))
                    for q in range(min(nv, len(vleft))):
                        if q and isinstance(vleft[q], tuple):
                            nv = q
                            break
                vleft = vleft[nv:]
            left -= nds
            pattern.append("t" * nds + "s" * max(0, 3 - nds - nv) + "v" * nv)
        self.pat(mf, pattern, ds, dq, vq)

    def srd(self, d, p, size):
        return ["s_mov_b32 %s, %s" % (sr(d), sr(p)), "s_and_b32 %s, %s, 0xffff" % (sr(d + 1), sr(p + 1)),
                "s_mov_b32 %s, %d" % (sr(d + 2), size), "s_mov_b32 %s, 0x20000" % sr(d + 3)]

    def dma(self, loc, srd, voff, soff, flag, tag, cnt=4, m0=sM0, nop=False):
        out = ["s_add_u32 m0, %s, %d" % (sr(m0), loc)] + (["s_nop 0"] if nop else [])
        for i in range(cnt):
            off = " offset:%d" % (1024 * i) if i else ""
            out.append(("buffer_load_dwordx4 %s, %s, %s offen%s%s lds" % (vr(voff + i), sr(srd, 4), sr(soff), off, flag), tag))
        return out

    def voff_std(self, dst, mul_i, mul_r, flip=None):
        t0, t1 = vT + 6, vT + 7
        return ["v_lshrrev_b32 %s, 4, %s" % (vr(t0), vr(vLANE)),
                "v_and_b32 %s, 15, %s" % (vr(t1), vr(vLANE)),
                "v_lshlrev_b32 %s, 1, %s" % (vr(dst), vr(t0)),
                "v_xor_b32 %s, %s, %s" % (vr(t1), vr(t1), vr(dst)),
                "v_lshlrev_b32 %s, 4, %s" % (vr(t1), vr(t1))] + \
            (["v_xor_b32 %s, %s, %s" % (vr(t1), sr(flip), vr(t1))] if flip is not None else []) + \
            ["v_mul_u32_u24 %s, %d, %s" % (vr(t0), mul_r, vr(t0)),
             "v_add_u32 %s, %s, %s" % (vr(dst), vr(t0), vr(t1)),
             "v_xor_b32 %s, 0x80, %s" % (vr(t1), vr(t1)),
             "v_add_u32 %s, %s, %s" % (vr(dst + 1), vr(t0), vr(t1)),
             "v_add_u32 %s, %d, %s" % (vr(dst + 2), 2 * mul_i, vr(dst)),
             "v_add_u32 %s, %d, %s" % (vr(dst + 3), 3 * mul_i, vr(dst + 1)),
             "v_add_u32 %s, %d, %s" % (vr(dst + 1), mul_i, vr(dst + 1))]

    def voff_o1(self, dst):
        t0, t1 = vT + 6, vT + 7
        out = ["s_and_b32 %s, %s, 1" % (sr(sA), sr(sX)),
               "s_lshl_b32 %s, %s, 2" % (sr(sA), sr(sA)),
               "v_lshrrev_b32 %s, 3, %s" % (vr(t0), vr(vLANE)),
               "v_and_b32 %s, 7, %s" % (vr(t1), vr(vLANE)),
               "v_and_b32 %s, 6, %s" % (vr(dst), vr(t0)),
               "v_xor_b32 %s, %s, %s" % (vr(t1), vr(t1), vr(dst)),
               "v_xor_b32 %s, %s, %s" % (vr(t1), sr(sA), vr(t1)),
               "v_lshlrev_b32 %s, 4, %s" % (vr(t1), vr(t1)),
               "v_lshl_add_u32 %s, %s, 10, %s" % (vr(dst), vr(t0), vr(t1))]
        for i in range(1, 4):
            out.append("v_add_u32 %s, %d, %s" % (vr(dst + i), 7168 * i, vr(dst)))
        return out

    def cg_of(self, dst, c):
        return ["s_add_u32 %s, %s, %s" % (sr(dst), sr(sCG0), c), "s_and_b32 %s, %s, 3" % (sr(dst), sr(dst))]

    def wq_group(self, c):
        return self.cg_of(sA, c) + ["s_lshl_b32 %s, %s, 20" % (sr(sA), sr(sA)),
                                    "s_add_u32 %s, %s, %s" % (sr(sWT), sr(sA), sr(sWQB))]

    def wq_params(self, i):
        return ["s_add_u32 %s, %s, %s" % (sr(sWOFF), sr(sWT), sr(sKW + i))]

    def x_group(self, c):
        return self.cg_of(sB2, c) + ["s_mul_i32 %s, %s, 24576" % (sr(sB2), sr(sB2)),
                                     "s_add_u32 %s, %s, %s" % (sr(sCGX), sr(sB2), sr(sXB))]

    def x_addr(self, i):
        return ["v_xor_b32 %s, %s, %s" % (vr(vB), sr(sKS + i), vr(vLK)),
                "v_add_u32 %s, %s, %s" % (vr(vB), sr(sCGX), vr(vB))]

    def kv_params(self):
        return ["s_add_u32 %s, %s, %s" % (sr(sKV), sr(sKVO), sr(sKVB)),
                "s_add_u32 %s, %s, 8192" % (sr(sKVO), sr(sKVO)),
                "s_and_b32 %s, %s, 0x1ffff" % (sr(sKVO), sr(sKVO))]

    def o1_off(self, dst, n):
        c, i = O1_TILES[n]
        return ["s_xor_b32 %s, %s, %d" % (sr(dst), sr(sXC), 128 * c), "s_add_u32 %s, %s, %s" % (sr(dst), sr(dst), sr(sO1 + i))]

    def x_dma(self, c):
        o = self.o
        out = self.cg_of(sA, "%d" % c)
        out += ["s_mul_i32 %s, %s, 24576" % (sr(sB2), sr(sA)),
                "s_mul_i32 %s, %s, 6144" % (sr(sXM), sr(sW)),
                "s_add_u32 %s, %s, %s" % (sr(sXM), sr(sXM), sr(sB2)),
                "s_lshl_b32 %s, %s, 8" % (sr(sA), sr(sA)),
                "s_mul_i32 %s, %s, 98304" % (sr(sXO), sr(sB)),
                "s_add_u32 %s, %s, %s" % (sr(sXO), sr(sXO), sr(sA)),
                "s_mul_i32 %s, %s, 24576" % (sr(sA), sr(sW)),
                "s_add_u32 %s, %s, %s" % (sr(sXO), sr(sXO), sr(sA))]
        out += self.dma(XB, dX, vOX, sXO, o.x_flag, ("x", c), 4, sXM)
        out += ["s_add_u32 %s, %s, 16384" % (sr(sXO), sr(sXO))]
        out += self.dma(XB + 4096, dX, vOX, sXO, o.x_flag, ("x", c), 2, sXM)
        return out

    def code_touch_small(self, label, t, d, back=False):
        self.uid += 1
        k = self.uid
        return ["s_getpc_b64 %s" % sr(d, 2), "L_pc%d:" % k,
                "s_add_u32 %s, %s, %s-L_pc%d" % (sr(d), sr(d), label, k),
                "s_addc_u32 %s, %s, %d" % (sr(d + 1), sr(d + 1), -1 if back else 0),
                "s_and_b32 %s, %s, 0xffff" % (sr(d + 1), sr(d + 1)),
                "s_mov_b32 %s, L_codeend-%s" % (sr(d + 2), label),
                "s_mov_b32 %s, 0x20000" % sr(d + 3),
                "s_and_b32 %s, %s, 7" % (sr(sA), sr(sB)),
                "s_lshl_b32 %s, %s, 2" % (sr(sA), sr(sA)),
                "s_add_u32 %s, %s, %s" % (sr(sA), sr(sA), sr(sW)),
                "s_lshl_b32 %s, %s, 11" % (sr(sA), sr(sA)),
                "v_and_b32 %s, 15, %s" % (vr(t), vr(vLANE)),
                "v_lshlrev_b32 %s, 7, %s" % (vr(t), vr(t)),
                ("buffer_load_dword %s, %s, %s, %s offen" % (vr(vDUM), vr(t), sr(d, 4), sr(sA)), "touch")]

    def code_touch(self, label, t, back=False):
        self.uid += 1
        k = self.uid
        return ["s_getpc_b64 %s" % sr(dC, 2), "L_pc%d:" % k,
                "s_add_u32 %s, %s, %s-L_pc%d" % (sr(dC), sr(dC), label, k),
                "s_addc_u32 %s, %s, %d" % (sr(dC + 1), sr(dC + 1), -1 if back else 0),
                "s_and_b32 %s, %s, 0xffff" % (sr(dC + 1), sr(dC + 1)),
                "s_mov_b32 %s, L_codeend-%s" % (sr(dC + 2), label),
                "s_lshl_b32 %s, %s, 13" % (sr(sA), sr(sW)),
                "v_lshlrev_b32 %s, 7, %s" % (vr(t), vr(vLANE)),
                ("buffer_load_dword %s, %s, %s, %s offen" % (vr(vDUM), vr(t), sr(dC, 4), sr(sA)), "touch")]

    def tr_reads(self, fset, slot):
        return ["ds_read_b64_tr_b16 %s, %s offset:%d" % (ar(aF[fset] + 4 * dt + 2 * e, 2), vr(vVA + dt), SLOT * slot + 4096 * e)
                for dt in range(8) for e in range(2)]

    def k_reads(self, fset, slot):
        return ["ds_read_b128 %s, %s offset:%d" % (ar(aF[fset] + 16 * kt + 4 * ks, 4), vr(vKA + ks), SLOT * slot + 4096 * kt)
                for kt in range(2) for ks in range(4)]

    def make_tiles(self):
        o = self.o
        n0 = [int(c) for c in o.np0.strip()]
        n1 = [int(c) for c in o.np1.strip()]
        self.nproj = (n0, n1)
        q = [("wq", 0, k) for k in range(16)]
        for rnd in range(2):
            k = 0
            for t in range(16):
                n = self.nproj[rnd][t]
                q.append(("k", rnd, t))
                if n:
                    q.append(("w", rnd, k))
                if n == 2 and (rnd, t) == (1, 15):
                    q.append(("w", rnd, k + 1))
                q.append(("v", rnd, t))
                if n == 2 and (rnd, t) != (1, 15):
                    q.append(("w", rnd, k + 1))
                k += n
            assert k == 16
        q += [("o", 1, n) for n in range(16)]
        if o.t0first:
            q.remove(("o", 1, 0))
            q.insert(q.index(("v", 1, 15)), ("o", 1, 0))
        self.loadq = q
        self.free = [SLOT * n for n in range(4)]
        self.ofree = []
        self.tofree = []
        self.loc = {}
        self.par = 0
        self.olimit = o.olim

    def tile_dma(self, tile, loc):
        o = self.o
        kind, rnd, k = tile
        if kind == "w" and rnd == 0 and o.a0skew == 0:
            return ["s_add_u32 %s, %s, %d" % (sr(sWOFF), sr(sWQB), 256 + 262144 * k)] + self.dma(loc, dW, vOW, sWOFF, o.w_flag, tile)
        if kind == "w" and rnd == 0 and o.a0skew == 1:
            pre = ["s_add_u32 %s, %s, 256" % (sr(sWQB), sr(sWQB))] if k == 0 else []
            pre += (self.wq_group("%d" % (k // 4)) if k % 4 == 0 else []) + ["s_add_u32 %s, %s, %d" % (sr(sWOFF), sr(sWT), 262144 * (k % 4))]
            return pre + self.dma(loc, dW, vOW, sWOFF, o.w_flag, tile)
        if kind == "wq" or (kind == "w" and rnd == 0):
            pre = ["s_add_u32 %s, %s, 256" % (sr(sWQB), sr(sWQB))] if (kind == "w" and k == 0) else []
            pre += (self.wq_group("%d" % (k // 4)) if k % 4 == 0 else []) + self.wq_params(k % 4)
            return pre + self.dma(loc, dW, vOW, sWOFF, o.w_flag, tile)
        if kind in "kv":
            pre = []
            if tile == ("k", 1, 0):
                pre = ["s_add_u32 %s, %s, 131072" % (sr(sKVB), sr(sKVB))]
            pre += ["s_add_u32 %s, %s, %d" % (sr(sKV), sr(sKVO), 8192 * k), "s_and_b32 %s, %s, 0x1ffff" % (sr(sKV), sr(sKV)),
                    "s_add_u32 %s, %s, %s" % (sr(sKV), sr(sKV), sr(sKVB))]
            return pre + self.dma(loc, dK if kind == "k" else dV, vOKV, sKV, o.kv_flag, tile)
        if kind == "w":
            pre = []
            if k == 0:
                pre = self.srd(dW, pWO, 4 << 20)[:2] + ["s_and_b32 %s, %s, 3" % (sr(sA), sr(sX)), "s_lshl_b32 %s, %s, 6" % (sr(sA), sr(sA))] + \
                    self.voff_std(vOW, 3072, 1024, sA)
            ks = k // 2
            pre += ["s_add_u32 %s, %s, %d" % (sr(sWOFF), sr(sWOB), 32768 * (ks % 4) + 262144 * (ks // 4))]
            if k % 2:
                pre += ["s_add_u32 %s, %s, %s" % (sr(sWOFF), sr(sWOFF), sr(sHX))]
            return pre + self.dma(loc, dW, vOW, sWOFF, o.w_flag, tile)
        return (self.voff_o1(vOW) if k == 0 else []) + self.o1_off(sWOFF, k) + self.dma(loc, dW, vOW, sWOFF, o.w_flag, tile)

    def next_loads(self, n):
        out = []
        while n and self.loadq:
            tile = self.loadq[0]
            if tile[0] == "o" and tile[2] > self.olimit:
                break
            if self.free:
                loc = self.free.pop(0)
            elif tile[0] == "o" and self.ofree:
                later = [x for x in self.loadq if x[2] >= 2]
                tile = later[0]
                loc = self.ofree.pop(0)
            else:
                break
            self.loadq.remove(tile)
            self.loc[tile] = loc
            out += self.tile_dma(tile, loc)
            n -= 1
        return out

    def open(self, tiles, also=()):
        for t in tiles:
            assert t in self.loc, t
        self.sync(self.vm_need(list(tiles) + list(also)))
        for loc in self.tofree:
            (self.free if loc < XB else self.ofree).append(loc)
        self.tofree = [self.loc[t] for t in tiles]

    def q_finalize(self, from_agpr):
        out = ["s_mov_b32 %s, %s" % (sr(sE), f32(math.log2(math.e) / math.sqrt(128.0)))]
        blocks = []
        for j in range(3):
            for ks in range(4):
                pre = []
                d = vQ + 12 * ks + 4 * j
                if from_agpr:
                    a, b = d, vBF + 4 * (len(blocks) % 3)
                    pre += ["v_accvgpr_read_b32 %s, %s" % (vr(a + i), ar(24 * ks + 4 * j + i)) for i in range(4)]
                    pre += ["v_accvgpr_read_b32 %s, %s" % (vr(b + i), ar(24 * ks + 12 + 4 * j + i)) for i in range(4)]
                else:
                    a, b = vO + 24 * ks + 4 * j, vO + 24 * ks + 12 + 4 * j
                pre += ["v_mul_f32 %s, %s, %s" % (vr(x + y), sr(sE), vr(x + y)) for x in (a, b) for y in range(4)]
                pre += ["v_cvt_pk_bf16_f32 %s, %s, %s" % (vr(d), vr(a), vr(a + 1)),
                        "v_cvt_pk_bf16_f32 %s, %s, %s" % (vr(d + 1), vr(a + 2), vr(a + 3)),
                        "v_cvt_pk_bf16_f32 %s, %s, %s" % (vr(d + 2), vr(b), vr(b + 1)),
                        "v_cvt_pk_bf16_f32 %s, %s, %s" % (vr(d + 3), vr(b + 2), vr(b + 3))]
                s32 = ["v_permlane32_swap_b32 %s, %s" % (vr(d), vr(d + 2)), "v_permlane32_swap_b32 %s, %s" % (vr(d + 1), vr(d + 3))]
                s16 = ["v_permlane16_swap_b32 %s, %s" % (vr(d), vr(d + 2)), "v_permlane16_swap_b32 %s, %s" % (vr(d + 1), vr(d + 3))]
                blocks.append((pre, s32, s16))
        n = len(blocks)
        for k in range(n + 1):
            if k < n:
                pre = blocks[k][0]
                h = len(pre) // 2
                out += pre[:h]
            if k > 0:
                if k == n:
                    out.append("s_nop 1")
                out += blocks[k - 1][1]
            if k < n:
                out += pre[h:]
            else:
                out.append("s_nop 1")
            if k > 0:
                out += blocks[k - 1][2]
        return out

    def o_rcp(self, j):
        return ["v_rcp_f32 %s, %s" % (vr(vBF + j), vr(vL + 4 * j)), "s_nop 0"]

    def o_block(self, ks, j, write=True):
        a, b = vO + 24 * ks + 4 * j, vO + 24 * ks + 12 + 4 * j
        return ["v_mul_f32 %s, %s, %s" % (vr(x + y), vr(x + y), vr(vBF + j)) for x in (a, b) for y in range(4)] + \
            ["v_cvt_pk_bf16_f32 %s, %s, %s" % (vr(a), vr(a), vr(a + 1)),
             "v_cvt_pk_bf16_f32 %s, %s, %s" % (vr(a + 1), vr(a + 2), vr(a + 3)),
             "v_cvt_pk_bf16_f32 %s, %s, %s" % (vr(a + 2), vr(b), vr(b + 1)),
             "v_cvt_pk_bf16_f32 %s, %s, %s" % (vr(a + 3), vr(b + 2), vr(b + 3))] + ([self.o_write(ks, j)] if write else [])

    def o_write(self, ks, j):
        return "ds_write_b128 %s, %s offset:%d" % (vr(vEXW), vr(vO + 24 * ks + 4 * j, 4), 1024 * (3 * ks + j))

    def attention(self):
        A, o = self.A, self.o

        def mx(j):
            s0, s1, m = vS + 4 * j, vS + 12 + 4 * j, vT + j
            return ["v_max3_f32 %s, %s, %s, %s" % (vr(m), vr(s0), vr(s0 + 1), vr(s0 + 2)),
                    "v_max3_f32 %s, %s, %s, %s" % (vr(m), vr(m), vr(s0 + 3), vr(s1)),
                    "v_max3_f32 %s, %s, %s, %s" % (vr(m), vr(m), vr(s1 + 1), vr(s1 + 2)),
                    "v_max_f32 %s, %s, %s" % (vr(m), vr(m), vr(s1 + 3))]

        def ex(kt, j):
            a = vS + 12 * kt + 4 * j
            return ["v_exp_f32 %s, %s" % (vr(a + x), vr(a + x)) for x in range(4)]

        def cv(j):
            return ["v_cvt_pk_bf16_f32 %s, %s, %s" % (vr(vP + 4 * j + 2 * kt + h), vr(vS + 12 * kt + 4 * j + 2 * h), vr(vS + 12 * kt + 4 * j + 2 * h + 1))
                    for kt in range(2) for h in range(2)]

        def check():
            self.uid += 1
            k = self.uid
            self.tail += ["L_rs%d:" % k, "s_call_b64 %s, L_rare" % sr(sRET, 2), "s_branch L_rb%d" % k]
            return ["v_max3_f32 %s, %s, %s, %s" % (vr(vT + 3), vr(vT), vr(vT + 1), vr(vT + 2)),
                    "v_cmp_lt_f32 vcc, %s, %s" % (sr(sTH), vr(vT + 3)), "s_cbranch_vccnz L_rs%d" % k, "L_rb%d:" % k]

        def init():
            out = []
            for op in ("v_permlane32_swap_b32", "v_permlane16_swap_b32"):
                out += ["v_mov_b32 %s, %s" % (vr(vT + 3 + j), vr(vT + j)) for j in range(3)] + ["s_nop 0"]
                out += ["%s %s, %s" % (op, vr(vT + j), vr(vT + 3 + j)) for j in range(3)]
                out += ["v_max_f32 %s, %s, %s" % (vr(vT + j), vr(vT + j), vr(vT + 3 + j)) for j in range(3)]
            for j in range(3):
                out += ["v_sub_f32 %s, %s, %s" % (vr(b + i), vr(b + i), vr(vT + j)) for b in (vS + 4 * j, vS + 12 + 4 * j) for i in range(4)]
                out += ["v_sub_f32 %s, 0, %s" % (vr(vNEGM + 4 * j + i), vr(vT + j)) for i in range(4)]
            return out

        def qk(first):
            mf = []
            for j in range(3):
                for kt in range(2):
                    for ks in range(4):
                        acc = vr(vS + 12 * kt + 4 * j, 4)
                        c = acc if ks else ("0" if first else vr(vNEGM + 4 * j, 4))
                        mf.append("%s %s, %s, %s, %s" % (MF, acc, ar(aF[self.par] + 16 * kt + 4 * ks, 4), vr(vQ + 12 * ks + 4 * j, 4), c))
            return mf

        def pv(first):
            mf = []
            for j in range(3):
                mf.append("%s %s, %s, %s, %s" % (MF, vr(vL + 4 * j, 4), vr(vONES, 4), vr(vP + 4 * j, 4), "0" if first else vr(vL + 4 * j, 4)))
                if o.drop & 1 and not first:
                    mf[-1] = "s_nop 1"
                for dt in range(8):
                    acc = vr(vO + 12 * dt + 4 * j, 4)
                    mf.append("%s %s, %s, %s, %s" % (MF, acc, ar(aF[self.par] + 4 * dt, 4), vr(vP + 4 * j, 4), "0" if first else acc))
            return mf

        def proj(rnd, k):
            mf = []
            for dt in range(8):
                for j in range(3):
                    acc = ar((96 * (k % 2) if rnd else 0) + 12 * dt + 4 * j, 4)
                    mf.append("%s %s, %s, %s, %s" % (MF, acc, ar(aF[self.par] + 4 * dt, 4), vr(vBF + 4 * j, 4), "0" if k < rnd + 1 else acc))
                    if o.drop & 2 and k > 1 and j == 0:
                        mf[-1] = "s_nop 1"
                    if o.drop & 4 and k > 1:
                        mf[-1] = "s_nop 1"
            return mf

        def b_parts(rnd, k):
            if rnd == 0 and o.a0skew < 2:
                sc = []
                if k % 4 == 0:
                    sc = self.x_group("%d" % (k // 4)) if o.a0skew else ["s_add_u32 %s, %s, %d" % (sr(sCGX), sr(sXB), 24576 * (k // 4))]
                return sc, ["v_xor_b32 %s, %d, %s" % (vr(vB), 64 * (k % 4), vr(vLK)), "v_add_u32 %s, %s, %s" % (vr(vB), sr(sCGX), vr(vB))], \
                    ["ds_read_b128 %s, %s offset:%d" % (vr(vBF + 4 * j, 4), vr(vB), 4096 * j) for j in range(3)]
            if rnd == 0:
                return (self.x_group("%d" % (k // 4)) if k % 4 == 0 else []), self.x_addr(k % 4), \
                    ["ds_read_b128 %s, %s offset:%d" % (vr(vBF + 4 * j, 4), vr(vB), 4096 * j) for j in range(3)]
            ks = k // 2
            rd = [] if k % 2 else ["ds_read_b128 %s, %s offset:%d" % (vr(vBF + 4 * j, 4), vr(vB), 24576 * (ks // 4) + 3072 * (ks % 4) + 1024 * j)
                                   for j in range(3)]
            return [], [None, None], rd

        def tr(tile):
            return self.tr_reads(1 - self.par, self.loc[tile] // SLOT)

        def kr(tile):
            return self.k_reads(1 - self.par, self.loc[tile] // SLOT)

        patK = "tss tss tss tss tts d tv tv t t tt d tv tv tv ttv d t t vv vv d ss _".split()
        patW = "tss tts d tv tv vv vvv v d tv tv tv tv tv d tv tv tv tv ttv d ssvv vv v".split()
        patV = "sv sv sv sv svv svv sv d v v v v d v v tv tvv tvvn tt t d tt t _ d ss ss".split()
        patV2 = "tsv tsv tsv tsv tvv tvv tsv d tv tv tv tv d tv tv tv tvv tvvn t t d t t _ d ss ss".split()
        self.softmax_parts = (mx, ex, cv, check, qk, pv, proj, b_parts, tr, patK)
        for rnd in range(2):
            k = 0
            self.stamp("a%d" % rnd)
            for t in range(16):
                n, first = self.nproj[rnd][t], t == 0
                K, V, W1, W2 = ("k", rnd, t), ("v", rnd, t), ("w", rnd, k), ("w", rnd, k + 1)
                KN = ("k", rnd + (t + 1) // 16, (t + 1) % 16)
                if (rnd, t) == (1, 15):
                    self.klast = k
                    return
                nd = 1
                self.stamp("s%d_%d" % (rnd, t))
                self.open([W1 if n else V])
                self.stamp("K%d_%d" % (rnd, t))
                par, vq, brd = b_parts(rnd, k) if n else ([], [None, None], [])
                self.pat(qk(first), patK, tr(W1 if n else V) + brd, par + self.next_loads(nd), vq + mx(0) + mx(1))
                self.par ^= 1
                vq = mx(2) + (init() if first else check()) + ex(0, 0) + ex(1, 0) + cv(0) + ex(0, 1)
                if n:
                    self.open([V])
                    self.stamp("W%d_%d" % (rnd, t))
                    self.pat(proj(rnd, k), patW, tr(V), self.next_loads(nd), vq)
                    self.par ^= 1
                    if (rnd, t) == (0, 15):
                        assert n == 1
                        fin = self.q_finalize(True)
                        if o.midbar:
                            self.open([])
                            fin = spread(fin[:o.midpos], self.next_loads(1)) + fin[o.midpos:]
                        self.emit_all(["s_nop 6"] + fin)
                else:
                    pre = []
                    if (rnd, t) == (1, 0):
                        for j in range(3):
                            pre += self.o_rcp(j)
                            for ks in range(4):
                                pre += self.o_block(ks, j)
                        pre += ["s_mul_i32 %s, %s, 12288" % (sr(sA), sr(sHF)), "s_add_u32 %s, %s, %d" % (sr(sA), sr(sA), EX),
                                "v_add_u32 %s, %s, %s" % (vr(vB), sr(sA), vr(vSTA))]
                    if (rnd, t) == (0, 15):
                        pre = self.q_finalize(True)
                    if pre and o.midbar:
                        self.open([])
                        pre = spread(pre[:o.midpos], self.next_loads(1)) + pre[o.midpos:]
                    self.emit_all(pre or ["s_nop 6"])
                    self.emit_all(vq)
                self.open([W2 if n == 2 else KN])
                self.stamp("V%d_%d" % (rnd, t))
                vq = ex(1, 1) + cv(1) + ex(0, 2) + ex(1, 2) + cv(2)
                d = self.next_loads(nd)
                if o.retouch and t in (2, 10):
                    self.uid += 1
                    d += ["L_here%d:" % self.uid] + self.code_touch_small("L_here%d" % self.uid, vT + 4, dC, True)
                if (rnd, t) == (1, 11) and o.touch:
                    d += self.wo_touch()
                if (rnd, t) == (1, o.wtlb) and o.wtlb:
                    d += ["s_mul_i32 %s, %s, 3072" % (sr(sA), sr(sHG)), "s_add_u32 %s, %s, %s" % (sr(sA), sr(sA), sr(sLDB)),
                          "v_mov_b32 %s, 0" % vr(vT + 4),
                          ("buffer_load_dword %s, %s, %s, %s offen nt" % (vr(vDUM), vr(vT + 4), sr(dS, 4), sr(sA)), "touch")]
                    d += self.srd(dC, pOUT, 16 * 96 * 1024 * 2)
                    d += [("buffer_load_dword %s, %s, %s, %s offen nt" % (vr(vDUM), vr(vT + 4), sr(dC, 4), sr(sOUT)), "touch")]
                if n == 2:
                    par, va, brd = b_parts(rnd, k + 1)
                    self.pat(pv(first), patV2, tr(W2) + brd, par + (va if rnd == 0 else []) + d, vq)
                    self.par ^= 1
                    self.open([KN])
                    self.auto(proj(rnd, k + 1), kr(KN), self.next_loads(nd))
                else:
                    self.pat(pv(first), patV, kr(KN), d, vq)
                self.par ^= 1
                k += n
            self.stamp("a%dend" % rnd)

    def wo_touch(self):
        t = vT + 4
        return ["s_lshl_b32 %s, %s, 3" % (sr(sA), sr(sB)),
                "s_lshl_b32 %s, %s, 2" % (sr(sB2), sr(sHF)),
                "s_add_u32 %s, %s, %s" % (sr(sA), sr(sA), sr(sB2)),
                "s_lshl_b32 %s, %s, 10" % (sr(sA), sr(sA)),
                "s_lshl_b32 %s, %s, 19" % (sr(sB2), sr(sHG)),
                "s_add_u32 %s, %s, %s" % (sr(sA), sr(sA), sr(sB2)),
                "s_lshl_b32 %s, %s, 18" % (sr(sB2), sr(sP)),
                "s_add_u32 %s, %s, %s" % (sr(sA), sr(sA), sr(sB2)),
                "s_add_u32 %s, %s, 131072" % (sr(sA), sr(sA)),
                "v_and_b32 %s, 31, %s" % (vr(t), vr(vLANE)),
                "v_lshlrev_b32 %s, 7, %s" % (vr(t), vr(t)),
                ("buffer_load_dword %s, %s, %s, %s offen" % (vr(vDUM), vr(t), sr(dW, 4), sr(sA)), "touch")]

    def rare(self):
        A = self.A
        A("L_rare:")
        for j in range(3):
            A("v_mov_b32 %s, %s" % (vr(vT + 3 + j), vr(vT + j)))
        A("s_nop 1")
        for j in range(3):
            A("v_permlane32_swap_b32 %s, %s" % (vr(vT + j), vr(vT + 3 + j)))
        for j in range(3):
            A("v_max_f32 %s, %s, %s" % (vr(vT + j), vr(vT + j), vr(vT + 3 + j)))
        for j in range(3):
            A("v_mov_b32 %s, %s" % (vr(vT + 3 + j), vr(vT + j)))
        A("s_nop 1")
        for j in range(3):
            A("v_permlane16_swap_b32 %s, %s" % (vr(vT + j), vr(vT + 3 + j)))
        for j in range(3):
            A("v_max3_f32 %s, %s, %s, 0" % (vr(vT + j), vr(vT + j), vr(vT + 3 + j)))
        for j in range(3):
            A("v_exp_f32 %s, -%s" % (vr(vT + 3 + j), vr(vT + j)))
        for j in range(3):
            for base in (vS + 4 * j, vS + 12 + 4 * j, vNEGM + 4 * j):
                for i in range(4):
                    A("v_sub_f32 %s, %s, %s" % (vr(base + i), vr(base + i), vr(vT + j)))
        for j in range(3):
            for base in [vO + 12 * dt + 4 * j for dt in range(8)] + [vL + 4 * j]:
                for i in range(4):
                    A("v_mul_f32 %s, %s, %s" % (vr(base + i), vr(base + i), vr(vT + 3 + j)))
        A("s_setpc_b64 %s" % sr(sRET, 2))

    def prologue(self):
        A, o = self.A, self.o
        A("s_cmp_ge_u32 s2, 256")
        A("s_cbranch_scc1 L_end")
        self.stamp("start")
        A("s_and_b32 %s, s2, 7" % sr(sA))
        A("s_lshr_b32 %s, s2, 3" % sr(sB2))
        A("s_lshr_b32 %s, %s, 2" % (sr(sBLK), sr(sA)))
        A("s_mul_i32 %s, %s, 40" % (sr(sC), sr(sBLK)))
        A("s_add_u32 s4, s0, %s" % sr(sC))
        A("s_addc_u32 s5, s1, 0")
        A("s_load_dwordx8 %s, s[4:5], 0" % sr(pX, 8))
        A("s_load_dwordx2 %s, s[4:5], 32" % sr(pWO, 2))
        A("s_load_dwordx2 %s, s[0:1], 96" % sr(pWS, 2))
        A("s_and_b32 %s, %s, 15" % (sr(sB), sr(sB2)))
        A("s_lshr_b32 %s, %s, 4" % (sr(sE), sr(sB2)))
        A("s_and_b32 %s, %s, 3" % (sr(sA), sr(sA)))
        A("s_lshl_b32 %s, %s, 1" % (sr(sHG), sr(sA)))
        A("s_add_u32 %s, %s, %s" % (sr(sHG), sr(sHG), sr(sE)))
        A("s_mul_i32 %s, %s, %d" % (sr(sA), sr(sA), o.xoct))
        A("s_mul_i32 %s, %s, %d" % (sr(sE), sr(sE), o.xq))
        A("s_add_u32 %s, %s, %s" % (sr(sCG0), sr(sB), sr(sA)))
        A("s_add_u32 %s, %s, %s" % (sr(sCG0), sr(sCG0), sr(sE)))
        A("s_lshr_b32 %s, %s, 2" % (sr(sE), sr(sB)))
        A("s_and_b32 %s, %s, %d" % (sr(sE), sr(sE), o.ksrot))
        for i in range(4):
            A("s_add_u32 %s, %s, %d" % (sr(sC), sr(sE), i))
            A("s_and_b32 %s, %s, 3" % (sr(sC), sr(sC)))
            A("s_lshl_b32 %s, %s, 6" % (sr(sKS + i), sr(sC)))
            A("s_lshl_b32 %s, %s, 18" % (sr(sKW + i), sr(sC)))
        A("v_lshrrev_b32 %s, 6, v0" % vr(vT))
        A("v_and_b32 %s, 63, v0" % vr(vLANE))
        self.emit_all(self.voff_std(vOX, 3072, 1024))
        self.emit_all(self.voff_std(vOW, 65536 - 1024, 8192))
        A("s_waitcnt lgkmcnt(0)")
        A("v_readfirstlane_b32 %s, %s" % (sr(sW), vr(vT)))
        self.emit_all(self.srd(dX, pX, 16 * 98304))
        self.emit_all(self.srd(dW, pWQ, 4 << 20))
        A("s_lshr_b32 %s, %s, 1" % (sr(sP), sr(sW)))
        A("s_and_b32 %s, %s, 1" % (sr(sHF), sr(sW)))
        if o.ctouch & 8:
            self.emit_all(self.code_touch_small("L_p1", vT + 5, dK))
            A("L_p1:")
        if not o.wfirst:
            self.emit_all(self.x_dma(0))
        A("s_lshl_b32 %s, %s, 12" % (sr(sM0), sr(sW)))
        A("s_lshl_b32 %s, %s, 1" % (sr(sA), sr(sHG)))
        A("s_add_u32 %s, %s, %s" % (sr(sA), sr(sA), sr(sP)))
        A("s_lshl_b32 %s, %s, 9" % (sr(sWQB), sr(sA)))
        A("s_lshl_b32 %s, %s, 15" % (sr(sA), sr(sHF)))
        A("s_add_u32 %s, %s, %s" % (sr(sWQB), sr(sWQB), sr(sA)))
        if o.wfirst:
            self.emit_all(self.next_loads(1) + self.x_dma(0) + self.next_loads(o.npre - 1))
        else:
            self.emit_all(self.next_loads(o.npre))
        if o.ctouch & 4:
            self.emit_all(self.code_touch_small("L_q0", vT + 5, dK))
        self.emit_all(self.srd(dK, pK, 0 if o.kv_oob else 64 << 20))
        self.emit_all(self.srd(dV, pV, 0 if o.kv_oob else 64 << 20))
        self.emit_all(self.srd(dS, pWS, WS_BYTES))
        A("s_load_dwordx2 %s, s[0:1], 80" % sr(pOUT, 2))
        A("s_xor_b32 %s, %s, 7" % (sr(sX), sr(sHG)))
        A("s_lshl_b32 %s, %s, 22" % (sr(sKVB), sr(sB)))
        A("s_lshl_b32 %s, %s, 19" % (sr(sWOB), sr(sHG)))
        A("s_add_u32 %s, %s, %s" % (sr(sKVB), sr(sKVB), sr(sWOB)))
        A("s_lshl_b32 %s, %s, 18" % (sr(sA), sr(sP)))
        A("s_add_u32 %s, %s, %s" % (sr(sKVB), sr(sKVB), sr(sA)))
        A("s_lshl_b32 %s, %s, 12" % (sr(sA), sr(sHF)))
        A("s_add_u32 %s, %s, %s" % (sr(sKVB), sr(sKVB), sr(sA)))
        A("s_lshl_b32 %s, %s, 9" % (sr(sA), sr(sP)))
        A("s_add_u32 %s, %s, %s" % (sr(sWOB), sr(sWOB), sr(sA)))
        A("s_lshl_b32 %s, %s, 15" % (sr(sA), sr(sHF)))
        A("s_add_u32 %s, %s, %s" % (sr(sC), sr(sWOB), sr(sA)))
        A("s_add_u32 %s, %s, 131072" % (sr(sC), sr(sC)))
        A("s_lshl_b32 %s, %s, 18" % (sr(sA), sr(sP)))
        A("s_add_u32 %s, %s, %s" % (sr(sO1), sr(sC), sr(sA)))
        A("s_xor_b32 %s, %s, 262144" % (sr(sA), sr(sA)))
        A("s_add_u32 %s, %s, %s" % (sr(sO1 + 2), sr(sC), sr(sA)))
        A("s_add_u32 %s, %s, 65536" % (sr(sO1 + 1), sr(sO1)))
        A("s_add_u32 %s, %s, 65536" % (sr(sO1 + 3), sr(sO1 + 2)))
        A("s_lshl_b32 %s, %s, 14" % (sr(sA), sr(sHF)))
        A("s_add_u32 %s, %s, %s" % (sr(sWOB), sr(sWOB), sr(sA)))
        A("s_lshr_b32 %s, %s, 2" % (sr(sA), sr(sX)))
        A("s_lshl_b32 %s, %s, 8" % (sr(sA), sr(sA)))
        A("s_add_u32 %s, %s, %s" % (sr(sWOB), sr(sWOB), sr(sA)))
        A("s_lshl_b32 %s, %s, 1" % (sr(sA), sr(sA)))
        A("s_sub_u32 %s, 256, %s" % (sr(sHX), sr(sA)))
        A("s_lshr_b32 %s, %s, 1" % (sr(sA), sr(sX)))
        A("s_lshl_b32 %s, %s, 7" % (sr(sXC), sr(sA)))
        A("s_and_b32 %s, %s, 1" % (sr(sA), sr(sHG)))
        A("s_mul_i32 %s, %s, %d" % (sr(sA), sr(sA), o.skq))
        A("s_mul_i32 %s, %s, %d" % (sr(sC), sr(sB), o.skb))
        A("s_add_u32 %s, %s, %s" % (sr(sA), sr(sC), sr(sA)))
        for reg, sh, mul in ((sHG, 1, o.sko), (sP, 0, o.skp), (sBLK, 0, o.skk)):
            if mul:
                A("s_lshr_b32 %s, %s, %d" % (sr(sC), sr(reg), sh))
                A("s_mul_i32 %s, %s, %d" % (sr(sC), sr(sC), mul))
                A("s_add_u32 %s, %s, %s" % (sr(sA), sr(sC), sr(sA)))
        A("s_and_b32 %s, %s, 15" % (sr(sA), sr(sA)))
        A("s_lshl_b32 %s, %s, 13" % (sr(sKVO), sr(sA)))
        A("s_mul_i32 %s, %s, 12288" % (sr(sXB), sr(sHF)))
        A("s_add_u32 %s, %s, %d" % (sr(sXB), sr(sXB), XB))
        A("s_lshl_b32 %s, %s, 4" % (sr(sA), sr(sBLK)))
        A("s_add_u32 %s, %s, %s" % (sr(sA), sr(sA), sr(sB)))
        A("s_lshl_b32 %s, %s, 2" % (sr(sA), sr(sA)))
        A("s_add_u32 %s, %s, %s" % (sr(sA), sr(sA), sr(sW)))
        A("s_mul_i32 %s, %s, 196608" % (sr(sB2), sr(sA)))
        A("s_mul_i32 %s, %s, 3072" % (sr(sC), sr(sHG)))
        A("s_add_u32 %s, %s, %s" % (sr(sSTB), sr(sB2), sr(sC)))
        A("s_mul_i32 %s, %s, 24576" % (sr(sC), sr(sHG)))
        A("s_add_u32 %s, %s, %s" % (sr(sLDB), sr(sB2), sr(sC)))
        A("s_lshl_b32 %s, %s, 10" % (sr(sA), sr(sA)))
        A("s_add_u32 %s, %s, %d" % (sr(sFLC), sr(sA), FLAGS))
        A("s_lshl_b32 %s, %s, %d" % (sr(sA), sr(sHG), o.fshift))
        A("s_add_u32 %s, %s, %s" % (sr(sFLO), sr(sFLC), sr(sA)))
        self.emit_all(self.poll_addr())
        self.emit(("buffer_load_dword %s, %s, %s, %s offen sc1" % (vr(vCHK), vr(vPA), sr(dS, 4), sr(sFLC)), "fl"))
        A("s_mul_i32 %s, %s, 96" % (sr(sA), sr(sB)))
        A("s_mul_i32 %s, %s, 48" % (sr(sB2), sr(sHF)))
        A("s_add_u32 %s, %s, %s" % (sr(sA), sr(sA), sr(sB2)))
        A("s_lshl_b32 %s, %s, 11" % (sr(sA), sr(sA)))
        A("s_lshl_b32 %s, %s, 10" % (sr(sB2), sr(sBLK)))
        A("s_add_u32 %s, %s, %s" % (sr(sA), sr(sA), sr(sB2)))
        A("s_lshl_b32 %s, %s, 9" % (sr(sB2), sr(sP)))
        A("s_add_u32 %s, %s, %s" % (sr(sA), sr(sA), sr(sB2)))
        A("s_lshl_b32 %s, %s, 6" % (sr(sB2), sr(sHG)))
        A("s_add_u32 %s, %s, %s" % (sr(sOUT), sr(sA), sr(sB2)))
        if o.tlb:
            A("v_mov_b32 %s, 0" % vr(vZ))
            self.emit(("buffer_load_dword %s, %s, %s, %s offen nt" % (vr(vDUM), vr(vZ), sr(dK, 4), sr(sKVB)), "touch"))
            self.emit(("buffer_load_dword %s, %s, %s, %s offen nt" % (vr(vDUM), vr(vZ), sr(dV, 4), sr(sKVB)), "touch"))
        ev = o.ev.strip()
        assert not (o.stamps and o.prof in (1, 2, 10) and ev), "these profiles reuse the registers of the touch descriptor"
        if ev:
            A("s_mul_hi_u32 %s, %s, %d" % (sr(sA), sr(sB), (1 << 32) // o.kvtm + 1))
            A("s_mul_i32 %s, %s, %d" % (sr(sA), sr(sA), o.kvtm))
            A("s_sub_u32 %s, %s, %s" % (sr(sA), sr(sB), sr(sA)))
            A("s_lshl_b32 %s, %d, %s" % (sr(sTM), sum(1 << (2 + o.kvt0 + o.kvtm * k) for k in range(len(ev))), sr(sA)))
            A("s_mov_b32 %s, %s" % (sr(sTO), sr(sKVO)))
            tk, tw, tq = vT + 4, vOX + 5, vOX + 6
            A("v_and_b32 %s, %d, %s" % (vr(tk), o.kvtl, vr(vLANE)))
            A("v_lshlrev_b32 %s, 7, %s" % (vr(tk), vr(tk)))
            A("v_and_b32 %s, 31, %s" % (vr(tw), vr(vLANE)))
            A("v_lshrrev_b32 %s, 1, %s" % (vr(tq), vr(tw)))
            A("v_lshlrev_b32 %s, 13, %s" % (vr(tq), vr(tq)))
            A("v_and_b32 %s, 1, %s" % (vr(vT), vr(vLANE)))
            A("v_lshl_add_u32 %s, %s, 7, %s" % (vr(tq), vr(vT), vr(tq)))
            A("v_lshlrev_b32 %s, 7, %s" % (vr(tw), vr(tw)))
            self.emit_all(self.srd(dT, pWO, 4 << 20))
            A("s_lshl_b32 %s, %s, 1" % (sr(sA), sr(sB)))
            A("s_add_u32 %s, %s, %s" % (sr(sA), sr(sA), sr(sHF)))
            A("s_lshl_b32 %s, %s, 17" % (sr(sTQ), sr(sA)))
            A("s_lshl_b32 %s, %s, 12" % (sr(sTW), sr(sA)))
            A("s_lshl_b32 %s, %s, 1" % (sr(sA), sr(sHG)))
            A("s_add_u32 %s, %s, %s" % (sr(sA), sr(sA), sr(sP)))
            A("s_lshl_b32 %s, %s, 18" % (sr(sB2), sr(sA)))
            A("s_add_u32 %s, %s, %s" % (sr(sTW), sr(sTW), sr(sB2)))
            A("s_lshl_b32 %s, %s, 9" % (sr(sB2), sr(sA)))
            A("s_add_u32 %s, %s, %s" % (sr(sTQ), sr(sTQ), sr(sB2)))
            A("s_add_u32 %s, %s, 256" % (sr(sTQ), sr(sTQ)))
            for c in o.pre.strip():
                if c == "q":
                    self.emit(("buffer_load_dword %s, %s, %s, %s offen" % (vr(vDUM), vr(tq), sr(dW, 4), sr(sTQ)), "touch"))
                else:
                    A("s_add_u32 %s, %s, %d" % (sr(sE), sr(sTW), 0 if c == "a" else 131072))
                    self.emit(("buffer_load_dword %s, %s, %s, %s offen" % (vr(vDUM), vr(tw), sr(dT, 4), sr(sE)), "touch"))
            A("s_branch L_kvt_skip")
            for ch in sorted(set(ev)):
                A("L_kvt_%s:" % ch)
                for c in {"x": "qab", "y": "qa", "z": "ab", "u": "qk", "v": "ak", "w": "bk"}.get(ch, ch):
                    if c == "k":
                        A("s_add_u32 %s, %s, %s" % (sr(sE), sr(sTO), sr(sKVB)))
                        A("s_add_u32 %s, %s, 8192" % (sr(sTO), sr(sTO)))
                        A("s_and_b32 %s, %s, 0x1ffff" % (sr(sTO), sr(sTO)))
                        A("buffer_load_dword %s, %s, %s, %s offen" % (vr(vDUM), vr(tk), sr(dK, 4), sr(sE)))
                        A("buffer_load_dword %s, %s, %s, %s offen" % (vr(vDUM), vr(tk), sr(dV, 4), sr(sE)))
                    elif c == "q":
                        A("buffer_load_dword %s, %s, %s, %s offen" % (vr(vDUM), vr(tq), sr(dW, 4), sr(sTQ)))
                    else:
                        A("s_add_u32 %s, %s, %d" % (sr(sE), sr(sTW), 0 if c == "a" else 131072))
                        A("buffer_load_dword %s, %s, %s, %s offen" % (vr(vDUM), vr(tw), sr(dT, 4), sr(sE)))
                A("s_add_u32 %s, %s, 4" % (sr(sRET), sr(sRET)))
                A("s_addc_u32 %s, %s, 0" % (sr(sRET + 1), sr(sRET + 1)))
                A("s_setpc_b64 %s" % sr(sRET, 2))
            A("L_kvt_skip:")
        self.emit_all(self.voff_std(vOKV, 0, 256))
        t0, t1, t2 = vT, vT + 1, vT + 2
        A("v_and_b32 %s, 15, %s" % (vr(t0), vr(vLANE)))
        A("v_lshrrev_b32 %s, 4, %s" % (vr(t1), vr(vLANE)))
        A("v_and_b32 %s, 7, %s" % (vr(t2), vr(vLANE)))
        A("v_lshlrev_b32 %s, 1, %s" % (vr(t2), vr(t2)))
        A("v_xor_b32 %s, %s, %s" % (vr(t2), vr(t2), vr(t1)))
        A("v_lshlrev_b32 %s, 4, %s" % (vr(t2), vr(t2)))
        A("v_lshl_add_u32 %s, %s, 8, %s" % (vr(vLK), vr(t0), vr(t2)))
        A("v_lshrrev_b32 %s, 2, %s" % (vr(t0), vr(vLANE)))
        A("v_and_b32 %s, 7, %s" % (vr(t1), vr(t0)))
        A("v_lshlrev_b32 %s, 5, %s" % (vr(t1), vr(t1)))
        A("v_lshl_add_u32 %s, %s, 8, %s" % (vr(t0), vr(t0), vr(t1)))
        A("v_and_b32 %s, 3, %s" % (vr(t1), vr(vLANE)))
        A("v_lshl_add_u32 %s, %s, 3, %s" % (vr(t0), vr(t1), vr(t0)))
        A("s_lshl_b32 %s, %s, 13" % (sr(sA), sr(sP)))
        for dt in range(8):
            A("v_xor_b32 %s, %d, %s" % (vr(vVA + dt), dt << 5, vr(t0)))
            A("v_add_u32 %s, %s, %s" % (vr(vVA + dt), sr(sA), vr(vVA + dt)))
        for ks in range(4):
            A("v_xor_b32 %s, %d, %s" % (vr(vKA + ks), ks << 6, vr(vLK)))
            A("v_add_u32 %s, %s, %s" % (vr(vKA + ks), sr(sA), vr(vKA + ks)))
        A("s_mul_i32 %s, %s, 12288" % (sr(sA), sr(sW)))
        A("s_add_u32 %s, %s, %d" % (sr(sA), sr(sA), EX))
        A("v_lshlrev_b32 %s, 4, %s" % (vr(vSTA), vr(vLANE)))
        A("v_add_u32 %s, %s, %s" % (vr(vEXW), sr(sA), vr(vSTA)))
        for i in range(4):
            A("v_mov_b32 %s, 0x3f803f80" % vr(vONES + i))
        A("s_mov_b32 %s, %s" % (sr(sTH), f32(8.0)))

    def touch_site(self, n):
        o, ev = self.o, self.o.ev.strip()
        if o.kvt0 <= n < o.kvt0 + o.kvtm * len(ev):
            return ["s_bitcmp1_b32 %s, %d\ns_getpc_b64 %s\ns_cbranch_scc1 L_kvt_%s" % (sr(sTM), n + 2, sr(sRET, 2), ev[(n - o.kvt0) // o.kvtm])]
        return []

    def poll_addr(self):
        return ["v_and_b32 %s, 7, %s" % (vr(vPA), vr(vLANE)), "v_xor_b32 %s, %s, %s" % (vr(vPA), sr(sX), vr(vPA)),
                "v_lshlrev_b32 %s, %d, %s" % (vr(vPA), self.o.fshift, vr(vPA))]

    def q0_phase(self):
        A, o = self.A, self.o
        vBX = (vS, vS + 12)

        def xb_reads(n):
            return (self.x_group("%d" % (n // 4)) if n % 4 == 0 else []) + self.x_addr(n % 4) + \
                ["ds_read_b128 %s, %s offset:%d" % (vr(vBX[n % 2] + 4 * j, 4), vr(vB), 4096 * j) for j in range(3)]

        W = lambda n: ("wq", 0, n)
        A("L_q0:")
        self.emit_all(self.touch_site(-2))
        self.open([W(0)], [("x", 0)])
        self.emit_all(xb_reads(0) + self.tr_reads(0, self.loc[W(0)] // SLOT) + self.next_loads(4 - o.npre) + self.touch_site(-1))
        xplan = [{0: 1, 4: 2, 8: 3}, {0: 1, 1: 2, 2: 3}, {0: 1, 2: 2, 4: 3}, {}, {0: 1, 3: 2, 6: 3}][o.xplan]
        qfin = self.q_finalize(False)
        for n in range(16):
            self.open([W(n + 1)] if n < 15 else [], [("x", (n + 1) // 4)] if n % 4 == 3 else [])
            self.stamp("q%d" % n)
            order = [(dt, j) for dt in range(8) for j in range(3)] if n < 15 else [(dt, j) for j in range(3) for dt in range(8)]
            mf = []
            for dt, j in order:
                acc = vr(vO + 12 * dt + 4 * j, 4)
                mf.append("%s %s, %s, %s, %s" % (MF, acc, ar(aF[n % 2] + 4 * dt, 4), vr(vBX[n % 2] + 4 * j, 4), "0" if n == 0 else acc))
            if n == 15:
                self.auto(mf, [], [], qfin[:30], v0=10)
                break
            xb = xb_reads(n + 1)
            head, vq, rd = xb[:-5], xb[-5:-3], self.tr_reads((n + 1) % 2, self.loc[W(n + 1)] // SLOT) + xb[-3:]
            post = []
            if n in xplan:
                post = self.x_dma(xplan[n])
                carry = []
                if o.xhalf and n > 0:
                    post, carry = post[:-4], post[-4:]
            elif n - 1 in xplan and o.xhalf:
                post = carry
            if n == 9 and o.ctouch & 16:
                assert not post
                post = self.code_touch_small("L_q0end", vT + 5, dC)
            post = post + self.touch_site(n)
            self.auto(mf, rd, head + self.next_loads(0 if n >= 15 - o.kvdefer else 1) + post, vq, v0=4)
        A("L_q0end:")
        self.stamp("qend")
        self.emit_all(spread(qfin[30:o.qsplit], self.next_loads(1 + o.kvdefer)))
        K0 = ("k", 0, 0)
        self.open([K0])
        self.emit_all(spread(qfin[o.qsplit:], self.k_reads(0, self.loc[K0] // SLOT)))
        self.par = 0

    def publish(self, stage, n):
        return ["s_add_u32 %s, %s, 8" % (sr(sGC), sr(sGC)), "s_add_u32 %s, %s, %d" % (sr(sE), sr(sGC), stage),
                "v_mov_b32 %s, %s" % (vr(vFV), sr(sE)), "s_waitcnt vmcnt(%d)" % n, "s_mov_b64 exec, 1",
                ("buffer_store_dword %s, %s, %s, %s offen sc1" % (vr(vFV), vr(vZ), sr(dS, 4), sr(sFLO)), "fl"),
                "s_mov_b64 exec, -1"]

    def o1_phase(self):
        A, o = self.A, self.o
        mx, ex, cv, check, qk, pv, proj, b_parts, tr, patK = self.softmax_parts
        vOA, vSG = (vKA, vVA, vVA + 4), vL
        t0, t1 = vT + 4, vT + 5
        addr = ["v_lshrrev_b32 %s, 2, %s" % (vr(t0), vr(vLANE)),
                "v_bfe_u32 %s, %s, 3, 2" % (vr(t1), vr(vLANE)),
                "v_lshlrev_b32 %s, 5, %s" % (vr(t1), vr(t1)),
                "v_lshl_add_u32 %s, %s, 7, %s" % (vr(t0), vr(t0), vr(t1)),
                "v_and_b32 %s, 3, %s" % (vr(t1), vr(vLANE)),
                "v_lshl_add_u32 %s, %s, 3, %s" % (vr(t0), vr(t1), vr(t0)),
                "s_lshl_b32 %s, %s, 13" % (sr(sB2), sr(sP))]
        addr1 = []
        for nt in range(4):
            addr += ["v_xor_b32 %s, %d, %s" % (vr(vOA[0] + nt), nt << 5, vr(t0)),
                     "v_add_u32 %s, %s, %s" % (vr(vOA[0] + nt), sr(sB2), vr(vOA[0] + nt))]
            addr1 += ["v_add_u32 %s, 0x10000, %s" % (vr(vOA[1] + nt), vr(vOA[0] + nt)),
                      "v_add_u32 %s, 0x20000, %s" % (vr(vOA[2] + nt), vr(vOA[0] + nt))]
        addr += ["s_xor_b32 %s, %s, 2" % (sr(sB2), sr(sW)),
                 "s_mul_i32 %s, %s, 12288" % (sr(sB2), sr(sB2)),
                 "s_add_u32 %s, %s, %d" % (sr(sB2), sr(sB2), EX),
                 "v_add_u32 %s, %s, %s" % (vr(vB), sr(sB2), vr(vSTA))]
        setup_v = self.poll_addr() + [
            "v_mov_b32 %s, 0" % vr(vZ), "v_readlane_b32 %s, %s, 7" % (sr(sGC), vr(vCHK)),
            "v_and_b32 %s, 15, %s" % (vr(vOUT), vr(vLANE)), "v_lshlrev_b32 %s, 11, %s" % (vr(vOUT), vr(vOUT)),
            "v_lshrrev_b32 %s, 4, %s" % (vr(vPD), vr(vLANE)), "v_lshl_add_u32 %s, %s, 4, %s" % (vr(vOUT), vr(vPD), vr(vOUT))]
        setup_s = ["s_and_b32 %s, %s, -8" % (sr(sGC), sr(sGC)), "s_mov_b32 %s, 0x00003f80" % sr(sDOT),
                   "s_mov_b32 %s, 0x3f800000" % sr(sDOT + 1)] + self.srd(dK, pOUT, 16 * 96 * 1024 * 2)[:3]
        T = lambda n: ("o", 1, n)

        def frags(n):
            if n < 12:
                return [(n, ks, nt) for ks in range(2) for nt in range(4)]
            t, u = 12 + 2 * (n % 2), (n - 12) // 2
            return [(t + h, ks, 2 * u + nt) for h in range(2) for ks in range(2) for nt in range(2)]

        def reads(n, fset):
            out = []
            for f, (t, ks, nt) in enumerate(frags(n)):
                win, off = self.loc[T(t)] // 65536, self.loc[T(t)] % 65536
                out += ["ds_read_b64_tr_b16 %s, %s offset:%d" % (ar(aF[fset] + 4 * f + 2 * e, 2), vr(vOA[win] + nt),
                                                                 off + 4096 * ks + 2048 * e) for e in range(2)]
            return out

        def eighth(e):
            out = ["s_xor_b32 %s, %s, %d" % (sr(sST), sr(sX), e), "s_mul_i32 %s, %s, 24576" % (sr(sST), sr(sST)),
                   "s_add_u32 %s, %s, %s" % (sr(sST), sr(sST), sr(sSTB))]
            for jq in range(3):
                a = vSG + 8 * ((3 * e + jq) % 6)
                src = 24 * e + 4 * jq
                out += ["v_accvgpr_read_b32 %s, %s" % (vr(a + x), ar(src + x)) for x in range(4)]
                out += ["v_accvgpr_read_b32 %s, %s" % (vr(a + 4 + x), ar(src + 12 + x)) for x in range(4)]
                out += ["v_cvt_pk_bf16_f32 %s, %s, %s" % (vr(a + x), vr(a + 2 * x), vr(a + 2 * x + 1)) for x in range(4)]
                off = " offset:%d" % (1024 * jq) if jq else ""
                out.append(("buffer_store_dwordx4 %s, %s, %s, %s offen%s sc1" % (vr(a, 4), vr(vSTA), sr(dS, 4), sr(sST), off), ("st", e)))
            return out

        V = ("v", 1, 15)
        self.stamp("last")
        nl, k = self.nproj[1][15], self.klast
        soft = mx(2) + check() + ex(0, 0) + ex(1, 0) + ex(0, 1) + cv(0) + ex(1, 1) + ex(0, 2) + cv(1) + ex(1, 2) + ["s_nop 0"] + cv(2)
        if nl == 0:
            self.open([])
            self.pat(qk(False), "ssv ssv d vv d vv d _ d _ _ _ _ _ vv vv _ _ _ _ _ _ nvv vv".split(), [], self.next_loads(1), addr[:6] + mx(0) + mx(1))
            self.par ^= 1
            self.emit_all(addr[6:] + soft)
        else:
            W1, W2 = ("w", 1, k), ("w", 1, k + 1)
            self.open([W1])
            par, vq, brd = b_parts(1, k)
            self.pat(qk(False), patK, tr(W1) + brd, par + self.next_loads(1), vq + mx(0) + mx(1))
            self.par ^= 1
            if nl == 2:
                assert k % 2 == 0
                self.open([W2])
                self.auto(proj(1, k), tr(W2), self.next_loads(1), soft[:26], v0=3)
                self.par ^= 1
                self.open([])
                self.auto(proj(1, k + 1), [], self.next_loads(1), soft[26:] + addr, v0=0)
            else:
                self.open([])
                self.auto(proj(1, k), [], self.next_loads(1), soft + addr, v0=4)
            self.par ^= 1
        kset = 1 - self.par
        assert self.loc[T(0)] < XB
        fin = lambda j, w: self.o_rcp(j) + self.o_block(0, j, w) + self.o_block(1, j, w)
        if o.t0first:
            self.open([T(0)])
            self.emit_all(reads(0, kset) + self.next_loads(1))
            self.open([V])
        else:
            self.open([V, T(0)])
        self.stamp("a1end")
        self.olimit = 99
        self.ofree += [EXTRA + SLOT * x for x in range(3)]
        vrd = self.tr_reads(self.par, self.loc[V] // SLOT)
        mf = pv(False)
        self.emit_all(vrd[:12])
        A(mf[0])
        self.emit_all(vrd[12:])
        d = self.next_loads(o.opv)
        if o.t0first:
            for dt in range(8):
                A("s_waitcnt lgkmcnt(%d)" % (14 - 2 * dt))
                A(mf[1 + dt])
                if dt % 2:
                    while d and not isinstance(d[0], tuple):
                        self.emit(d.pop(0))
                    if d:
                        self.emit(d.pop(0))
            self.pat(mf[9:], "sss d _ vv vv vv vv d vv vv vv vv d vv vv vv vv d".split(), [], d, (fin(0, False) + fin(1, False))[:26])
            self.emit_all((fin(0, False) + fin(1, False))[26:] + fin(2, False))
            wr01 = [self.o_write(ks, j) for ks in (0, 1) for j in range(3)]
        else:
            for dt in range(8):
                A("s_waitcnt lgkmcnt(%d)" % (14 - 2 * dt))
                A(mf[1 + dt])
            nd1 = len(d) * 2 // 3
            self.pat(mf[9:], "tsss td td tvv tdvv tdvv tsvv tsvv tdvv tdvv tvvv tdvv tdvv tvvvv tvvvv tvvvv vvvv vvvv".split(),
                     reads(0, kset), d[:nd1], fin(0, True) + fin(1, True))
            A("s_nop 1")
            self.emit_all(spread(fin(2, True), d[nd1:]))
            wr01 = []
        self.par = kset
        brd = ["ds_read_b128 %s, %s offset:%d" % (vr(vO + 24 * (f // 3) + 12 + 4 * (f % 3), 4), vr(vB), 1024 * f) for f in range(12)]
        fin2 = []
        for ks in (2, 3):
            for j in range(3):
                fin2 += self.o_block(ks, j, not o.oord)
        wr23 = [self.o_write(ks, j) for ks in (2, 3) for j in range(3)]
        early = eighth(0) + eighth(1) + eighth(2) + eighth(3)
        vqs = {12: eighth(4), 13: eighth(5), 14: eighth(6)}
        if o.oord:
            vqs.update({0: fin2[:36] + addr1, 1: fin2[36:], 3: setup_v})
            xds = {0: wr01[:3], 1: wr01[3:], 2: wr23 + brd[:6], 3: brd[6:]}
            if o.wspread:
                xds = {0: wr01[:5], 1: wr01[5:] + wr23[:3], 2: brd[:2] + wr23[3:4] + brd[2:4] + wr23[4:5] + brd[4:6] + wr23[5:], 3: brd[6:]}
            for k in range(3):
                vqs[5 + k] = early[28 * k:28 * (k + 1)]
            for k in range(4):
                vqs[8 + k] = early[84 + 21 * k:84 + 21 * (k + 1)]
            nex = 4
        else:
            vqs.update({0: addr1 + fin2, 2: setup_v})
            xds = {0: wr01, 1: brd[:6], 2: brd[6:]}
            for k in range(8):
                vqs[4 + k] = early[21 * k:21 * (k + 1)]
            nex = 3
        nload = [{0: 1, 1: 2, 2: 2, 3: 2, 4: 2, 5: 1, 6: 1, 7: 1}, {0: 1, 1: 1, 2: 2, 3: 2, 4: 2, 5: 2, 6: 2}, {0: 2, 1: 2, 2: 2, 3: 2, 4: 2, 5: 2},
                 {0: 1, 1: 1, 2: 1, 3: 2, 4: 2, 5: 2, 6: 1, 7: 1}, {0: 0, 1: 1, 2: 1, 3: 2, 4: 2, 5: 2, 6: 2, 7: 1}][o.oplan]
        poll = "buffer_load_dword %s, %s, %s, %s offen sc1" % (vr(vPD), vr(vPA), sr(dS, 4), sr(sFLC))
        for n in range(16):
            if n < 11:
                self.open([T(n + 1)])
            elif n < 13:
                self.open([T(2 * n - 10), T(2 * n - 9)])
            else:
                A("s_waitcnt lgkmcnt(0)")
            if n == nex:
                self.ofree += [EX + SLOT * x for x in range(3)]
            self.stamp("o%d" % n)
            mf = []
            for f, (t, ks, nt) in enumerate(frags(n)):
                c, i = O1_TILES[t]
                for j in range(3):
                    acc = ar(48 * c + 12 * nt + 4 * j, 4)
                    mf.append("%s %s, %s, %s, %s" % (MF, acc, ar(aF[self.par] + 4 * f, 4), vr(vO + 48 * (i % 2) + 24 * ks + 12 * (i // 2) + 4 * j, 4), acc))
            d = self.next_loads(nload.get(n, 1 if n < 11 else 0))
            rd = reads(n + 1, 1 - self.par) if n < 15 else []
            if n == 0:
                assert self.loc[T(1)] < XB
            rd = spread(rd, xds.get(n, []))
            if n == 5:
                d = setup_s + d
            if n == o.pub1:
                self.emit_all(self.publish(1, self.vm_need([("st", 3)])) + ["s_nop 3"])
            if n == 15:
                d = [(poll, "poll")]
            self.auto(mf, rd, d, vqs.get(n, []), v0=(0 if n < 4 else 3), vend=(o.vend if n == 14 else None))
            self.par ^= 1
        assert not self.loadq
        self.stamp("o16")

        masks = (0x0f, 0x70)
        groups = ((0, 1, 2, 3), (4, 5, 6))
        vLD, vAC = (vO, vO + 48), vQ

        def test(k):
            A("v_and_b32 %s, 7, %s" % (vr(vPT), vr(vPD)))
            A("v_cmp_eq_u32 %s, %s, %s" % (sr(sRET, 2), vr(vPD), vr(vCHK)))
            A("v_cmp_gt_u32 vcc, %d, %s" % (2 if o.aall else k + 1, vr(vPT)))
            A("s_nop 0")
            A("s_or_b32 %s, vcc_lo, %s" % (sr(sA), sr(sRET)))
            A("s_and_b32 %s, %s, %d" % (sr(sA), sr(sA), masks[k]))

        def ensure(k):
            A("s_mov_b32 %s, 0" % sr(sSTP))
            A("L_pt%d:" % k)
            test(k)
            A("s_cbranch_scc0 L_pd%d" % k)
            if o.pmask:
                A("s_mov_b64 exec, %d" % (0x7f if k == 0 else 0x70))
            A(poll)
            if o.pmask:
                A("s_mov_b64 exec, -1")
            A("s_add_u32 %s, %s, 1" % (sr(sSTP), sr(sSTP)))
            A("s_and_b32 %s, %s, 31" % (sr(sA), sr(sSTP)))
            A("s_cbranch_scc0 L_pr%d" % k)
            A("L_pw%d:" % k)
            A("s_waitcnt vmcnt(0)")
            A("s_cmp_lt_u32 %s, %d" % (sr(sSTP), SPIN))
            A("s_cbranch_scc1 L_pt%d" % k)
            A("L_pd%d:" % k)
            self.tail += ["L_pr%d:" % k] + plain(self.publish(2, 63)) + ["s_branch L_pw%d" % k]

        def loads(k, attempt=False):
            if attempt:
                A("s_cselect_b32 %s, 1, 0" % sr(sL))
                A("s_cselect_b32 %s, %d, %s" % (sr(sC), OOB, sr(sLDB)))
            else:
                A("s_mov_b32 %s, %s" % (sr(sC), sr(sLDB)))
            for h, e in enumerate(groups[k]):
                A("s_xor_b32 %s, %s, %d" % (sr(sA), sr(sX), e))
                A("s_mul_i32 %s, %s, 3072" % (sr(sA), sr(sA)))
                A("s_add_u32 %s, %s, %s" % (sr(sA), sr(sA), sr(sC)))
                for jq in range(3):
                    off = " offset:%d" % (1024 * jq) if jq else ""
                    A("buffer_load_dwordx4 %s, %s, %s, %s offen%s sc1" % (vr(vLD[k] + 12 * h + 4 * jq, 4), vr(vSTA), sr(dS, 4), sr(sA), off))

        def add(k, jqs=(0, 1, 2)):
            for jq in jqs:
                for h in range(len(groups[k])):
                    for i in range(4):
                        for e in range(2):
                            a = vr(vAC + 8 * jq + 2 * i + e)
                            A("v_dot2_f32_bf16 %s, %s, %s, %s" % (a, vr(vLD[k] + 12 * h + 4 * jq + i), sr(sDOT + e), a))

        self.emit_all(self.publish(2, 0))
        self.stamp("pub")
        for jq in range(3):
            for x in range(8):
                A("v_accvgpr_read_b32 %s, %s" % (vr(vAC + 8 * jq + x), ar(168 + 4 * jq + 12 * (x // 4) + x % 4)))
        ensure(0)
        loads(0)
        self.stamp("xa")
        test(1)
        loads(1, True)
        A(poll)
        if o.bfirst:
            A("s_cmp_eq_u32 %s, 0" % sr(sL))
            A("s_cbranch_scc1 L_second")
            A("s_waitcnt vmcnt(0)")
            test(1)
            loads(1, True)
            A(poll)
            A("L_second:")
        A("s_waitcnt vmcnt(10)")
        add(0)
        self.stamp("xs")
        A("s_cmp_eq_u32 %s, 0" % sr(sL))
        A("s_cbranch_scc1 L_have")
        A("s_waitcnt vmcnt(0)")
        ensure(1)
        loads(1)
        A("s_waitcnt vmcnt(0)")
        A("L_have:")
        self.stamp("xb")
        A("s_waitcnt vmcnt(1)")
        self.stamp("xf")
        for jq in range(3):
            a = vAC + 8 * jq
            add(1, (jq,))
            A("s_nop 2")
            for i in range(4):
                A("v_cvt_pk_bf16_f32 %s, %s, %s" % (vr(a + i), vr(a + 2 * i), vr(a + 2 * i + 1)))
            A("s_nop 1")
            A("v_permlane32_swap_b32 %s, %s" % (vr(a), vr(a + 2)))
            A("v_permlane32_swap_b32 %s, %s" % (vr(a + 1), vr(a + 3)))
            A("s_nop 1")
            A("v_permlane16_swap_b32 %s, %s" % (vr(a), vr(a + 2)))
            A("v_permlane16_swap_b32 %s, %s" % (vr(a + 1), vr(a + 3)))
            A("buffer_store_dwordx4 %s, %s, %s, %s offen%s" % (vr(a, 4), vr(vOUT), sr(dK, 4), sr(sOUT), o.out_flag))
            if jq < 2:
                A("s_add_u32 %s, %s, 32768" % (sr(sOUT), sr(sOUT)))

    def write_stamps(self):
        A = self.A
        A("s_waitcnt vmcnt(0)")
        self.stamp("end")
        A("s_waitcnt lgkmcnt(0)")
        A("s_cmp_lg_u32 %s, 0" % sr(sW))
        A("s_cbranch_scc1 L_end")
        A("s_mov_b64 exec, 1")
        A("s_mul_i32 s3, s2, %d" % (NSTAMP * 8))
        A("s_add_u32 s3, s3, %d" % STAMP_OFF)
        A("v_mov_b32 v6, 0")
        for i in range(NSTAMP):
            A("v_mov_b32 v8, s%d" % (sSTAMP + 2 * i))
            A("v_mov_b32 v9, s%d" % (sSTAMP + 2 * i + 1))
            A("buffer_store_dwordx2 v[8:9], v6, %s, s3 offen offset:%d" % (sr(dS, 4), 8 * i))
            A("s_nop 1")

    def build(self):
        A, o = self.A, self.o
        lab = NAME + "_kernel"
        A("; @launch grid=(256,1,1) block=(256,1,1) lds=163840")
        A('.amdgcn_target "amdgcn-amd-amdhsa--gfx950"')
        A(".text")
        A(".globl %s" % lab)
        A(".p2align 8")
        A(".type %s,@function" % lab)
        A("%s:" % lab)
        self.make_tiles()
        self.prologue()
        self.q0_phase()
        self.phase = 2
        self.attention()
        self.phase = 4
        self.o1_phase()
        if o.stamps:
            self.write_stamps()
        A("L_end:")
        A("s_endpgm")
        self.rare()
        for x in self.tail:
            A(x)
        A("L_codeend:")
        A('.section .rodata,"a"')
        A(".p2align 6")
        A(".amdhsa_kernel %s" % lab)
        A("  .amdhsa_next_free_vgpr 512")
        A("  .amdhsa_next_free_sgpr 100")
        A("  .amdhsa_accum_offset 256")
        A("  .amdhsa_group_segment_fixed_size 0")
        A("  .amdhsa_kernarg_size 104")
        A("  .amdhsa_user_sgpr_count 2")
        A("  .amdhsa_user_sgpr_kernarg_segment_ptr 1")
        A("  .amdhsa_system_sgpr_workgroup_id_x 1")
        A(".end_amdhsa_kernel")
        return "\n".join(self.L) + "\n"


def parse_opts(args):
    kw = {}
    for a in args:
        k, v = a.split("=", 1)
        cur = getattr(Opt, k)
        if isinstance(cur, bool):
            kw[k] = v not in ("0", "False")
        elif isinstance(cur, int):
            kw[k] = int(v)
        else:
            kw[k] = (" " + v.replace("+", " ")) if v else ""
    return kw


if __name__ == "__main__":
    open(sys.argv[1], "w").write(Gen(Opt(**parse_opts(sys.argv[2:]))).build())
```

```python
import math
import struct
import sys

NAME = "concat_heads__mha_block_cached__mha_block_cached__near_ridge"
WS_BYTES = 288358400
STAMP_OFF = WS_BYTES - (1 << 20)
NSTAMP = 10


HEADER = """
; Kernarg (13 pointers): A_x A_k A_v A_wq A_wo B_x B_k B_v B_wq B_wo d_out d_debug d_ws.
;
"""


def f32(x):
    return "0x%08x" % struct.unpack("<I", struct.pack("<f", x))[0]


class Opt:
    stamps = False
    cyc = False
    prof = 0
    kv_flag = " nt"
    w_flag = ""
    x_flag = ""
    out_flag = ""
    touch = False
    ctouch = 22
    xoct = 1
    xq = 0
    x1pre = False
    xplan = 4
    kv_oob = False
    nomf = 0
    fshift = 7
    pub1 = 14
    ev = "uvw"
    pre = ""
    kvt0 = -1
    kvtm = 4
    kvtn = 1
    kvti = False
    tlb = 0
    np0 = "1111111111111111"
    np1 = "0111111111111112"
    retouch = True
    bfirst = True
    oplan = 0
    qsplit = 120
    olim = 1
    t0first = True
    oord = 1
    xhalf = True
    wspread = True
    pmask = False
    wtlb = 0
    midbar = False
    drop = 0
    skb = 1
    skq = 8
    sko = 0
    skp = 0
    skk = 0
    a0skew = 2
    midpos = 120
    ksrot = 3
    npre = 2
    wfirst = False
    kvdefer = 0
    kvtl = 3
    aall = False
    opv = 3
    vend = 16

    def __init__(self, **kw):
        for k, v in kw.items():
            assert hasattr(Opt, k), k
            setattr(self, k, v)


sW, sP, sHF, sB, sBLK, sHG, sX, sKVO = 4, 5, 6, 7, 8, 9, 10, 11
dK, dV, dW, dX, dS = 12, 16, 32, 36, 40
dC = dX
pX, pK, pV, pWQ, pWO, pWS = 20, 22, 24, 26, 28, 30
pOUT, sFLO, sFLC, sGC, sSTP, sLDB, sOUT, sHX, sXC = 20, 22, 23, 24, 25, 26, 27, 30, 31
sKV, sWOFF, sXO, sM0, sIT, sKVB, sTH, sLO = 44, 45, 46, 47, 48, 49, 50, 51
sA, sB2, sC, sE = 52, 53, 54, 55
sWQB, sWOB, sWT, sCGX, sXB, sST, sL, sSTB = 56, 57, 58, 59, 60, 61, 62, 63
sO1, sRET, sXM, sCG0, sSTAMP = 64, 68, 70, 71, 72
sKS, sKW = 92, 96
sALT, sDOT = sKS, sKW
sTM, sTO, sTQ, sTW = sST, sL, sIT, sLO
dT = 88

vLANE, vLK, vB = 1, 2, 3
vO, vL, vNEGM, vS, vP = 4, 100, 112, 124, 148
vQ, vBF, vONES = 160, 208, 220
aF = (192, 224)
vVA, vKA, vOKV, vOW, vT = 224, 232, 236, 240, 244
vEXW, vSTA, vDUM, vCHK = 252, 253, 254, 255
vPA, vPD, vFV, vZ, vOUT, vPT = 152, 153, 154, 155, 156, 157

SLOT = 16384
XB = 65536
EX = 65536
EXTRA = 114688
FLAGS = 32 << 20
SPIN = 100000
OOB = 0x7ff00000
MF = "v_mfma_f32_16x16x32_bf16"
O1_TILES = [(c, i) for c in range(4) for i in range(4)]
O1_ALT = [(0, 0), (1, 0), (0, 1), (0, 2), (0, 3), (1, 1), (1, 2), (1, 3)] + O1_TILES[8:]
vOX = 148


def vr(a, n=1):
    return "v%d" % a if n == 1 else "v[%d:%d]" % (a, a + n - 1)


def ar(a, n=1):
    return "a%d" % a if n == 1 else "a[%d:%d]" % (a, a + n - 1)


def sr(a, n=1):
    return "s%d" % a if n == 1 else "s[%d:%d]" % (a, a + n - 1)


def txt(x):
    return x[0] if isinstance(x, tuple) else x


def plain(xs):
    return [txt(x) for x in xs]


def is_label(x):
    return not isinstance(x, tuple) and x.endswith(":")


def spread(base, ins):
    out, k = [], 0
    for i, x in enumerate(base):
        out.append(x)
        while k < len(ins) and (k + 1) * len(base) <= (i + 1) * (len(ins) + 1):
            out.append(ins[k])
            k += 1
    return out + ins[k:]


class Gen:
    def __init__(self, o):
        self.o = o
        if o.oord:
            O1_TILES[:] = O1_ALT
        self.L = []
        self.vm = []
        self.tail = []
        self.uid = 0
        self.phase = 1

    def A(self, s):
        self.L.append(s)

    def emit(self, x):
        if txt(x).endswith(" lds") and " m0," in self.L[-1]:
            self.A("s_nop 0")
        self.A(txt(x))
        if isinstance(x, tuple):
            self.vm.append(x[1])

    def emit_all(self, xs):
        for x in xs:
            self.emit(x)

    def stamp(self, name):
        tables = {0: ["start", "q0", "qend", "a0", "a0end", "a1", "a1end", "o16", "pub", "end"],
                  1: ["start"] + ["q%d" % k for k in range(8)] + ["end"],
                  2: ["start"] + ["q%d" % k for k in range(8, 16)] + ["qend"],
                  3: ["start", "a1end"] + ["o%d" % k for k in range(8)],
                  4: ["start"] + ["o%d" % k for k in range(8, 16)] + ["o16"],
                  10: ["start", "q12", "q13", "q14", "q15", "qend", "a0", "s0_1", "s0_2", "s0_3"],
                  11: ["start", "s0_14", "s0_15", "s1_0", "s1_1", "s1_2", "s1_13", "s1_14", "last", "a1end"],
                  12: ["start", "K0_6", "W0_6", "V0_6", "K0_7", "K1_6", "W1_6", "V1_6", "K1_7", "end"],
                  8: ["start"] + ["s0_%d" % k for k in range(0, 16, 2)] + ["end"],
                  9: ["start"] + ["s1_%d" % k for k in range(0, 16, 2)] + ["end"],
                  5: ["start", "a1end", "o0", "o16", "pub", "xa", "xs", "xb", "xf", "end"]}
        if self.o.prof == 6:
            t = ["start", "a0", "", "a0end", "", "a1", "", "a1end", "", "end"]
            if self.o.stamps and name in t:
                k = t.index(name)
                self.A("s_memrealtime %s" % sr(sSTAMP + 2 * k, 2))
                if 0 < k < 9:
                    self.A("s_memtime %s" % sr(sSTAMP + 2 * k + 2, 2))
            return
        if self.o.prof == 7:
            if self.o.stamps and name in ("start", "end"):
                self.A("s_memrealtime %s" % sr(sSTAMP + (0 if name == "start" else 18), 2))
            if self.o.stamps and name == "iter":
                for k in range(1, 8):
                    self.A("s_mov_b64 %s, %s" % (sr(sSTAMP + 2 * k, 2), sr(sSTAMP + 2 * k + 2, 2)))
                self.A("s_memrealtime %s" % sr(sSTAMP + 16, 2))
            return
        t = tables[self.o.prof]
        if self.o.stamps and name in t:
            self.A("%s %s" % ("s_memtime" if self.o.cyc else "s_memrealtime", sr(sSTAMP + 2 * t.index(name), 2)))

    def vm_need(self, tags):
        idx = max([i for i, t in enumerate(self.vm) if t in tags] + [-1])
        n = len(self.vm) - 1 - idx
        self.vm = self.vm[idx + 1:]
        return n

    def sync(self, n):
        self.A("s_waitcnt vmcnt(%d) lgkmcnt(0)" % n)
        self.A("s_barrier")

    def pat(self, mf, pattern, ds=(), dq=(), vq=()):
        ds, dq, vq = list(ds), list(dq), list(vq)
        assert len(pattern) == len(mf), (len(pattern), len(mf))

        def labels(q):
            while q and q[0] is not None and is_label(q[0]):
                self.emit(q.pop(0))

        for m, gap in zip(mf, pattern):
            self.A(m if not (self.o.nomf & self.phase) else "s_nop 0")
            for ch in gap:
                if ch == "t" and ds:
                    self.emit(ds.pop(0))
                elif ch == "s" and dq and not txt(dq[0]).startswith("buffer_"):
                    self.emit(dq.pop(0))
                    labels(dq)
                elif ch == "d" and dq:
                    while dq and not txt(dq[0]).startswith("buffer_"):
                        self.emit(dq.pop(0))
                    if dq:
                        self.emit(dq.pop(0))
                elif ch == "n":
                    self.A("s_nop 1")
                elif ch == "v" and vq:
                    x = vq.pop(0)
                    if x is not None:
                        self.emit(x)
                    labels(vq)
        self.emit_all(ds + dq + vq)

    def auto(self, mf, ds=(), dq=(), vq=(), v0=0, vend=None):
        n = len(mf)
        nd = len([x for x in dq if txt(x).startswith("buffer_")])
        ds_end, first = n - 5, 3
        dpos = [first + int(k * (n - 2 - first) / max(nd - 1, 1) + 0.5) for k in range(nd)] if nd > 1 else ([first] if nd else [])
        pattern, left, vleft = [], len(ds), [x for x in vq if not is_label(x)]
        for g in range(n):
            k = dpos.count(g)
            if k:
                pattern.append("d" * k)
                continue
            gaps_ds = len([h for h in range(g, ds_end + 1) if h not in dpos])
            nds = 0 if left == 0 else min(2, -(-left // max(gaps_ds, 1)))
            nv = 0
            if g >= v0 and vleft:
                gaps_v = max(1, len([h for h in range(g, vend or n) if h not in dpos]))
                if isinstance(vleft[0], tuple):
                    nv = 1
                    if left <= 2 * (gaps_ds - 1):
                        nds = 0
                else:
                    nv = max(2 - nds, -(-len(vleft) // gaps_v))
                    for q in range(min(nv, len(vleft))):
                        if q and isinstance(vleft[q], tuple):
                            nv = q
                            break
                vleft = vleft[nv:]
            left -= nds
            pattern.append("t" * nds + "s" * max(0, 3 - nds - nv) + "v" * nv)
        self.pat(mf, pattern, ds, dq, vq)

    def srd(self, d, p, size):
        return ["s_mov_b32 %s, %s" % (sr(d), sr(p)), "s_and_b32 %s, %s, 0xffff" % (sr(d + 1), sr(p + 1)),
                "s_mov_b32 %s, %d" % (sr(d + 2), size), "s_mov_b32 %s, 0x20000" % sr(d + 3)]

    def dma(self, loc, srd, voff, soff, flag, tag, cnt=4, m0=sM0, nop=False):
        out = ["s_add_u32 m0, %s, %d" % (sr(m0), loc)] + (["s_nop 0"] if nop else [])
        for i in range(cnt):
            off = " offset:%d" % (1024 * i) if i else ""
            out.append(("buffer_load_dwordx4 %s, %s, %s offen%s%s lds" % (vr(voff + i), sr(srd, 4), sr(soff), off, flag), tag))
        return out

    def voff_std(self, dst, mul_i, mul_r, flip=None):
        t0, t1 = vT + 6, vT + 7
        return ["v_lshrrev_b32 %s, 4, %s" % (vr(t0), vr(vLANE)),
                "v_and_b32 %s, 15, %s" % (vr(t1), vr(vLANE)),
                "v_lshlrev_b32 %s, 1, %s" % (vr(dst), vr(t0)),
                "v_xor_b32 %s, %s, %s" % (vr(t1), vr(t1), vr(dst)),
                "v_lshlrev_b32 %s, 4, %s" % (vr(t1), vr(t1))] + \
            (["v_xor_b32 %s, %s, %s" % (vr(t1), sr(flip), vr(t1))] if flip is not None else []) + \
            ["v_mul_u32_u24 %s, %d, %s" % (vr(t0), mul_r, vr(t0)),
             "v_add_u32 %s, %s, %s" % (vr(dst), vr(t0), vr(t1)),
             "v_xor_b32 %s, 0x80, %s" % (vr(t1), vr(t1)),
             "v_add_u32 %s, %s, %s" % (vr(dst + 1), vr(t0), vr(t1)),
             "v_add_u32 %s, %d, %s" % (vr(dst + 2), 2 * mul_i, vr(dst)),
             "v_add_u32 %s, %d, %s" % (vr(dst + 3), 3 * mul_i, vr(dst + 1)),
             "v_add_u32 %s, %d, %s" % (vr(dst + 1), mul_i, vr(dst + 1))]

    def voff_o1(self, dst):
        t0, t1 = vT + 6, vT + 7
        out = ["s_and_b32 %s, %s, 1" % (sr(sA), sr(sX)),
               "s_lshl_b32 %s, %s, 2" % (sr(sA), sr(sA)),
               "v_lshrrev_b32 %s, 3, %s" % (vr(t0), vr(vLANE)),
               "v_and_b32 %s, 7, %s" % (vr(t1), vr(vLANE)),
               "v_and_b32 %s, 6, %s" % (vr(dst), vr(t0)),
               "v_xor_b32 %s, %s, %s" % (vr(t1), vr(t1), vr(dst)),
               "v_xor_b32 %s, %s, %s" % (vr(t1), sr(sA), vr(t1)),
               "v_lshlrev_b32 %s, 4, %s" % (vr(t1), vr(t1)),
               "v_lshl_add_u32 %s, %s, 10, %s" % (vr(dst), vr(t0), vr(t1))]
        for i in range(1, 4):
            out.append("v_add_u32 %s, %d, %s" % (vr(dst + i), 7168 * i, vr(dst)))
        return out

    def cg_of(self, dst, c):
        return ["s_add_u32 %s, %s, %s" % (sr(dst), sr(sCG0), c), "s_and_b32 %s, %s, 3" % (sr(dst), sr(dst))]

    def wq_group(self, c):
        return self.cg_of(sA, c) + ["s_lshl_b32 %s, %s, 20" % (sr(sA), sr(sA)),
                                    "s_add_u32 %s, %s, %s" % (sr(sWT), sr(sA), sr(sWQB))]

    def wq_params(self, i):
        return ["s_add_u32 %s, %s, %s" % (sr(sWOFF), sr(sWT), sr(sKW + i))]

    def x_group(self, c):
        return self.cg_of(sB2, c) + ["s_mul_i32 %s, %s, 24576" % (sr(sB2), sr(sB2)),
                                     "s_add_u32 %s, %s, %s" % (sr(sCGX), sr(sB2), sr(sXB))]

    def x_addr(self, i):
        return ["v_xor_b32 %s, %s, %s" % (vr(vB), sr(sKS + i), vr(vLK)),
                "v_add_u32 %s, %s, %s" % (vr(vB), sr(sCGX), vr(vB))]

    def kv_params(self):
        return ["s_add_u32 %s, %s, %s" % (sr(sKV), sr(sKVO), sr(sKVB)),
                "s_add_u32 %s, %s, 8192" % (sr(sKVO), sr(sKVO)),
                "s_and_b32 %s, %s, 0x1ffff" % (sr(sKVO), sr(sKVO))]

    def o1_off(self, dst, n):
        c, i = O1_TILES[n]
        return ["s_xor_b32 %s, %s, %d" % (sr(dst), sr(sXC), 128 * c), "s_add_u32 %s, %s, %s" % (sr(dst), sr(dst), sr(sO1 + i))]

    def x_dma(self, c):
        o = self.o
        out = self.cg_of(sA, "%d" % c)
        out += ["s_mul_i32 %s, %s, 24576" % (sr(sB2), sr(sA)),
                "s_mul_i32 %s, %s, 6144" % (sr(sXM), sr(sW)),
                "s_add_u32 %s, %s, %s" % (sr(sXM), sr(sXM), sr(sB2)),
                "s_lshl_b32 %s, %s, 8" % (sr(sA), sr(sA)),
                "s_mul_i32 %s, %s, 98304" % (sr(sXO), sr(sB)),
                "s_add_u32 %s, %s, %s" % (sr(sXO), sr(sXO), sr(sA)),
                "s_mul_i32 %s, %s, 24576" % (sr(sA), sr(sW)),
                "s_add_u32 %s, %s, %s" % (sr(sXO), sr(sXO), sr(sA))]
        out += self.dma(XB, dX, vOX, sXO, o.x_flag, ("x", c), 4, sXM)
        out += ["s_add_u32 %s, %s, 16384" % (sr(sXO), sr(sXO))]
        out += self.dma(XB + 4096, dX, vOX, sXO, o.x_flag, ("x", c), 2, sXM)
        return out

    def code_touch_small(self, label, t, d, back=False):
        self.uid += 1
        k = self.uid
        return ["s_getpc_b64 %s" % sr(d, 2), "L_pc%d:" % k,
                "s_add_u32 %s, %s, %s-L_pc%d" % (sr(d), sr(d), label, k),
                "s_addc_u32 %s, %s, %d" % (sr(d + 1), sr(d + 1), -1 if back else 0),
                "s_and_b32 %s, %s, 0xffff" % (sr(d + 1), sr(d + 1)),
                "s_mov_b32 %s, L_codeend-%s" % (sr(d + 2), label),
                "s_mov_b32 %s, 0x20000" % sr(d + 3),
                "s_and_b32 %s, %s, 7" % (sr(sA), sr(sB)),
                "s_lshl_b32 %s, %s, 2" % (sr(sA), sr(sA)),
                "s_add_u32 %s, %s, %s" % (sr(sA), sr(sA), sr(sW)),
                "s_lshl_b32 %s, %s, 11" % (sr(sA), sr(sA)),
                "v_and_b32 %s, 15, %s" % (vr(t), vr(vLANE)),
                "v_lshlrev_b32 %s, 7, %s" % (vr(t), vr(t)),
                ("buffer_load_dword %s, %s, %s, %s offen" % (vr(vDUM), vr(t), sr(d, 4), sr(sA)), "touch")]

    def code_touch(self, label, t, back=False):
        self.uid += 1
        k = self.uid
        return ["s_getpc_b64 %s" % sr(dC, 2), "L_pc%d:" % k,
                "s_add_u32 %s, %s, %s-L_pc%d" % (sr(dC), sr(dC), label, k),
                "s_addc_u32 %s, %s, %d" % (sr(dC + 1), sr(dC + 1), -1 if back else 0),
                "s_and_b32 %s, %s, 0xffff" % (sr(dC + 1), sr(dC + 1)),
                "s_mov_b32 %s, L_codeend-%s" % (sr(dC + 2), label),
                "s_lshl_b32 %s, %s, 13" % (sr(sA), sr(sW)),
                "v_lshlrev_b32 %s, 7, %s" % (vr(t), vr(vLANE)),
                ("buffer_load_dword %s, %s, %s, %s offen" % (vr(vDUM), vr(t), sr(dC, 4), sr(sA)), "touch")]

    def tr_reads(self, fset, slot):
        return ["ds_read_b64_tr_b16 %s, %s offset:%d" % (ar(aF[fset] + 4 * dt + 2 * e, 2), vr(vVA + dt), SLOT * slot + 4096 * e)
                for dt in range(8) for e in range(2)]

    def k_reads(self, fset, slot):
        return ["ds_read_b128 %s, %s offset:%d" % (ar(aF[fset] + 16 * kt + 4 * ks, 4), vr(vKA + ks), SLOT * slot + 4096 * kt)
                for kt in range(2) for ks in range(4)]

    def make_tiles(self):
        o = self.o
        n0 = [int(c) for c in o.np0.strip()]
        n1 = [int(c) for c in o.np1.strip()]
        self.nproj = (n0, n1)
        q = [("wq", 0, k) for k in range(16)]
        for rnd in range(2):
            k = 0
            for t in range(16):
                n = self.nproj[rnd][t]
                q.append(("k", rnd, t))
                if n:
                    q.append(("w", rnd, k))
                if n == 2 and (rnd, t) == (1, 15):
                    q.append(("w", rnd, k + 1))
                q.append(("v", rnd, t))
                if n == 2 and (rnd, t) != (1, 15):
                    q.append(("w", rnd, k + 1))
                k += n
            assert k == 16
        q += [("o", 1, n) for n in range(16)]
        if o.t0first:
            q.remove(("o", 1, 0))
            q.insert(q.index(("v", 1, 15)), ("o", 1, 0))
        self.loadq = q
        self.free = [SLOT * n for n in range(4)]
        self.ofree = []
        self.tofree = []
        self.loc = {}
        self.par = 0
        self.olimit = o.olim

    def tile_dma(self, tile, loc):
        o = self.o
        kind, rnd, k = tile
        if kind == "w" and rnd == 0 and o.a0skew == 0:
            return ["s_add_u32 %s, %s, %d" % (sr(sWOFF), sr(sWQB), 256 + 262144 * k)] + self.dma(loc, dW, vOW, sWOFF, o.w_flag, tile)
        if kind == "w" and rnd == 0 and o.a0skew == 1:
            pre = ["s_add_u32 %s, %s, 256" % (sr(sWQB), sr(sWQB))] if k == 0 else []
            pre += (self.wq_group("%d" % (k // 4)) if k % 4 == 0 else []) + ["s_add_u32 %s, %s, %d" % (sr(sWOFF), sr(sWT), 262144 * (k % 4))]
            return pre + self.dma(loc, dW, vOW, sWOFF, o.w_flag, tile)
        if kind == "wq" or (kind == "w" and rnd == 0):
            pre = ["s_add_u32 %s, %s, 256" % (sr(sWQB), sr(sWQB))] if (kind == "w" and k == 0) else []
            pre += (self.wq_group("%d" % (k // 4)) if k % 4 == 0 else []) + self.wq_params(k % 4)
            return pre + self.dma(loc, dW, vOW, sWOFF, o.w_flag, tile)
        if kind in "kv":
            pre = []
            if tile == ("k", 1, 0):
                pre = ["s_add_u32 %s, %s, 131072" % (sr(sKVB), sr(sKVB))]
            pre += ["s_add_u32 %s, %s, %d" % (sr(sKV), sr(sKVO), 8192 * k), "s_and_b32 %s, %s, 0x1ffff" % (sr(sKV), sr(sKV)),
                    "s_add_u32 %s, %s, %s" % (sr(sKV), sr(sKV), sr(sKVB))]
            return pre + self.dma(loc, dK if kind == "k" else dV, vOKV, sKV, o.kv_flag, tile)
        if kind == "w":
            pre = []
            if k == 0:
                pre = self.srd(dW, pWO, 4 << 20)[:2] + ["s_and_b32 %s, %s, 3" % (sr(sA), sr(sX)), "s_lshl_b32 %s, %s, 6" % (sr(sA), sr(sA))] + \
                    self.voff_std(vOW, 3072, 1024, sA)
            ks = k // 2
            pre += ["s_add_u32 %s, %s, %d" % (sr(sWOFF), sr(sWOB), 32768 * (ks % 4) + 262144 * (ks // 4))]
            if k % 2:
                pre += ["s_add_u32 %s, %s, %s" % (sr(sWOFF), sr(sWOFF), sr(sHX))]
            return pre + self.dma(loc, dW, vOW, sWOFF, o.w_flag, tile)
        return (self.voff_o1(vOW) if k == 0 else []) + self.o1_off(sWOFF, k) + self.dma(loc, dW, vOW, sWOFF, o.w_flag, tile)

    def next_loads(self, n):
        out = []
        while n and self.loadq:
            tile = self.loadq[0]
            if tile[0] == "o" and tile[2] > self.olimit:
                break
            if self.free:
                loc = self.free.pop(0)
            elif tile[0] == "o" and self.ofree:
                later = [x for x in self.loadq if x[2] >= 2]
                tile = later[0]
                loc = self.ofree.pop(0)
            else:
                break
            self.loadq.remove(tile)
            self.loc[tile] = loc
            out += self.tile_dma(tile, loc)
            n -= 1
        return out

    def open(self, tiles, also=()):
        for t in tiles:
            assert t in self.loc, t
        self.sync(self.vm_need(list(tiles) + list(also)))
        for loc in self.tofree:
            (self.free if loc < XB else self.ofree).append(loc)
        self.tofree = [self.loc[t] for t in tiles]

    def q_finalize(self, from_agpr):
        out = ["s_mov_b32 %s, %s" % (sr(sE), f32(math.log2(math.e) / math.sqrt(128.0)))]
        blocks = []
        for j in range(3):
            for ks in range(4):
                pre = []
                d = vQ + 12 * ks + 4 * j
                if from_agpr:
                    a, b = d, vBF + 4 * (len(blocks) % 3)
                    pre += ["v_accvgpr_read_b32 %s, %s" % (vr(a + i), ar(24 * ks + 4 * j + i)) for i in range(4)]
                    pre += ["v_accvgpr_read_b32 %s, %s" % (vr(b + i), ar(24 * ks + 12 + 4 * j + i)) for i in range(4)]
                else:
                    a, b = vO + 24 * ks + 4 * j, vO + 24 * ks + 12 + 4 * j
                pre += ["v_mul_f32 %s, %s, %s" % (vr(x + y), sr(sE), vr(x + y)) for x in (a, b) for y in range(4)]
                pre += ["v_cvt_pk_bf16_f32 %s, %s, %s" % (vr(d), vr(a), vr(a + 1)),
                        "v_cvt_pk_bf16_f32 %s, %s, %s" % (vr(d + 1), vr(a + 2), vr(a + 3)),
                        "v_cvt_pk_bf16_f32 %s, %s, %s" % (vr(d + 2), vr(b), vr(b + 1)),
                        "v_cvt_pk_bf16_f32 %s, %s, %s" % (vr(d + 3), vr(b + 2), vr(b + 3))]
                s32 = ["v_permlane32_swap_b32 %s, %s" % (vr(d), vr(d + 2)), "v_permlane32_swap_b32 %s, %s" % (vr(d + 1), vr(d + 3))]
                s16 = ["v_permlane16_swap_b32 %s, %s" % (vr(d), vr(d + 2)), "v_permlane16_swap_b32 %s, %s" % (vr(d + 1), vr(d + 3))]
                blocks.append((pre, s32, s16))
        n = len(blocks)
        for k in range(n + 1):
            if k < n:
                pre = blocks[k][0]
                h = len(pre) // 2
                out += pre[:h]
            if k > 0:
                if k == n:
                    out.append("s_nop 1")
                out += blocks[k - 1][1]
            if k < n:
                out += pre[h:]
            else:
                out.append("s_nop 1")
            if k > 0:
                out += blocks[k - 1][2]
        return out

    def o_rcp(self, j):
        return ["v_rcp_f32 %s, %s" % (vr(vBF + j), vr(vL + 4 * j)), "s_nop 0"]

    def o_block(self, ks, j, write=True):
        a, b = vO + 24 * ks + 4 * j, vO + 24 * ks + 12 + 4 * j
        return ["v_mul_f32 %s, %s, %s" % (vr(x + y), vr(x + y), vr(vBF + j)) for x in (a, b) for y in range(4)] + \
            ["v_cvt_pk_bf16_f32 %s, %s, %s" % (vr(a), vr(a), vr(a + 1)),
             "v_cvt_pk_bf16_f32 %s, %s, %s" % (vr(a + 1), vr(a + 2), vr(a + 3)),
             "v_cvt_pk_bf16_f32 %s, %s, %s" % (vr(a + 2), vr(b), vr(b + 1)),
             "v_cvt_pk_bf16_f32 %s, %s, %s" % (vr(a + 3), vr(b + 2), vr(b + 3))] + ([self.o_write(ks, j)] if write else [])

    def o_write(self, ks, j):
        return "ds_write_b128 %s, %s offset:%d" % (vr(vEXW), vr(vO + 24 * ks + 4 * j, 4), 1024 * (3 * ks + j))

    def attention(self):
        A, o = self.A, self.o

        def mx(j):
            s0, s1, m = vS + 4 * j, vS + 12 + 4 * j, vT + j
            return ["v_max3_f32 %s, %s, %s, %s" % (vr(m), vr(s0), vr(s0 + 1), vr(s0 + 2)),
                    "v_max3_f32 %s, %s, %s, %s" % (vr(m), vr(m), vr(s0 + 3), vr(s1)),
                    "v_max3_f32 %s, %s, %s, %s" % (vr(m), vr(m), vr(s1 + 1), vr(s1 + 2)),
                    "v_max_f32 %s, %s, %s" % (vr(m), vr(m), vr(s1 + 3))]

        def ex(kt, j):
            a = vS + 12 * kt + 4 * j
            return ["v_exp_f32 %s, %s" % (vr(a + x), vr(a + x)) for x in range(4)]

        def cv(j):
            return ["v_cvt_pk_bf16_f32 %s, %s, %s" % (vr(vP + 4 * j + 2 * kt + h), vr(vS + 12 * kt + 4 * j + 2 * h), vr(vS + 12 * kt + 4 * j + 2 * h + 1))
                    for kt in range(2) for h in range(2)]

        def check():
            self.uid += 1
            k = self.uid
            self.tail += ["L_rs%d:" % k, "s_call_b64 %s, L_rare" % sr(sRET, 2), "s_branch L_rb%d" % k]
            return ["v_max3_f32 %s, %s, %s, %s" % (vr(vT + 3), vr(vT), vr(vT + 1), vr(vT + 2)),
                    "v_cmp_lt_f32 vcc, %s, %s" % (sr(sTH), vr(vT + 3)), "s_cbranch_vccnz L_rs%d" % k, "L_rb%d:" % k]

        def init():
            out = []
            for op in ("v_permlane32_swap_b32", "v_permlane16_swap_b32"):
                out += ["v_mov_b32 %s, %s" % (vr(vT + 3 + j), vr(vT + j)) for j in range(3)] + ["s_nop 0"]
                out += ["%s %s, %s" % (op, vr(vT + j), vr(vT + 3 + j)) for j in range(3)]
                out += ["v_max_f32 %s, %s, %s" % (vr(vT + j), vr(vT + j), vr(vT + 3 + j)) for j in range(3)]
            for j in range(3):
                out += ["v_sub_f32 %s, %s, %s" % (vr(b + i), vr(b + i), vr(vT + j)) for b in (vS + 4 * j, vS + 12 + 4 * j) for i in range(4)]
                out += ["v_sub_f32 %s, 0, %s" % (vr(vNEGM + 4 * j + i), vr(vT + j)) for i in range(4)]
            return out

        def qk(first):
            mf = []
            for j in range(3):
                for kt in range(2):
                    for ks in range(4):
                        acc = vr(vS + 12 * kt + 4 * j, 4)
                        c = acc if ks else ("0" if first else vr(vNEGM + 4 * j, 4))
                        mf.append("%s %s, %s, %s, %s" % (MF, acc, ar(aF[self.par] + 16 * kt + 4 * ks, 4), vr(vQ + 12 * ks + 4 * j, 4), c))
            return mf

        def pv(first):
            mf = []
            for j in range(3):
                mf.append("%s %s, %s, %s, %s" % (MF, vr(vL + 4 * j, 4), vr(vONES, 4), vr(vP + 4 * j, 4), "0" if first else vr(vL + 4 * j, 4)))
                if o.drop & 1 and not first:
                    mf[-1] = "s_nop 1"
                for dt in range(8):
                    acc = vr(vO + 12 * dt + 4 * j, 4)
                    mf.append("%s %s, %s, %s, %s" % (MF, acc, ar(aF[self.par] + 4 * dt, 4), vr(vP + 4 * j, 4), "0" if first else acc))
            return mf

        def proj(rnd, k):
            mf = []
            for dt in range(8):
                for j in range(3):
                    acc = ar((96 * (k % 2) if rnd else 0) + 12 * dt + 4 * j, 4)
                    mf.append("%s %s, %s, %s, %s" % (MF, acc, ar(aF[self.par] + 4 * dt, 4), vr(vBF + 4 * j, 4), "0" if k < rnd + 1 else acc))
                    if o.drop & 2 and k > 1 and j == 0:
                        mf[-1] = "s_nop 1"
                    if o.drop & 4 and k > 1:
                        mf[-1] = "s_nop 1"
            return mf

        def b_parts(rnd, k):
            if rnd == 0 and o.a0skew < 2:
                sc = []
                if k % 4 == 0:
                    sc = self.x_group("%d" % (k // 4)) if o.a0skew else ["s_add_u32 %s, %s, %d" % (sr(sCGX), sr(sXB), 24576 * (k // 4))]
                return sc, ["v_xor_b32 %s, %d, %s" % (vr(vB), 64 * (k % 4), vr(vLK)), "v_add_u32 %s, %s, %s" % (vr(vB), sr(sCGX), vr(vB))], \
                    ["ds_read_b128 %s, %s offset:%d" % (vr(vBF + 4 * j, 4), vr(vB), 4096 * j) for j in range(3)]
            if rnd == 0:
                return (self.x_group("%d" % (k // 4)) if k % 4 == 0 else []), self.x_addr(k % 4), \
                    ["ds_read_b128 %s, %s offset:%d" % (vr(vBF + 4 * j, 4), vr(vB), 4096 * j) for j in range(3)]
            ks = k // 2
            rd = [] if k % 2 else ["ds_read_b128 %s, %s offset:%d" % (vr(vBF + 4 * j, 4), vr(vB), 24576 * (ks // 4) + 3072 * (ks % 4) + 1024 * j)
                                   for j in range(3)]
            return [], [None, None], rd

        def tr(tile):
            return self.tr_reads(1 - self.par, self.loc[tile] // SLOT)

        def kr(tile):
            return self.k_reads(1 - self.par, self.loc[tile] // SLOT)

        patK = "tss tss tss tss tts d tv tv t t tt d tv tv tv ttv d t t vv vv d ss _".split()
        patW = "tss tts d tv tv vv vvv v d tv tv tv tv tv d tv tv tv tv ttv d ssvv vv v".split()
        patV = "sv sv sv sv svv svv sv d v v v v d v v tv tvv tvvn tt t d tt t _ d ss ss".split()
        patV2 = "tsv tsv tsv tsv tvv tvv tsv d tv tv tv tv d tv tv tv tvv tvvn t t d t t _ d ss ss".split()
        self.softmax_parts = (mx, ex, cv, check, qk, pv, proj, b_parts, tr, patK)
        for rnd in range(2):
            k = 0
            self.stamp("a%d" % rnd)
            for t in range(16):
                n, first = self.nproj[rnd][t], t == 0
                K, V, W1, W2 = ("k", rnd, t), ("v", rnd, t), ("w", rnd, k), ("w", rnd, k + 1)
                KN = ("k", rnd + (t + 1) // 16, (t + 1) % 16)
                if (rnd, t) == (1, 15):
                    self.klast = k
                    return
                nd = 1
                self.stamp("s%d_%d" % (rnd, t))
                self.open([W1 if n else V])
                self.stamp("K%d_%d" % (rnd, t))
                par, vq, brd = b_parts(rnd, k) if n else ([], [None, None], [])
                self.pat(qk(first), patK, tr(W1 if n else V) + brd, par + self.next_loads(nd), vq + mx(0) + mx(1))
                self.par ^= 1
                vq = mx(2) + (init() if first else check()) + ex(0, 0) + ex(1, 0) + cv(0) + ex(0, 1)
                if n:
                    self.open([V])
                    self.stamp("W%d_%d" % (rnd, t))
                    self.pat(proj(rnd, k), patW, tr(V), self.next_loads(nd), vq)
                    self.par ^= 1
                    if (rnd, t) == (0, 15):
                        assert n == 1
                        fin = self.q_finalize(True)
                        if o.midbar:
                            self.open([])
                            fin = spread(fin[:o.midpos], self.next_loads(1)) + fin[o.midpos:]
                        self.emit_all(["s_nop 6"] + fin)
                else:
                    pre = []
                    if (rnd, t) == (1, 0):
                        for j in range(3):
                            pre += self.o_rcp(j)
                            for ks in range(4):
                                pre += self.o_block(ks, j)
                        pre += ["s_mul_i32 %s, %s, 12288" % (sr(sA), sr(sHF)), "s_add_u32 %s, %s, %d" % (sr(sA), sr(sA), EX),
                                "v_add_u32 %s, %s, %s" % (vr(vB), sr(sA), vr(vSTA))]
                    if (rnd, t) == (0, 15):
                        pre = self.q_finalize(True)
                    if pre and o.midbar:
                        self.open([])
                        pre = spread(pre[:o.midpos], self.next_loads(1)) + pre[o.midpos:]
                    self.emit_all(pre or ["s_nop 6"])
                    self.emit_all(vq)
                self.open([W2 if n == 2 else KN])
                self.stamp("V%d_%d" % (rnd, t))
                vq = ex(1, 1) + cv(1) + ex(0, 2) + ex(1, 2) + cv(2)
                d = self.next_loads(nd)
                if o.retouch and t in (2, 10):
                    self.uid += 1
                    d += ["L_here%d:" % self.uid] + self.code_touch_small("L_here%d" % self.uid, vT + 4, dC, True)
                if (rnd, t) == (1, 11) and o.touch:
                    d += self.wo_touch()
                if (rnd, t) == (1, o.wtlb) and o.wtlb:
                    d += ["s_mul_i32 %s, %s, 3072" % (sr(sA), sr(sHG)), "s_add_u32 %s, %s, %s" % (sr(sA), sr(sA), sr(sLDB)),
                          "v_mov_b32 %s, 0" % vr(vT + 4),
                          ("buffer_load_dword %s, %s, %s, %s offen nt" % (vr(vDUM), vr(vT + 4), sr(dS, 4), sr(sA)), "touch")]
                    d += self.srd(dC, pOUT, 16 * 96 * 1024 * 2)
                    d += [("buffer_load_dword %s, %s, %s, %s offen nt" % (vr(vDUM), vr(vT + 4), sr(dC, 4), sr(sOUT)), "touch")]
                if n == 2:
                    par, va, brd = b_parts(rnd, k + 1)
                    self.pat(pv(first), patV2, tr(W2) + brd, par + (va if rnd == 0 else []) + d, vq)
                    self.par ^= 1
                    self.open([KN])
                    self.auto(proj(rnd, k + 1), kr(KN), self.next_loads(nd))
                else:
                    self.pat(pv(first), patV, kr(KN), d, vq)
                self.par ^= 1
                k += n
            self.stamp("a%dend" % rnd)

    def wo_touch(self):
        t = vT + 4
        return ["s_lshl_b32 %s, %s, 3" % (sr(sA), sr(sB)),
                "s_lshl_b32 %s, %s, 2" % (sr(sB2), sr(sHF)),
                "s_add_u32 %s, %s, %s" % (sr(sA), sr(sA), sr(sB2)),
                "s_lshl_b32 %s, %s, 10" % (sr(sA), sr(sA)),
                "s_lshl_b32 %s, %s, 19" % (sr(sB2), sr(sHG)),
                "s_add_u32 %s, %s, %s" % (sr(sA), sr(sA), sr(sB2)),
                "s_lshl_b32 %s, %s, 18" % (sr(sB2), sr(sP)),
                "s_add_u32 %s, %s, %s" % (sr(sA), sr(sA), sr(sB2)),
                "s_add_u32 %s, %s, 131072" % (sr(sA), sr(sA)),
                "v_and_b32 %s, 31, %s" % (vr(t), vr(vLANE)),
                "v_lshlrev_b32 %s, 7, %s" % (vr(t), vr(t)),
                ("buffer_load_dword %s, %s, %s, %s offen" % (vr(vDUM), vr(t), sr(dW, 4), sr(sA)), "touch")]

    def rare(self):
        A = self.A
        A("L_rare:")
        for j in range(3):
            A("v_mov_b32 %s, %s" % (vr(vT + 3 + j), vr(vT + j)))
        A("s_nop 1")
        for j in range(3):
            A("v_permlane32_swap_b32 %s, %s" % (vr(vT + j), vr(vT + 3 + j)))
        for j in range(3):
            A("v_max_f32 %s, %s, %s" % (vr(vT + j), vr(vT + j), vr(vT + 3 + j)))
        for j in range(3):
            A("v_mov_b32 %s, %s" % (vr(vT + 3 + j), vr(vT + j)))
        A("s_nop 1")
        for j in range(3):
            A("v_permlane16_swap_b32 %s, %s" % (vr(vT + j), vr(vT + 3 + j)))
        for j in range(3):
            A("v_max3_f32 %s, %s, %s, 0" % (vr(vT + j), vr(vT + j), vr(vT + 3 + j)))
        for j in range(3):
            A("v_exp_f32 %s, -%s" % (vr(vT + 3 + j), vr(vT + j)))
        for j in range(3):
            for base in (vS + 4 * j, vS + 12 + 4 * j, vNEGM + 4 * j):
                for i in range(4):
                    A("v_sub_f32 %s, %s, %s" % (vr(base + i), vr(base + i), vr(vT + j)))
        for j in range(3):
            for base in [vO + 12 * dt + 4 * j for dt in range(8)] + [vL + 4 * j]:
                for i in range(4):
                    A("v_mul_f32 %s, %s, %s" % (vr(base + i), vr(base + i), vr(vT + 3 + j)))
        A("s_setpc_b64 %s" % sr(sRET, 2))

    def prologue(self):
        A, o = self.A, self.o
        A("s_cmp_ge_u32 s2, 256")
        A("s_cbranch_scc1 L_end")
        self.stamp("start")
        A("s_and_b32 %s, s2, 7" % sr(sA))
        A("s_lshr_b32 %s, s2, 3" % sr(sB2))
        A("s_lshr_b32 %s, %s, 2" % (sr(sBLK), sr(sA)))
        A("s_mul_i32 %s, %s, 40" % (sr(sC), sr(sBLK)))
        A("s_add_u32 s4, s0, %s" % sr(sC))
        A("s_addc_u32 s5, s1, 0")
        A("s_load_dwordx8 %s, s[4:5], 0" % sr(pX, 8))
        A("s_load_dwordx2 %s, s[4:5], 32" % sr(pWO, 2))
        A("s_load_dwordx2 %s, s[0:1], 96" % sr(pWS, 2))
        A("s_and_b32 %s, %s, 15" % (sr(sB), sr(sB2)))
        A("s_lshr_b32 %s, %s, 4" % (sr(sE), sr(sB2)))
        A("s_and_b32 %s, %s, 3" % (sr(sA), sr(sA)))
        A("s_lshl_b32 %s, %s, 1" % (sr(sHG), sr(sA)))
        A("s_add_u32 %s, %s, %s" % (sr(sHG), sr(sHG), sr(sE)))
        A("s_mul_i32 %s, %s, %d" % (sr(sA), sr(sA), o.xoct))
        A("s_mul_i32 %s, %s, %d" % (sr(sE), sr(sE), o.xq))
        A("s_add_u32 %s, %s, %s" % (sr(sCG0), sr(sB), sr(sA)))
        A("s_add_u32 %s, %s, %s" % (sr(sCG0), sr(sCG0), sr(sE)))
        A("s_lshr_b32 %s, %s, 2" % (sr(sE), sr(sB)))
        A("s_and_b32 %s, %s, %d" % (sr(sE), sr(sE), o.ksrot))
        for i in range(4):
            A("s_add_u32 %s, %s, %d" % (sr(sC), sr(sE), i))
            A("s_and_b32 %s, %s, 3" % (sr(sC), sr(sC)))
            A("s_lshl_b32 %s, %s, 6" % (sr(sKS + i), sr(sC)))
            A("s_lshl_b32 %s, %s, 18" % (sr(sKW + i), sr(sC)))
        A("v_lshrrev_b32 %s, 6, v0" % vr(vT))
        A("v_and_b32 %s, 63, v0" % vr(vLANE))
        self.emit_all(self.voff_std(vOX, 3072, 1024))
        self.emit_all(self.voff_std(vOW, 65536 - 1024, 8192))
        A("s_waitcnt lgkmcnt(0)")
        A("v_readfirstlane_b32 %s, %s" % (sr(sW), vr(vT)))
        self.emit_all(self.srd(dX, pX, 16 * 98304))
        self.emit_all(self.srd(dW, pWQ, 4 << 20))
        A("s_lshr_b32 %s, %s, 1" % (sr(sP), sr(sW)))
        A("s_and_b32 %s, %s, 1" % (sr(sHF), sr(sW)))
        if o.ctouch & 8:
            self.emit_all(self.code_touch_small("L_p1", vT + 5, dK))
            A("L_p1:")
        if not o.wfirst:
            self.emit_all(self.x_dma(0))
        A("s_lshl_b32 %s, %s, 12" % (sr(sM0), sr(sW)))
        A("s_lshl_b32 %s, %s, 1" % (sr(sA), sr(sHG)))
        A("s_add_u32 %s, %s, %s" % (sr(sA), sr(sA), sr(sP)))
        A("s_lshl_b32 %s, %s, 9" % (sr(sWQB), sr(sA)))
        A("s_lshl_b32 %s, %s, 15" % (sr(sA), sr(sHF)))
        A("s_add_u32 %s, %s, %s" % (sr(sWQB), sr(sWQB), sr(sA)))
        if o.wfirst:
            self.emit_all(self.next_loads(1) + self.x_dma(0) + self.next_loads(o.npre - 1))
        else:
            self.emit_all(self.next_loads(o.npre))
        if o.ctouch & 4:
            self.emit_all(self.code_touch_small("L_q0", vT + 5, dK))
        self.emit_all(self.srd(dK, pK, 0 if o.kv_oob else 64 << 20))
        self.emit_all(self.srd(dV, pV, 0 if o.kv_oob else 64 << 20))
        self.emit_all(self.srd(dS, pWS, WS_BYTES))
        A("s_load_dwordx2 %s, s[0:1], 80" % sr(pOUT, 2))
        A("s_xor_b32 %s, %s, 7" % (sr(sX), sr(sHG)))
        A("s_lshl_b32 %s, %s, 22" % (sr(sKVB), sr(sB)))
        A("s_lshl_b32 %s, %s, 19" % (sr(sWOB), sr(sHG)))
        A("s_add_u32 %s, %s, %s" % (sr(sKVB), sr(sKVB), sr(sWOB)))
        A("s_lshl_b32 %s, %s, 18" % (sr(sA), sr(sP)))
        A("s_add_u32 %s, %s, %s" % (sr(sKVB), sr(sKVB), sr(sA)))
        A("s_lshl_b32 %s, %s, 12" % (sr(sA), sr(sHF)))
        A("s_add_u32 %s, %s, %s" % (sr(sKVB), sr(sKVB), sr(sA)))
        A("s_lshl_b32 %s, %s, 9" % (sr(sA), sr(sP)))
        A("s_add_u32 %s, %s, %s" % (sr(sWOB), sr(sWOB), sr(sA)))
        A("s_lshl_b32 %s, %s, 15" % (sr(sA), sr(sHF)))
        A("s_add_u32 %s, %s, %s" % (sr(sC), sr(sWOB), sr(sA)))
        A("s_add_u32 %s, %s, 131072" % (sr(sC), sr(sC)))
        A("s_lshl_b32 %s, %s, 18" % (sr(sA), sr(sP)))
        A("s_add_u32 %s, %s, %s" % (sr(sO1), sr(sC), sr(sA)))
        A("s_xor_b32 %s, %s, 262144" % (sr(sA), sr(sA)))
        A("s_add_u32 %s, %s, %s" % (sr(sO1 + 2), sr(sC), sr(sA)))
        A("s_add_u32 %s, %s, 65536" % (sr(sO1 + 1), sr(sO1)))
        A("s_add_u32 %s, %s, 65536" % (sr(sO1 + 3), sr(sO1 + 2)))
        A("s_lshl_b32 %s, %s, 14" % (sr(sA), sr(sHF)))
        A("s_add_u32 %s, %s, %s" % (sr(sWOB), sr(sWOB), sr(sA)))
        A("s_lshr_b32 %s, %s, 2" % (sr(sA), sr(sX)))
        A("s_lshl_b32 %s, %s, 8" % (sr(sA), sr(sA)))
        A("s_add_u32 %s, %s, %s" % (sr(sWOB), sr(sWOB), sr(sA)))
        A("s_lshl_b32 %s, %s, 1" % (sr(sA), sr(sA)))
        A("s_sub_u32 %s, 256, %s" % (sr(sHX), sr(sA)))
        A("s_lshr_b32 %s, %s, 1" % (sr(sA), sr(sX)))
        A("s_lshl_b32 %s, %s, 7" % (sr(sXC), sr(sA)))
        A("s_and_b32 %s, %s, 1" % (sr(sA), sr(sHG)))
        A("s_mul_i32 %s, %s, %d" % (sr(sA), sr(sA), o.skq))
        A("s_mul_i32 %s, %s, %d" % (sr(sC), sr(sB), o.skb))
        A("s_add_u32 %s, %s, %s" % (sr(sA), sr(sC), sr(sA)))
        for reg, sh, mul in ((sHG, 1, o.sko), (sP, 0, o.skp), (sBLK, 0, o.skk)):
            if mul:
                A("s_lshr_b32 %s, %s, %d" % (sr(sC), sr(reg), sh))
                A("s_mul_i32 %s, %s, %d" % (sr(sC), sr(sC), mul))
                A("s_add_u32 %s, %s, %s" % (sr(sA), sr(sC), sr(sA)))
        A("s_and_b32 %s, %s, 15" % (sr(sA), sr(sA)))
        A("s_lshl_b32 %s, %s, 13" % (sr(sKVO), sr(sA)))
        A("s_mul_i32 %s, %s, 12288" % (sr(sXB), sr(sHF)))
        A("s_add_u32 %s, %s, %d" % (sr(sXB), sr(sXB), XB))
        A("s_lshl_b32 %s, %s, 4" % (sr(sA), sr(sBLK)))
        A("s_add_u32 %s, %s, %s" % (sr(sA), sr(sA), sr(sB)))
        A("s_lshl_b32 %s, %s, 2" % (sr(sA), sr(sA)))
        A("s_add_u32 %s, %s, %s" % (sr(sA), sr(sA), sr(sW)))
        A("s_mul_i32 %s, %s, 196608" % (sr(sB2), sr(sA)))
        A("s_mul_i32 %s, %s, 3072" % (sr(sC), sr(sHG)))
        A("s_add_u32 %s, %s, %s" % (sr(sSTB), sr(sB2), sr(sC)))
        A("s_mul_i32 %s, %s, 24576" % (sr(sC), sr(sHG)))
        A("s_add_u32 %s, %s, %s" % (sr(sLDB), sr(sB2), sr(sC)))
        A("s_lshl_b32 %s, %s, 10" % (sr(sA), sr(sA)))
        A("s_add_u32 %s, %s, %d" % (sr(sFLC), sr(sA), FLAGS))
        A("s_lshl_b32 %s, %s, %d" % (sr(sA), sr(sHG), o.fshift))
        A("s_add_u32 %s, %s, %s" % (sr(sFLO), sr(sFLC), sr(sA)))
        self.emit_all(self.poll_addr())
        self.emit(("buffer_load_dword %s, %s, %s, %s offen sc1" % (vr(vCHK), vr(vPA), sr(dS, 4), sr(sFLC)), "fl"))
        A("s_mul_i32 %s, %s, 96" % (sr(sA), sr(sB)))
        A("s_mul_i32 %s, %s, 48" % (sr(sB2), sr(sHF)))
        A("s_add_u32 %s, %s, %s" % (sr(sA), sr(sA), sr(sB2)))
        A("s_lshl_b32 %s, %s, 11" % (sr(sA), sr(sA)))
        A("s_lshl_b32 %s, %s, 10" % (sr(sB2), sr(sBLK)))
        A("s_add_u32 %s, %s, %s" % (sr(sA), sr(sA), sr(sB2)))
        A("s_lshl_b32 %s, %s, 9" % (sr(sB2), sr(sP)))
        A("s_add_u32 %s, %s, %s" % (sr(sA), sr(sA), sr(sB2)))
        A("s_lshl_b32 %s, %s, 6" % (sr(sB2), sr(sHG)))
        A("s_add_u32 %s, %s, %s" % (sr(sOUT), sr(sA), sr(sB2)))
        if o.tlb:
            A("v_mov_b32 %s, 0" % vr(vZ))
            self.emit(("buffer_load_dword %s, %s, %s, %s offen nt" % (vr(vDUM), vr(vZ), sr(dK, 4), sr(sKVB)), "touch"))
            self.emit(("buffer_load_dword %s, %s, %s, %s offen nt" % (vr(vDUM), vr(vZ), sr(dV, 4), sr(sKVB)), "touch"))
        ev = o.ev.strip()
        assert not (o.stamps and o.prof in (1, 2, 10) and ev), "these profiles reuse the registers of the touch descriptor"
        if ev:
            A("s_mul_hi_u32 %s, %s, %d" % (sr(sA), sr(sB), (1 << 32) // o.kvtm + 1))
            A("s_mul_i32 %s, %s, %d" % (sr(sA), sr(sA), o.kvtm))
            A("s_sub_u32 %s, %s, %s" % (sr(sA), sr(sB), sr(sA)))
            A("s_lshl_b32 %s, %d, %s" % (sr(sTM), sum(1 << (2 + o.kvt0 + o.kvtm * k) for k in range(len(ev))), sr(sA)))
            A("s_mov_b32 %s, %s" % (sr(sTO), sr(sKVO)))
            tk, tw, tq = vT + 4, vOX + 5, vOX + 6
            A("v_and_b32 %s, %d, %s" % (vr(tk), o.kvtl, vr(vLANE)))
            A("v_lshlrev_b32 %s, 7, %s" % (vr(tk), vr(tk)))
            A("v_and_b32 %s, 31, %s" % (vr(tw), vr(vLANE)))
            A("v_lshrrev_b32 %s, 1, %s" % (vr(tq), vr(tw)))
            A("v_lshlrev_b32 %s, 13, %s" % (vr(tq), vr(tq)))
            A("v_and_b32 %s, 1, %s" % (vr(vT), vr(vLANE)))
            A("v_lshl_add_u32 %s, %s, 7, %s" % (vr(tq), vr(vT), vr(tq)))
            A("v_lshlrev_b32 %s, 7, %s" % (vr(tw), vr(tw)))
            self.emit_all(self.srd(dT, pWO, 4 << 20))
            A("s_lshl_b32 %s, %s, 1" % (sr(sA), sr(sB)))
            A("s_add_u32 %s, %s, %s" % (sr(sA), sr(sA), sr(sHF)))
            A("s_lshl_b32 %s, %s, 17" % (sr(sTQ), sr(sA)))
            A("s_lshl_b32 %s, %s, 12" % (sr(sTW), sr(sA)))
            A("s_lshl_b32 %s, %s, 1" % (sr(sA), sr(sHG)))
            A("s_add_u32 %s, %s, %s" % (sr(sA), sr(sA), sr(sP)))
            A("s_lshl_b32 %s, %s, 18" % (sr(sB2), sr(sA)))
            A("s_add_u32 %s, %s, %s" % (sr(sTW), sr(sTW), sr(sB2)))
            A("s_lshl_b32 %s, %s, 9" % (sr(sB2), sr(sA)))
            A("s_add_u32 %s, %s, %s" % (sr(sTQ), sr(sTQ), sr(sB2)))
            A("s_add_u32 %s, %s, 256" % (sr(sTQ), sr(sTQ)))
            for c in o.pre.strip():
                if c == "q":
                    self.emit(("buffer_load_dword %s, %s, %s, %s offen" % (vr(vDUM), vr(tq), sr(dW, 4), sr(sTQ)), "touch"))
                else:
                    A("s_add_u32 %s, %s, %d" % (sr(sE), sr(sTW), 0 if c == "a" else 131072))
                    self.emit(("buffer_load_dword %s, %s, %s, %s offen" % (vr(vDUM), vr(tw), sr(dT, 4), sr(sE)), "touch"))
            A("s_branch L_kvt_skip")
            for ch in sorted(set(ev)):
                A("L_kvt_%s:" % ch)
                for c in {"x": "qab", "y": "qa", "z": "ab", "u": "qk", "v": "ak", "w": "bk"}.get(ch, ch):
                    if c == "k":
                        A("s_add_u32 %s, %s, %s" % (sr(sE), sr(sTO), sr(sKVB)))
                        A("s_add_u32 %s, %s, 8192" % (sr(sTO), sr(sTO)))
                        A("s_and_b32 %s, %s, 0x1ffff" % (sr(sTO), sr(sTO)))
                        A("buffer_load_dword %s, %s, %s, %s offen" % (vr(vDUM), vr(tk), sr(dK, 4), sr(sE)))
                        A("buffer_load_dword %s, %s, %s, %s offen" % (vr(vDUM), vr(tk), sr(dV, 4), sr(sE)))
                    elif c == "q":
                        A("buffer_load_dword %s, %s, %s, %s offen" % (vr(vDUM), vr(tq), sr(dW, 4), sr(sTQ)))
                    else:
                        A("s_add_u32 %s, %s, %d" % (sr(sE), sr(sTW), 0 if c == "a" else 131072))
                        A("buffer_load_dword %s, %s, %s, %s offen" % (vr(vDUM), vr(tw), sr(dT, 4), sr(sE)))
                A("s_add_u32 %s, %s, 4" % (sr(sRET), sr(sRET)))
                A("s_addc_u32 %s, %s, 0" % (sr(sRET + 1), sr(sRET + 1)))
                A("s_setpc_b64 %s" % sr(sRET, 2))
            A("L_kvt_skip:")
        self.emit_all(self.voff_std(vOKV, 0, 256))
        t0, t1, t2 = vT, vT + 1, vT + 2
        A("v_and_b32 %s, 15, %s" % (vr(t0), vr(vLANE)))
        A("v_lshrrev_b32 %s, 4, %s" % (vr(t1), vr(vLANE)))
        A("v_and_b32 %s, 7, %s" % (vr(t2), vr(vLANE)))
        A("v_lshlrev_b32 %s, 1, %s" % (vr(t2), vr(t2)))
        A("v_xor_b32 %s, %s, %s" % (vr(t2), vr(t2), vr(t1)))
        A("v_lshlrev_b32 %s, 4, %s" % (vr(t2), vr(t2)))
        A("v_lshl_add_u32 %s, %s, 8, %s" % (vr(vLK), vr(t0), vr(t2)))
        A("v_lshrrev_b32 %s, 2, %s" % (vr(t0), vr(vLANE)))
        A("v_and_b32 %s, 7, %s" % (vr(t1), vr(t0)))
        A("v_lshlrev_b32 %s, 5, %s" % (vr(t1), vr(t1)))
        A("v_lshl_add_u32 %s, %s, 8, %s" % (vr(t0), vr(t0), vr(t1)))
        A("v_and_b32 %s, 3, %s" % (vr(t1), vr(vLANE)))
        A("v_lshl_add_u32 %s, %s, 3, %s" % (vr(t0), vr(t1), vr(t0)))
        A("s_lshl_b32 %s, %s, 13" % (sr(sA), sr(sP)))
        for dt in range(8):
            A("v_xor_b32 %s, %d, %s" % (vr(vVA + dt), dt << 5, vr(t0)))
            A("v_add_u32 %s, %s, %s" % (vr(vVA + dt), sr(sA), vr(vVA + dt)))
        for ks in range(4):
            A("v_xor_b32 %s, %d, %s" % (vr(vKA + ks), ks << 6, vr(vLK)))
            A("v_add_u32 %s, %s, %s" % (vr(vKA + ks), sr(sA), vr(vKA + ks)))
        A("s_mul_i32 %s, %s, 12288" % (sr(sA), sr(sW)))
        A("s_add_u32 %s, %s, %d" % (sr(sA), sr(sA), EX))
        A("v_lshlrev_b32 %s, 4, %s" % (vr(vSTA), vr(vLANE)))
        A("v_add_u32 %s, %s, %s" % (vr(vEXW), sr(sA), vr(vSTA)))
        for i in range(4):
            A("v_mov_b32 %s, 0x3f803f80" % vr(vONES + i))
        A("s_mov_b32 %s, %s" % (sr(sTH), f32(8.0)))

    def touch_site(self, n):
        o, ev = self.o, self.o.ev.strip()
        if o.kvt0 <= n < o.kvt0 + o.kvtm * len(ev):
            return ["s_bitcmp1_b32 %s, %d\ns_getpc_b64 %s\ns_cbranch_scc1 L_kvt_%s" % (sr(sTM), n + 2, sr(sRET, 2), ev[(n - o.kvt0) // o.kvtm])]
        return []

    def poll_addr(self):
        return ["v_and_b32 %s, 7, %s" % (vr(vPA), vr(vLANE)), "v_xor_b32 %s, %s, %s" % (vr(vPA), sr(sX), vr(vPA)),
                "v_lshlrev_b32 %s, %d, %s" % (vr(vPA), self.o.fshift, vr(vPA))]

    def q0_phase(self):
        A, o = self.A, self.o
        vBX = (vS, vS + 12)

        def xb_reads(n):
            return (self.x_group("%d" % (n // 4)) if n % 4 == 0 else []) + self.x_addr(n % 4) + \
                ["ds_read_b128 %s, %s offset:%d" % (vr(vBX[n % 2] + 4 * j, 4), vr(vB), 4096 * j) for j in range(3)]

        W = lambda n: ("wq", 0, n)
        A("L_q0:")
        self.emit_all(self.touch_site(-2))
        self.open([W(0)], [("x", 0)])
        self.emit_all(xb_reads(0) + self.tr_reads(0, self.loc[W(0)] // SLOT) + self.next_loads(4 - o.npre) + self.touch_site(-1))
        xplan = [{0: 1, 4: 2, 8: 3}, {0: 1, 1: 2, 2: 3}, {0: 1, 2: 2, 4: 3}, {}, {0: 1, 3: 2, 6: 3}][o.xplan]
        qfin = self.q_finalize(False)
        for n in range(16):
            self.open([W(n + 1)] if n < 15 else [], [("x", (n + 1) // 4)] if n % 4 == 3 else [])
            self.stamp("q%d" % n)
            order = [(dt, j) for dt in range(8) for j in range(3)] if n < 15 else [(dt, j) for j in range(3) for dt in range(8)]
            mf = []
            for dt, j in order:
                acc = vr(vO + 12 * dt + 4 * j, 4)
                mf.append("%s %s, %s, %s, %s" % (MF, acc, ar(aF[n % 2] + 4 * dt, 4), vr(vBX[n % 2] + 4 * j, 4), "0" if n == 0 else acc))
            if n == 15:
                self.auto(mf, [], [], qfin[:30], v0=10)
                break
            xb = xb_reads(n + 1)
            head, vq, rd = xb[:-5], xb[-5:-3], self.tr_reads((n + 1) % 2, self.loc[W(n + 1)] // SLOT) + xb[-3:]
            post = []
            if n in xplan:
                post = self.x_dma(xplan[n])
                carry = []
                if o.xhalf and n > 0:
                    post, carry = post[:-4], post[-4:]
            elif n - 1 in xplan and o.xhalf:
                post = carry
            if n == 9 and o.ctouch & 16:
                assert not post
                post = self.code_touch_small("L_q0end", vT + 5, dC)
            post = post + self.touch_site(n)
            self.auto(mf, rd, head + self.next_loads(0 if n >= 15 - o.kvdefer else 1) + post, vq, v0=4)
        A("L_q0end:")
        self.stamp("qend")
        self.emit_all(spread(qfin[30:o.qsplit], self.next_loads(1 + o.kvdefer)))
        K0 = ("k", 0, 0)
        self.open([K0])
        self.emit_all(spread(qfin[o.qsplit:], self.k_reads(0, self.loc[K0] // SLOT)))
        self.par = 0

    def publish(self, stage, n):
        return ["s_add_u32 %s, %s, 8" % (sr(sGC), sr(sGC)), "s_add_u32 %s, %s, %d" % (sr(sE), sr(sGC), stage),
                "v_mov_b32 %s, %s" % (vr(vFV), sr(sE)), "s_waitcnt vmcnt(%d)" % n, "s_mov_b64 exec, 1",
                ("buffer_store_dword %s, %s, %s, %s offen sc1" % (vr(vFV), vr(vZ), sr(dS, 4), sr(sFLO)), "fl"),
                "s_mov_b64 exec, -1"]

    def o1_phase(self):
        A, o = self.A, self.o
        mx, ex, cv, check, qk, pv, proj, b_parts, tr, patK = self.softmax_parts
        vOA, vSG = (vKA, vVA, vVA + 4), vL
        t0, t1 = vT + 4, vT + 5
        addr = ["v_lshrrev_b32 %s, 2, %s" % (vr(t0), vr(vLANE)),
                "v_bfe_u32 %s, %s, 3, 2" % (vr(t1), vr(vLANE)),
                "v_lshlrev_b32 %s, 5, %s" % (vr(t1), vr(t1)),
                "v_lshl_add_u32 %s, %s, 7, %s" % (vr(t0), vr(t0), vr(t1)),
                "v_and_b32 %s, 3, %s" % (vr(t1), vr(vLANE)),
                "v_lshl_add_u32 %s, %s, 3, %s" % (vr(t0), vr(t1), vr(t0)),
                "s_lshl_b32 %s, %s, 13" % (sr(sB2), sr(sP))]
        addr1 = []
        for nt in range(4):
            addr += ["v_xor_b32 %s, %d, %s" % (vr(vOA[0] + nt), nt << 5, vr(t0)),
                     "v_add_u32 %s, %s, %s" % (vr(vOA[0] + nt), sr(sB2), vr(vOA[0] + nt))]
            addr1 += ["v_add_u32 %s, 0x10000, %s" % (vr(vOA[1] + nt), vr(vOA[0] + nt)),
                      "v_add_u32 %s, 0x20000, %s" % (vr(vOA[2] + nt), vr(vOA[0] + nt))]
        addr += ["s_xor_b32 %s, %s, 2" % (sr(sB2), sr(sW)),
                 "s_mul_i32 %s, %s, 12288" % (sr(sB2), sr(sB2)),
                 "s_add_u32 %s, %s, %d" % (sr(sB2), sr(sB2), EX),
                 "v_add_u32 %s, %s, %s" % (vr(vB), sr(sB2), vr(vSTA))]
        setup_v = self.poll_addr() + [
            "v_mov_b32 %s, 0" % vr(vZ), "v_readlane_b32 %s, %s, 7" % (sr(sGC), vr(vCHK)),
            "v_and_b32 %s, 15, %s" % (vr(vOUT), vr(vLANE)), "v_lshlrev_b32 %s, 11, %s" % (vr(vOUT), vr(vOUT)),
            "v_lshrrev_b32 %s, 4, %s" % (vr(vPD), vr(vLANE)), "v_lshl_add_u32 %s, %s, 4, %s" % (vr(vOUT), vr(vPD), vr(vOUT))]
        setup_s = ["s_and_b32 %s, %s, -8" % (sr(sGC), sr(sGC)), "s_mov_b32 %s, 0x00003f80" % sr(sDOT),
                   "s_mov_b32 %s, 0x3f800000" % sr(sDOT + 1)] + self.srd(dK, pOUT, 16 * 96 * 1024 * 2)[:3]
        T = lambda n: ("o", 1, n)

        def frags(n):
            if n < 12:
                return [(n, ks, nt) for ks in range(2) for nt in range(4)]
            t, u = 12 + 2 * (n % 2), (n - 12) // 2
            return [(t + h, ks, 2 * u + nt) for h in range(2) for ks in range(2) for nt in range(2)]

        def reads(n, fset):
            out = []
            for f, (t, ks, nt) in enumerate(frags(n)):
                win, off = self.loc[T(t)] // 65536, self.loc[T(t)] % 65536
                out += ["ds_read_b64_tr_b16 %s, %s offset:%d" % (ar(aF[fset] + 4 * f + 2 * e, 2), vr(vOA[win] + nt),
                                                                 off + 4096 * ks + 2048 * e) for e in range(2)]
            return out

        def eighth(e):
            out = ["s_xor_b32 %s, %s, %d" % (sr(sST), sr(sX), e), "s_mul_i32 %s, %s, 24576" % (sr(sST), sr(sST)),
                   "s_add_u32 %s, %s, %s" % (sr(sST), sr(sST), sr(sSTB))]
            for jq in range(3):
                a = vSG + 8 * ((3 * e + jq) % 6)
                src = 24 * e + 4 * jq
                out += ["v_accvgpr_read_b32 %s, %s" % (vr(a + x), ar(src + x)) for x in range(4)]
                out += ["v_accvgpr_read_b32 %s, %s" % (vr(a + 4 + x), ar(src + 12 + x)) for x in range(4)]
                out += ["v_cvt_pk_bf16_f32 %s, %s, %s" % (vr(a + x), vr(a + 2 * x), vr(a + 2 * x + 1)) for x in range(4)]
                off = " offset:%d" % (1024 * jq) if jq else ""
                out.append(("buffer_store_dwordx4 %s, %s, %s, %s offen%s sc1" % (vr(a, 4), vr(vSTA), sr(dS, 4), sr(sST), off), ("st", e)))
            return out

        V = ("v", 1, 15)
        self.stamp("last")
        nl, k = self.nproj[1][15], self.klast
        soft = mx(2) + check() + ex(0, 0) + ex(1, 0) + ex(0, 1) + cv(0) + ex(1, 1) + ex(0, 2) + cv(1) + ex(1, 2) + ["s_nop 0"] + cv(2)
        if nl == 0:
            self.open([])
            self.pat(qk(False), "ssv ssv d vv d vv d _ d _ _ _ _ _ vv vv _ _ _ _ _ _ nvv vv".split(), [], self.next_loads(1), addr[:6] + mx(0) + mx(1))
            self.par ^= 1
            self.emit_all(addr[6:] + soft)
        else:
            W1, W2 = ("w", 1, k), ("w", 1, k + 1)
            self.open([W1])
            par, vq, brd = b_parts(1, k)
            self.pat(qk(False), patK, tr(W1) + brd, par + self.next_loads(1), vq + mx(0) + mx(1))
            self.par ^= 1
            if nl == 2:
                assert k % 2 == 0
                self.open([W2])
                self.auto(proj(1, k), tr(W2), self.next_loads(1), soft[:26], v0=3)
                self.par ^= 1
                self.open([])
                self.auto(proj(1, k + 1), [], self.next_loads(1), soft[26:] + addr, v0=0)
            else:
                self.open([])
                self.auto(proj(1, k), [], self.next_loads(1), soft + addr, v0=4)
            self.par ^= 1
        kset = 1 - self.par
        assert self.loc[T(0)] < XB
        fin = lambda j, w: self.o_rcp(j) + self.o_block(0, j, w) + self.o_block(1, j, w)
        if o.t0first:
            self.open([T(0)])
            self.emit_all(reads(0, kset) + self.next_loads(1))
            self.open([V])
        else:
            self.open([V, T(0)])
        self.stamp("a1end")
        self.olimit = 99
        self.ofree += [EXTRA + SLOT * x for x in range(3)]
        vrd = self.tr_reads(self.par, self.loc[V] // SLOT)
        mf = pv(False)
        self.emit_all(vrd[:12])
        A(mf[0])
        self.emit_all(vrd[12:])
        d = self.next_loads(o.opv)
        if o.t0first:
            for dt in range(8):
                A("s_waitcnt lgkmcnt(%d)" % (14 - 2 * dt))
                A(mf[1 + dt])
                if dt % 2:
                    while d and not isinstance(d[0], tuple):
                        self.emit(d.pop(0))
                    if d:
                        self.emit(d.pop(0))
            self.pat(mf[9:], "sss d _ vv vv vv vv d vv vv vv vv d vv vv vv vv d".split(), [], d, (fin(0, False) + fin(1, False))[:26])
            self.emit_all((fin(0, False) + fin(1, False))[26:] + fin(2, False))
            wr01 = [self.o_write(ks, j) for ks in (0, 1) for j in range(3)]
        else:
            for dt in range(8):
                A("s_waitcnt lgkmcnt(%d)" % (14 - 2 * dt))
                A(mf[1 + dt])
            nd1 = len(d) * 2 // 3
            self.pat(mf[9:], "tsss td td tvv tdvv tdvv tsvv tsvv tdvv tdvv tvvv tdvv tdvv tvvvv tvvvv tvvvv vvvv vvvv".split(),
                     reads(0, kset), d[:nd1], fin(0, True) + fin(1, True))
            A("s_nop 1")
            self.emit_all(spread(fin(2, True), d[nd1:]))
            wr01 = []
        self.par = kset
        brd = ["ds_read_b128 %s, %s offset:%d" % (vr(vO + 24 * (f // 3) + 12 + 4 * (f % 3), 4), vr(vB), 1024 * f) for f in range(12)]
        fin2 = []
        for ks in (2, 3):
            for j in range(3):
                fin2 += self.o_block(ks, j, not o.oord)
        wr23 = [self.o_write(ks, j) for ks in (2, 3) for j in range(3)]
        early = eighth(0) + eighth(1) + eighth(2) + eighth(3)
        vqs = {12: eighth(4), 13: eighth(5), 14: eighth(6)}
        if o.oord:
            vqs.update({0: fin2[:36] + addr1, 1: fin2[36:], 3: setup_v})
            xds = {0: wr01[:3], 1: wr01[3:], 2: wr23 + brd[:6], 3: brd[6:]}
            if o.wspread:
                xds = {0: wr01[:5], 1: wr01[5:] + wr23[:3], 2: brd[:2] + wr23[3:4] + brd[2:4] + wr23[4:5] + brd[4:6] + wr23[5:], 3: brd[6:]}
            for k in range(3):
                vqs[5 + k] = early[28 * k:28 * (k + 1)]
            for k in range(4):
                vqs[8 + k] = early[84 + 21 * k:84 + 21 * (k + 1)]
            nex = 4
        else:
            vqs.update({0: addr1 + fin2, 2: setup_v})
            xds = {0: wr01, 1: brd[:6], 2: brd[6:]}
            for k in range(8):
                vqs[4 + k] = early[21 * k:21 * (k + 1)]
            nex = 3
        nload = [{0: 1, 1: 2, 2: 2, 3: 2, 4: 2, 5: 1, 6: 1, 7: 1}, {0: 1, 1: 1, 2: 2, 3: 2, 4: 2, 5: 2, 6: 2}, {0: 2, 1: 2, 2: 2, 3: 2, 4: 2, 5: 2},
                 {0: 1, 1: 1, 2: 1, 3: 2, 4: 2, 5: 2, 6: 1, 7: 1}, {0: 0, 1: 1, 2: 1, 3: 2, 4: 2, 5: 2, 6: 2, 7: 1}][o.oplan]
        poll = "buffer_load_dword %s, %s, %s, %s offen sc1" % (vr(vPD), vr(vPA), sr(dS, 4), sr(sFLC))
        for n in range(16):
            if n < 11:
                self.open([T(n + 1)])
            elif n < 13:
                self.open([T(2 * n - 10), T(2 * n - 9)])
            else:
                A("s_waitcnt lgkmcnt(0)")
            if n == nex:
                self.ofree += [EX + SLOT * x for x in range(3)]
            self.stamp("o%d" % n)
            mf = []
            for f, (t, ks, nt) in enumerate(frags(n)):
                c, i = O1_TILES[t]
                for j in range(3):
                    acc = ar(48 * c + 12 * nt + 4 * j, 4)
                    mf.append("%s %s, %s, %s, %s" % (MF, acc, ar(aF[self.par] + 4 * f, 4), vr(vO + 48 * (i % 2) + 24 * ks + 12 * (i // 2) + 4 * j, 4), acc))
            d = self.next_loads(nload.get(n, 1 if n < 11 else 0))
            rd = reads(n + 1, 1 - self.par) if n < 15 else []
            if n == 0:
                assert self.loc[T(1)] < XB
            rd = spread(rd, xds.get(n, []))
            if n == 5:
                d = setup_s + d
            if n == o.pub1:
                self.emit_all(self.publish(1, self.vm_need([("st", 3)])) + ["s_nop 3"])
            if n == 15:
                d = [(poll, "poll")]
            self.auto(mf, rd, d, vqs.get(n, []), v0=(0 if n < 4 else 3), vend=(o.vend if n == 14 else None))
            self.par ^= 1
        assert not self.loadq
        self.stamp("o16")

        masks = (0x0f, 0x70)
        groups = ((0, 1, 2, 3), (4, 5, 6))
        vLD, vAC = (vO, vO + 48), vQ

        def test(k):
            A("v_and_b32 %s, 7, %s" % (vr(vPT), vr(vPD)))
            A("v_cmp_eq_u32 %s, %s, %s" % (sr(sRET, 2), vr(vPD), vr(vCHK)))
            A("v_cmp_gt_u32 vcc, %d, %s" % (2 if o.aall else k + 1, vr(vPT)))
            A("s_nop 0")
            A("s_or_b32 %s, vcc_lo, %s" % (sr(sA), sr(sRET)))
            A("s_and_b32 %s, %s, %d" % (sr(sA), sr(sA), masks[k]))

        def ensure(k):
            A("s_mov_b32 %s, 0" % sr(sSTP))
            A("L_pt%d:" % k)
            test(k)
            A("s_cbranch_scc0 L_pd%d" % k)
            if o.pmask:
                A("s_mov_b64 exec, %d" % (0x7f if k == 0 else 0x70))
            A(poll)
            if o.pmask:
                A("s_mov_b64 exec, -1")
            A("s_add_u32 %s, %s, 1" % (sr(sSTP), sr(sSTP)))
            A("s_and_b32 %s, %s, 31" % (sr(sA), sr(sSTP)))
            A("s_cbranch_scc0 L_pr%d" % k)
            A("L_pw%d:" % k)
            A("s_waitcnt vmcnt(0)")
            A("s_cmp_lt_u32 %s, %d" % (sr(sSTP), SPIN))
            A("s_cbranch_scc1 L_pt%d" % k)
            A("L_pd%d:" % k)
            self.tail += ["L_pr%d:" % k] + plain(self.publish(2, 63)) + ["s_branch L_pw%d" % k]

        def loads(k, attempt=False):
            if attempt:
                A("s_cselect_b32 %s, 1, 0" % sr(sL))
                A("s_cselect_b32 %s, %d, %s" % (sr(sC), OOB, sr(sLDB)))
            else:
                A("s_mov_b32 %s, %s" % (sr(sC), sr(sLDB)))
            for h, e in enumerate(groups[k]):
                A("s_xor_b32 %s, %s, %d" % (sr(sA), sr(sX), e))
                A("s_mul_i32 %s, %s, 3072" % (sr(sA), sr(sA)))
                A("s_add_u32 %s, %s, %s" % (sr(sA), sr(sA), sr(sC)))
                for jq in range(3):
                    off = " offset:%d" % (1024 * jq) if jq else ""
                    A("buffer_load_dwordx4 %s, %s, %s, %s offen%s sc1" % (vr(vLD[k] + 12 * h + 4 * jq, 4), vr(vSTA), sr(dS, 4), sr(sA), off))

        def add(k, jqs=(0, 1, 2)):
            for jq in jqs:
                for h in range(len(groups[k])):
                    for i in range(4):
                        for e in range(2):
                            a = vr(vAC + 8 * jq + 2 * i + e)
                            A("v_dot2_f32_bf16 %s, %s, %s, %s" % (a, vr(vLD[k] + 12 * h + 4 * jq + i), sr(sDOT + e), a))

        self.emit_all(self.publish(2, 0))
        self.stamp("pub")
        for jq in range(3):
            for x in range(8):
                A("v_accvgpr_read_b32 %s, %s" % (vr(vAC + 8 * jq + x), ar(168 + 4 * jq + 12 * (x // 4) + x % 4)))
        ensure(0)
        loads(0)
        self.stamp("xa")
        test(1)
        loads(1, True)
        A(poll)
        if o.bfirst:
            A("s_cmp_eq_u32 %s, 0" % sr(sL))
            A("s_cbranch_scc1 L_second")
            A("s_waitcnt vmcnt(0)")
            test(1)
            loads(1, True)
            A(poll)
            A("L_second:")
        A("s_waitcnt vmcnt(10)")
        add(0)
        self.stamp("xs")
        A("s_cmp_eq_u32 %s, 0" % sr(sL))
        A("s_cbranch_scc1 L_have")
        A("s_waitcnt vmcnt(0)")
        ensure(1)
        loads(1)
        A("s_waitcnt vmcnt(0)")
        A("L_have:")
        self.stamp("xb")
        A("s_waitcnt vmcnt(1)")
        self.stamp("xf")
        for jq in range(3):
            a = vAC + 8 * jq
            add(1, (jq,))
            A("s_nop 2")
            for i in range(4):
                A("v_cvt_pk_bf16_f32 %s, %s, %s" % (vr(a + i), vr(a + 2 * i), vr(a + 2 * i + 1)))
            A("s_nop 1")
            A("v_permlane32_swap_b32 %s, %s" % (vr(a), vr(a + 2)))
            A("v_permlane32_swap_b32 %s, %s" % (vr(a + 1), vr(a + 3)))
            A("s_nop 1")
            A("v_permlane16_swap_b32 %s, %s" % (vr(a), vr(a + 2)))
            A("v_permlane16_swap_b32 %s, %s" % (vr(a + 1), vr(a + 3)))
            A("buffer_store_dwordx4 %s, %s, %s, %s offen%s" % (vr(a, 4), vr(vOUT), sr(dK, 4), sr(sOUT), o.out_flag))
            if jq < 2:
                A("s_add_u32 %s, %s, 32768" % (sr(sOUT), sr(sOUT)))

    def write_stamps(self):
        A = self.A
        A("s_waitcnt vmcnt(0)")
        self.stamp("end")
        A("s_waitcnt lgkmcnt(0)")
        A("s_cmp_lg_u32 %s, 0" % sr(sW))
        A("s_cbranch_scc1 L_end")
        A("s_mov_b64 exec, 1")
        A("s_mul_i32 s3, s2, %d" % (NSTAMP * 8))
        A("s_add_u32 s3, s3, %d" % STAMP_OFF)
        A("v_mov_b32 v6, 0")
        for i in range(NSTAMP):
            A("v_mov_b32 v8, s%d" % (sSTAMP + 2 * i))
            A("v_mov_b32 v9, s%d" % (sSTAMP + 2 * i + 1))
            A("buffer_store_dwordx2 v[8:9], v6, %s, s3 offen offset:%d" % (sr(dS, 4), 8 * i))
            A("s_nop 1")

    def build(self):
        A, o = self.A, self.o
        lab = NAME + "_kernel"
        for line in HEADER.strip("\n").split("\n"):
            A(line)
        A("; @launch grid=(256,1,1) block=(256,1,1) lds=163840")
        A('.amdgcn_target "amdgcn-amd-amdhsa--gfx950"')
        A(".text")
        A(".globl %s" % lab)
        A(".p2align 8")
        A(".type %s,@function" % lab)
        A("%s:" % lab)
        self.make_tiles()
        self.prologue()
        self.q0_phase()
        self.phase = 2
        self.attention()
        self.phase = 4
        self.o1_phase()
        if o.stamps:
            self.write_stamps()
        A("L_end:")
        A("s_endpgm")
        self.rare()
        for x in self.tail:
            A(x)
        A("L_codeend:")
        A('.section .rodata,"a"')
        A(".p2align 6")
        A(".amdhsa_kernel %s" % lab)
        A("  .amdhsa_next_free_vgpr 512")
        A("  .amdhsa_next_free_sgpr 100")
        A("  .amdhsa_accum_offset 256")
        A("  .amdhsa_group_segment_fixed_size 0")
        A("  .amdhsa_kernarg_size 104")
        A("  .amdhsa_user_sgpr_count 2")
        A("  .amdhsa_user_sgpr_kernarg_segment_ptr 1")
        A("  .amdhsa_system_sgpr_workgroup_id_x 1")
        A(".end_amdhsa_kernel")
        return "\n".join(self.L) + "\n"


def parse_opts(args):
    kw = {}
    for a in args:
        k, v = a.split("=", 1)
        cur = getattr(Opt, k)
        if isinstance(cur, bool):
            kw[k] = v not in ("0", "False")
        elif isinstance(cur, int):
            kw[k] = int(v)
        else:
            kw[k] = (" " + v.replace("+", " ")) if v else ""
    return kw


if __name__ == "__main__":
    open(sys.argv[1], "w").write(Gen(Opt(**parse_opts(sys.argv[2:]))).build())
```
